```python
import torch

def _softmax(x, axis=-1):
    return torch.softmax(x, dim=axis)
def _gelu(x):
    return torch.nn.functional.gelu(x, approximate="tanh")
def _silu(x):
    return torch.nn.functional.silu(x)
def _sigmoid(x):
    return torch.sigmoid(x)
def _layernorm(x, axis=-1, eps=1e-5):
    m = x.mean(dim=axis, keepdim=True)
    v = x.var(dim=axis, keepdim=True, unbiased=False)
    return (x - m) / torch.sqrt(v + eps)
def _scatter_add(tgt, idx, src, axis=0):
    return tgt.clone().index_add_(axis, idx, src)
def _segment_sum(src, seg, n):
    out = torch.zeros((n,) + src.shape[1:], dtype=src.dtype)
    return out.index_add_(0, seg, src)
def _pad(x, pw):
    flat = tuple(v for pair in reversed(pw) for v in pair)
    return torch.nn.functional.pad(x, flat)

kernel_name = 'interleave_layers__sliding_local_dilated__glu_gated_geglu__prompt'

def setup_inputs():

    _w = (lambda a: (lambda t: t.to(torch.bfloat16) if t.is_floating_point() else t)(torch.as_tensor(a)))
    def _A_setup():
        B, S, D = 1, 2048, 576
        return {
            "x": _w((lambda *s: torch.randn(*s, dtype=torch.bfloat16) * 0.05)(B, S, D)),
            "wqkv": _w((lambda *s: torch.randn(*s, dtype=torch.bfloat16) * 0.05)(D, 3 * D)),
            "wo": _w((lambda *s: torch.randn(*s, dtype=torch.bfloat16) * 0.05)(D, D)),
        }
    _A_in = _A_setup()

    def _B_setup():
        B, S, Dm, Df = 1, 2048, 576, 4608
        return {
            "x": _w((lambda *s: torch.randn(*s, dtype=torch.bfloat16) * 0.05)(B, S, Dm)),
            "w_gate": _w((lambda *s: torch.randn(*s, dtype=torch.bfloat16) * 0.8)(Dm, Df) * (Dm ** -0.5)),
            "w_up": _w((lambda *s: torch.randn(*s, dtype=torch.bfloat16) * 0.8)(Dm, Df) * (Dm ** -0.5)),
            "w_down": _w((lambda *s: torch.randn(*s, dtype=torch.bfloat16) * 0.8)(Df, Dm) * (Df ** -0.5)),
        }
    _B_in = _B_setup()

    return {
        "A_x": _A_in["x"],
        "A_wqkv": _A_in["wqkv"],
        "A_wo": _A_in["wo"],
        "B_x": _B_in["x"],
        "B_w_gate": _B_in["w_gate"],
        "B_w_up": _B_in["w_up"],
        "B_w_down": _B_in["w_down"],
    }

def reference(A_x, A_wqkv, A_wo, B_x, B_w_gate, B_w_up, B_w_down):
    def _A_ref(x, wqkv, wo):
        B, S, D = x.shape
        H = 32; Dh = D // H
        W, dil = 8, 2
        qkv = (lambda x, *d: x.permute(*d))((x @ wqkv).reshape(B, S, 3, H, Dh), 2, 0, 3, 1, 4)
        q, k, v = qkv[0], qkv[1], qkv[2]
        scale = Dh ** -0.5
        pos = torch.arange(S)
        off = torch.arange(W) * dil
        idx = pos[:, None] - off[None, :]
        mask = idx >= 0
        idx_c = torch.where(mask, idx, 0).reshape(-1)
        kg = k[:, :, idx_c, :].reshape(B, H, S, W, Dh)
        vg = v[:, :, idx_c, :].reshape(B, H, S, W, Dh)
        logits = torch.einsum("bhsd,bhswd->bhsw", q, kg) * scale
        logits = torch.where(mask[None, None, :, :], logits, -1e9)
        attn = _softmax(logits, axis=-1)
        o = torch.einsum("bhsw,bhswd->bhsd", attn, vg)
        return (lambda x, *d: x.permute(*d))(o, 0, 2, 1, 3).reshape(B, S, D) @ wo

    def _B_ref(x, w_gate, w_up, w_down):
        g = torch.einsum("bsd,df->bsf", x, w_gate)
        u = torch.einsum("bsd,df->bsf", x, w_up)
        h = _gelu(g) * u
        return torch.einsum("bsf,fd->bsd", h, w_down)

    x = A_x
    x = x + _A_ref(_layernorm(x, axis=-1), A_wqkv, A_wo)
    x = x + _B_ref(_layernorm(x, axis=-1), B_w_gate, B_w_up, B_w_down)
    x = x + _A_ref(_layernorm(x, axis=-1), A_wqkv, A_wo)
    x = x + _B_ref(_layernorm(x, axis=-1), B_w_gate, B_w_up, B_w_down)
    return x
```

```python
class Asm:
    def __init__(self):
        self.lines = []
        self._lab = 0

    def __call__(self, s=""):
        for ln in s.split("\n"):
            ln = ln.strip()
            if not ln:
                continue
            if ln.endswith(":") or ln.startswith("."):
                self.lines.append(ln)
            else:
                self.lines.append("    " + ln)

    def label(self, stem):
        self._lab += 1
        return f"L_{stem}_{self._lab}"

    def text(self):
        return "\n".join(self.lines) + "\n"


def vr(base, n=1, f="v"):
    if n == 1:
        return f"{f}{base}"
    return f"{f}[{base}:{base + n - 1}]"


def reg(idx, n=1):
    if idx < 256:
        assert idx + n <= 256
        return vr(idx, n, "v")
    return vr(idx - 256, n, "a")


def sr(base, n=1):
    return vr(base, n, "s")


def kernel_begin(a, name):
    a(".text")
    a(f".globl {name}")
    a(".p2align 8")
    a(f".type {name},@function")
    a(f"{name}:")


def kernel_desc(a, name, nvgpr, nagpr=0, nsgpr=96, wg_y=False):
    acc = max(4, (nvgpr + 3) // 4 * 4)
    total = acc + nagpr if nagpr else nvgpr
    a('.section .rodata,"a"')
    a(".p2align 6")
    a(f".amdhsa_kernel {name}")
    a(f".amdhsa_next_free_vgpr {total}")
    a(f".amdhsa_next_free_sgpr {nsgpr}")
    a(f".amdhsa_accum_offset {acc}")
    a(".amdhsa_group_segment_fixed_size 0")
    a(".amdhsa_kernarg_size 80")
    a(".amdhsa_user_sgpr_count 2")
    a(".amdhsa_user_sgpr_kernarg_segment_ptr 1")
    a(".amdhsa_system_sgpr_workgroup_id_x 1")
    if wg_y:
        a(".amdhsa_system_sgpr_workgroup_id_y 1")
    a(".amdhsa_float_denorm_mode_32 3")
    a(".amdhsa_float_denorm_mode_16_64 3")
    a(".end_amdhsa_kernel")


def srd(a, s, base_lo, base_hi, nbytes):
    a(f"s_mov_b32 s{s}, {base_lo}")
    a(f"s_and_b32 s{s + 1}, {base_hi}, 0xffff")
    a(f"s_mov_b32 s{s + 2}, {nbytes}")
    a(f"s_mov_b32 s{s + 3}, 0x20000")
```

```python
import re

_REG = re.compile(r"^([vas])(?:(\d+)|\[(\d+):(\d+)\])$")
TRANS = ("v_exp_f32", "v_log_f32", "v_rcp_f32", "v_rsq_f32", "v_sqrt_f32", "v_sin_f32", "v_cos_f32")


def regs(tok):
    t = tok.strip()
    t = re.sub(r"^(?:neg|abs)\((.*)\)$", r"\1", t).lstrip("-").strip("|")
    if t == "vcc":
        return {("s", 106), ("s", 107)}
    if t == "exec":
        return {("s", 126), ("s", 127)}
    if t == "m0":
        return {("s", 124)}
    m = _REG.match(t)
    if not m:
        return set()
    f = m.group(1)
    lo = int(m.group(2) if m.group(2) is not None else m.group(3))
    hi = int(m.group(2) if m.group(2) is not None else m.group(4))
    return {(f, i) for i in range(lo, hi + 1)}


class I:
    def __init__(self, text, line):
        self.text, self.line = text, line
        parts = text.split(None, 1)
        self.op = parts[0]
        rest = parts[1] if len(parts) > 1 else ""
        ops = [o.strip() for o in rest.split(",")] if rest else []
        self.mods = ""
        if ops:
            last = ops[-1].split()
            if len(last) > 1:
                ops[-1] = last[0]
                self.mods = " ".join(last[1:])
        self.ops = ops
        op = self.op
        self.mfma = op.startswith("v_mfma")
        self.valu = op.startswith("v_") and not self.mfma
        self.vmem = op.startswith(("buffer_", "global_"))
        self.ds = op.startswith("ds_")
        self.salu = op.startswith("s_")
        self.trans = op.replace("_e32", "").replace("_e64", "") in TRANS
        self.dot = op.startswith("v_dot")
        self.perml = op.startswith("v_permlane")
        self.dpp = "_dpp" in op or "row_" in self.mods or "quad_perm" in self.mods
        self.w, self.r = set(), set()
        self.states = 1
        R = [regs(o) for o in ops]
        if op == "s_nop":
            self.states = int(ops[0], 0) + 1
        elif self.mfma:
            self.w = R[0]
            self.ab = R[1] | R[2]
            self.c = R[3]
            self.r = self.ab | self.c
            self.passes = 4 if "16x16x32" in op else 8
        elif self.valu:
            self.w = set(R[0])
            srcs = R[1:]
            if op.startswith(("v_add_co", "v_sub_co", "v_addc_co", "v_subb_co")):
                self.w |= R[1]
                srcs = R[2:]
            for s in srcs:
                self.r |= s
            if op.startswith(("v_fmac", "v_dot2c", "v_writelane")) or self.dpp:
                self.r |= R[0]
            if self.perml or op.startswith("v_swap"):
                self.w |= R[1]
                self.r |= R[0]
            if op.startswith("v_cndmask") and len(ops) == 3:
                self.r |= regs("vcc")
        elif self.vmem:
            self.lds = " lds" in (" " + self.mods) or "_lds_" in op
            self.store = "store" in op or ("atomic" in op)
            if op in ("buffer_inv", "buffer_wbl2"):
                pass
            elif "load" in op and not self.lds:
                self.w = R[0]
                for s in R[1:]:
                    self.r |= s
            else:
                for s in R:
                    self.r |= s
                if self.lds:
                    self.r |= regs("m0")
                if "atomic" in op and "sc0" in self.mods:
                    self.w = R[0]
            self.wide = self.store and ("x3" in op or "x4" in op)
            self.data = set()
            if self.store:
                self.data = R[0] if op.startswith("buffer") else R[1]
        elif self.ds:
            if op.startswith(("ds_read", "ds_bpermute", "ds_permute", "ds_swizzle")):
                self.w = R[0]
                for s in R[1:]:
                    self.r |= s
            else:
                for s in R:
                    self.r |= s
        elif self.salu:
            if op.startswith(("s_cmp", "s_waitcnt", "s_branch", "s_cbranch", "s_barrier", "s_endpgm", "s_sleep", "s_setprio", "s_bitcmp")):
                for s in R:
                    self.r |= s
            else:
                if R:
                    self.w = set(R[0])
                for s in R[1:]:
                    self.r |= s
                if "saveexec" in op:
                    self.w |= regs("exec")


def need(p, c):
    n = 0
    vw = {x for x in p.w if x[0] != "s"}
    sw = {x for x in p.w if x[0] == "s"}
    if p.mfma:
        big, part = (8, 6) if p.passes == 4 else (12, 10)
        if c.mfma:
            if vw & c.ab:
                n = max(n, big)
            if vw & c.c and not (vw == c.c and p.passes == c.passes):
                n = max(n, part)
        elif (c.valu or c.vmem or c.ds) and vw & (c.r | c.w):
            n = max(n, big)
        if c.valu and p.c & c.w:
            n = max(n, 3 if p.passes == 4 else 7)
    if p.valu:
        if c.mfma and vw & c.r:
            n = max(n, 2)
        if p.trans and c.valu and not c.trans and vw & c.r:
            n = max(n, 1)
        if p.trans and (c.ds or c.vmem) and vw & c.r:
            n = max(n, 1)
        if c.valu and (c.perml or c.dpp) and vw & c.r:
            n = max(n, 2)
        if c.op.startswith(("v_readlane", "v_readfirstlane")) and vw & c.r:
            n = max(n, 1)
        if c.vmem and sw & c.r:
            n = max(n, 5)
        if c.valu and sw & c.r:
            n = max(n, 4 if c.op.startswith(("v_readlane", "v_writelane")) else 2)
        if p.dot and (c.valu or c.mfma or c.vmem or c.ds) and vw & (c.r | c.w):
            if c.op == p.op:
                srcs = set()
                for o in c.ops[1:3]:
                    srcs |= regs(o)
                if vw & srcs:
                    n = max(n, 3)
            else:
                n = max(n, 3)
        if ("sdwa" in p.op or "op_sel" in p.mods) and not p.op.startswith("v_pk") and c.valu and vw & (c.r | c.w):
            n = max(n, 1)
    if p.salu and ("s", 124) in sw and c.vmem and getattr(c, "lds", False):
        n = max(n, 1)
    if p.vmem and p.wide and p.data & c.w:
        n = max(n, 2 if c.valu else 1)
    return n


def check(text):
    ins, labels = [], {}
    for ln, raw in enumerate(text.split("\n"), 1):
        s = raw.split(";")[0].strip()
        if not s or s.startswith("."):
            continue
        if s.endswith(":"):
            labels[s[:-1]] = len(ins)
            continue
        ins.append(I(s, ln))

    def succ(i):
        x = ins[i]
        if x.op == "s_endpgm":
            return []
        if x.op == "s_branch":
            return [labels[x.ops[0]]]
        if x.op.startswith("s_cbranch"):
            return [i + 1, labels[x.ops[0]]]
        return [i + 1]

    bad = []
    for i, p in enumerate(ins):
        if not (p.mfma or p.valu or p.salu or p.vmem):
            continue
        stack = [(j, 0) for j in succ(i)]
        seen = {}
        while stack:
            j, d = stack.pop()
            if j >= len(ins) or d >= 12 or seen.get(j, 99) <= d:
                continue
            seen[j] = d
            c = ins[j]
            n = need(p, c)
            if n > d:
                bad.append(f"line {p.line}: {p.text}  ->  line {c.line}: {c.text}  needs {n}, has {d}")
            for k in succ(j):
                stack.append((k, d + c.states))
    return bad
```

```python
import math
import os
import struct
import sys

sys.path.insert(0, os.path.dirname(os.path.abspath(__file__)))
from asmlib import Asm, kernel_begin, kernel_desc, reg, srd
import hazards

NAME = "interleave_layers__sliding_local_dilated__glu_gated_geglu__prompt"
KB = 1024
GB = 9216
WS_SIZE = 256 << 20
WQ = 0
WO = 0x240000
WF = 0x300000
WSTR = 486 * KB
XN = 0x1300000
OO = 0x1540000
X1 = 0x1780000
X2 = 0x19C0000
PART = 0x1C00000
OOB = 0x40000000
STAMP_OFF = 255 << 20

HEADER = """; Kernarg layout for this problem (80 bytes, ptrs only, base s[0:1]):
"""


def f32(x):
    return "0x%08x" % struct.unpack("<I", struct.pack("<f", x))[0]


def sdiv(a, dst, src, d, hi):
    m = -(-(1 << 20) // d)
    assert all((x * m) >> 20 == x // d for x in range(hi + 1)) and hi * m < (1 << 32)
    a(f"s_mul_i32 {dst}, {src}, {m}")
    a(f"s_lshr_b32 {dst}, {dst}, 20")


def sdivmod(a, q, r, src, d, hi):
    sdiv(a, q, src, d, hi)
    a(f"s_mul_i32 {r}, {q}, {d}")
    a(f"s_sub_u32 {r}, {src}, {r}")


def csel(a, dst, x, y):
    a(f"s_mov_b32 {dst}, {y}")
    a(f"s_cmov_b32 {dst}, {x}")


class Cfg:
    stamps = False


def entry(a, nwg, end, extra_loads=()):
    a(f"s_cmp_ge_u32 s2, {nwg}")
    a(f"s_cbranch_scc1 {end}")
    if Cfg.stamps:
        a("s_memtime s[90:91]")
        a("s_memrealtime s[92:93]")
    a("s_load_dwordx2 s[4:5], s[0:1], 72")
    for l in extra_loads:
        a(l)
    a("v_lshrrev_b32 v1, 6, v0")
    a("v_and_b32 v0, 63, v0")
    a("v_readfirstlane_b32 s3, v1")
    a("s_waitcnt lgkmcnt(0)")
    srd(a, 8, "s4", "s5", WS_SIZE)


def mark(a, idx):
    if Cfg.stamps:
        a("s_memtime s[94:95]")
        a("s_waitcnt lgkmcnt(0)")
        a(f"s_sub_u32 s{80 + idx}, s94, s90")


def finish(a, end, slot):
    if Cfg.stamps:
        skip = a.label("nostamp")
        a("s_waitcnt vmcnt(0)")
        a("s_memtime s[94:95]")
        a("s_memrealtime s[96:97]")
        a("s_waitcnt lgkmcnt(0)")
        a("s_cmp_lg_u32 s3, 0")
        a(f"s_cbranch_scc1 {skip}")
        a("s_lshl_b32 s7, s2, 6")
        a(f"s_add_u32 s7, s7, {STAMP_OFF + slot * 65536}")
        vals = ["s90", "s91", "s94", "s95", "s92", "s93", "s96", "s97",
                "s80", "s81", "s82", "s83", "s84", "s85", "s86", "s87"]
        for i, v in enumerate(vals):
            a(f"v_mov_b32 v{16 + i}, {v}")
        a("v_mov_b32 v3, 0")
        a("s_mov_b64 exec, 1")
        for i in range(4):
            a(f"buffer_store_dwordx4 v[{16 + 4 * i}:{19 + 4 * i}], v3, s[8:11], s7 offen offset:{16 * i}")
        a(f"{skip}:")
    a(f"{end}:")
    a("s_endpgm")


def bfrag_voff(a, dst, tmp):
    a(f"v_bfe_u32 {tmp}, v0, 3, 1")
    a(f"v_mul_u32_u24 {dst}, {GB}, {tmp}")
    a(f"v_lshrrev_b32 {tmp}, 4, v0")
    a(f"v_lshl_add_u32 {dst}, {tmp}, 7, {dst}")
    a(f"v_and_b32 {tmp}, 7, v0")
    a(f"v_lshl_add_u32 {dst}, {tmp}, 4, {dst}")


def dtile_voff(a, dst, tmp, tmp2, gstride):
    a(f"v_bfe_u32 {tmp}, v0, 3, 2")
    a(f"s_mov_b32 s7, {gstride}")
    a(f"v_mul_lo_u32 {dst}, {tmp}, s7")
    a(f"v_lshrrev_b32 {tmp}, 5, v0")
    a(f"v_lshl_add_u32 {dst}, {tmp}, 7, {dst}")
    a(f"v_and_b32 {tmp}, 7, v0")
    a(f"v_lshl_add_u32 {dst}, {tmp}, 4, {dst}")


def rowsum_16_32(a, vals, tmp):
    for swap in ("v_permlane32_swap_b32", "v_permlane16_swap_b32"):
        for i, v in enumerate(vals):
            a(f"v_mov_b32 {tmp[i]}, {v}")
        a("s_nop 1")
        for i, v in enumerate(vals):
            a(f"{swap} {tmp[i]}, {v}")
        for i, v in enumerate(vals):
            a(f"v_add_f32 {v}, {v}, {tmp[i]}")


def ln_coeffs(a, vs, vss, rstd, nb):
    a(f"v_mul_f32 {vs}, {f32(1.0 / 576)}, {vs}")
    a(f"v_mul_f32 {vss}, {f32(1.0 / 576)}, {vss}")
    a(f"v_fma_f32 {vss}, -{vs}, {vs}, {vss}")
    a(f"v_max_f32 {vss}, 0, {vss}")
    a(f"v_add_f32 {vss}, {f32(1e-5)}, {vss}")
    a(f"v_rsq_f32 v{rstd}, {vss}")
    a("s_nop 0")
    a(f"v_mul_f32 v{nb}, {vs}, v{rstd}")
    a(f"v_mov_b32 v{rstd + 1}, v{rstd}")
    a(f"v_sub_f32 v{nb}, 0, v{nb}")
    a(f"v_mov_b32 v{nb + 1}, v{nb}")


def normalize(a, src, dst, n, rstd, nb, tmp):
    for i0 in range(0, n, 4):
        k = min(4, n - i0)
        for i in range(k):
            a(f"v_lshlrev_b32 v{tmp + 2 * i}, 16, v{src + i0 + i}")
            a(f"v_and_b32 v{tmp + 2 * i + 1}, s16, v{src + i0 + i}")
        for i in range(k):
            t = tmp + 2 * i
            a(f"v_pk_fma_f32 v[{t}:{t + 1}], v[{t}:{t + 1}], v[{rstd}:{rstd + 1}], v[{nb}:{nb + 1}]")
        for i in range(k):
            t = tmp + 2 * i
            a(f"v_cvt_pk_bf16_f32 v{dst + i0 + i}, v{t}, v{t + 1}")


def emit_red(a, mode, sG):
    VR, VM = 2, 5
    a("s_mov_b32 s16, 0xffff0000")
    a("s_lshl_b32 s7, s3, 10")
    a(f"v_lshl_add_u32 v{VR}, v0, 4, s7")
    a(f"v_add_u32 v{VR + 1}, 4096, v{VR}")
    a("s_cmp_eq_u32 s3, 0")
    csel(a, "s17", 8192, OOB)
    a(f"v_add_u32 v{VR + 2}, s17, v{VR}")
    if mode != 1:
        a("v_and_b32 v8, 7, v0")
        a("v_mul_u32_u24 v8, 1152, v8")
        a("v_lshrrev_b32 v9, 3, v0")
        a("v_lshl_add_u32 v8, v9, 4, v8")
        a("s_lshl_b32 s7, s3, 7")
        a(f"v_add_u32 v{VM}, s7, v8")
        a(f"v_add_u32 v{VM + 1}, 512, v{VM}")
        a("s_cmp_eq_u32 s3, 0")
        csel(a, "s17", 1024, OOB)
        a(f"v_add_u32 v{VM + 2}, s17, v{VM}")
    a(f"s_mul_i32 s18, {sG}, {GB}")
    LD = 16
    nsrc = 1 if mode == 0 else 9
    if mode == 0:
        for b in range(3):
            a(f"buffer_load_dwordx4 v[{LD + 4 * b}:{LD + 4 * b + 3}], v{VM + b}, s[12:15], s18 offen")
        XB = LD
        a("s_waitcnt vmcnt(0)")
    else:
        a(f"s_add_u32 s19, s18, {X1}")
        a(f"s_mul_i32 s20, {sG}, {8 * GB}")
        a(f"s_add_u32 s20, s20, {PART}")
        for j in range(9):
            for b in range(3):
                r = LD + (j * 3 + b) * 4
                a(f"buffer_load_dwordx4 v[{r}:{r + 3}], v{VR + b}, s[8:11], {'s19' if j == 0 else 's20'} offen")
            if 0 < j < 8:
                a(f"s_add_u32 s20, s20, {GB}")
        ACC, TMP, XB = 124, 148, 156
        for j in range(9):
            for b in range(3):
                r = LD + (j * 3 + b) * 4
                a(f"s_waitcnt vmcnt({26 - (j * 3 + b)})")
                dst = ACC + 8 * b if j == 0 else TMP
                for i in range(4):
                    a(f"v_lshlrev_b32 v{dst + 2 * i}, 16, v{r + i}")
                    a(f"v_and_b32 v{dst + 2 * i + 1}, s16, v{r + i}")
                if j:
                    for i in range(4):
                        c = ACC + 8 * b + 2 * i
                        a(f"v_pk_add_f32 v[{c}:{c + 1}], v[{c}:{c + 1}], v[{TMP + 2 * i}:{TMP + 2 * i + 1}]")
        for b in range(3):
            for i in range(4):
                c = ACC + 8 * b + 2 * i
                a(f"v_cvt_pk_bf16_f32 v{XB + 4 * b + i}, v{c}, v{c + 1}")
    if mode == 2:
        for b in range(3):
            a(f"buffer_store_dwordx4 v[{XB + 4 * b}:{XB + 4 * b + 3}], v{VM + b}, s[12:15], s18 offen")
        return
    a(f"s_add_u32 s19, s18, {X2}")
    for b in range(3):
        a(f"buffer_store_dwordx4 v[{XB + 4 * b}:{XB + 4 * b + 3}], v{VR + b}, s[8:11], s19 offen")
    a("s_mov_b32 s17, 0x3f803f80")
    a("v_mov_b32 v8, 0")
    a("v_mov_b32 v9, 0")
    a("v_mov_b32 v10, 0")
    a("v_mov_b32 v11, 0")
    for i in range(12):
        a(f"v_dot2c_f32_bf16 v{8 + 2 * (i & 1)}, s17, v{XB + i}")
        a(f"v_dot2c_f32_bf16 v{9 + 2 * (i & 1)}, v{XB + i}, v{XB + i}")
    a("s_nop 2")
    a("v_add_f32 v8, v8, v10")
    a("v_add_f32 v9, v9, v11")
    a("s_nop 1")
    a("v_add_f32_dpp v8, v8, v8 row_ror:8 row_mask:0xf bank_mask:0xf")
    a("v_add_f32_dpp v9, v9, v9 row_ror:8 row_mask:0xf bank_mask:0xf")
    rowsum_16_32(a, ["v8", "v9"], ["v10", "v11"])
    a("v_and_b32 v12, 7, v0")
    a("v_lshlrev_b32 v12, 3, v12")
    a("s_lshl_b32 s7, s3, 6")
    a("v_add_u32 v13, s7, v12")
    a("ds_write_b64 v13, v[8:9]")
    a("s_waitcnt lgkmcnt(0)")
    a("s_barrier")
    T = 40
    for w in range(4):
        a(f"ds_read_b64 v[{T + 2 * w}:{T + 2 * w + 1}], v12 offset:{64 * w}")
    a("s_waitcnt lgkmcnt(0)")
    a(f"v_pk_add_f32 v[{T}:{T + 1}], v[{T}:{T + 1}], v[{T + 2}:{T + 3}]")
    a(f"v_pk_add_f32 v[{T + 4}:{T + 5}], v[{T + 4}:{T + 5}], v[{T + 6}:{T + 7}]")
    a(f"v_pk_add_f32 v[8:9], v[{T}:{T + 1}], v[{T + 4}:{T + 5}]")
    ln_coeffs(a, "v8", "v9", 10, 12)
    normalize(a, XB, 48, 12, 10, 12, T)
    a(f"s_add_u32 s19, s18, {XN}")
    for b in range(3):
        a(f"buffer_store_dwordx4 v[{48 + 4 * b}:{51 + 4 * b}], v{VR + b}, s[8:11], s19 offen")
    if mode == 0:
        skip = a.label("nopad")
        a(f"s_cmp_ge_u32 {sG}, 2")
        a(f"s_cbranch_scc1 {skip}")
        for i in range(4):
            a(f"v_mov_b32 v{60 + i}, 0")
        a(f"s_add_u32 s19, s18, {XN - 2 * GB}")
        for b in range(3):
            a(f"buffer_store_dwordx4 v[60:63], v{VR + b}, s[8:11], s19 offen")
        a(f"{skip}:")


def k_red(a, mode):
    name = f"red{mode}_kernel"
    kernel_begin(a, name)
    end = f"L_red{mode}_end"
    entry(a, 256, end, ["s_load_dwordx2 s[6:7], s[0:1], 56"] if mode == 2 else [])
    if mode == 2:
        srd(a, 12, "s6", "s7", 2048 * 1152)
    emit_red(a, mode, "s2")
    finish(a, end, 4 if mode == 1 else 8)
    return name, 168, 0


NB = 2
NA = 3888 // (4 * NB)
N_PREP = NA + 192 + 54 + 256


def emit_swz_ffn(a):
    per = NA // 3
    sdivmod(a, "s20", "s21", "s2", per, NA)
    a("s_cmp_eq_u32 s20, 1")
    a("s_cselect_b32 s12, s26, s24")
    a("s_cselect_b32 s13, s27, s25")
    a("s_cmp_eq_u32 s20, 2")
    a("s_cselect_b32 s12, s28, s12")
    a("s_cselect_b32 s13, s29, s13")
    a("s_and_b32 s13, s13, 0xffff")
    a(f"s_mov_b32 s14, {576 * 9216}")
    a("s_mov_b32 s15, 0x20000")
    a("s_cmp_eq_u32 s20, 2")
    csel(a, "s22", 1152, 9216)
    csel(a, "s23", -(-(1 << 20) // 9), -(-(1 << 20) // 72))
    a("s_cselect_b32 s30, 9, 72")
    a("s_cselect_b32 s31, 2, 3")
    csel(a, "s32", 2048, 512)
    a("s_lshl_b32 s21, s21, 2")
    a("s_add_u32 s21, s21, s3")
    a(f"s_mul_i32 s21, s21, {NB}")
    a("v_lshrrev_b32 v2, 3, v0")
    a("v_mul_lo_u32 v2, v2, s22")
    a("v_and_b32 v3, 7, v0")
    a("v_lshl_add_u32 v2, v3, 4, v2")
    a(f"s_mul_i32 s33, s3, {NB * 4096}")
    a("s_lshl_b32 s34, s22, 3")
    for b in range(NB):
        q, r = f"s{36 + 2 * b}", f"s{37 + 2 * b}"
        a(f"s_add_u32 s7, s21, {b}")
        a(f"s_mul_i32 {q}, s7, s23")
        a(f"s_lshr_b32 {q}, {q}, 20")
        a(f"s_mul_i32 {r}, {q}, s30")
        a(f"s_sub_u32 {r}, s7, {r}")
        a(f"s_mul_i32 s7, {q}, s34")
        a("s_lshl_b32 s7, s7, 2")
        a(f"s_lshl_b32 s35, {r}, 7")
        a("s_add_u32 s7, s7, s35")
        for m in range(4):
            a(f"s_add_u32 m0, s33, {b * 4096 + m * 1024}")
            if m:
                a("s_add_u32 s7, s7, s34")
            else:
                a("s_nop 0")
            a("buffer_load_dwordx4 v2, s[12:15], s7 offen lds")
    a("v_lshrrev_b32 v3, 4, v0")
    a("v_lshlrev_b32 v3, s31, v3")
    a("v_bfe_u32 v4, v0, 2, 2")
    a("v_add_u32 v3, v3, v4")
    a("v_and_b32 v4, 3, v0")
    a("v_lshlrev_b32 v4, 3, v4")
    a("v_lshl_add_u32 v3, v3, 7, v4")
    a("v_add_u32 v3, s33, v3")
    a("v_add_u32 v4, s32, v3")
    a("v_lshlrev_b32 v5, 4, v0")
    dn, dd = a.label("swz_down"), a.label("swz_dest")
    a("s_cmp_eq_u32 s20, 2")
    a(f"s_cbranch_scc1 {dn}")
    for b in range(NB):
        q, r = f"s{36 + 2 * b}", f"s{37 + 2 * b}"
        sdivmod(a, "s6", "s7", r, 9, 71)
        a(f"s_mul_i32 s6, s6, {4 * WSTR}")
        a("s_mul_i32 s7, s7, 36")
        sdivmod(a, "s34", "s35", q, 3, 17)
        a("s_mul_i32 s34, s34, 6")
        a("s_add_u32 s7, s7, s34")
        a("s_add_u32 s7, s7, s35")
        a("s_mul_i32 s34, s20, 3")
        a("s_add_u32 s7, s7, s34")
        a("s_lshl_b32 s7, s7, 10")
        a("s_add_u32 s6, s6, s7")
        for t in range(4):
            a(f"s_add_u32 s{44 + 4 * b + t}, s6, {WF + t * WSTR}")
    a(f"s_branch {dd}")
    a(f"{dn}:")
    for b in range(NB):
        q, r = f"s{36 + 2 * b}", f"s{37 + 2 * b}"
        sdivmod(a, "s6", "s7", q, 18, 143)
        a(f"s_mul_i32 s6, s6, {4 * WSTR}")
        a("s_lshl_b32 s7, s7, 10")
        a("s_add_u32 s6, s6, s7")
        a(f"s_add_u32 s6, s6, {WF + 324 * KB}")
        for t in range(4):
            a(f"s_lshl_b32 s7, {r}, 2")
            a(f"s_add_u32 s7, s7, {t}")
            sdivmod(a, "s34", "s35", "s7", 9, 35)
            a(f"s_mul_i32 s34, s34, {WSTR}")
            a(f"s_mul_i32 s35, s35, {18 * KB}")
            a("s_add_u32 s34, s34, s35")
            a(f"s_add_u32 s{44 + 4 * b + t}, s6, s34")
    a(f"{dd}:")
    for b in range(NB):
        a(f"s_waitcnt vmcnt({4 * (NB - 1 - b) + 4 * b})")
        for t in range(4):
            r = 8 + 16 * b + 4 * t
            a(f"ds_read_b64_tr_b16 v[{r}:{r + 1}], v3 offset:{b * 4096 + t * 32}")
            a(f"ds_read_b64_tr_b16 v[{r + 2}:{r + 3}], v4 offset:{b * 4096 + t * 32}")
        for t in range(4):
            r = 8 + 16 * b + 4 * t
            a(f"s_waitcnt lgkmcnt({6 - 2 * t})")
            a(f"buffer_store_dwordx4 v[{r}:{r + 3}], v5, s[8:11], s{44 + 4 * b + t} offen")


def gather_store(a, dest):
    for m in range(3):
        a(f"s_waitcnt vmcnt({16 - 8 * m + m})")
        for i in range(4):
            r = 16 + 8 * m + 2 * i
            a(f"v_lshl_or_b32 v{44 + 4 * m + i}, v{r + 1}, 16, v{r}")
        a(f"buffer_store_dwordx4 v[{44 + 4 * m}:{47 + 4 * m}], v5, s[8:11], {dest} offen offset:{m * KB}")


def emit_swz_qkv(a):
    srd(a, 12, "s24", "s25", 576 * 3456)
    a(f"s_sub_u32 s20, s2, {NA}")
    a("s_lshl_b32 s20, s20, 2")
    a("s_add_u32 s20, s20, s3")
    a("s_mul_i32 s20, s20, 3")
    sdivmod(a, "s21", "s22", "s20", 72, 2303)
    a("s_mul_i32 s21, s21, 36")
    a("v_and_b32 v2, 15, v0")
    a("v_lshrrev_b32 v3, 4, v0")
    a(f"v_mul_u32_u24 v3, {8 * 3456}, v3")
    a("v_add_u32 v3, s21, v3")
    a("v_lshlrev_b32 v5, 4, v0")
    a(f"v_mov_b32 v9, {OOB}")
    for j in range(1, 8):
        a(f"s_mov_b32 s{30 + j}, {j * 3456}")
    for m in range(3):
        a(f"s_add_u32 s7, s22, {m}")
        a("s_and_b32 s6, s7, 3")
        a("s_lshl_b32 s6, s6, 4")
        a("v_add_u32 v4, s6, v2")
        a("s_lshr_b32 s7, s7, 2")
        a(f"s_mul_i32 s7, s7, {32 * 3456}")
        a("v_lshl_add_u32 v6, v4, 1, v3")
        a("v_add_u32 v6, s7, v6")
        a(f"v_add_u32 v7, {1152 - 40}, v6")
        a(f"v_add_u32 v8, {2304 - 76}, v6")
        a("v_cmp_gt_u32 s[40:41], 18, v4")
        a("v_cmp_gt_u32 s[42:43], 20, v4")
        a("v_cmp_gt_u32 s[44:45], 38, v4")
        a("v_cmp_gt_u32 s[46:47], 56, v4")
        a("s_nop 1")
        a("v_cndmask_b32 v8, v9, v8, s[46:47]")
        a("v_cndmask_b32 v8, v8, v7, s[44:45]")
        a("v_cndmask_b32 v8, v8, v9, s[42:43]")
        a(f"v_cndmask_b32 v{10 + m}, v8, v6, s[40:41]")
        for j in range(8):
            so = "0" if j == 0 else f"s{30 + j}"
            a(f"buffer_load_ushort v{16 + 8 * m + j}, v{10 + m}, s[12:15], {so} offen")
    a("s_lshl_b32 s20, s20, 10")
    a(f"s_add_u32 s20, s20, {WQ}")
    gather_store(a, "s20")


def emit_swz_wo(a):
    srd(a, 12, "s26", "s27", 576 * 1152)
    a(f"s_sub_u32 s20, s2, {NA + 192}")
    a("s_lshl_b32 s20, s20, 2")
    a("s_add_u32 s20, s20, s3")
    a("s_mul_i32 s20, s20, 3")
    sdivmod(a, "s21", "s22", "s20", 18, 647)
    a("s_lshl_b32 s21, s21, 5")
    a("v_and_b32 v2, 15, v0")
    a("v_lshl_add_u32 v2, v2, 1, s21")
    a("v_lshrrev_b32 v3, 4, v0")
    a("v_lshlrev_b32 v5, 4, v0")
    a("s_movk_i32 s23, 1152")
    for m in range(3):
        a(f"s_add_u32 s7, s22, {m}")
        a("s_lshl_b32 s7, s7, 2")
        a("v_add_u32 v4, s7, v3")
        a("v_mul_u32_u24 v6, 7282, v4")
        a("v_lshrrev_b32 v6, 16, v6")
        a("v_mul_u32_u24 v7, 9, v6")
        a("v_sub_u32 v7, v4, v7")
        a("v_mul_u32_u24 v6, 72, v6")
        a("v_cmp_eq_u32 vcc, 8, v7")
        a("v_lshrrev_b32 v8, 1, v7")
        a("v_mad_u32_u24 v8, v8, 18, v6")
        a("v_and_b32 v7, 1, v7")
        a("v_lshl_add_u32 v8, v7, 3, v8")
        a("v_mad_u32_u24 v8, v8, s23, v2")
        a("v_add_u32 v6, 16, v6")
        a("v_mad_u32_u24 v6, v6, s23, v2")
        for j in range(8):
            a(f"v_add_u32 v9, {j * 1152}, v8")
            a(f"v_add_u32 v10, {(18 * (j >> 1) + (j & 1)) * 1152}, v6")
            a("v_cndmask_b32 v9, v9, v10, vcc")
            a(f"buffer_load_ushort v{16 + 8 * m + j}, v9, s[12:15], 0 offen")
    a("s_lshl_b32 s20, s20, 10")
    a(f"s_add_u32 s20, s20, {WO}")
    gather_store(a, "s20")


def k_prep(a):
    name = "prep_kernel"
    kernel_begin(a, name)
    end = "L_prep_end"
    entry(a, N_PREP, end)
    lq, lo, ll, fin = "L_prep_q", "L_prep_o", "L_prep_ln", "L_prep_fin"
    a(f"s_cmp_ge_u32 s2, {NA}")
    a(f"s_cbranch_scc1 {lq}")
    a("s_load_dwordx4 s[24:27], s[0:1], 32")
    a("s_load_dwordx2 s[28:29], s[0:1], 48")
    a("s_waitcnt lgkmcnt(0)")
    emit_swz_ffn(a)
    a(f"s_branch {fin}")
    a(f"{lq}:")
    a(f"s_cmp_ge_u32 s2, {NA + 246}")
    a(f"s_cbranch_scc1 {ll}")
    a("s_load_dwordx2 s[24:25], s[0:1], 8")
    a("s_load_dwordx2 s[26:27], s[0:1], 16")
    a("s_waitcnt lgkmcnt(0)")
    a(f"s_cmp_ge_u32 s2, {NA + 192}")
    a(f"s_cbranch_scc1 {lo}")
    emit_swz_qkv(a)
    a(f"s_branch {fin}")
    a(f"{lo}:")
    emit_swz_wo(a)
    a(f"s_branch {fin}")
    a(f"{ll}:")
    a("s_load_dwordx2 s[6:7], s[0:1], 0")
    a("s_waitcnt lgkmcnt(0)")
    srd(a, 12, "s6", "s7", 2048 * 1152)
    a(f"s_sub_u32 s21, s2, {NA + 246}")
    emit_red(a, 0, "s21")
    a(f"{fin}:")
    finish(a, end, 0)
    return name, 64, 0


QKV_LDS = 96 * KB
PITCH = 272


def k_qkv(a):
    name = "qkv_kernel"
    kernel_begin(a, name)
    end = "L_qkv_end"
    entry(a, 256, end)
    a("s_lshr_b32 s20, s2, 3")
    a("s_and_b32 s21, s2, 7")
    bfrag_voff(a, "v2", "v3")
    a(f"s_mul_i32 s22, s20, {8 * GB}")
    a(f"s_add_u32 s23, s22, {XN - 2 * GB}")
    a(f"s_mul_i32 s7, s3, {2 * GB}")
    a("s_add_u32 s24, s23, s7")
    a(f"s_add_u32 s24, s24, {2 * GB}")
    a("s_lshl_b32 s25, s3, 10")
    a("s_add_u32 m0, s25, 1024")
    a("s_mov_b32 s26, 0")
    lp = a.label("qkv_dma")
    a(f"{lp}:")
    a("s_add_u32 s26, s26, 1")
    a("buffer_load_dwordx4 v2, s[8:11], s24 offen lds")
    a("s_add_u32 s24, s24, 512")
    a("s_add_u32 m0, m0, 5120")
    a("s_cmp_lt_u32 s26, 18")
    a(f"s_cbranch_scc1 {lp}")
    for m in range(5):
        a(f"s_add_u32 s7, s3, {4 * m}")
        if m == 4:
            a("s_min_u32 s7, s7, 17")
        a("s_mul_i32 m0, s7, 5120")
        a("s_lshl_b32 s7, s7, 9")
        a("s_add_u32 s7, s7, s23")
        a("buffer_load_dwordx4 v2, s[8:11], s7 offen lds")
    a("s_lshl_b32 s27, s21, 2")
    a("s_add_u32 s27, s27, s3")
    a(f"s_mul_i32 s28, s27, {72 * KB}")
    if WQ:
        a(f"s_add_u32 s28, s28, {WQ}")
    a("v_lshlrev_b32 v4, 4, v0")
    a("v_mov_b32 v5, v4")

    def wload(slot):
        for t in range(4):
            r = 16 * slot + 4 * t
            yield f"buffer_load_dwordx4 a[{r}:{r + 3}], v5, s[8:11], s28 offen offset:{t * KB}"

    for ks in range(5):
        for l in wload(ks):
            a(l)
        a("s_add_u32 s28, s28, 4096")
    ACC = 96
    units = [(0, tt) for tt in range(1, 5)] + [(t, tt) for t in range(1, 4) for tt in range(5)]
    for i in range(len(units) * 4):
        a(f"v_accvgpr_write_b32 a{ACC + i}, 0")
    a("s_waitcnt vmcnt(20)")
    a("s_barrier")
    mark(a, 0)
    BF = 16
    a("v_mov_b32 v6, v4")
    for tt in range(5):
        a(f"ds_read_b128 v[{BF + 4 * tt}:{BF + 4 * tt + 3}], v6 offset:{tt * KB}")
    a("s_mov_b32 s26, 0")
    lp = a.label("qkv_k")
    a(f"{lp}:")
    for kk in range(6):
        cur, nxt = BF + 20 * (kk & 1), BF + 20 * ((kk + 1) & 1)
        fill = [f"ds_read_b128 v[{nxt + 4 * tt}:{nxt + 4 * tt + 3}], v6 offset:{((kk + 1) * 5 + tt) * KB}" for tt in range(5)]
        loads = list(wload((kk + 5) % 6))
        a("s_waitcnt vmcnt(16) lgkmcnt(0)")
        for u, (t, tt) in enumerate(units):
            c = ACC + 4 * u
            w = 16 * kk + 4 * t
            a(f"v_mfma_f32_16x16x32_bf16 a[{c}:{c + 3}], a[{w}:{w + 3}], v[{cur + 4 * tt}:{cur + 4 * tt + 3}], a[{c}:{c + 3}]")
            if u < 5:
                a(fill[u])
            elif u in (6, 9, 12, 15):
                a(loads[(u - 6) // 3])
            elif u == 16:
                a("s_add_u32 s28, s28, 4096")
            elif u == 17 and kk == 0:
                a("s_cmp_eq_u32 s26, 2")
                a(f"s_cselect_b32 s7, {OOB}, 0")
                a("v_add_u32 v5, s7, v4")
    a("v_add_u32 v6, 30720, v6")
    a("s_add_u32 s26, s26, 1")
    a("s_cmp_lt_u32 s26, 3")
    a(f"s_cbranch_scc1 {lp}")
    mark(a, 1)
    a(f"s_mul_i32 s24, s3, {80 * PITCH}")
    a("v_and_b32 v7, 15, v0")
    a(f"v_mul_u32_u24 v7, {PITCH}, v7")
    a("v_lshrrev_b32 v8, 4, v0")
    a("v_lshl_add_u32 v7, v8, 4, v7")
    a("v_add_u32 v7, s24, v7")
    a(f"v_mul_u32_u24 v8, {PITCH}, v0")
    a(f"v_add_u32 v8, {2 * PITCH}, v8")
    a("v_add_u32 v8, s24, v8")
    a("s_waitcnt lgkmcnt(0)")
    a("s_barrier")
    for u, (t, tt) in enumerate(units):
        c = ACC + 4 * u
        a(f"ds_write_b128 v7, a[{c}:{c + 3}] offset:{tt * 16 * PITCH + t * 64}")
    Q, K, V, L = 16, 36, 36, 196
    own = 14 * PITCH
    a("s_waitcnt lgkmcnt(0)")
    for g in range(4):
        a(f"ds_read_b128 v[{Q + 4 * g}:{Q + 4 * g + 3}], v8 offset:{own + 16 * g}")
    a(f"ds_read_b64 v[{Q + 16}:{Q + 17}], v8 offset:{own + 64}")

    def kread(w):
        for g in range(5):
            r = K + 20 * w + 4 * g
            a(f"ds_read_b128 v[{r}:{r + 3}], v8 offset:{own - 2 * w * PITCH + 80 + 16 * g}")

    kread(0)
    kread(1)
    S2 = 204
    for w0 in range(0, 8, 2):
        a("s_waitcnt lgkmcnt(0)")
        if w0 < 6:
            kread(w0 + 2)
            kread(w0 + 3)
        for i in range(9):
            for w in (w0, w0 + 1):
                s = S2 + 2 * (w & 1)
                k = K + 20 * w + 2 * i
                if i == 0:
                    a(f"v_pk_mul_f32 v[{s}:{s + 1}], v[{Q}:{Q + 1}], v[{k}:{k + 1}]")
                else:
                    a(f"v_pk_fma_f32 v[{s}:{s + 1}], v[{Q + 2 * i}:{Q + 2 * i + 1}], v[{k}:{k + 1}], v[{s}:{s + 1}]")
        for w in (w0, w0 + 1):
            s = S2 + 2 * (w & 1)
            a(f"v_add_f32 v{L + w}, v{s}, v{s + 1}")

    def vread(w):
        for g in range(4):
            r = V + 20 * w + 4 * g
            a(f"ds_read_b128 v[{r}:{r + 3}], v8 offset:{own - 2 * w * PITCH + 160 + 16 * g}")

    for w in range(3):
        vread(w)
    nomask = a.label("qkv_nomask")
    a("s_cmp_lg_u32 s20, 0")
    a(f"s_cbranch_scc1 {nomask}")
    a(f"v_mov_b32 v9, {f32(-1e30)}")
    for w in range(1, 8):
        a(f"v_cmp_le_u32 vcc, {2 * w}, v0")
        a("s_nop 1")
        a(f"v_cndmask_b32 v{L + w}, v9, v{L + w}, vcc")
    a(f"{nomask}:")
    c = 18 ** -0.5 * math.log2(math.e)
    a(f"v_max3_f32 v9, v{L}, v{L + 1}, v{L + 2}")
    a(f"v_max3_f32 v10, v{L + 3}, v{L + 4}, v{L + 5}")
    a(f"v_max3_f32 v9, v9, v{L + 6}, v{L + 7}")
    a(f"s_mov_b32 s7, {f32(c)}")
    a("v_max_f32 v9, v9, v10")
    for w in range(8):
        a(f"v_sub_f32 v{L + w}, v{L + w}, v9")
    for w in range(8):
        a(f"v_mul_f32 v{L + w}, s7, v{L + w}")
    for w in range(8):
        a(f"v_exp_f32 v{L + w}, v{L + w}")
    a(f"v_add_f32 v9, v{L}, v{L + 1}")
    a(f"v_add_f32 v10, v{L + 2}, v{L + 3}")
    a(f"v_add_f32 v11, v{L + 4}, v{L + 5}")
    a(f"v_add_f32 v12, v{L + 6}, v{L + 7}")
    a("v_add_f32 v9, v9, v10")
    a("v_add_f32 v11, v11, v12")
    a("v_add_f32 v9, v9, v11")
    a("v_rcp_f32 v10, v9")
    O = 208
    for w in range(8):
        a(f"s_waitcnt lgkmcnt({min(8, 4 * (7 - w))})")
        if w + 3 < 8:
            vread(w + 3)
        p = L + (w & ~1)
        sel = "op_sel:[1,0,0] op_sel_hi:[1,1,1]" if w & 1 else "op_sel:[0,0,0] op_sel_hi:[0,1,1]"
        sel2 = "op_sel:[1,0] op_sel_hi:[1,1]" if w & 1 else "op_sel:[0,0] op_sel_hi:[0,1]"
        for i in range(9):
            v = V + 20 * w + 18 if i == 0 else V + 20 * w + 2 * (i - 1)
            o = O + 2 * i
            if w == 0:
                a(f"v_pk_mul_f32 v[{o}:{o + 1}], v[{p}:{p + 1}], v[{v}:{v + 1}] {sel2}")
            else:
                a(f"v_pk_fma_f32 v[{o}:{o + 1}], v[{p}:{p + 1}], v[{v}:{v + 1}], v[{o}:{o + 1}] {sel}")
    for i in range(9):
        o = O + 2 * i
        a(f"v_pk_mul_f32 v[{o}:{o + 1}], v[10:11], v[{o}:{o + 1}] op_sel:[0,0] op_sel_hi:[0,1]")
    for i in range(9):
        a(f"v_cvt_pk_bf16_f32 v{16 + i}, v{O + 2 * i}, v{O + 2 * i + 1}")
    a("v_lshrrev_b32 v9, 3, v0")
    a(f"v_mul_u32_u24 v9, {GB}, v9")
    a("v_and_b32 v10, 7, v0")
    a("v_lshl_add_u32 v9, v10, 4, v9")
    a("s_mul_i32 s7, s21, 1152")
    a("s_add_u32 s22, s22, s7")
    a(f"s_add_u32 s22, s22, {OO}")
    a("s_lshl_b32 s7, s3, 8")
    a("s_add_u32 s23, s22, s7")
    a("s_lshl_b32 s7, s3, 2")
    a("s_add_u32 s22, s22, s7")
    a("buffer_store_dwordx4 v[16:19], v9, s[8:11], s23 offen")
    a("buffer_store_dwordx4 v[20:23], v9, s[8:11], s23 offen offset:128")
    a("buffer_store_dword v24, v9, s[8:11], s22 offen offset:1024")
    finish(a, end, 1)
    return name, 228, 172


WO_LDS = 38 * KB


def k_wo(a):
    name = "wo_kernel"
    kernel_begin(a, name)
    end = "L_wo_end"
    entry(a, 256, end)
    a("s_lshr_b32 s20, s2, 2")
    a("s_and_b32 s21, s2, 3")
    bfrag_voff(a, "v2", "v3")
    a(f"s_mul_i32 s22, s20, {4 * GB}")
    a("s_and_b32 s7, s3, 1")
    a(f"s_mul_i32 s7, s7, {2 * GB}")
    a("s_add_u32 s23, s22, s7")
    a("s_lshr_b32 s7, s3, 1")
    a("s_lshl_b32 s7, s7, 9")
    a("s_add_u32 s23, s23, s7")
    a(f"s_add_u32 s23, s23, {OO}")
    a("s_lshl_b32 m0, s3, 10")
    for m in range(9):
        if m:
            a("s_add_u32 m0, m0, 4096")
            a("s_add_u32 s23, s23, 1024")
        else:
            a("s_mul_i32 s24, s21, 9")
        a("buffer_load_dwordx4 v2, s[8:11], s23 offen lds")
    a("s_add_u32 s24, s24, s3")
    a(f"s_mul_i32 s25, s24, {18 * KB}")
    a(f"s_add_u32 s25, s25, {WO}")
    a(f"s_add_u32 s26, s25, {4 * 18 * KB}")
    a(f"s_add_u32 s27, s25, {8 * 18 * KB}")
    a("s_cmp_eq_u32 s3, 0")
    a(f"s_cselect_b32 s28, 0, {OOB}")
    a("v_lshlrev_b32 v4, 4, v0")
    a("v_add_u32 v5, s28, v4")
    for ks in range(18):
        for sl in range(3):
            r = (ks * 3 + sl) * 4
            a(f"buffer_load_dwordx4 a[{r}:{r + 3}], v{5 if sl == 2 else 4}, s[8:11], s{25 + sl} offen offset:{(ks & 3) * KB}")
        if ks & 3 == 3:
            for sl in range(3):
                a(f"s_add_u32 s{25 + sl}, s{25 + sl}, 4096")
    dtile_voff(a, "v6", "v3", None, GB)
    a("v_add_u32 v7, s28, v6")
    a("s_lshl_b32 s7, s24, 8")
    a("s_add_u32 s22, s22, s7")
    a(f"s_add_u32 s23, s22, {X2}")
    a(f"s_add_u32 s22, s22, {X1}")
    a("s_mov_b32 s16, 0xffff0000")
    a("s_waitcnt vmcnt(54)")
    a("s_barrier")
    mark(a, 0)
    RES, BF, ACC = 8, 20, 40
    for tt in range(2):
        a(f"ds_read_b128 v[{BF + 4 * tt}:{BF + 4 * tt + 3}], v4 offset:{tt * KB}")
    for sl in range(3):
        a(f"buffer_load_dwordx4 v[{RES + 4 * sl}:{RES + 4 * sl + 3}], v{7 if sl == 2 else 6}, s[8:11], s23 offen offset:{sl * 1024}")
    for ks in range(18):
        cur, nxt = BF + 8 * (ks & 1), BF + 8 * ((ks + 1) & 1)
        a(f"s_waitcnt vmcnt({54 - 3 * ks}) lgkmcnt(0)")
        i = 0
        for sl in range(3):
            for tt in range(2):
                c = ACC + 4 * (2 * sl + tt)
                w = (ks * 3 + sl) * 4
                src = "0" if ks == 0 else f"v[{c}:{c + 3}]"
                a(f"v_mfma_f32_16x16x32_bf16 v[{c}:{c + 3}], a[{w}:{w + 3}], v[{cur + 4 * tt}:{cur + 4 * tt + 3}], {src}")
                if i < 2 and ks < 17:
                    a(f"ds_read_b128 v[{nxt + 4 * i}:{nxt + 4 * i + 3}], v4 offset:{((ks + 1) * 2 + i) * KB}")
                i += 1
    mark(a, 1)
    T = 64
    a("s_waitcnt vmcnt(0)")
    for sl in range(3):
        for i in range(4):
            a(f"v_lshlrev_b32 v{T + 8 * sl + 2 * i}, 16, v{RES + 4 * sl + i}")
            a(f"v_and_b32 v{T + 8 * sl + 2 * i + 1}, s16, v{RES + 4 * sl + i}")
    for sl in range(3):
        c = ACC + 8 * sl
        for r in range(4):
            a(f"v_permlane16_swap_b32 v{c + r}, v{c + 4 + r}")
        for i in range(4):
            t = T + 8 * sl + 2 * i
            a(f"v_pk_add_f32 v[{t}:{t + 1}], v[{t}:{t + 1}], v[{c + 2 * i}:{c + 2 * i + 1}]")
        for i in range(4):
            t = T + 8 * sl + 2 * i
            a(f"v_cvt_pk_bf16_f32 v{RES + 4 * sl + i}, v{t}, v{t + 1}")
        a(f"buffer_store_dwordx4 v[{RES + 4 * sl}:{RES + 4 * sl + 3}], v{7 if sl == 2 else 6}, s[8:11], s22 offen offset:{sl * 1024}")
    finish(a, end, 2)
    return name, 88, 216


FFN_LDS = 144 * KB
HB = 72 * KB


def pack_gaps(n_gaps, pinned, ops, start=0, cap=2):
    gaps = [list(pinned.get(g, [])) for g in range(n_gaps)]
    g = start
    for text, cost, earliest in ops:
        g = max(g, earliest)
        while sum(c for _, c in gaps[g]) + cost > cap:
            g += 1
        gaps[g].append((text, cost))
    return gaps


def check_stage_reads(mf, gaps, base, n):
    stage = {("v", base + i) for i in range(n)}
    wr = {}
    for i, t in enumerate(mf):
        for r in hazards.I(t, 0).w & stage:
            wr[r] = i
    for i, g in enumerate(gaps):
        for t, _ in g:
            for r in hazards.I(t, 0).r & stage:
                assert i < wr[r], (i, t, wr[r])


def k_ffn(a):
    name = "ffn_kernel"
    kernel_begin(a, name)
    end = "L_ffn_end"
    entry(a, 256, end)
    RING, ACC, STG, TMP, VB = 16, 88, 120, 152, 184
    xreg = lambda tt, ks: reg(256 + 4 * (tt * 18 + ks), 4) if tt * 18 + ks < 64 else reg(224 + 4 * (tt * 18 + ks - 64), 4)
    a("s_and_b32 s20, s2, 7")
    a("s_lshr_b32 s21, s2, 3")
    bfrag_voff(a, "v2", "v3")
    a("s_lshl_b32 s7, s21, 2")
    a("s_add_u32 s7, s7, s3")
    a(f"s_mul_i32 s22, s7, {2 * GB}")
    a(f"s_add_u32 s22, s22, {X1}")
    RAW = 88
    for ks in range(18):
        if ks and ks % 8 == 0:
            a("s_add_u32 s22, s22, 4096")
        a(f"buffer_load_dwordx4 v[{RAW + 4 * ks}:{RAW + 4 * ks + 3}], v2, s[8:11], s22 offen offset:{(ks % 8) * 512}")
    a("s_lshl_b32 s7, s20, 2")
    a("s_add_u32 s7, s7, s3")
    a(f"s_mul_i32 s23, s7, {WSTR}")
    a(f"s_add_u32 s23, s23, {WF}")
    a(f"v_lshlrev_b32 v{VB}, 4, v0")
    for m in range(1, 9):
        a(f"v_add_u32 v{VB + m}, {4096 * m}, v{VB}")

    def wload(slot, n):
        r = RING + 4 * slot
        return f"buffer_load_dwordx4 v[{r}:{r + 3}], v{VB + n // 4}, s[8:11], s23 offen offset:{(n % 4) * KB}"

    for n in range(15):
        a(wload(n, n))
    a(f"s_add_u32 s23, s23, {15 * KB}")
    a("s_mov_b32 s16, 0xffff0000")
    a("s_mov_b32 s17, 0x3f803f80")
    for i in range(8):
        a(f"v_mov_b32 v{4 + i}, 0")
    for ks in range(18):
        a(f"s_waitcnt vmcnt({15 + 17 - ks})")
        for i in range(4):
            a(f"v_dot2c_f32_bf16 v{4 + i}, s17, v{RAW + 4 * ks + i}")
            a(f"v_dot2c_f32_bf16 v{8 + i}, v{RAW + 4 * ks + i}, v{RAW + 4 * ks + i}")
    mark(a, 0)
    a("s_nop 2")
    a("v_pk_add_f32 v[4:5], v[4:5], v[6:7]")
    a("v_pk_add_f32 v[8:9], v[8:9], v[10:11]")
    a("v_add_f32 v4, v4, v5")
    a("v_add_f32 v5, v8, v9")
    rowsum_16_32(a, ["v4", "v5"], ["v6", "v7"])
    ln_coeffs(a, "v4", "v5", 6, 8)
    a(f"s_mul_i32 s7, s3, {18 * KB}")
    a(f"v_add_u32 v10, s7, v{VB}")
    for ks in range(18):
        normalize(a, RAW + 4 * ks, RAW + 4 * ks, 4, 6, 8, 160 + 8 * (ks & 1))
        a(f"ds_write_b128 v10, v[{RAW + 4 * ks}:{RAW + 4 * ks + 3}] offset:{ks * KB}")
    a(f"v_add_u32 v11, {36 * KB}, v{VB}")
    a("s_waitcnt lgkmcnt(0)")
    a("s_barrier")
    mark(a, 1)
    for ks in range(18):
        for tt in range(4):
            f = tt * 18 + ks
            a(f"ds_read_b128 {xreg(tt, ks)}, v{VB if f < 36 else 11} offset:{(f % 36) * KB}")
    a("s_lshr_b32 s7, s3, 1")
    a("s_lshl_b32 s7, s7, 10")
    a("s_and_b32 s6, s3, 1")
    a("s_lshl_b32 s6, s6, 3")
    a("s_add_u32 s24, s7, s6")
    a(f"s_add_u32 s24, s24, {HB}")
    a(f"s_add_u32 s7, s24, {16 * KB}")
    a(f"v_add_u32 v12, s7, v{VB}")
    k0 = -2.0 * math.sqrt(2.0 / math.pi) * math.log2(math.e)
    a(f"v_mov_b32 v13, {f32(k0 * 0.044715)}")
    a(f"v_mov_b32 v14, {f32(k0)}")
    a("s_mov_b32 s25, 0")
    a("s_waitcnt lgkmcnt(0)")
    mark(a, 2)

    def gelu_ops(first_gap):
        ops = []
        for tt in range(4):
            t, p, o = TMP + 10 * (tt & 1), TMP + 10 * (tt & 1) + 4, TMP + 10 * (tt & 1) + 8
            g, u = STG + 4 * tt, STG + 16 + 4 * tt
            e = first_gap(tt)
            for r in range(4):
                ops.append((f"v_mul_f32 v{t + r}, v{g + r}, v{g + r}", 1, e))
            for r in range(4):
                ops.append((f"v_fma_f32 v{t + r}, v{t + r}, v13, v14", 1, e))
            for r in range(4):
                ops.append((f"v_mul_f32 v{t + r}, v{g + r}, v{t + r}", 1, e))
            for r in range(4):
                ops.append((f"v_exp_f32 v{t + r}, v{t + r}", 2, e))
            for r in range(4):
                ops.append((f"v_mul_f32 v{p + r}, v{g + r}, v{u + r}", 1, e))
            for r in range(4):
                ops.append((f"v_add_f32 v{t + r}, 1.0, v{t + r}", 1, e))
            for r in range(4):
                ops.append((f"v_rcp_f32 v{t + r}, v{t + r}", 2, e))
            for r in range(4):
                ops.append((f"v_mul_f32 v{p + r}, v{p + r}, v{t + r}", 1, e))
            ops.append((f"v_cvt_pk_bf16_f32 v{o}, v{p}, v{p + 1}", 1, e))
            ops.append((f"v_cvt_pk_bf16_f32 v{o + 1}, v{p + 2}, v{p + 3}", 1, e))
            ops.append((f"ds_write_b64 v12, v[{o}:{o + 1}] offset:{tt * 18 * KB}", 2, e))
        return ops

    lp = a.label("ffn_gu")
    a(f"{lp}:")
    mf, pinned = [], {}
    for G in range(12):
        gu, grp = G & 1, G >> 1
        for tt in range(4):
            for kk in range(3):
                ks = 3 * grp + kk
                c = ACC + 16 * gu + 4 * tt
                d = STG + 16 * gu + 4 * tt if ks == 17 else c
                src = "0" if ks == 0 else f"v[{c}:{c + 3}]"
                w = RING + 4 * ((3 * G + kk) % 18)
                mf.append(f"v_mfma_f32_16x16x32_bf16 v[{d}:{d + 3}], v[{w}:{w + 3}], {xreg(tt, ks)}, {src}")
        for kk in range(3):
            n = 3 * G + kk
            pinned[12 * G + 4 * kk + 1] = [(wload((n + 15) % 18, n), 2)]
    gaps = pack_gaps(144, pinned, gelu_ops(lambda tt: 2))
    check_stage_reads(mf, gaps, STG, 32)
    for i in range(144):
        if i % 12 == 0:
            a("s_waitcnt vmcnt(12)")
        a(mf[i])
        for text, _ in gaps[i]:
            a(text)
        if i == 139:
            a("s_lshl_b32 s7, s25, 11")
        if i == 140:
            a("s_add_u32 s7, s7, s24")
        if i == 142:
            a(f"s_add_u32 s23, s23, {36 * KB}")
    a(f"v_add_u32 v12, s7, v{VB}")
    a("s_add_u32 s25, s25, 1")
    a("s_cmp_lt_u32 s25, 9")
    a(f"s_cbranch_scc1 {lp}")
    mark(a, 3)
    a(f"v_add_u32 v10, {HB}, v{VB}")
    a(f"v_add_u32 v11, {HB + 36 * KB}, v{VB}")
    a("s_waitcnt lgkmcnt(0)")
    a("s_barrier")
    hread = lambda tt, ks: f"ds_read_b128 {xreg(tt, ks)}, v{10 if tt < 2 else 11} offset:{((tt * 18 + ks) % 36) * KB}"
    reads = [hread(tt, ks) for ks in range(16) for tt in range(4)]
    ops = [t for t, _, _ in gelu_ops(lambda tt: 0)]
    for i, t in enumerate(ops):
        a(t)
        if "v_exp" in t or "v_rcp" in t or i % 3 == 0:
            if reads:
                a(reads.pop(0))
    for t in reads:
        a(t)
    dtile_voff(a, "v2", "v4", None, 8 * GB)
    a(f"v_add_u32 v3, {32 * GB}, v2")
    a(f"s_mul_i32 s26, s21, {64 * GB}")
    a(f"s_mul_i32 s7, s20, {GB}")
    a("s_add_u32 s26, s26, s7")
    a(f"s_mul_i32 s7, s3, {9 * 256}")
    a("s_add_u32 s26, s26, s7")
    a(f"s_add_u32 s26, s26, {PART}")
    a(f"s_add_u32 s27, s26, {8 * 256}")
    a("s_waitcnt lgkmcnt(0)")
    a("s_barrier")
    for ks in (16, 17):
        for tt in range(4):
            a(hread(tt, ks))
    a("s_mov_b32 s25, 0")
    a("s_waitcnt lgkmcnt(0)")
    mark(a, 4)

    def down_epi(e):
        ops = []
        for pr in range(2):
            o = TMP + 4 * pr
            for h in range(2):
                s = STG + 4 * (2 * pr + h)
                ops.append((f"v_cvt_pk_bf16_f32 v{o + 2 * h}, v{s}, v{s + 1}", 1, e))
                ops.append((f"v_cvt_pk_bf16_f32 v{o + 2 * h + 1}, v{s + 2}, v{s + 3}", 1, e))
        for pr in range(2):
            o = TMP + 4 * pr
            ops.append((f"v_permlane16_swap_b32 v{o}, v{o + 2}", 2, e))
            ops.append((f"v_permlane16_swap_b32 v{o + 1}, v{o + 3}", 2, e))
        for pr in range(2):
            o = TMP + 4 * pr
            ops.append((f"buffer_store_dwordx4 v[{o}:{o + 3}], v{2 + pr}, s[8:11], s27 offen", 2, e))
        return ops

    lp = a.label("ffn_dn")
    a(f"{lp}:")
    mf, pinned = [], {}
    for G in range(6):
        for tt in range(4):
            for kk in range(3):
                ks = 3 * G + kk
                c = ACC + 4 * tt
                d = STG + 4 * tt if ks == 17 else c
                src = "0" if ks == 0 else f"v[{c}:{c + 3}]"
                w = RING + 4 * ks
                mf.append(f"v_mfma_f32_16x16x32_bf16 v[{d}:{d + 3}], v[{w}:{w + 3}], {xreg(tt, ks)}, {src}")
        for kk in range(3):
            n = 3 * G + kk
            pinned[12 * G + 4 * kk + 1] = [(wload((n + 15) % 18, n), 2)]
    gaps = pack_gaps(72, pinned, down_epi(6))
    check_stage_reads(mf, gaps, STG, 16)
    store_groups = [i // 12 for i in range(72) for t, _ in gaps[i] if "store" in t]
    for i in range(72):
        if i % 12 == 0:
            G = i // 12
            extra = sum(1 for sg in store_groups if 0 <= G - 1 - sg <= 3)
            a(f"s_waitcnt vmcnt({12 + extra})")
        a(mf[i])
        for text, _ in gaps[i]:
            a(text)
        if i == 66:
            a("s_lshl_b32 s7, s25, 8")
        if i == 67:
            a("s_add_u32 s27, s26, s7")
        if i == 70:
            a(f"s_add_u32 s23, s23, {18 * KB}")
    a("s_add_u32 s25, s25, 1")
    a("s_cmp_lt_u32 s25, 9")
    a(f"s_cbranch_scc1 {lp}")
    mark(a, 5)
    a("s_nop 7")
    prev = None
    for t, _, _ in down_epi(0):
        if "permlane" in t and "cvt" in prev:
            a("s_nop 1")
        a(t)
        prev = t
    finish(a, end, 3)
    return name, 256, 256


def build(stamps=False, launches=None):
    Cfg.stamps = stamps
    a = Asm()
    a('.amdgcn_target "amdgcn-amd-amdhsa--gfx950"')
    kernels = [k_prep(a), k_qkv(a), k_wo(a), k_ffn(a), k_red(a, 1), k_red(a, 2)]
    for name, nv, na in kernels:
        kernel_desc(a, name, nv, na, 100 if stamps else 64)
    geo = {
        "prep": (N_PREP, NB * 16 * KB), "qkv": (256, QKV_LDS), "wo": (256, WO_LDS),
        "ffn": (256, FFN_LDS), "red1": (256, 1024), "red2": (256, 1024),
    }
    launches = launches or ["prep", "qkv", "wo", "ffn", "red1", "qkv", "wo", "ffn", "red2"]
    head = HEADER + "".join(
        f"; @launch kernel={k}_kernel grid=({geo[k][0]},1,1) block=(256,1,1) lds={geo[k][1]}\n" for k in launches)
    text = head + a.text()
    bad = hazards.check(text)
    if bad:
        print("\n".join(bad[:40]), file=sys.stderr)
        raise SystemExit(f"{len(bad)} hazards")
    return text


if __name__ == "__main__":
    out = sys.argv[1] if len(sys.argv) > 1 else os.path.join(os.path.dirname(os.path.abspath(__file__)), "..", NAME + ".s")
    stamps = "--stamps" in sys.argv
    launches = None
    for x in sys.argv[2:]:
        if x.startswith("--launch="):
            launches = x.split("=")[1].split(",")
    open(out, "w").write(build(stamps, launches))
```

```python
import math
import os
import struct
import sys

sys.path.insert(0, os.path.dirname(os.path.abspath(__file__)))
from asmlib import Asm, kernel_begin, kernel_desc, reg, srd
import hazards

NAME = "interleave_layers__sliding_local_dilated__glu_gated_geglu__prompt"
KB = 1024
GB = 9216
WS_SIZE = 256 << 20
WQ = 0
WO = 0x240000
WF = 0x300000
WSTR = 486 * KB
FLAGS = 0x1240000
XN = 0x1300000
OO = 0x1540000
X1 = 0x1780000
X2 = 0x19C0000
PART = 0x1C00000
LSTR = 0x1C00000
OOB = 0x40000000
STAMP_OFF = 255 << 20

HEADER = """; Kernarg layout for this problem (80 bytes, ptrs only, base s[0:1]):
"""


def f32(x):
    return "0x%08x" % struct.unpack("<I", struct.pack("<f", x))[0]


def sdiv(a, dst, src, d, hi):
    m = -(-(1 << 20) // d)
    assert all((x * m) >> 20 == x // d for x in range(hi + 1)) and hi * m < (1 << 32)
    a(f"s_mul_i32 {dst}, {src}, {m}")
    a(f"s_lshr_b32 {dst}, {dst}, 20")


def sdivmod(a, q, r, src, d, hi):
    sdiv(a, q, src, d, hi)
    a(f"s_mul_i32 {r}, {q}, {d}")
    a(f"s_sub_u32 {r}, {src}, {r}")


def csel(a, dst, x, y):
    a(f"s_mov_b32 {dst}, {y}")
    a(f"s_cmov_b32 {dst}, {x}")


class Cfg:
    stamps = False
    jx = 4
    wflag = ""
    nostore = 0


def tile_map(a, sj, smt, jx):
    lg = jx.bit_length() - 1
    a(f"s_and_b32 {sj}, s2, {8 // jx - 1}")
    a(f"s_lshl_b32 {sj}, {sj}, {lg}")
    a(f"s_bfe_u32 s7, s2, {3 | (lg << 16)}")
    a(f"s_add_u32 {sj}, {sj}, s7")
    a(f"s_bfe_u32 {smt}, s2, {(3 - lg) | (lg << 16)}")
    a(f"s_lshl_b32 {smt}, {smt}, {5 - lg}")
    a(f"s_lshr_b32 s7, s2, {3 + lg}")
    a(f"s_add_u32 {smt}, {smt}, s7")


def entry(a, nwg, end, extra_loads=()):
    a(f"s_cmp_ge_u32 s2, {nwg}")
    a(f"s_cbranch_scc1 {end}")
    a("s_load_dwordx2 s[4:5], s[0:1], 72")
    for l in extra_loads:
        a(l)
    a("v_lshrrev_b32 v1, 6, v0")
    a("v_and_b32 v0, 63, v0")
    a("v_readfirstlane_b32 s3, v1")
    a("s_waitcnt lgkmcnt(0)")
    srd(a, 8, "s4", "s5", WS_SIZE)


def mark(a, idx):
    if Cfg.stamps:
        a("s_memrealtime s[94:95]")
        a("s_memtime s[96:97]")
        a("s_lshl_b32 m0, s42, 5")
        a(f"s_add_u32 m0, m0, {idx}")
        a("s_waitcnt lgkmcnt(0)")
        a(f"v_writelane_b32 v{Cfg.sv}, s94, m0")
        a(f"v_writelane_b32 v{Cfg.sv + 1}, s96, m0")


def dump_marks(a, slot):
    if Cfg.stamps:
        a("s_lshl_b32 s7, s2, 2")
        a("s_add_u32 s7, s7, s3")
        a("s_lshl_b32 s7, s7, 9")
        a(f"s_add_u32 s7, s7, {STAMP_OFF + slot * 0x80000}")
        a("v_lshlrev_b32 v1, 2, v0")
        a(f"buffer_store_dword v{Cfg.sv}, v1, s[8:11], s7 offen")
        a(f"buffer_store_dword v{Cfg.sv + 1}, v1, s[8:11], s7 offen offset:256")


PH_QKV, PH_WO, PH_FFN, PH_RED = range(4)


def publish(a, phase):
    a("s_lshl_b32 s6, s40, 4")
    a("s_lshl_b32 s7, s3, 2")
    a("s_add_u32 s6, s6, s7")
    a("s_add_u32 s6, s6, s44")
    a("v_mov_b32 v1, 1")
    a("s_waitcnt vmcnt(0)")
    a("s_mov_b64 exec, 1")
    a(f"buffer_store_dword v1, off, s[8:11], s6 offset:{0} sc1" if phase == 0 else
      f"s_add_u32 s6, s6, {phase * 4096}\nbuffer_store_dword v1, off, s[8:11], s6 sc1")
    a("s_mov_b64 exec, -1")


def poll(a, soff, vaddr, abort):
    lp, ok = a.label("poll"), a.label("polled")
    a("s_mov_b32 s6, 0")
    a(f"{lp}:")
    a(f"buffer_load_dword v1, {vaddr}, s[8:11], {soff} offen sc1")
    a("s_add_u32 s6, s6, 1")
    a("s_waitcnt vmcnt(0)")
    a("v_cmp_ne_u32 vcc, 0, v1")
    a("s_cmp_eq_u64 vcc, exec")
    a(f"s_cbranch_scc1 {ok}")
    a(f"s_cmp_ge_u32 s6, {1 << 20}")
    a(f"s_cbranch_scc1 {abort}")
    a("s_sleep 1")
    a(f"s_branch {lp}")
    a(f"{ok}:")


def poll32(a, phase, abort):
    a("v_and_b32 v15, 31, v0")
    a("v_lshlrev_b32 v15, 2, v15")
    a(f"s_add_u32 s7, s44, {phase * 4096}")
    poll(a, "s7", "v15", abort)


def bfrag_voff(a, dst, tmp):
    a(f"v_bfe_u32 {tmp}, v0, 3, 1")
    a(f"v_mul_u32_u24 {dst}, {GB}, {tmp}")
    a(f"v_lshrrev_b32 {tmp}, 4, v0")
    a(f"v_lshl_add_u32 {dst}, {tmp}, 7, {dst}")
    a(f"v_and_b32 {tmp}, 7, v0")
    a(f"v_lshl_add_u32 {dst}, {tmp}, 4, {dst}")


def dtile_voff(a, dst, tmp, tmp2, gstride):
    a(f"v_bfe_u32 {tmp}, v0, 3, 2")
    a(f"s_mov_b32 s7, {gstride}")
    a(f"v_mul_lo_u32 {dst}, {tmp}, s7")
    a(f"v_lshrrev_b32 {tmp}, 5, v0")
    a(f"v_lshl_add_u32 {dst}, {tmp}, 7, {dst}")
    a(f"v_and_b32 {tmp}, 7, v0")
    a(f"v_lshl_add_u32 {dst}, {tmp}, 4, {dst}")


def rowsum_16_32(a, vals, tmp):
    for swap in ("v_permlane32_swap_b32", "v_permlane16_swap_b32"):
        for i, v in enumerate(vals):
            a(f"v_mov_b32 {tmp[i]}, {v}")
        a("s_nop 1")
        for i, v in enumerate(vals):
            a(f"{swap} {tmp[i]}, {v}")
        for i, v in enumerate(vals):
            a(f"v_add_f32 {v}, {v}, {tmp[i]}")


def ln_coeffs(a, vs, vss, rstd, nb):
    a(f"v_mul_f32 {vs}, {f32(1.0 / 576)}, {vs}")
    a(f"v_mul_f32 {vss}, {f32(1.0 / 576)}, {vss}")
    a(f"v_fma_f32 {vss}, -{vs}, {vs}, {vss}")
    a(f"v_max_f32 {vss}, 0, {vss}")
    a(f"v_add_f32 {vss}, {f32(1e-5)}, {vss}")
    a(f"v_rsq_f32 v{rstd}, {vss}")
    a("s_nop 0")
    a(f"v_mul_f32 v{nb}, {vs}, v{rstd}")
    a(f"v_mov_b32 v{rstd + 1}, v{rstd}")
    a(f"v_sub_f32 v{nb}, 0, v{nb}")
    a(f"v_mov_b32 v{nb + 1}, v{nb}")


def normalize(a, src, dst, n, rstd, nb, tmp):
    for i0 in range(0, n, 4):
        k = min(4, n - i0)
        for i in range(k):
            a(f"v_lshlrev_b32 v{tmp + 2 * i}, 16, v{src + i0 + i}")
            a(f"v_and_b32 v{tmp + 2 * i + 1}, s16, v{src + i0 + i}")
        for i in range(k):
            t = tmp + 2 * i
            a(f"v_pk_fma_f32 v[{t}:{t + 1}], v[{t}:{t + 1}], v[{rstd}:{rstd + 1}], v[{nb}:{nb + 1}]")
        for i in range(k):
            t = tmp + 2 * i
            a(f"v_cvt_pk_bf16_f32 v{dst + i0 + i}, v{t}, v{t + 1}")


VR, VM = 2, 5


def red_offsets(a):
    a("s_mov_b32 s16, 0xffff0000")
    a("s_lshl_b32 s7, s3, 10")
    a(f"v_lshl_add_u32 v{VR}, v0, 4, s7")
    a(f"v_add_u32 v{VR + 1}, 4096, v{VR}")
    a("v_and_b32 v8, 7, v0")
    a("v_mul_u32_u24 v8, 1152, v8")
    a("v_lshrrev_b32 v9, 3, v0")
    a("v_lshl_add_u32 v8, v9, 4, v8")
    a("s_lshl_b32 s7, s3, 7")
    a(f"v_add_u32 v{VM}, s7, v8")
    a(f"v_add_u32 v{VM + 1}, 512, v{VM}")
    a("s_cmp_eq_u32 s3, 0")
    csel(a, "s17", 8192, OOB)
    a(f"v_add_u32 v{VR + 2}, s17, v{VR}")
    csel(a, "s17", 1024, OOB)
    a(f"v_add_u32 v{VM + 2}, s17, v{VM}")


def red_ln_store(a, XB, sX2, sXN, flag):
    for b in range(3):
        a(f"buffer_store_dwordx4 v[{XB + 4 * b}:{XB + 4 * b + 3}], v{VR + b}, s[8:11], {sX2} offen {flag}")
    a("s_mov_b32 s17, 0x3f803f80")
    for i in range(4):
        a(f"v_mov_b32 v{8 + i}, 0")
    for i in range(12):
        a(f"v_dot2c_f32_bf16 v{8 + 2 * (i & 1)}, s17, v{XB + i}")
        a(f"v_dot2c_f32_bf16 v{9 + 2 * (i & 1)}, v{XB + i}, v{XB + i}")
    a("v_and_b32 v12, 7, v0")
    a("v_lshlrev_b32 v12, 3, v12")
    a("s_lshl_b32 s7, s3, 6")
    a("v_add_u32 v13, s7, v12")
    a("v_pk_add_f32 v[8:9], v[8:9], v[10:11]")
    a("s_nop 1")
    a("v_add_f32_dpp v8, v8, v8 row_ror:8 row_mask:0xf bank_mask:0xf")
    a("v_add_f32_dpp v9, v9, v9 row_ror:8 row_mask:0xf bank_mask:0xf")
    rowsum_16_32(a, ["v8", "v9"], ["v10", "v11"])
    a("ds_write_b64 v13, v[8:9]")
    a("s_waitcnt lgkmcnt(0)")
    a("s_barrier")
    T = 40
    for w in range(4):
        a(f"ds_read_b64 v[{T + 2 * w}:{T + 2 * w + 1}], v12 offset:{64 * w}")
    a("s_waitcnt lgkmcnt(0)")
    a(f"v_pk_add_f32 v[{T}:{T + 1}], v[{T}:{T + 1}], v[{T + 2}:{T + 3}]")
    a(f"v_pk_add_f32 v[{T + 4}:{T + 5}], v[{T + 4}:{T + 5}], v[{T + 6}:{T + 7}]")
    a(f"v_pk_add_f32 v[8:9], v[{T}:{T + 1}], v[{T + 4}:{T + 5}]")
    ln_coeffs(a, "v8", "v9", 10, 12)
    normalize(a, XB, 48, 12, 10, 12, T)
    for b in range(3):
        a(f"buffer_store_dwordx4 v[{48 + 4 * b}:{51 + 4 * b}], v{VR + b}, s[8:11], {sXN} offen {flag}")


def emit_ln0(a, sG):
    red_offsets(a)
    a(f"s_mul_i32 s18, {sG}, {GB}")
    for b in range(3):
        a(f"buffer_load_dwordx4 v[{16 + 4 * b}:{19 + 4 * b}], v{VM + b}, s[12:15], s18 offen")
    for i in range(4):
        a(f"v_mov_b32 v{60 + i}, 0")
    a(f"s_lshl_b32 s19, {sG}, 7")
    a(f"s_add_u32 s19, s19, {FLAGS}")
    a("v_and_b32 v14, 31, v0")
    a("v_lshlrev_b32 v14, 2, v14")
    a("buffer_store_dword v60, v14, s[8:11], s19 offen")
    skip = a.label("nopad")
    a(f"s_cmp_ge_u32 {sG}, 4")
    a(f"s_cbranch_scc1 {skip}")
    a(f"s_and_b32 s19, {sG}, 1")
    a(f"s_mul_i32 s19, s19, {GB}")
    a(f"s_lshr_b32 s20, {sG}, 1")
    a(f"s_mul_i32 s20, s20, {LSTR}")
    a("s_add_u32 s19, s19, s20")
    a(f"s_add_u32 s19, s19, {XN - 2 * GB}")
    for b in range(3):
        a(f"buffer_store_dwordx4 v[60:63], v{VR + b}, s[8:11], s19 offen")
    a(f"{skip}:")
    a(f"s_add_u32 s19, s18, {X2}")
    a(f"s_add_u32 s20, s18, {XN}")
    a("s_waitcnt vmcnt(0)")
    red_ln_store(a, 16, "s19", "s20", "")


def phase_red(a, abort, last):
    red_offsets(a)
    a("s_lshl_b32 s21, s41, 3")
    a("s_add_u32 s21, s21, s40")
    a(f"s_mul_i32 s18, s21, {GB}")
    a("s_add_u32 s19, s18, s43")
    a(f"s_add_u32 s22, s19, {X1}")
    a(f"s_mul_i32 s20, s21, {8 * GB}")
    a("s_add_u32 s20, s20, s43")
    a(f"s_add_u32 s20, s20, {PART}")
    LD, ACC, TMP, XB = 16, 124, 148, 156
    for b in range(3):
        a(f"buffer_load_dwordx4 v[{LD + 4 * b}:{LD + 4 * b + 3}], v{VR + b}, s[8:11], s22 offen sc1")
    poll32(a, PH_FFN, abort)
    mark(a, 16)
    for j in range(1, 9):
        for b in range(3):
            r = LD + (j * 3 + b) * 4
            a(f"buffer_load_dwordx4 v[{r}:{r + 3}], v{VR + b}, s[8:11], s20 offen sc1")
        if j < 8:
            a(f"s_add_u32 s20, s20, {GB}")
    for j in range(9):
        for b in range(3):
            r = LD + (j * 3 + b) * 4
            if j:
                a(f"s_waitcnt vmcnt({26 - (j * 3 + b)})")
            dst = ACC + 8 * b if j == 0 else TMP
            for i in range(4):
                a(f"v_lshlrev_b32 v{dst + 2 * i}, 16, v{r + i}")
                a(f"v_and_b32 v{dst + 2 * i + 1}, s16, v{r + i}")
            if j:
                for i in range(4):
                    c = ACC + 8 * b + 2 * i
                    a(f"v_pk_add_f32 v[{c}:{c + 1}], v[{c}:{c + 1}], v[{TMP + 2 * i}:{TMP + 2 * i + 1}]")
    for b in range(3):
        for i in range(4):
            c = ACC + 8 * b + 2 * i
            a(f"v_cvt_pk_bf16_f32 v{XB + 4 * b + i}, v{c}, v{c + 1}")
    mark(a, 17)
    a("s_cmp_lg_u32 s42, 0")
    a(f"s_cbranch_scc1 {last}")
    a(f"s_add_u32 s19, s18, {X2 + LSTR}")
    a(f"s_add_u32 s20, s18, {XN + LSTR}")
    red_ln_store(a, XB, "s19", "s20", "sc1")
    mark(a, 18)
    publish(a, PH_RED)
    mark(a, 19)

    def tail():
        for b in range(3):
            a(f"buffer_store_dwordx4 v[{XB + 4 * b}:{XB + 4 * b + 3}], v{VM + b}, s[12:15], s18 offen")
    return tail


NB = 2
NA = 3888 // (4 * NB)
N_PREP = NA + 192 + 54 + 256


def emit_swz_ffn(a):
    per = NA // 3
    sdivmod(a, "s20", "s21", "s2", per, NA)
    a("s_cmp_eq_u32 s20, 1")
    a("s_cselect_b32 s12, s26, s24")
    a("s_cselect_b32 s13, s27, s25")
    a("s_cmp_eq_u32 s20, 2")
    a("s_cselect_b32 s12, s28, s12")
    a("s_cselect_b32 s13, s29, s13")
    a("s_and_b32 s13, s13, 0xffff")
    a(f"s_mov_b32 s14, {576 * 9216}")
    a("s_mov_b32 s15, 0x20000")
    a("s_cmp_eq_u32 s20, 2")
    csel(a, "s22", 1152, 9216)
    csel(a, "s23", -(-(1 << 20) // 9), -(-(1 << 20) // 72))
    a("s_cselect_b32 s30, 9, 72")
    a("s_cselect_b32 s31, 2, 3")
    csel(a, "s32", 2048, 512)
    a("s_lshl_b32 s21, s21, 2")
    a("s_add_u32 s21, s21, s3")
    a(f"s_mul_i32 s21, s21, {NB}")
    a("v_lshrrev_b32 v2, 3, v0")
    a("v_mul_lo_u32 v2, v2, s22")
    a("v_and_b32 v3, 7, v0")
    a("v_lshl_add_u32 v2, v3, 4, v2")
    a(f"s_mul_i32 s33, s3, {NB * 4096}")
    a("s_lshl_b32 s34, s22, 3")
    for b in range(NB):
        q, r = f"s{36 + 2 * b}", f"s{37 + 2 * b}"
        a(f"s_add_u32 s7, s21, {b}")
        a(f"s_mul_i32 {q}, s7, s23")
        a(f"s_lshr_b32 {q}, {q}, 20")
        a(f"s_mul_i32 {r}, {q}, s30")
        a(f"s_sub_u32 {r}, s7, {r}")
        a(f"s_mul_i32 s7, {q}, s34")
        a("s_lshl_b32 s7, s7, 2")
        a(f"s_lshl_b32 s35, {r}, 7")
        a("s_add_u32 s7, s7, s35")
        for m in range(4):
            a(f"s_add_u32 m0, s33, {b * 4096 + m * 1024}")
            if m:
                a("s_add_u32 s7, s7, s34")
            else:
                a("s_nop 0")
            a("buffer_load_dwordx4 v2, s[12:15], s7 offen lds")
    a("v_lshrrev_b32 v3, 4, v0")
    a("v_lshlrev_b32 v3, s31, v3")
    a("v_bfe_u32 v4, v0, 2, 2")
    a("v_add_u32 v3, v3, v4")
    a("v_and_b32 v4, 3, v0")
    a("v_lshlrev_b32 v4, 3, v4")
    a("v_lshl_add_u32 v3, v3, 7, v4")
    a("v_add_u32 v3, s33, v3")
    a("v_add_u32 v4, s32, v3")
    a("v_lshlrev_b32 v5, 4, v0")
    dn, dd = a.label("swz_down"), a.label("swz_dest")
    a("s_cmp_eq_u32 s20, 2")
    a(f"s_cbranch_scc1 {dn}")
    for b in range(NB):
        q, r = f"s{36 + 2 * b}", f"s{37 + 2 * b}"
        sdivmod(a, "s6", "s7", r, 9, 71)
        a(f"s_mul_i32 s6, s6, {4 * WSTR}")
        a("s_mul_i32 s7, s7, 36")
        sdivmod(a, "s34", "s35", q, 3, 17)
        a("s_mul_i32 s34, s34, 6")
        a("s_add_u32 s7, s7, s34")
        a("s_add_u32 s7, s7, s35")
        a("s_mul_i32 s34, s20, 3")
        a("s_add_u32 s7, s7, s34")
        a("s_lshl_b32 s7, s7, 10")
        a("s_add_u32 s6, s6, s7")
        for t in range(4):
            a(f"s_add_u32 s{44 + 4 * b + t}, s6, {WF + t * WSTR}")
    a(f"s_branch {dd}")
    a(f"{dn}:")
    for b in range(NB):
        q, r = f"s{36 + 2 * b}", f"s{37 + 2 * b}"
        sdivmod(a, "s6", "s7", q, 18, 143)
        a(f"s_mul_i32 s6, s6, {4 * WSTR}")
        a("s_lshl_b32 s7, s7, 10")
        a("s_add_u32 s6, s6, s7")
        a(f"s_add_u32 s6, s6, {WF + 324 * KB}")
        for t in range(4):
            a(f"s_lshl_b32 s7, {r}, 2")
            a(f"s_add_u32 s7, s7, {t}")
            sdivmod(a, "s34", "s35", "s7", 9, 35)
            a(f"s_mul_i32 s34, s34, {WSTR}")
            a(f"s_mul_i32 s35, s35, {18 * KB}")
            a("s_add_u32 s34, s34, s35")
            a(f"s_add_u32 s{44 + 4 * b + t}, s6, s34")
    a(f"{dd}:")
    for b in range(NB):
        a(f"s_waitcnt vmcnt({4 * (NB - 1 - b) + 4 * b})")
        for t in range(4):
            r = 8 + 16 * b + 4 * t
            a(f"ds_read_b64_tr_b16 v[{r}:{r + 1}], v3 offset:{b * 4096 + t * 32}")
            a(f"ds_read_b64_tr_b16 v[{r + 2}:{r + 3}], v4 offset:{b * 4096 + t * 32}")
        for t in range(4):
            r = 8 + 16 * b + 4 * t
            a(f"s_waitcnt lgkmcnt({6 - 2 * t})")
            a(f"buffer_store_dwordx4 v[{r}:{r + 3}], v5, s[8:11], s{44 + 4 * b + t} offen")


def gather_store(a, dest):
    for m in range(3):
        a(f"s_waitcnt vmcnt({16 - 8 * m + m})")
        for i in range(4):
            r = 16 + 8 * m + 2 * i
            a(f"v_lshl_or_b32 v{44 + 4 * m + i}, v{r + 1}, 16, v{r}")
        a(f"buffer_store_dwordx4 v[{44 + 4 * m}:{47 + 4 * m}], v5, s[8:11], {dest} offen offset:{m * KB}")


def emit_swz_qkv(a):
    srd(a, 12, "s24", "s25", 576 * 3456)
    a(f"s_sub_u32 s20, s2, {NA}")
    a("s_lshl_b32 s20, s20, 2")
    a("s_add_u32 s20, s20, s3")
    a("s_mul_i32 s20, s20, 3")
    sdivmod(a, "s21", "s22", "s20", 72, 2303)
    a("s_mul_i32 s21, s21, 36")
    a("v_and_b32 v2, 15, v0")
    a("v_lshrrev_b32 v3, 4, v0")
    a(f"v_mul_u32_u24 v3, {8 * 3456}, v3")
    a("v_add_u32 v3, s21, v3")
    a("v_lshlrev_b32 v5, 4, v0")
    a("v_lshl_add_u32 v6, v2, 1, v3")
    a("v_lshrrev_b32 v7, 1, v2")
    a("v_mul_u32_u24 v7, 1152, v7")
    a("v_and_b32 v8, 1, v2")
    a("v_lshl_add_u32 v7, v8, 1, v7")
    a("v_add3_u32 v7, v7, v3, 32")
    a(f"v_mov_b32 v9, {OOB}")
    a("v_cmp_gt_u32 vcc, 6, v2")
    for j in range(1, 8):
        a(f"s_mov_b32 s{30 + j}, {j * 3456}")
    a("v_cndmask_b32 v7, v9, v7, vcc")
    for m in range(3):
        a(f"s_add_u32 s7, s22, {m}")
        a("s_and_b32 s6, s7, 3")
        a("s_lshr_b32 s7, s7, 2")
        a(f"s_mul_i32 s7, s7, {32 * 3456}")
        a("s_cmp_eq_u32 s6, 3")
        a("s_cselect_b64 vcc, -1, 0")
        a("s_mul_i32 s6, s6, 1152")
        a("v_add_u32 v4, s6, v6")
        a("v_cndmask_b32 v4, v4, v7, vcc")
        a(f"v_add_u32 v{10 + m}, s7, v4")
        for j in range(8):
            so = "0" if j == 0 else f"s{30 + j}"
            a(f"buffer_load_ushort v{16 + 8 * m + j}, v{10 + m}, s[12:15], {so} offen")
    a("s_lshl_b32 s20, s20, 10")
    a(f"s_add_u32 s20, s20, {WQ}")
    gather_store(a, "s20")


def emit_swz_wo(a):
    srd(a, 12, "s26", "s27", 576 * 1152)
    a(f"s_sub_u32 s20, s2, {NA + 192}")
    a("s_lshl_b32 s20, s20, 2")
    a("s_add_u32 s20, s20, s3")
    a("s_mul_i32 s20, s20, 3")
    sdivmod(a, "s21", "s22", "s20", 18, 647)
    a("s_lshl_b32 s21, s21, 5")
    a("v_and_b32 v2, 15, v0")
    a("v_lshl_add_u32 v2, v2, 1, s21")
    a("v_lshrrev_b32 v3, 4, v0")
    a("v_lshlrev_b32 v5, 4, v0")
    a("s_movk_i32 s23, 1152")
    for m in range(3):
        a(f"s_add_u32 s7, s22, {m}")
        a("s_lshl_b32 s7, s7, 2")
        a("v_add_u32 v4, s7, v3")
        a("v_mul_u32_u24 v6, 7282, v4")
        a("v_lshrrev_b32 v6, 16, v6")
        a("v_mul_u32_u24 v7, 9, v6")
        a("v_sub_u32 v7, v4, v7")
        a("v_mul_u32_u24 v6, 72, v6")
        a("v_cmp_eq_u32 vcc, 8, v7")
        a("v_lshrrev_b32 v8, 1, v7")
        a("v_mad_u32_u24 v8, v8, 18, v6")
        a("v_and_b32 v7, 1, v7")
        a("v_lshl_add_u32 v8, v7, 3, v8")
        a("v_mad_u32_u24 v8, v8, s23, v2")
        a("v_add_u32 v6, 16, v6")
        a("v_mad_u32_u24 v6, v6, s23, v2")
        for j in range(8):
            a(f"v_add_u32 v9, {j * 1152}, v8")
            a(f"v_add_u32 v10, {(18 * (j >> 1) + (j & 1)) * 1152}, v6")
            a("v_cndmask_b32 v9, v9, v10, vcc")
            a(f"buffer_load_ushort v{16 + 8 * m + j}, v9, s[12:15], 0 offen")
    a("s_lshl_b32 s20, s20, 10")
    a(f"s_add_u32 s20, s20, {WO}")
    gather_store(a, "s20")


def k_prep(a):
    name = "prep_kernel"
    kernel_begin(a, name)
    end = "L_prep_end"
    entry(a, N_PREP, end)
    Cfg.sv = 64
    if Cfg.stamps:
        a("s_mov_b32 s42, 0")
        a("v_mov_b32 v64, 0")
        a("v_mov_b32 v65, 0")
    mark(a, 0)
    lq, lo, ll, fin = "L_prep_q", "L_prep_o", "L_prep_ln", "L_prep_fin"
    a(f"s_cmp_ge_u32 s2, {NA}")
    a(f"s_cbranch_scc1 {lq}")
    a("s_load_dwordx4 s[24:27], s[0:1], 32")
    a("s_load_dwordx2 s[28:29], s[0:1], 48")
    a("s_waitcnt lgkmcnt(0)")
    emit_swz_ffn(a)
    a(f"s_branch {fin}")
    a(f"{lq}:")
    a(f"s_cmp_ge_u32 s2, {NA + 246}")
    a(f"s_cbranch_scc1 {ll}")
    a("s_load_dwordx2 s[24:25], s[0:1], 8")
    a("s_load_dwordx2 s[26:27], s[0:1], 16")
    a("s_waitcnt lgkmcnt(0)")
    a(f"s_cmp_ge_u32 s2, {NA + 192}")
    a(f"s_cbranch_scc1 {lo}")
    emit_swz_qkv(a)
    a(f"s_branch {fin}")
    a(f"{lo}:")
    emit_swz_wo(a)
    a(f"s_branch {fin}")
    a(f"{ll}:")
    a("s_load_dwordx2 s[6:7], s[0:1], 0")
    a("s_waitcnt lgkmcnt(0)")
    srd(a, 12, "s6", "s7", 2048 * 1152)
    a(f"s_sub_u32 s21, s2, {NA + 246}")
    emit_ln0(a, "s21")
    a(f"{fin}:")
    mark(a, 1)
    if Cfg.stamps:
        a("s_waitcnt vmcnt(0)")
        mark(a, 2)
        a("s_cmp_ge_u32 s2, 256")
        a(f"s_cbranch_scc1 {end}")
        dump_marks(a, 0)
    a(f"{end}:")
    a("s_endpgm")
    return name, 66 if Cfg.stamps else 64, 0


BIG = -1e30


def wo_weight_loads(a):
    setup = []
    s = setup.append
    s("s_lshl_b32 s30, s41, 1")
    s("s_lshr_b32 s7, s40, 2")
    s("s_add_u32 s30, s30, s7")
    s(f"s_mul_i32 s30, s30, {4 * GB}")
    s("s_add_u32 s30, s30, s43")
    s("s_and_b32 s31, s40, 3")
    s("s_mul_i32 s31, s31, 9")
    s("s_add_u32 s31, s31, s3")
    s(f"s_mul_i32 s32, s31, {18 * KB}")
    s(f"s_add_u32 s32, s32, {WO}")
    s(f"s_add_u32 s33, s32, {4 * 18 * KB}")
    s(f"s_add_u32 s34, s32, {8 * 18 * KB}")
    s("s_cmp_eq_u32 s3, 0")
    s(f"s_cselect_b32 s35, 0, {OOB}")
    s("v_add_u32 v5, s35, v4")
    s("v_add_u32 v7, s35, v9")
    s("s_lshl_b32 s7, s31, 8")
    s("s_add_u32 s36, s30, s7")
    s(f"s_add_u32 s37, s36, {X2}")
    s(f"s_add_u32 s36, s36, {X1}")
    loads = []
    for ks in range(18):
        for sl in range(3):
            r = (ks * 3 + sl) * 4
            t = f"buffer_load_dwordx4 a[{r}:{r + 3}], v{5 if sl == 2 else 4}, s[8:11], s{32 + sl} offen offset:{(ks & 3) * KB}"
            if ks & 3 == 3:
                t += f"\ns_add_u32 s{32 + sl}, s{32 + sl}, 4096"
            loads.append(t)
    for sl in range(3):
        loads.append(f"buffer_load_dwordx4 v[{240 + 4 * sl}:{243 + 4 * sl}], v{7 if sl == 2 else 9}, s[8:11], s37 offen offset:{sl * KB} sc1")
    return setup, loads


def phase_qkv(a, abort):
    BF, ACC, QO, KO, VO, VL, SEL, CI, BP, BC, BP1 = 16, 56, 132, 152, 172, 182, 192, 196, 200, 204, 208
    a("s_lshl_b32 s27, s40, 2")
    a("s_add_u32 s27, s27, s3")
    a(f"s_mul_i32 s28, s27, {72 * KB}")
    if WQ:
        a(f"s_add_u32 s28, s28, {WQ}")
    a(f"s_add_u32 s50, s28, {72 * KB}")
    a("v_lshlrev_b32 v4, 4, v0")

    def wload(slot):
        for t in range(4):
            r = 16 * slot + 4 * t
            yield f"buffer_load_dwordx4 a[{r}:{r + 3}], v4, s[48:51], s28 offen offset:{t * KB}"

    for ks in range(5):
        for l in wload(ks):
            a(l)
        a("s_add_u32 s28, s28, 4096")
    bfrag_voff(a, "v2", "v3")
    dtile_voff(a, "v9", "v3", None, GB)
    a(f"s_mul_i32 s22, s41, {8 * GB}")
    a("s_add_u32 s22, s22, s43")
    a(f"s_add_u32 s23, s22, {XN - 2 * GB}")
    a(f"s_mul_i32 s7, s3, {2 * GB}")
    a("s_add_u32 s24, s23, s7")
    a(f"s_add_u32 s24, s24, {2 * GB}")
    units = [(0, tt) for tt in range(1, 5)] + [(t, tt) for t in range(1, 4) for tt in range(5)]
    acc = {u: ACC + 4 * i for i, u in enumerate(units)}
    for i in range(76):
        a(f"v_mov_b32 v{ACC + i}, 0")
    for r in [QO, QO + 1, SEL, SEL + 1, SEL + 3] + [QO + 4 * t + 3 for t in range(5)] + [KO + 4 * t + 3 for t in range(5)]:
        a(f"v_mov_b32 v{r}, 0")
    a("v_cmp_eq_u32 vcc, 16, v0")
    a("v_mov_b32 v10, 0x3f80")
    a("v_cmp_eq_u32 s[20:21], 17, v0")
    a(f"v_cndmask_b32 v{SEL + 2}, 0, v10, vcc")
    a("v_and_b32 v11, 3, v0")
    a(f"v_cndmask_b32 v{SEL + 2}, v{SEL + 2}, 1.0, s[20:21]")
    a("v_cmp_eq_u32 vcc, 2, v11")
    a("v_and_b32 v10, 15, v0")
    a("v_lshrrev_b32 v11, 4, v0")
    for r in range(4):
        a(f"v_cndmask_b32 v{CI + r}, 0, 1.0, vcc")
    a("v_lshlrev_b32 v11, 2, v11")
    a("v_sub_u32 v10, v11, v10")
    a(f"v_mov_b32 v12, {f32(BIG)}")
    a("s_cmp_eq_u32 s41, 0")
    a("s_cselect_b64 s[38:39], 0, -1")
    for r in range(4):
        a(f"v_add_u32 v11, {r}, v10")
        a("v_and_b32 v13, 1, v11")
        a("v_cmp_eq_u32 s[20:21], 0, v13")
        a("v_cmp_lt_i32 vcc, 1, v11")
        a("v_cmp_gt_i32 s[18:19], 1, v11")
        a("s_and_b64 vcc, vcc, s[20:21]")
        a("s_and_b64 s[18:19], s[18:19], s[20:21]")
        a("s_and_b64 s[20:21], vcc, s[38:39]")
        a(f"v_cndmask_b32 v{BP + r}, v12, 0, vcc")
        a(f"v_cndmask_b32 v{BC + r}, v12, 0, s[18:19]")
        a(f"v_cndmask_b32 v{BP1 + r}, v12, 0, s[20:21]")
    nowait = a.label("qkv_go")
    a("s_cmp_eq_u32 s42, 0")
    a(f"s_cbranch_scc1 {nowait}")
    a("v_cmp_gt_u32 vcc, 40, v0")
    a("s_cmp_eq_u32 s41, 0")
    a("s_cselect_b32 s7, 8, 0")
    a("v_cndmask_b32 v15, 8, v0, vcc")
    a("v_max_u32 v15, s7, v15")
    a("v_lshlrev_b32 v15, 2, v15")
    a(f"s_sub_u32 s7, s44, {4 * 4096 - PH_RED * 4096 + 32}")
    poll(a, "s7", "v15", abort)
    a(f"{nowait}:")
    mark(a, 0)
    a("s_lshl_b32 s25, s3, 10")
    a("s_add_u32 m0, s25, 1024")
    a("s_mov_b32 s26, 0")
    lp = a.label("qkv_dma")
    a(f"{lp}:")
    a("s_add_u32 s26, s26, 1")
    a("buffer_load_dwordx4 v2, s[8:11], s24 offen sc1 lds")
    a("s_add_u32 s24, s24, 512")
    a("s_add_u32 m0, m0, 5120")
    a("s_cmp_lt_u32 s26, 18")
    a(f"s_cbranch_scc1 {lp}")
    for m in range(5):
        a(f"s_add_u32 s7, s3, {4 * m}")
        if m == 4:
            a("s_min_u32 s7, s7, 17")
        a("s_mul_i32 m0, s7, 5120")
        a("s_lshl_b32 s7, s7, 9")
        a("s_add_u32 s7, s7, s23")
        a("buffer_load_dwordx4 v2, s[8:11], s7 offen sc1 lds")
    a("v_mov_b32 v6, v4")
    a("s_mov_b32 s26, 0")
    a("s_waitcnt vmcnt(0)")
    a("s_barrier")
    mark(a, 1)
    for tt in range(5):
        a(f"ds_read_b128 v[{BF + 4 * tt}:{BF + 4 * tt + 3}], v6 offset:{tt * KB}")
    lp = a.label("qkv_k")
    a(f"{lp}:")
    for kk in range(6):
        cur, nxt = BF + 20 * (kk & 1), BF + 20 * ((kk + 1) & 1)
        fill = [f"ds_read_b128 v[{nxt + 4 * tt}:{nxt + 4 * tt + 3}], v6 offset:{((kk + 1) * 5 + tt) * KB}" for tt in range(5)]
        loads = list(wload((kk + 5) % 6))
        a("s_waitcnt vmcnt(16) lgkmcnt(0)")
        for u, (t, tt) in enumerate(units):
            c = acc[(t, tt)]
            w, x = f"a[{16 * kk + 4 * t}:{16 * kk + 4 * t + 3}]", f"v[{cur + 4 * tt}:{cur + 4 * tt + 3}]"
            if t == 2:
                w, x = x, w
            a(f"v_mfma_f32_16x16x32_bf16 v[{c}:{c + 3}], {w}, {x}, v[{c}:{c + 3}]")
            if u < 5:
                a(fill[u])
            elif u in (6, 9, 12, 15):
                a(loads[(u - 6) // 3])
            elif u == 16:
                a("s_add_u32 s28, s28, 4096")
    a("v_add_u32 v6, 30720, v6")
    a("s_add_u32 s26, s26, 1")
    a("s_cmp_lt_u32 s26, 3")
    a(f"s_cbranch_scc1 {lp}")
    mark(a, 2)
    a("s_waitcnt lgkmcnt(0)")
    setup, early = wo_weight_loads(a)
    for t in setup:
        a(t)
    body = []
    e = body.append
    cvt = lambda d, s: e(f"v_cvt_pk_bf16_f32 v{d}, v{s}, v{s + 1}")
    mf = lambda d, x, y, c: e(f"v_mfma_f32_16x16x32_bf16 v[{d}:{d + 3}], v[{x}:{x + 3}], v[{y}:{y + 3}], {c}")
    quad = lambda r: f"v[{r}:{r + 3}]"
    for tt in range(1, 5):
        cvt(QO + 4 * tt, acc[(0, tt)]); cvt(QO + 4 * tt + 1, acc[(0, tt)] + 2)
    for tt in range(5):
        cvt(KO + 4 * tt, acc[(1, tt)]); cvt(KO + 4 * tt + 1, acc[(1, tt)] + 2)
    for tt in range(5):
        cvt(QO + 4 * tt + 2, acc[(3, tt)]); cvt(KO + 4 * tt + 2, acc[(3, tt)] + 2)
    for tt in range(5):
        cvt(VO + 2 * tt, acc[(2, tt)]); cvt(VO + 2 * tt + 1, acc[(2, tt)] + 2)
    S, T, P, M = 16, 56, 76, 92
    for tt in range(1, 5):
        s = S + 8 * (tt - 1)
        mf(s, KO + 4 * (tt - 1), QO + 4 * tt, quad(BP1 if tt == 1 else BP))
        mf(s + 4, KO + 4 * tt, QO + 4 * tt, quad(BC))
    for tt in range(5):
        mf(T + 4 * tt, QO + 4 * tt, SEL, quad(CI))
    for i in range(4):
        s = S + 8 * i
        e(f"v_max3_f32 v{M + i}, v{s}, v{s + 1}, v{s + 2}")
        e(f"v_max3_f32 v{M + 4 + i}, v{s + 3}, v{s + 4}, v{s + 5}")
    for i in range(4):
        s = S + 8 * i
        e(f"v_max3_f32 v{M + i}, v{M + i}, v{s + 6}, v{s + 7}")
    for i in range(4):
        e(f"v_max_f32 v{M + i}, v{M + i}, v{M + 4 + i}")
    c = 18 ** -0.5 * math.log2(math.e)
    e(f"s_mov_b32 s18, {f32(c)}")
    tcv = [(VL + 2 * tt + h, T + 4 * tt + 2 * h) for tt in range(5) for h in range(2)]
    pad = lambda n: [cvt(*tcv.pop(0)) for _ in range(n)]
    pad(1)
    e(f"v_permlane32_swap_b32 v{M}, v{M + 1}")
    e(f"v_permlane32_swap_b32 v{M + 2}, v{M + 3}")
    e(f"v_max_f32 v{M}, v{M}, v{M + 1}")
    e(f"v_max_f32 v{M + 2}, v{M + 2}, v{M + 3}")
    pad(2)
    e(f"v_permlane16_swap_b32 v{M}, v{M + 2}")
    e(f"v_max_f32 v{M}, v{M}, v{M + 2}")
    e(f"v_mul_f32 v{M}, {f32(-c)}, v{M}")
    e(f"v_mov_b32 v{M + 2}, v{M}")
    pad(2)
    e(f"v_permlane16_swap_b32 v{M}, v{M + 2}")
    e(f"v_mov_b32 v{M + 1}, v{M}")
    e(f"v_mov_b32 v{M + 3}, v{M + 2}")
    pad(2)
    e(f"v_permlane32_swap_b32 v{M}, v{M + 1}")
    e(f"v_permlane32_swap_b32 v{M + 2}, v{M + 3}")
    pad(3)
    OA, OL, R, OUT, LO = 100, 116, 96, 212, 220
    for i in range(4):
        s = S + 8 * i
        for r in range(8):
            e(f"v_fma_f32 v{s + r}, v{s + r}, s18, v{M + i}")
        for r in range(8):
            e(f"v_exp_f32 v{s + r}, v{s + r}")
        if i:
            mf(OA + 4 * (i - 1), VO + 2 * (i - 1), P + 4 * (i - 1), "0")
            mf(OL + 4 * (i - 1), VL + 2 * (i - 1), P + 4 * (i - 1), "0")
        else:
            e("s_nop 0")
        for r in range(4):
            cvt(P + 4 * i + r, s + 2 * r)
    e(f"v_rcp_f32 v{R}, v{OL + 2}")
    e(f"v_rcp_f32 v{R + 1}, v{OL + 6}")
    mf(OA + 12, VO + 6, P + 12, "0")
    mf(OL + 12, VL + 6, P + 12, "0")

    def scale(i):
        sel = "op_sel:[1,0] op_sel_hi:[1,1]" if i & 1 else "op_sel:[0,0] op_sel_hi:[0,1]"
        rp = R + (i & 2)
        for o in (OA + 4 * i, OA + 4 * i + 2, OL + 4 * i):
            e(f"v_pk_mul_f32 v[{o}:{o + 1}], v[{rp}:{rp + 1}], v[{o}:{o + 1}] {sel}")
        cvt(OUT + 2 * i, OA + 4 * i); cvt(OUT + 2 * i + 1, OA + 4 * i + 2); cvt(LO + i, OL + 4 * i)

    scale(0)
    e(f"v_rcp_f32 v{R + 2}, v{OL + 10}")
    scale(1)
    e(f"v_rcp_f32 v{R + 3}, v{OL + 14}")
    e(f"v_permlane16_swap_b32 v{OUT}, v{OUT + 2}")
    e(f"v_permlane16_swap_b32 v{OUT + 1}, v{OUT + 3}")
    scale(2)
    scale(3)
    e("v_lshrrev_b32 v10, 3, v0")
    e(f"v_permlane16_swap_b32 v{LO}, v{LO + 1}")
    e(f"v_permlane16_swap_b32 v{OUT + 4}, v{OUT + 6}")
    e(f"v_permlane16_swap_b32 v{OUT + 5}, v{OUT + 7}")
    e(f"v_permlane16_swap_b32 v{LO + 2}, v{LO + 3}")
    e(f"v_mul_u32_u24 v10, {GB}, v10")
    e("v_and_b32 v11, 7, v0")
    e(f"v_permlane32_swap_b32 v{LO}, v{LO + 2}")
    e("v_lshl_add_u32 v10, v11, 4, v10")
    step = len(body) // len(early)
    for i, t in enumerate(body):
        a(t)
        if early and i % step == step - 1:
            a(early.pop(0))
    for t in early:
        a(t)
    a("s_mul_i32 s7, s40, 1152")
    a("s_add_u32 s22, s22, s7")
    a(f"s_add_u32 s22, s22, {OO}")
    a("s_lshl_b32 s7, s3, 8")
    a("s_add_u32 s23, s22, s7")
    a(f"s_add_u32 s24, s23, {4 * GB}")
    a("s_lshl_b32 s7, s3, 2")
    a("s_add_u32 s22, s22, s7")
    a(f"buffer_store_dwordx4 v[{OUT}:{OUT + 3}], v9, s[8:11], s23 offen sc1")
    a(f"buffer_store_dwordx4 v[{OUT + 4}:{OUT + 7}], v9, s[8:11], s24 offen sc1")
    a(f"buffer_store_dword v{LO}, v10, s[8:11], s22 offen offset:1024 sc1")
    mark(a, 3)
    publish(a, PH_QKV)
    mark(a, 4)


def phase_wo(a, abort):
    RES, BF, ACC, T = 240, 20, 40, 64
    a("s_and_b32 s7, s3, 1")
    a(f"s_mul_i32 s7, s7, {2 * GB}")
    a("s_add_u32 s23, s30, s7")
    a("s_lshr_b32 s7, s3, 1")
    a("s_lshl_b32 s7, s7, 9")
    a("s_add_u32 s23, s23, s7")
    a(f"s_add_u32 s23, s23, {OO}")
    a("s_mov_b32 s16, 0xffff0000")
    for sl in range(3):
        for i in range(4):
            a(f"v_lshlrev_b32 v{T + 8 * sl + 2 * i}, 16, v{RES + 4 * sl + i}")
            a(f"v_and_b32 v{T + 8 * sl + 2 * i + 1}, s16, v{RES + 4 * sl + i}")
    poll32(a, PH_QKV, abort)
    mark(a, 5)
    a("s_lshl_b32 m0, s3, 10")
    for m in range(9):
        if m:
            a("s_add_u32 m0, m0, 4096")
            a("s_add_u32 s23, s23, 1024")
        else:
            a("s_nop 0")
        a("buffer_load_dwordx4 v2, s[8:11], s23 offen sc1 lds")
    a("s_waitcnt vmcnt(0)")
    a("s_barrier")
    mark(a, 6)
    for tt in range(2):
        a(f"ds_read_b128 v[{BF + 4 * tt}:{BF + 4 * tt + 3}], v4 offset:{tt * KB}")
    for ks in range(18):
        cur, nxt = BF + 8 * (ks & 1), BF + 8 * ((ks + 1) & 1)
        a("s_waitcnt lgkmcnt(0)")
        i = 0
        for sl in range(3):
            for tt in range(2):
                c = ACC + 4 * (2 * sl + tt)
                w = (ks * 3 + sl) * 4
                src = "0" if ks == 0 else f"v[{c}:{c + 3}]"
                a(f"v_mfma_f32_16x16x32_bf16 v[{c}:{c + 3}], a[{w}:{w + 3}], v[{cur + 4 * tt}:{cur + 4 * tt + 3}], {src}")
                if i < 2 and ks < 17:
                    a(f"ds_read_b128 v[{nxt + 4 * i}:{nxt + 4 * i + 3}], v4 offset:{((ks + 1) * 2 + i) * KB}")
                i += 1
    mark(a, 7)
    a("s_nop 3")
    for sl in range(3):
        c = ACC + 8 * sl
        for r in range(4):
            a(f"v_permlane16_swap_b32 v{c + r}, v{c + 4 + r}")
        for i in range(4):
            t = T + 8 * sl + 2 * i
            a(f"v_pk_add_f32 v[{t}:{t + 1}], v[{t}:{t + 1}], v[{c + 2 * i}:{c + 2 * i + 1}]")
        for i in range(4):
            t = T + 8 * sl + 2 * i
            a(f"v_cvt_pk_bf16_f32 v{RES + 4 * sl + i}, v{t}, v{t + 1}")
        a(f"buffer_store_dwordx4 v[{RES + 4 * sl}:{RES + 4 * sl + 3}], v{7 if sl == 2 else 9}, s[8:11], s36 offen offset:{sl * KB} sc1")
    publish(a, PH_WO)
    mark(a, 8)


FFN_LDS = 144 * KB
HB = 72 * KB


def pack_gaps(n_gaps, pinned, ops, start=0, cap=2):
    gaps = [list(pinned.get(g, [])) for g in range(n_gaps)]
    g = start
    for text, cost, earliest in ops:
        g = max(g, earliest)
        while sum(c for _, c in gaps[g]) + cost > cap:
            g += 1
        gaps[g].append((text, cost))
    return gaps


def check_stage_reads(mf, gaps, base, n):
    stage = {("v", base + i) for i in range(n)}
    wr = {}
    for i, t in enumerate(mf):
        for r in hazards.I(t, 0).w & stage:
            wr[r] = i
    for i, g in enumerate(gaps):
        for t, _ in g:
            for r in hazards.I(t, 0).r & stage:
                assert i < wr[r], (i, t, wr[r])


def phase_ffn(a, abort):
    RING, ACC, STG, TMP, VB = 16, 88, 120, 152, 184
    xreg = lambda tt, ks: reg(256 + 4 * (tt * 18 + ks), 4) if tt * 18 + ks < 64 else reg(220 + 4 * (tt * 18 + ks - 64), 4)
    a("s_lshl_b32 s7, s40, 2")
    a("s_add_u32 s7, s7, s3")
    a(f"s_mul_i32 s23, s7, {WSTR}")
    a(f"s_add_u32 s23, s23, {WF}")
    a(f"s_add_u32 s50, s23, {WSTR}")
    a(f"v_lshlrev_b32 v{VB}, 4, v0")
    for m in range(1, 9):
        a(f"v_add_u32 v{VB + m}, {4096 * m}, v{VB}")

    def wload(slot, n):
        r = RING + 4 * slot
        return f"buffer_load_dwordx4 v[{r}:{r + 3}], v{VB + n // 4}, s[48:51], s23 offen offset:{(n % 4) * KB} {Cfg.wflag}"

    for n in range(15):
        a(wload(n, n))
    a(f"s_add_u32 s23, s23, {15 * KB}")
    a("s_lshl_b32 s7, s41, 2")
    a("s_add_u32 s7, s7, s3")
    a(f"s_mul_i32 s22, s7, {2 * GB}")
    a("s_add_u32 s22, s22, s43")
    a(f"s_add_u32 s22, s22, {X1}")
    poll32(a, PH_WO, abort)
    mark(a, 9)
    RAW = 88
    for ks in range(18):
        if ks and ks % 8 == 0:
            a("s_add_u32 s22, s22, 4096")
        a(f"buffer_load_dwordx4 v[{RAW + 4 * ks}:{RAW + 4 * ks + 3}], v2, s[8:11], s22 offen offset:{(ks % 8) * 512} sc1")
    a("s_mov_b32 s16, 0xffff0000")
    a("s_mov_b32 s17, 0x3f803f80")
    for i in range(8):
        a(f"v_mov_b32 v{4 + i}, 0")
    for ks in range(18):
        a(f"s_waitcnt vmcnt({17 - ks})")
        for i in range(4):
            a(f"v_dot2c_f32_bf16 v{4 + i}, s17, v{RAW + 4 * ks + i}")
            a(f"v_dot2c_f32_bf16 v{8 + i}, v{RAW + 4 * ks + i}, v{RAW + 4 * ks + i}")
    mark(a, 10)
    a("s_nop 2")
    a("v_pk_add_f32 v[4:5], v[4:5], v[6:7]")
    a("v_pk_add_f32 v[8:9], v[8:9], v[10:11]")
    a("v_add_f32 v4, v4, v5")
    a("v_add_f32 v5, v8, v9")
    rowsum_16_32(a, ["v4", "v5"], ["v6", "v7"])
    ln_coeffs(a, "v4", "v5", 6, 8)
    a(f"s_mul_i32 s7, s3, {18 * KB}")
    a(f"v_add_u32 v10, s7, v{VB}")
    for ks in range(18):
        normalize(a, RAW + 4 * ks, RAW + 4 * ks, 4, 6, 8, 160 + 8 * (ks & 1))
        a(f"ds_write_b128 v10, v[{RAW + 4 * ks}:{RAW + 4 * ks + 3}] offset:{ks * KB}")
    a(f"v_add_u32 v11, {36 * KB}, v{VB}")
    a("s_waitcnt lgkmcnt(0)")
    a("s_barrier")
    mark(a, 11)
    for ks in range(18):
        for tt in range(4):
            f = tt * 18 + ks
            a(f"ds_read_b128 {xreg(tt, ks)}, v{VB if f < 36 else 11} offset:{(f % 36) * KB}")
    a("s_lshr_b32 s7, s3, 1")
    a("s_lshl_b32 s7, s7, 10")
    a("s_and_b32 s6, s3, 1")
    a("s_lshl_b32 s6, s6, 3")
    a("s_add_u32 s24, s7, s6")
    a(f"s_add_u32 s24, s24, {HB}")
    a(f"s_add_u32 s7, s24, {16 * KB}")
    a(f"v_add_u32 v12, s7, v{VB}")
    k0 = -2.0 * math.sqrt(2.0 / math.pi) * math.log2(math.e)
    a(f"v_mov_b32 v13, {f32(k0 * 0.044715)}")
    a(f"v_mov_b32 v14, {f32(k0)}")
    a("s_mov_b32 s25, 0")
    a("s_waitcnt lgkmcnt(0)")
    mark(a, 12)

    def gelu_ops(first_gap):
        ops = []
        for tt in range(4):
            t, p, o = TMP + 10 * (tt & 1), TMP + 10 * (tt & 1) + 4, TMP + 10 * (tt & 1) + 8
            g, u = STG + 4 * tt, STG + 16 + 4 * tt
            e = first_gap(tt)
            for r in range(4):
                ops.append((f"v_mul_f32 v{t + r}, v{g + r}, v{g + r}", 1, e))
            for r in range(4):
                ops.append((f"v_fma_f32 v{t + r}, v{t + r}, v13, v14", 1, e))
            for r in range(4):
                ops.append((f"v_mul_f32 v{t + r}, v{g + r}, v{t + r}", 1, e))
            for r in range(4):
                ops.append((f"v_exp_f32 v{t + r}, v{t + r}", 2, e))
            for r in range(4):
                ops.append((f"v_mul_f32 v{p + r}, v{g + r}, v{u + r}", 1, e))
            for r in range(4):
                ops.append((f"v_add_f32 v{t + r}, 1.0, v{t + r}", 1, e))
            for r in range(4):
                ops.append((f"v_rcp_f32 v{t + r}, v{t + r}", 2, e))
            for r in range(4):
                ops.append((f"v_mul_f32 v{p + r}, v{p + r}, v{t + r}", 1, e))
            ops.append((f"v_cvt_pk_bf16_f32 v{o}, v{p}, v{p + 1}", 1, e))
            ops.append((f"v_cvt_pk_bf16_f32 v{o + 1}, v{p + 2}, v{p + 3}", 1, e))
            ops.append((f"ds_write_b64 v12, v[{o}:{o + 1}] offset:{tt * 18 * KB}", 2, e))
        return ops

    lp = a.label("ffn_gu")
    a(f"{lp}:")
    mf, pinned = [], {}
    for G in range(12):
        gu, grp = G & 1, G >> 1
        for tt in range(4):
            for kk in range(3):
                ks = 3 * grp + kk
                c = ACC + 16 * gu + 4 * tt
                d = STG + 16 * gu + 4 * tt if ks == 17 else c
                src = "0" if ks == 0 else f"v[{c}:{c + 3}]"
                w = RING + 4 * ((3 * G + kk) % 18)
                mf.append(f"v_mfma_f32_16x16x32_bf16 v[{d}:{d + 3}], v[{w}:{w + 3}], {xreg(tt, ks)}, {src}")
        for kk in range(3):
            n = 3 * G + kk
            pinned[12 * G + 4 * kk + 1] = [(wload((n + 15) % 18, n), 2)]
    gaps = pack_gaps(144, pinned, gelu_ops(lambda tt: 2))
    check_stage_reads(mf, gaps, STG, 32)
    for i in range(144):
        if i % 12 == 0:
            a("s_waitcnt vmcnt(12)")
        a(mf[i])
        for text, _ in gaps[i]:
            a(text)
        if i == 139:
            a("s_lshl_b32 s7, s25, 11")
        if i == 140:
            a("s_add_u32 s7, s7, s24")
        if i == 142:
            a(f"s_add_u32 s23, s23, {36 * KB}")
    a(f"v_add_u32 v12, s7, v{VB}")
    a("s_add_u32 s25, s25, 1")
    a("s_cmp_lt_u32 s25, 9")
    a(f"s_cbranch_scc1 {lp}")
    mark(a, 13)
    a(f"v_add_u32 v10, {HB}, v{VB}")
    a(f"v_add_u32 v11, {HB + 36 * KB}, v{VB}")
    a("s_waitcnt lgkmcnt(0)")
    a("s_barrier")
    hread = lambda tt, ks: f"ds_read_b128 {xreg(tt, ks)}, v{10 if tt < 2 else 11} offset:{((tt * 18 + ks) % 36) * KB}"
    reads = [hread(tt, ks) for ks in range(16) for tt in range(4)]
    ops = [t for t, _, _ in gelu_ops(lambda tt: 0)]
    for i, t in enumerate(ops):
        a(t)
        if "v_exp" in t or "v_rcp" in t or i % 3 == 0:
            if reads:
                a(reads.pop(0))
    for t in reads:
        a(t)
    dtile_voff(a, "v2", "v4", None, 8 * GB)
    a(f"v_add_u32 v3, {32 * GB}, v2")
    a(f"s_mul_i32 s26, s41, {64 * GB}")
    a("s_add_u32 s26, s26, s43")
    a(f"s_mul_i32 s7, s40, {GB}")
    a("s_add_u32 s26, s26, s7")
    a(f"s_mul_i32 s7, s3, {9 * 256}")
    a("s_add_u32 s26, s26, s7")
    a(f"s_add_u32 s26, s26, {PART}")
    a(f"s_add_u32 s27, s26, {8 * 256}")
    a("s_waitcnt lgkmcnt(0)")
    a("s_barrier")
    for ks in (16, 17):
        for tt in range(4):
            a(hread(tt, ks))
    a("s_mov_b32 s25, 0")
    a("s_waitcnt lgkmcnt(0)")
    mark(a, 14)

    def down_epi(e):
        ops = []
        for pr in range(2):
            o = TMP + 4 * pr
            for h in range(2):
                s = STG + 4 * (2 * pr + h)
                ops.append((f"v_cvt_pk_bf16_f32 v{o + 2 * h}, v{s}, v{s + 1}", 1, e))
                ops.append((f"v_cvt_pk_bf16_f32 v{o + 2 * h + 1}, v{s + 2}, v{s + 3}", 1, e))
        for pr in range(2):
            o = TMP + 4 * pr
            ops.append((f"v_permlane16_swap_b32 v{o}, v{o + 2}", 2, e))
            ops.append((f"v_permlane16_swap_b32 v{o + 1}, v{o + 3}", 2, e))
        for pr in range(2):
            o = TMP + 4 * pr
            if not Cfg.nostore:
                ops.append((f"buffer_store_dwordx4 v[{o}:{o + 3}], v{2 + pr}, s[8:11], s27 offen sc1", 2, e))
        return ops

    lp = a.label("ffn_dn")
    a(f"{lp}:")
    mf, pinned = [], {}
    for G in range(6):
        for tt in range(4):
            for kk in range(3):
                ks = 3 * G + kk
                c = ACC + 4 * tt
                d = STG + 4 * tt if ks == 17 else c
                src = "0" if ks == 0 else f"v[{c}:{c + 3}]"
                w = RING + 4 * ks
                mf.append(f"v_mfma_f32_16x16x32_bf16 v[{d}:{d + 3}], v[{w}:{w + 3}], {xreg(tt, ks)}, {src}")
        for kk in range(3):
            n = 3 * G + kk
            pinned[12 * G + 4 * kk + 1] = [(wload((n + 15) % 18, n), 2)]
    gaps = pack_gaps(72, pinned, down_epi(6))
    check_stage_reads(mf, gaps, STG, 16)
    store_groups = [i // 12 for i in range(72) for t, _ in gaps[i] if "store" in t]
    for i in range(72):
        if i % 12 == 0:
            G = i // 12
            extra = sum(1 for sg in store_groups if 0 <= G - 1 - sg <= 3)
            a(f"s_waitcnt vmcnt({12 + extra})")
        a(mf[i])
        for text, _ in gaps[i]:
            a(text)
        if i == 66:
            a("s_lshl_b32 s7, s25, 8")
        if i == 67:
            a("s_add_u32 s27, s26, s7")
        if i == 70:
            a(f"s_add_u32 s23, s23, {18 * KB}")
    a("s_add_u32 s25, s25, 1")
    a("s_cmp_lt_u32 s25, 9")
    a(f"s_cbranch_scc1 {lp}")
    mark(a, 15)
    a("s_nop 7")
    prev = None
    for t, _, _ in down_epi(0):
        if "permlane" in t and "cvt" in prev:
            a("s_nop 1")
        a(t)
        prev = t
    publish(a, PH_FFN)
    mark(a, 20)


def k_main(a):
    name = "main_kernel"
    kernel_begin(a, name)
    end, last, loop = "L_main_end", "L_main_last", "L_main_layer"
    entry(a, 256, end, ["s_load_dwordx2 s[6:7], s[0:1], 56"])
    srd(a, 12, "s6", "s7", 2048 * 1152)
    srd(a, 48, "s4", "s5", WS_SIZE)
    Cfg.sv = 254
    if Cfg.stamps:
        a("v_mov_b32 v254, 0")
        a("v_mov_b32 v255, 0")
    tile_map(a, "s40", "s41", Cfg.jx)
    a("s_mov_b32 s42, 0")
    a("s_mov_b32 s43, 0")
    a("s_lshl_b32 s44, s41, 7")
    a(f"s_add_u32 s44, s44, {FLAGS}")
    mark(a, 31)
    a(f"{loop}:")
    phase_qkv(a, end)
    phase_wo(a, end)
    phase_ffn(a, end)
    tail = phase_red(a, end, last)
    a("s_mov_b32 s42, 1")
    a(f"s_mov_b32 s43, {LSTR}")
    a(f"s_add_u32 s44, s44, {4 * 4096}")
    a(f"s_branch {loop}")
    a(f"{last}:")
    tail()
    if Cfg.stamps:
        a("s_waitcnt vmcnt(0)")
        mark(a, 19)
        dump_marks(a, 1)
    a(f"{end}:")
    a("s_endpgm")
    return name, 256, 256


def build(stamps=False, launches=None):
    Cfg.stamps = stamps
    a = Asm()
    a('.amdgcn_target "amdgcn-amd-amdhsa--gfx950"')
    kernels = [k_prep(a), k_main(a)]
    for name, nv, na in kernels:
        kernel_desc(a, name, nv, na, 100 if stamps else 64)
    geo = {"prep": (N_PREP, NB * 16 * KB), "main": (256, FFN_LDS)}
    launches = launches or ["prep", "main"]
    head = HEADER + "".join(
        f"; @launch kernel={k}_kernel grid=({geo[k][0]},1,1) block=(256,1,1) lds={geo[k][1]}\n" for k in launches)
    text = head + a.text()
    bad = hazards.check(text)
    if bad:
        print("\n".join(bad[:40]), file=sys.stderr)
        raise SystemExit(f"{len(bad)} hazards")
    return text


if __name__ == "__main__":
    out = sys.argv[1] if len(sys.argv) > 1 else os.path.join(os.path.dirname(os.path.abspath(__file__)), "..", NAME + ".s")
    stamps = "--stamps" in sys.argv
    launches = None
    for x in sys.argv[2:]:
        if x.startswith("--launch="):
            launches = x.split("=")[1].split(",")
        elif x.startswith("--set="):
            for kv in x[6:].split(","):
                k, v = kv.split(":")
                setattr(Cfg, k, int(v) if v.isdigit() else v.replace("+", " "))
    open(out, "w").write(build(stamps, launches))
```

```python
import math
import os
import struct
import sys

sys.path.insert(0, os.path.dirname(os.path.abspath(__file__)))
from asmlib import Asm, kernel_begin, kernel_desc, reg, srd
import hazards

NAME = "interleave_layers__sliding_local_dilated__glu_gated_geglu__prompt"
KB = 1024
GB = 9216
WS_SIZE = 256 << 20
WQ = 0
WO = 0x240000
WF = 0x300000
WSTR = 486 * KB
FLAGS = 0x1240000
FPH = 256 * 128
SL_WQ, SL_WF, SL_WO = 9, 10, 11
EPOCH = 0x12C0000
XN = 0x1300000
OO = 0x1540000
MEAN1 = 0x1780000
X2 = 0x19C0000
PART = 0x1C00000
XC = 0x2E00000
MEAN = 0x3040000
STAT = 0x3050000
LSTR = 0x2000000
OOB = 0x40000000
STAMP_OFF = 255 << 20

HEADER = """; Kernarg layout for this problem (80 bytes, ptrs only, base s[0:1]):
"""


def f32(x):
    return "0x%08x" % struct.unpack("<I", struct.pack("<f", x))[0]


def sdiv(a, dst, src, d, hi):
    m = -(-(1 << 20) // d)
    assert all((x * m) >> 20 == x // d for x in range(hi + 1)) and hi * m < (1 << 32)
    a(f"s_mul_i32 {dst}, {src}, {m}")
    a(f"s_lshr_b32 {dst}, {dst}, 20")


def sdivmod(a, q, r, src, d, hi):
    sdiv(a, q, src, d, hi)
    a(f"s_mul_i32 {r}, {q}, {d}")
    a(f"s_sub_u32 {r}, {src}, {r}")


def csel(a, dst, x, y):
    a(f"s_mov_b32 {dst}, {y}")
    a(f"s_cmov_b32 {dst}, {x}")


class Vm:
    def __init__(self):
        self.ops = []

    def issue(self, tag):
        self.ops.append(tag)

    def count(self, *tags):
        last = max(i for i, t in enumerate(self.ops) if t in tags)
        return len(self.ops) - 1 - last


class Cfg:
    stamps = False
    jx = 4
    wflag = "sc1"
    nostore = 0
    wo_per_ks = 4
    red_ahead = 8
    sleep = 0
    pw = 0


def tile_map(a, sj, smt, jx):
    lg = jx.bit_length() - 1
    a(f"s_and_b32 {sj}, s2, {8 // jx - 1}")
    a(f"s_lshl_b32 {sj}, {sj}, {lg}")
    a(f"s_bfe_u32 s7, s2, {3 | (lg << 16)}")
    a(f"s_add_u32 {sj}, {sj}, s7")
    a(f"s_bfe_u32 {smt}, s2, {(3 - lg) | (lg << 16)}")
    a(f"s_lshl_b32 {smt}, {smt}, {5 - lg}")
    a(f"s_lshr_b32 s7, s2, {3 + lg}")
    a(f"s_add_u32 {smt}, {smt}, s7")


def entry(a, nwg, end, extra_loads=()):
    a(f"s_cmp_ge_u32 s2, {nwg}")
    a(f"s_cbranch_scc1 {end}")
    a("s_load_dwordx2 s[4:5], s[0:1], 72")
    for l in extra_loads:
        a(l)
    a("v_lshrrev_b32 v1, 6, v0")
    a("v_and_b32 v0, 63, v0")
    a("v_readfirstlane_b32 s3, v1")
    a("s_waitcnt lgkmcnt(0)")
    srd(a, 8, "s4", "s5", WS_SIZE)


def mark(a, idx):
    if Cfg.stamps:
        a("s_memrealtime s[94:95]")
        a("s_memtime s[96:97]")
        a("s_lshl_b32 m0, s42, 5")
        a(f"s_add_u32 m0, m0, {idx}")
        a("s_waitcnt lgkmcnt(0)")
        a(f"v_writelane_b32 v{Cfg.sv}, s94, m0")
        a(f"v_writelane_b32 v{Cfg.sv + 1}, s96, m0")


def dump_marks(a, slot):
    if Cfg.stamps:
        a("s_lshl_b32 s7, s2, 2")
        a("s_add_u32 s7, s7, s3")
        a("s_lshl_b32 s7, s7, 9")
        a(f"s_add_u32 s7, s7, {STAMP_OFF + slot * 0x80000}")
        a("v_lshlrev_b32 v1, 2, v0")
        a(f"buffer_store_dword v{Cfg.sv}, v1, s[8:11], s7 offen")
        a(f"buffer_store_dword v{Cfg.sv + 1}, v1, s[8:11], s7 offen offset:256")


PH_QKV, PH_WO, PH_FFN, PH_RED = range(4)


def publish(a, phase, extra=None):
    skip = a.label("pub")
    a("v_lshlrev_b32 v15, 7, v0")
    a("s_lshl_b32 s6, s40, 2")
    a("s_add_u32 s6, s6, s44")
    if phase > 0:
        a(f"s_add_u32 s6, s6, {phase * FPH}")
    elif phase < 0:
        a(f"s_sub_u32 s6, s6, {-phase * FPH}")
    a("v_mov_b32 v1, s76")
    a("s_mov_b64 vcc, 0xff")
    if phase % 4 == PH_RED:
        a("v_lshrrev_b32 v14, 3, v0")
        a("v_lshl_add_u32 v15, v14, 3, v15")
        a("s_cmp_ge_u32 s40, 6")
        a("s_cselect_b32 s7, s41, 31")
        a("s_cmp_lt_u32 s7, 31")
        a("s_cmov_b64 vcc, 0xffff")
    a("s_waitcnt vmcnt(0)")
    a("s_barrier")
    a(f"s_cmp_lg_u32 s3, {Cfg.pw}")
    a(f"s_cbranch_scc1 {skip}")
    a("s_mov_b64 exec, vcc")
    a("buffer_store_dword v1, v15, s[8:11], s6 offen sc1")
    if extra:
        extra(skip)
    a(f"{skip}:")
    a("s_mov_b64 exec, -1")


def column_flag(a, slot):
    a("v_lshlrev_b32 v15, 10, v0")
    a("s_lshl_b32 s6, s40, 7")
    a("s_lshl_b32 s7, s41, 2")
    a("s_add_u32 s6, s6, s7")
    a(f"s_add_u32 s6, s6, {FLAGS + slot * FPH}")
    a("s_mov_b64 exec, 0xffffffff")
    a("v_lshlrev_b32 v15, 10, v0")
    a("v_mov_b32 v1, s76")
    a("buffer_store_dword v1, v15, s[8:11], s6 offen sc1")


def spin_words(a, soff, vaddr, abort):
    lp, ok = a.label("spin"), a.label("spun")
    a("s_mov_b32 s6, 0")
    a(f"{lp}:")
    a(f"buffer_load_dword v1, {vaddr}, s[8:11], {soff} offen sc1")
    a("s_add_u32 s6, s6, 1")
    a("s_waitcnt vmcnt(0)")
    a("v_cmp_eq_u32 vcc, s76, v1")
    a("s_cmp_eq_u64 vcc, exec")
    a(f"s_cbranch_scc1 {ok}")
    a(f"s_cmp_lt_u32 s6, {1 << 20}")
    a(f"s_cbranch_scc1 {lp}")
    a(f"s_branch {abort}")
    a(f"{ok}:")


def column_wait(a, slot, abort):
    a("v_and_b32 v15, 31, v0")
    a("v_lshlrev_b32 v15, 2, v15")
    a("s_lshl_b32 s7, s41, 3")
    a("s_add_u32 s7, s7, s40")
    a("s_lshl_b32 s7, s7, 7")
    a(f"s_add_u32 s7, s7, {FLAGS + slot * FPH}")
    spin_words(a, "s7", "v15", abort)


def wait_flags(a, off, abort, halo=False, extra=None):
    lp, ok, out = a.label("poll"), a.label("polled"), a.label("pollout")
    a(f"s_cmp_lg_u32 s3, {Cfg.pw}")
    a(f"s_cbranch_scc1 {out}")
    a("s_lshl_b32 s7, s40, 7")
    a("s_add_u32 s7, s7, s44")
    if off > 0:
        a(f"s_add_u32 s7, s7, {off}")
    elif off < 0:
        a(f"s_sub_u32 s7, s7, {-off}")
    a("s_add_u32 s52, s4, s7")
    a("s_addc_u32 s53, s5, 0")
    if halo:
        a("s_cmp_eq_u32 s41, 0")
        a("s_cselect_b32 s7, 0, 32")
    a("s_mov_b32 s6, 0")
    a(f"{lp}:")
    a("s_load_dwordx8 s[56:63], s[52:53], 0 glc")
    if halo:
        a("s_load_dwordx2 s[54:55], s[52:53], s7 glc")
    a("s_add_u32 s6, s6, 1")
    a("s_waitcnt lgkmcnt(0)")
    for r in ([54] if halo else []) + [56, 58, 60, 62]:
        a(f"s_xor_b64 s[{r}:{r + 1}], s[{r}:{r + 1}], s[76:77]")
    a("s_or_b64 s[56:57], s[56:57], s[58:59]")
    a("s_or_b64 s[60:61], s[60:61], s[62:63]")
    if halo:
        a("s_or_b64 s[56:57], s[56:57], s[54:55]")
    a("s_or_b64 s[56:57], s[56:57], s[60:61]")
    a(f"s_cbranch_scc0 {ok}")
    a(f"s_cmp_lt_u32 s6, {1 << 20}")
    a(f"s_cbranch_scc1 {lp}")
    a(f"s_branch {abort}")
    a(f"{ok}:")
    if extra:
        extra(out)
    a(f"{out}:")
    a("s_barrier")


def bfrag_voff(a, dst, tmp):
    a(f"v_bfe_u32 {tmp}, v0, 3, 1")
    a(f"v_mul_u32_u24 {dst}, {GB}, {tmp}")
    a(f"v_lshrrev_b32 {tmp}, 4, v0")
    a(f"v_lshl_add_u32 {dst}, {tmp}, 7, {dst}")
    a(f"v_and_b32 {tmp}, 7, v0")
    a(f"v_lshl_add_u32 {dst}, {tmp}, 4, {dst}")


def dtile_voff(a, dst, tmp, tmp2, gstride):
    a(f"v_bfe_u32 {tmp}, v0, 3, 2")
    a(f"s_mov_b32 s7, {gstride}")
    a(f"v_mul_lo_u32 {dst}, {tmp}, s7")
    a(f"v_lshrrev_b32 {tmp}, 5, v0")
    a(f"v_lshl_add_u32 {dst}, {tmp}, 7, {dst}")
    a(f"v_and_b32 {tmp}, 7, v0")
    a(f"v_lshl_add_u32 {dst}, {tmp}, 4, {dst}")


def rowsum_16_32(a, vals, tmp):
    for swap in ("v_permlane32_swap_b32", "v_permlane16_swap_b32"):
        for i, v in enumerate(vals):
            a(f"v_mov_b32 {tmp[i]}, {v}")
        a("s_nop 1")
        for i, v in enumerate(vals):
            a(f"{swap} {tmp[i]}, {v}")
        for i, v in enumerate(vals):
            a(f"v_add_f32 {v}, {v}, {tmp[i]}")


def ln_coeffs(a, vs, vss, rstd, nb):
    a(f"v_mul_f32 {vs}, {f32(1.0 / 576)}, {vs}")
    a(f"v_mul_f32 {vss}, {f32(1.0 / 576)}, {vss}")
    a(f"v_fma_f32 {vss}, -{vs}, {vs}, {vss}")
    a(f"v_max_f32 {vss}, 0, {vss}")
    a(f"v_add_f32 {vss}, {f32(1e-5)}, {vss}")
    a(f"v_rsq_f32 v{rstd}, {vss}")
    a("s_nop 0")
    a(f"v_mul_f32 v{nb}, {vs}, v{rstd}")
    a(f"v_mov_b32 v{rstd + 1}, v{rstd}")
    a(f"v_sub_f32 v{nb}, 0, v{nb}")
    a(f"v_mov_b32 v{nb + 1}, v{nb}")


def normalize(a, src, dst, n, rstd, nb, tmp):
    for i0 in range(0, n, 4):
        k = min(4, n - i0)
        for i in range(k):
            a(f"v_lshlrev_b32 v{tmp + 2 * i}, 16, v{src + i0 + i}")
            a(f"v_and_b32 v{tmp + 2 * i + 1}, s16, v{src + i0 + i}")
        for i in range(k):
            t = tmp + 2 * i
            a(f"v_pk_fma_f32 v[{t}:{t + 1}], v[{t}:{t + 1}], v[{rstd}:{rstd + 1}], v[{nb}:{nb + 1}]")
        for i in range(k):
            t = tmp + 2 * i
            a(f"v_cvt_pk_bf16_f32 v{dst + i0 + i}, v{t}, v{t + 1}")


VR, VM = 2, 5


def red_offsets(a):
    a("s_mov_b32 s16, 0xffff0000")
    a("s_lshl_b32 s7, s3, 10")
    a(f"v_lshl_add_u32 v{VR}, v0, 4, s7")
    a(f"v_add_u32 v{VR + 1}, 4096, v{VR}")
    a("v_and_b32 v8, 7, v0")
    a("v_mul_u32_u24 v8, 1152, v8")
    a("v_lshrrev_b32 v9, 3, v0")
    a("v_lshl_add_u32 v8, v9, 4, v8")
    a("s_lshl_b32 s7, s3, 7")
    a(f"v_add_u32 v{VM}, s7, v8")
    a(f"v_add_u32 v{VM + 1}, 512, v{VM}")
    a("s_cmp_eq_u32 s3, 0")
    csel(a, "s17", 8192, OOB)
    a(f"v_add_u32 v{VR + 2}, s17, v{VR}")
    csel(a, "s17", 1024, OOB)
    a(f"v_add_u32 v{VM + 2}, s17, v{VM}")


def red_ln_store(a, XB, sX2, sXN, sMEAN, flag):
    for b in range(3):
        a(f"buffer_store_dwordx4 v[{XB + 4 * b}:{XB + 4 * b + 3}], v{VR + b}, s[8:11], {sX2} offen {flag}")
    a("s_mov_b32 s17, 0x3f803f80")
    for i in range(4):
        a(f"v_mov_b32 v{8 + i}, 0")
    for i in range(12):
        a(f"v_dot2c_f32_bf16 v{8 + 2 * (i & 1)}, s17, v{XB + i}")
        a(f"v_dot2c_f32_bf16 v{9 + 2 * (i & 1)}, v{XB + i}, v{XB + i}")
    a("v_and_b32 v12, 7, v0")
    a("v_lshlrev_b32 v12, 3, v12")
    a("s_lshl_b32 s7, s3, 6")
    a("v_add_u32 v13, s7, v12")
    a("v_pk_add_f32 v[8:9], v[8:9], v[10:11]")
    a("s_nop 1")
    a("v_add_f32_dpp v8, v8, v8 row_ror:8 row_mask:0xf bank_mask:0xf")
    a("v_add_f32_dpp v9, v9, v9 row_ror:8 row_mask:0xf bank_mask:0xf")
    rowsum_16_32(a, ["v8", "v9"], ["v10", "v11"])
    a("ds_write_b64 v13, v[8:9]")
    a("s_waitcnt lgkmcnt(0)")
    a("s_barrier")
    T = 40
    for w in range(4):
        a(f"ds_read_b64 v[{T + 2 * w}:{T + 2 * w + 1}], v12 offset:{64 * w}")
    a("s_waitcnt lgkmcnt(0)")
    a(f"v_pk_add_f32 v[{T}:{T + 1}], v[{T}:{T + 1}], v[{T + 2}:{T + 3}]")
    a(f"v_pk_add_f32 v[{T + 4}:{T + 5}], v[{T + 4}:{T + 5}], v[{T + 6}:{T + 7}]")
    a(f"v_pk_add_f32 v[8:9], v[{T}:{T + 1}], v[{T + 4}:{T + 5}]")
    ln_coeffs(a, "v8", "v9", 10, 12)
    a("s_cmp_eq_u32 s3, 0")
    a("s_cselect_b32 s7, 32, 0")
    a("v_lshlrev_b32 v14, 2, v0")
    a("v_cmp_gt_u32 vcc, s7, v0")
    a(f"v_mov_b32 v9, {OOB}")
    a("s_nop 0")
    a("v_cndmask_b32 v14, v9, v14, vcc")
    a(f"buffer_store_dword v8, v14, s[8:11], {sMEAN} offen {flag}")
    normalize(a, XB, 48, 12, 10, 12, T)
    for b in range(3):
        a(f"buffer_store_dwordx4 v[{48 + 4 * b}:{51 + 4 * b}], v{VR + b}, s[8:11], {sXN} offen {flag}")


def phase_red(a, abort, last):
    red_offsets(a)
    a("s_lshl_b32 s21, s41, 3")
    a("s_add_u32 s21, s21, s40")
    a(f"s_mul_i32 s18, s21, {GB}")
    a("s_add_u32 s19, s18, s43")
    a(f"s_add_u32 s22, s19, {XC}")
    a(f"s_mul_i32 s20, s21, {8 * GB}")
    a("s_add_u32 s20, s20, s43")
    a(f"s_add_u32 s20, s20, {PART}")
    a("s_lshl_b32 s23, s21, 5")
    a("s_add_u32 s23, s23, s43")
    a(f"s_add_u32 s23, s23, {MEAN1}")
    a("v_and_b32 v8, 7, v0")
    a("v_lshlrev_b32 v8, 2, v8")
    LD, ACC, TMP, XB = 16, 124, 148, 156
    a("buffer_load_dword v10, v8, s[8:11], s23 offen sc1")
    for b in range(3):
        a(f"buffer_load_dwordx4 v[{LD + 4 * b}:{LD + 4 * b + 3}], v{VR + b}, s[8:11], s22 offen sc1")

    def unpack(dst, r):
        for i in range(4):
            a(f"v_lshlrev_b32 v{dst + 2 * i}, 16, v{r + i}")
            a(f"v_and_b32 v{dst + 2 * i + 1}, s16, v{r + i}")

    a("s_cmp_eq_u32 s3, 0")
    a("s_cselect_b32 s7, 1.0, 0")
    a("s_waitcnt vmcnt(0)")
    a("v_mul_f32 v11, s7, v10")
    for b in range(3):
        unpack(ACC + 8 * b, LD + 4 * b)
        for i in range(4):
            c = ACC + 8 * b + 2 * i
            sel = "op_sel:[0,1] op_sel_hi:[1,1]" if b == 2 else "op_sel_hi:[1,0]"
            a(f"v_pk_add_f32 v[{c}:{c + 1}], v[{c}:{c + 1}], v[10:11] {sel}")
    wait_flags(a, PH_FFN * FPH, abort)
    mark(a, 16)
    vm = Vm()
    queue = []
    for j in range(1, 9):
        for b in range(3):
            r = LD + (j * 3 + b) * 4
            t = f"buffer_load_dwordx4 v[{r}:{r + 3}], v{VR + b}, s[8:11], s20 offen sc1"
            if b == 2 and j < 8:
                t += f"\ns_add_u32 s20, s20, {GB}"
            queue.append((t, (j, b)))
    pf = Asm()
    qkv_prefetch(pf, 0, 6, "s42")
    chunk = ""
    for ln in pf.lines:
        chunk += ln + "\n"
        if "buffer_load" in ln:
            queue.append((chunk, "w"))
            chunk = ""

    def feed(n):
        for _ in range(n):
            if queue:
                t, tag = queue.pop(0)
                a(t)
                vm.issue(tag)

    feed(Cfg.red_ahead)
    for j in range(1, 9):
        for b in range(3):
            a(f"s_waitcnt vmcnt({vm.count((j, b))})")
            feed(1)
            unpack(TMP, LD + (j * 3 + b) * 4)
            if j >= 6:
                feed(1)
            for i in range(4):
                c = ACC + 8 * b + 2 * i
                a(f"v_pk_add_f32 v[{c}:{c + 1}], v[{c}:{c + 1}], v[{TMP + 2 * i}:{TMP + 2 * i + 1}]")
    feed(99)
    a(chunk)
    for b in range(3):
        for i in range(4):
            c = ACC + 8 * b + 2 * i
            a(f"v_cvt_pk_bf16_f32 v{XB + 4 * b + i}, v{c}, v{c + 1}")
    mark(a, 17)
    a("s_cmp_lg_u32 s42, 0")
    a(f"s_cbranch_scc1 {last}")
    a(f"s_add_u32 s19, s18, {X2 + LSTR}")
    a(f"s_add_u32 s20, s18, {XN + LSTR}")
    a("s_lshl_b32 s22, s21, 7")
    a(f"s_add_u32 s22, s22, {MEAN + LSTR}")
    red_ln_store(a, XB, "s19", "s20", "s22", "sc1")
    mark(a, 18)
    publish(a, PH_RED)
    mark(a, 19)

    def tail():
        for b in range(3):
            a(f"buffer_store_dwordx4 v[{XB + 4 * b}:{XB + 4 * b + 3}], v{VM + b}, s[12:15], s18 offen")
    return tail


ZB = 96 * KB


def o_row(a, dst, vc, vj, t0, t1):
    a(f"v_mul_u32_u24 {t0}, 7282, {vc}")
    a(f"v_lshrrev_b32 {t0}, 16, {t0}")
    a(f"v_mul_u32_u24 {t1}, 9, {t0}")
    a(f"v_sub_u32 {t1}, {vc}, {t1}")
    a(f"v_mul_u32_u24 {t0}, 72, {t0}")
    a(f"v_cmp_eq_u32 vcc, 8, {t1}")
    a(f"v_lshrrev_b32 {dst}, 1, {t1}")
    a(f"v_mad_u32_u24 {dst}, {dst}, 18, {t0}")
    a(f"v_and_b32 {t1}, 1, {t1}")
    a(f"v_lshl_add_u32 {dst}, {t1}, 3, {dst}")
    a(f"v_add_u32 {dst}, {dst}, {vj}")
    a(f"v_lshrrev_b32 {t1}, 1, {vj}")
    a(f"v_mad_u32_u24 {t0}, {t1}, 18, {t0}")
    a(f"v_and_b32 {t1}, 1, {vj}")
    a(f"v_add3_u32 {t0}, {t0}, {t1}, 16")
    a(f"v_cndmask_b32 {dst}, {dst}, {t0}, vcc")


def tr_rows(a, dst, tmp, shift, pitch):
    a(f"v_lshrrev_b32 {dst}, 4, v0")
    a(f"v_lshlrev_b32 {dst}, {shift}, {dst}")
    a(f"v_bfe_u32 {tmp}, v0, 2, 2")
    a(f"v_add_u32 {dst}, {dst}, {tmp}")
    a(f"v_mul_u32_u24 {dst}, {pitch}, {dst}")
    a(f"v_and_b32 {tmp}, 3, v0")
    a(f"v_lshl_add_u32 {dst}, {tmp}, 3, {dst}")


def phase_prep(a, abort):
    srd(a, 12, "s18", "s19", 2048 * 1152)
    srd(a, 64, "s20", "s21", 576 * 3456)
    srd(a, 68, "s22", "s23", 576 * 1152)
    red_offsets(a)
    a("s_lshl_b32 s21, s41, 3")
    a("s_add_u32 s21, s21, s40")
    a(f"s_mul_i32 s18, s21, {GB}")
    for b in range(3):
        a(f"buffer_load_dwordx4 v[{16 + 4 * b}:{19 + 4 * b}], v{VM + b}, s[12:15], s18 offen")
    srd(a, 12, "s30", "s31", 2048 * 1152)
    a("s_lshl_b32 s79, s3, 14")
    a(f"s_add_u32 s79, s79, {ZB}")
    nq, nq2 = a.label("noq"), a.label("noq")
    a("s_lshl_b32 s32, s3, 5")
    a("s_add_u32 s32, s32, s41")
    a("s_cmp_ge_u32 s32, 72")
    a(f"s_cbranch_scc1 {nq}")
    sdivmod(a, "s33", "s34", "s32", 18, 71)
    a("s_lshl_b32 s7, s40, 2")
    a("s_add_u32 s33, s33, s7")
    a(f"s_mul_i32 s35, s34, {32 * 3456}")
    a("s_mul_i32 s7, s33, 36")
    a("s_add_u32 s35, s35, s7")
    a(f"v_mov_b32 v13, {OOB}")
    for i in range(5):
        a(f"v_add_u32 v8, {64 * i}, v0")
        a("v_mul_u32_u24 v9, 21846, v8")
        a("v_lshrrev_b32 v9, 16, v9")
        a("v_mul_u32_u24 v10, 3, v9")
        a("v_sub_u32 v10, v8, v10")
        a("v_and_b32 v11, 31, v9")
        a("v_mul_u32_u24 v11, 3456, v11")
        a("v_lshl_add_u32 v11, v10, 4, v11")
        a("v_lshrrev_b32 v9, 5, v9")
        a("v_mul_u32_u24 v9, 1152, v9")
        a(f"s_add_u32 m0, s79, {i * KB}")
        a("v_add_u32 v11, v11, v9")
        if i == 4:
            a("v_cmp_gt_u32 vcc, 32, v0")
            a("s_nop 1")
            a("v_cndmask_b32 v11, v13, v11, vcc")
        a("buffer_load_dwordx4 v11, s[64:67], s35 offen lds")
    a(f"{nq}:")
    lw, l3, l4, l5 = a.label("wbar"), a.label("p3"), a.label("wbar"), a.label("p3")
    a("s_lshl_b32 s36, s41, 1")
    a("s_lshr_b32 s7, s40, 2")
    a("s_add_u32 s36, s36, s7")
    a("s_and_b32 s37, s40, 3")
    a("s_cmp_eq_u32 s3, 3")
    a(f"s_cbranch_scc1 {lw}")
    a("s_mul_i32 s38, s36, 3")
    a("s_add_u32 s38, s38, s3")
    a("s_cmp_ge_u32 s38, 162")
    a(f"s_cbranch_scc1 {l3}")
    sdivmod(a, "s39", "s45", "s38", 18, 161)
    a("s_mul_i32 s7, s37, 9")
    a("s_add_u32 s39, s39, s7")
    a("s_lshl_b32 s7, s45, 2")
    a("v_lshrrev_b32 v8, 4, v0")
    a("v_add_u32 v8, s7, v8")
    a("v_bfe_u32 v9, v0, 1, 3")
    o_row(a, "v10", "v8", "v9", "v11", "v12")
    a("v_mul_u32_u24 v10, 1152, v10")
    a("v_and_b32 v9, 1, v0")
    a("v_lshl_add_u32 v10, v9, 4, v10")
    a(f"s_add_u32 m0, s79, {6 * KB}")
    a("s_lshl_b32 s7, s39, 5")
    a("buffer_load_dwordx4 v10, s[68:71], s7 offen lds")
    a(f"s_branch {l3}")
    a(f"{lw}:")
    a("s_cmp_ge_u32 s36, 36")
    a(f"s_cbranch_scc1 {l3}")
    a("s_lshl_b32 s7, s36, 1")
    a("v_bfe_u32 v8, v0, 3, 1")
    a("v_add_u32 v8, s7, v8")
    a("v_and_b32 v9, 7, v0")
    o_row(a, "v10", "v8", "v9", "v11", "v12")
    a("v_mul_u32_u24 v10, 1152, v10")
    a("v_lshrrev_b32 v9, 4, v0")
    a("v_lshl_add_u32 v10, v9, 4, v10")
    for ks in range(18):
        a(f"buffer_load_dwordx4 v[{64 + 4 * ks}:{67 + 4 * ks}], v10, s[68:71], 0 offen offset:{64 * ks}")
    a(f"{l3}:")
    a("s_lshl_b32 s7, s41, 2")
    a("s_add_u32 s7, s7, s3")
    sdiv(a, "s93", "s7", 41, 127)
    a("s_min_u32 s93, s93, 2")
    a("s_mul_i32 s6, s93, 41")
    a("s_sub_u32 s7, s7, s6")
    a("s_lshl_b32 s46, s7, 2")
    a("s_cmp_eq_u32 s93, 1")
    a("s_cselect_b32 s72, s26, s24")
    a("s_cselect_b32 s73, s27, s25")
    a("s_cmp_eq_u32 s93, 2")
    a("s_cselect_b32 s72, s28, s72")
    a("s_cselect_b32 s73, s29, s73")
    csel(a, "s92", 8 * 1152, 8 * 9216)
    csel(a, "s47", 18 * 32 * 1152, 1152)
    a("s_and_b32 s73, s73, 0xffff")
    a(f"s_mov_b32 s74, {576 * 9216}")
    a("s_mov_b32 s75, 0x20000")
    a("s_mul_i32 s47, s47, s40")
    for b in range(4):
        a(f"s_add_u32 s7, s46, {b}")
        a("s_min_u32 s7, s7, 161")
        sdivmod(a, f"s{84 + b}", f"s{88 + b}", "s7", 9, 161)
        a(f"s_mul_i32 s7, s{84 + b}, s92")
        a("s_lshl_b32 s7, s7, 2")
        a("s_add_u32 s7, s7, s47")
        a(f"s_lshl_b32 s6, s{88 + b}, 7")
        a(f"s_add_u32 s{80 + b}, s7, s6")
    a("s_lshr_b32 s7, s92, 3")
    a("v_lshrrev_b32 v224, 3, v0")
    a("v_mul_lo_u32 v224, v224, s7")
    a("v_and_b32 v8, 7, v0")
    a("v_lshl_add_u32 v224, v8, 4, v224")
    a("s_waitcnt lgkmcnt(0)")
    a("s_mul_i32 s76, s76, 0x9e3779b1")
    a("s_add_u32 s76, s76, 0x7f4a7c15")
    a("s_mov_b32 s77, s76")
    tr_rows(a, "v8", "v9", 3, 48)
    a("v_add_u32 v8, s79, v8")
    a("v_and_b32 v9, 3, v0")
    a("v_min_u32 v10, 2, v9")
    a("v_mul_u32_u24 v10, 1536, v10")
    a("v_lshlrev_b32 v9, 3, v9")
    a("v_sub_u32 v10, v10, v9")
    a("v_add3_u32 v10, v10, v8, 32")
    a("v_and_b32 v9, 15, v0")
    a("v_cmp_gt_u32 s[22:23], 6, v9")
    a("v_lshrrev_b32 v11, 1, v9")
    a("v_and_b32 v12, 0x31, v0")
    a("v_lshl_add_u32 v11, v11, 2, v12")
    a("v_lshlrev_b32 v11, 2, v11")
    a("s_waitcnt vmcnt(0)")
    mark(a, 28)
    a("s_cmp_ge_u32 s32, 72")
    a(f"s_cbranch_scc1 {nq2}")
    a("ds_read_b64_tr_b16 v[44:45], v10")
    a("ds_read_b64_tr_b16 v[46:47], v10 offset:192")
    for t in range(3):
        a(f"ds_read_b64_tr_b16 v[{32 + 4 * t}:{33 + 4 * t}], v8 offset:{t * 1536}")
        a(f"ds_read_b64_tr_b16 v[{34 + 4 * t}:{35 + 4 * t}], v8 offset:{t * 1536 + 192}")
    a("s_mul_i32 s33, s33, 18")
    a("s_add_u32 s33, s33, s34")
    a("s_lshl_b32 s33, s33, 12")
    if WQ:
        a(f"s_add_u32 s33, s33, {WQ}")
    a("s_waitcnt lgkmcnt(6)")
    for i in range(4):
        a(f"ds_bpermute_b32 v{44 + i}, v11, v{44 + i}")
    a("s_waitcnt lgkmcnt(4)")
    for t in range(3):
        a(f"buffer_store_dwordx4 v[{32 + 4 * t}:{35 + 4 * t}], v253, s[8:11], s33 offen offset:{t * KB} sc1")
    a("s_waitcnt lgkmcnt(0)")
    for i in range(4):
        a(f"v_cndmask_b32 v{44 + i}, 0, v{44 + i}, s[22:23]")
    a(f"buffer_store_dwordx4 v[44:47], v253, s[8:11], s33 offen offset:{3 * KB} sc1")
    a(f"{nq2}:")
    a("s_cmp_eq_u32 s3, 3")
    a(f"s_cbranch_scc1 {l4}")
    a("s_cmp_ge_u32 s38, 162")
    a(f"s_cbranch_scc1 {l5}")
    tr_rows(a, "v8", "v9", 3, 32)
    a("v_add_u32 v8, s79, v8")
    a(f"ds_read_b64_tr_b16 v[28:29], v8 offset:{6 * KB}")
    a(f"ds_read_b64_tr_b16 v[30:31], v8 offset:{6 * KB + 128}")
    a("s_mul_i32 s39, s39, 18")
    a("s_add_u32 s39, s39, s45")
    a("s_lshl_b32 s39, s39, 10")
    a(f"s_add_u32 s39, s39, {WO}")
    a("s_waitcnt lgkmcnt(0)")
    a("buffer_store_dwordx4 v[28:31], v253, s[8:11], s39 offen sc1")
    a(f"s_branch {l5}")
    a(f"{l4}:")
    a("s_cmp_ge_u32 s36, 36")
    a(f"s_cbranch_scc1 {l5}")
    for i in range(4):
        a(f"v_mov_b32 v{28 + i}, 0x3f803f80")
    a("v_and_b32 v9, 15, v0")
    a("v_cmp_eq_u32 vcc, 0, v9")
    a("v_cmp_eq_u32 s[22:23], 1, v9")
    for ks in range(18):
        a(f"v_mfma_f32_16x16x32_bf16 v[32:35], v[{64 + 4 * ks}:{67 + 4 * ks}], v[28:31], {'0' if ks == 0 else 'v[32:35]'}")
    a("v_lshrrev_b32 v10, 5, v0")
    a("v_lshlrev_b32 v10, 8, v10")
    a("v_lshl_add_u32 v10, v9, 4, v10")
    a("v_bfe_u32 v9, v0, 4, 1")
    a("v_lshl_add_u32 v10, v9, 3, v10")
    a("s_lshl_b32 s7, s36, 9")
    a(f"s_mul_i32 s6, s37, {18 * KB}")
    a("s_add_u32 s7, s7, s6")
    a(f"s_add_u32 s7, s7, {WO + 36 * 18 * KB}")
    for r in range(4):
        a(f"v_mul_f32 v{32 + r}, {f32(1.0 / 576)}, v{32 + r}")
    a("v_cvt_pk_bf16_f32 v36, v32, v33")
    a("v_cvt_pk_bf16_f32 v37, v34, v35")
    for h in range(2):
        a(f"v_lshlrev_b32 v38, 16, v{36 + h}")
        a(f"v_and_b32 v39, s16, v{36 + h}")
        a(f"v_sub_f32 v38, v{32 + 2 * h}, v38")
        a(f"v_sub_f32 v39, v{33 + 2 * h}, v39")
        a(f"v_cvt_pk_bf16_f32 v{28 + h}, v38, v39")
        a(f"v_cndmask_b32 v{28 + h}, 0, v{28 + h}, s[22:23]")
        a(f"v_cndmask_b32 v{28 + h}, v{28 + h}, v{36 + h}, vcc")
    a("buffer_store_dwordx2 v[28:29], v10, s[8:11], s7 offen sc1")
    a(f"{l5}:")
    a(f"s_add_u32 s19, s18, {X2}")
    a(f"s_add_u32 s20, s18, {XN}")
    a("s_lshl_b32 s22, s21, 7")
    a(f"s_add_u32 s22, s22, {MEAN}")
    red_ln_store(a, 16, "s19", "s20", "s22", "sc1")
    mark(a, 29)

    def more(skip):
        column_flag(a, SL_WQ)
        a("s_lshl_b32 s6, s37, 8")
        a("s_lshl_b32 s7, s36, 2")
        a("s_add_u32 s6, s6, s7")
        a(f"s_add_u32 s6, s6, {FLAGS + SL_WO * FPH}")
        a("s_mov_b64 exec, 1")
        a("buffer_store_dword v1, off, s[8:11], s6 sc1")

    publish(a, PH_RED - 4, more)
    mark(a, 30)
    out = a.label("wq_ready")
    a(f"s_cmp_lg_u32 s3, {Cfg.pw}")
    a(f"s_cbranch_scc1 {out}")
    column_wait(a, SL_WQ, abort)
    a(f"{out}:")
    a("s_barrier")
    mark(a, 27)


def ffn_raw_dma(i):
    b, m = divmod(i, 4)
    step = f"s_mov_b32 s78, s{80 + b}" if m == 0 else "s_add_u32 s78, s78, s92"
    return f"s_add_u32 m0, s79, {i * KB}\n{step}\nbuffer_load_dwordx4 v224, s[72:75], s78 offen lds"


def ffn_transpose(a):
    a("s_cmp_eq_u32 s93, 2")
    a("s_cselect_b32 s6, 2, 3")
    csel(a, "s7", 2048, 512)
    tr_rows(a, "v14", "v15", "s6", 128)
    a("v_add_u32 v14, s79, v14")
    a("v_add_u32 v15, s7, v14")
    for b in range(4):
        for t in range(4):
            r = 16 + 16 * b + 4 * t
            a(f"ds_read_b64_tr_b16 v[{r}:{r + 1}], v14 offset:{b * 4096 + t * 32}")
            a(f"ds_read_b64_tr_b16 v[{r + 2}:{r + 3}], v15 offset:{b * 4096 + t * 32}")
    dn, dd = a.label("swz_down"), a.label("swz_dest")
    dest = [52, 53, 54, 55, 56, 57, 18, 19, 20, 21, 22, 25, 26, 27, 28, 29]
    a(f"s_mul_i32 s68, s40, {4 * WSTR}")
    a(f"s_add_u32 s68, s68, {WF}")
    a("s_cmp_eq_u32 s93, 2")
    a(f"s_cbranch_scc1 {dn}")
    for b in range(4):
        sdivmod(a, "s6", "s7", f"s{84 + b}", 3, 17)
        a("s_mul_i32 s6, s6, 6")
        a("s_add_u32 s7, s7, s6")
        a(f"s_mul_i32 s6, s{88 + b}, 36")
        a("s_add_u32 s7, s7, s6")
        a("s_mul_i32 s6, s93, 3")
        a("s_add_u32 s7, s7, s6")
        a("s_lshl_b32 s7, s7, 10")
        a("s_add_u32 s7, s7, s68")
        for t in range(4):
            a(f"s_add_u32 s{dest[4 * b + t]}, s7, {t * WSTR}")
    a(f"s_branch {dd}")
    a(f"{dn}:")
    for b in range(4):
        a(f"s_add_u32 s69, s{84 + b}, 324")
        a("s_lshl_b32 s69, s69, 10")
        a("s_add_u32 s69, s69, s68")
        for t in range(4):
            a(f"s_lshl_b32 s70, s{88 + b}, 2")
            a(f"s_add_u32 s70, s70, {t}")
            sdivmod(a, "s6", "s7", "s70", 9, 35)
            a(f"s_mul_i32 s6, s6, {WSTR}")
            a(f"s_mul_i32 s7, s7, {18 * KB}")
            a("s_add_u32 s6, s6, s7")
            a(f"s_add_u32 s{dest[4 * b + t]}, s69, s6")
    a(f"{dd}:")
    a("s_waitcnt lgkmcnt(0)")
    return [f"buffer_store_dwordx4 v[{16 + 4 * i}:{19 + 4 * i}], v253, s[8:11], s{dest[i]} offen sc1" for i in range(16)]


BIG = -1e30


QR = 10
WO_FREE = [(160 + 4 * i, -1) for i in range(24)] + \
    [(16 * (k % QR) + 4 * t, k) for k in range(18 - QR, 18) for t in range(4)]


def wo_reg(ks, sl):
    return WO_FREE[ks * 3 + sl][0]


def qkv_prefetch(a, k0, k1, skip=None):
    if k0 == 0:
        a("s_lshl_b32 s28, s40, 2")
        a("s_add_u32 s28, s28, s3")
        a(f"s_mul_i32 s28, s28, {72 * KB}")
        if WQ:
            a(f"s_add_u32 s28, s28, {WQ}")
    v = "v253"
    if skip:
        a(f"s_mul_i32 s7, {skip}, {OOB}")
        a("v_add_u32 v1, s7, v253")
        v = "v1"
    for ks in range(k0, k1):
        for l in qkv_wload(ks, v):
            a(l)
        a("s_add_u32 s28, s28, 4096")


def qkv_wload(ks, v="v253"):
    for t in range(4):
        r = 16 * (ks % QR) + 4 * t
        yield f"buffer_load_dwordx4 a[{r}:{r + 3}], {v}, s[8:11], s28 offen offset:{t * KB} {Cfg.wflag}"


def wo_weight_loads(a):
    setup = []
    s = setup.append
    s("s_lshl_b32 s45, s41, 1")
    s("s_lshr_b32 s7, s40, 2")
    s("s_add_u32 s45, s45, s7")
    s(f"s_mul_i32 s30, s45, {4 * GB}")
    s("s_add_u32 s30, s30, s43")
    s("s_and_b32 s31, s40, 3")
    s("s_mul_i32 s31, s31, 9")
    s("s_add_u32 s31, s31, s3")
    s(f"s_mul_i32 s32, s31, {18 * KB}")
    s(f"s_add_u32 s32, s32, {WO}")
    s(f"s_add_u32 s33, s32, {4 * 18 * KB}")
    s(f"s_add_u32 s34, s32, {8 * 18 * KB}")
    s("s_and_b32 s7, s40, 3")
    s(f"s_mul_i32 s6, s7, {18 * KB}")
    s(f"s_add_u32 s6, s6, {WO + 36 * 18 * KB}")
    s("s_lshl_b32 s39, s7, 8")
    s(f"s_add_u32 s39, s39, {FLAGS + SL_WO * FPH}")
    s("v_lshlrev_b32 v226, 2, v0")
    s("s_cmp_eq_u32 s3, 1")
    s("s_cmov_b32 s34, s6")
    s("s_cmp_lt_u32 s3, 2")
    s(f"s_cselect_b32 s35, 0, {OOB}")
    s("v_add_u32 v5, s35, v253")
    s("s_cmp_eq_u32 s3, 0")
    s(f"s_cselect_b32 s35, 0, {OOB}")
    s("v_add_u32 v7, s35, v9")
    s("s_lshl_b32 s7, s31, 8")
    s("s_add_u32 s36, s30, s7")
    s(f"s_add_u32 s37, s36, {X2}")
    s(f"s_add_u32 s46, s36, {XC}")
    s("s_lshl_b32 s36, s45, 7")
    s("s_add_u32 s36, s36, s43")
    s(f"s_add_u32 s36, s36, {MEAN1}")
    s("s_lshl_b32 s47, s45, 9")
    s("s_add_u32 s47, s47, s43")
    s(f"s_add_u32 s47, s47, {MEAN}")
    s("v_bfe_u32 v10, v0, 3, 2")
    s("v_and_b32 v8, 7, v0")
    s("v_lshlrev_b32 v8, 2, v8")
    s("v_lshl_add_u32 v8, v10, 7, v8")
    loads = []
    for ks in range(18):
        for sl in range(3):
            r = wo_reg(ks, sl)
            t = f"buffer_load_dwordx4 a[{r}:{r + 3}], v{5 if sl == 2 else 253}, s[8:11], s{32 + sl} offen offset:{(ks & 3) * KB} {Cfg.wflag}"
            if ks & 3 == 3:
                t += f"\ns_add_u32 s{32 + sl}, s{32 + sl}, 4096"
            loads.append((t, WO_FREE[ks * 3 + sl][1]))
    for sl in range(3):
        loads.append((f"buffer_load_dwordx4 v[{240 + 4 * sl}:{243 + 4 * sl}], v{7 if sl == 2 else 9}, s[8:11], s37 offen offset:{sl * KB} sc1", -1))
    loads.append(("buffer_load_dword v252, v8, s[8:11], s47 offen sc1", -1))
    return setup, loads


def phase_qkv(a, abort):
    BF, ACC, QO, KO, VO, VL, SEL, CI, BP, BC, BP1 = 16, 56, 132, 152, 172, 182, 192, 196, 200, 204, 208
    qkv_prefetch(a, 6, QR - 1)
    bfrag_voff(a, "v2", "v3")
    dtile_voff(a, "v9", "v3", None, GB)
    a(f"s_mul_i32 s22, s41, {8 * GB}")
    a("s_add_u32 s22, s22, s43")
    a(f"s_add_u32 s23, s22, {XN}")
    a(f"s_mul_i32 s7, s3, {2 * GB}")
    a("s_add_u32 s24, s23, s7")
    a("s_cmp_eq_u32 s41, 0")
    a(f"s_cselect_b32 s7, 0, {2 * GB}")
    a("s_sub_u32 s23, s23, s7")
    units = [(0, tt) for tt in range(1, 5)] + [(t, tt) for t in range(1, 4) for tt in range(5)]
    acc = {u: ACC + 4 * i for i, u in enumerate(units)}
    a("s_lshl_b32 s25, s3, 10")
    a("s_add_u32 s25, s25, 1024")
    a("s_mul_i32 s26, s3, 5120")
    a("s_lshl_b32 s7, s3, 9")
    a("s_add_u32 s27, s23, s7")
    a("s_and_b32 s7, s3, 1")
    a("s_add_u32 s7, s7, 4")
    a("s_mul_i32 s29, s7, 5120")
    a("s_lshl_b32 s7, s7, 9")
    a("s_add_u32 s23, s23, s7")
    wait_flags(a, (PH_RED - 4) * FPH, abort, halo=True)
    mark(a, 0)
    def xdma(st):
        for kk in range(6):
            ks = 6 * st + kk
            t = f"s_add_u32 m0, s25, {ks * 5120 - (ks % 8) * 512}\n"
            t += "s_add_u32 s24, s24, 4096\n" if ks and ks % 8 == 0 else "s_nop 0\n"
            yield t + f"buffer_load_dwordx4 v2, s[8:11], s24 offen offset:{(ks % 8) * 512} sc1 lds"
        for sm, so in (("s26", "s27"), ("s29", "s23")):
            yield (f"s_add_u32 m0, {sm}, {st * 30720}\ns_add_u32 s7, {so}, {st * 3072}\n"
                   "buffer_load_dwordx4 v2, s[8:11], s7 offen sc1 lds")

    for t in xdma(0):
        a(t)
    for r in [QO, QO + 1, SEL, SEL + 1, SEL + 3] + [QO + 4 * t + 3 for t in range(5)] + [KO + 4 * t + 3 for t in range(5)]:
        a(f"v_mov_b32 v{r}, 0")
    a("v_cmp_eq_u32 vcc, 16, v0")
    a("v_mov_b32 v10, 0x3f80")
    a("v_cmp_eq_u32 s[20:21], 17, v0")
    a(f"v_cndmask_b32 v{SEL + 2}, 0, v10, vcc")
    a("v_and_b32 v11, 3, v0")
    a(f"v_cndmask_b32 v{SEL + 2}, v{SEL + 2}, 1.0, s[20:21]")
    a("v_cmp_eq_u32 vcc, 2, v11")
    a("v_and_b32 v10, 15, v0")
    a("v_lshrrev_b32 v11, 4, v0")
    for r in range(4):
        a(f"v_cndmask_b32 v{CI + r}, 0, 1.0, vcc")
    a("v_lshlrev_b32 v11, 2, v11")
    a("v_sub_u32 v10, v11, v10")
    a(f"v_mov_b32 v12, {f32(BIG)}")
    a("s_cmp_eq_u32 s41, 0")
    a("s_cselect_b64 s[38:39], 0, -1")
    for r in range(4):
        a(f"v_add_u32 v11, {r}, v10")
        a("v_and_b32 v13, 1, v11")
        a("v_cmp_eq_u32 s[20:21], 0, v13")
        a("v_cmp_lt_i32 vcc, 1, v11")
        a("v_cmp_gt_i32 s[18:19], 1, v11")
        a("s_and_b64 vcc, vcc, s[20:21]")
        a("s_and_b64 s[18:19], s[18:19], s[20:21]")
        a("s_and_b64 s[20:21], vcc, s[38:39]")
        a(f"v_cndmask_b32 v{BP + r}, v12, 0, vcc")
        a(f"v_cndmask_b32 v{BC + r}, v12, 0, s[18:19]")
        a(f"v_cndmask_b32 v{BP1 + r}, v12, 0, s[20:21]")
    setup, early = wo_weight_loads(a)
    for t in setup:
        a(t)
    a(f"v_add_u32 v6, {45 * KB}, v253")
    a("s_waitcnt vmcnt(0)")
    a("s_barrier")
    mark(a, 1)

    def xread(ks, tt):
        r = BF + 20 * (ks & 1) + 4 * tt
        f = ks * 5 + tt
        return f"ds_read_b128 v[{r}:{r + 3}], v{253 if f < 45 else 6} offset:{(f % 45) * KB}"

    for tt in range(5):
        a(xread(0, tt))
    vm = Vm()
    stage = {1: list(xdma(1)), 2: list(xdma(2))}
    for ks in range(18):
        cur = BF + 20 * (ks & 1)
        fill = {}
        if ks < 17:
            for tt in range(5):
                fill[tt] = [(xread(ks + 1, tt), None)]
        vq = []
        st = 1 if ks < 4 else 2
        for _ in range(2):
            if stage[st] and ks != 4:
                vq.append((stage[st].pop(0), ("x", st)))
        if ks + QR - 1 < 18:
            vq += [(l, ("w", ks + QR - 1)) for l in qkv_wload(ks + QR - 1)]
            fill[17] = [("s_add_u32 s28, s28, 4096", None)]
        else:
            while len(vq) < Cfg.wo_per_ks and early[0][1] < ks:
                vq.append((early.pop(0)[0], "o"))
        for i, op in enumerate(vq):
            fill[5 + 2 * i] = [op]
        if 1 <= ks <= 16:
            fill[18] = [(ffn_raw_dma(ks - 1), "z")]
        if ks == 4:
            fill[5 + 2 * len(vq)] = [("buffer_load_dword v225, v226, s[8:11], s39 offen sc1", "b")]
        need = ([("w", ks)] if ks >= QR - 1 else []) + ([("x", (ks + 1) // 6)] if ks in (5, 11) else [])
        if ks == 18 - QR + 1:
            need.append("b")
        a(f"s_waitcnt vmcnt({vm.count(*need)}) lgkmcnt(0)" if need else "s_waitcnt lgkmcnt(0)")
        if ks == 18 - QR + 1:
            ok = a.label("wo_ready")
            a("v_cmp_eq_u32 vcc, s76, v225")
            a("s_cmp_eq_u64 vcc, exec")
            a(f"s_cbranch_scc1 {ok}")
            spin_words(a, "s39", "v226", abort)
            a(f"{ok}:")
        if ks in (5, 11):
            a("s_barrier")
        for u, (t, tt) in enumerate(units):
            c = acc[(t, tt)]
            wr = 16 * (ks % QR) + 4 * t
            w, x = f"a[{wr}:{wr + 3}]", f"v[{cur + 4 * tt}:{cur + 4 * tt + 3}]"
            if t == 2:
                w, x = x, w
            a(f"v_mfma_f32_16x16x32_bf16 v[{c}:{c + 3}], {w}, {x}, {'0' if ks == 0 else f'v[{c}:{c + 3}]'}")
            for text, tag in fill.get(u, []):
                a(text)
                if tag:
                    vm.issue(tag)
    assert not stage[1] and not stage[2]
    early = [t for t, _ in early]
    mark(a, 2)
    body = []
    e = body.append
    cvt = lambda d, s: e(f"v_cvt_pk_bf16_f32 v{d}, v{s}, v{s + 1}")
    mf = lambda d, x, y, c: e(f"v_mfma_f32_16x16x32_bf16 v[{d}:{d + 3}], v[{x}:{x + 3}], v[{y}:{y + 3}], {c}")
    quad = lambda r: f"v[{r}:{r + 3}]"
    for tt in range(1, 5):
        cvt(QO + 4 * tt, acc[(0, tt)]); cvt(QO + 4 * tt + 1, acc[(0, tt)] + 2)
    for tt in range(5):
        cvt(KO + 4 * tt, acc[(1, tt)]); cvt(KO + 4 * tt + 1, acc[(1, tt)] + 2)
    for tt in range(5):
        cvt(QO + 4 * tt + 2, acc[(3, tt)]); cvt(KO + 4 * tt + 2, acc[(3, tt)] + 2)
    for tt in range(5):
        cvt(VO + 2 * tt, acc[(2, tt)]); cvt(VO + 2 * tt + 1, acc[(2, tt)] + 2)
    S, T, P, M = 16, 56, 76, 92
    for tt in range(1, 5):
        s = S + 8 * (tt - 1)
        mf(s, KO + 4 * (tt - 1), QO + 4 * tt, quad(BP1 if tt == 1 else BP))
        mf(s + 4, KO + 4 * tt, QO + 4 * tt, quad(BC))
    for tt in range(5):
        mf(T + 4 * tt, QO + 4 * tt, SEL, quad(CI))
    for i in range(4):
        s = S + 8 * i
        e(f"v_max3_f32 v{M + i}, v{s}, v{s + 1}, v{s + 2}")
        e(f"v_max3_f32 v{M + 4 + i}, v{s + 3}, v{s + 4}, v{s + 5}")
    for i in range(4):
        s = S + 8 * i
        e(f"v_max3_f32 v{M + i}, v{M + i}, v{s + 6}, v{s + 7}")
    for i in range(4):
        e(f"v_max_f32 v{M + i}, v{M + i}, v{M + 4 + i}")
    c = 18 ** -0.5 * math.log2(math.e)
    e(f"s_mov_b32 s18, {f32(c)}")
    tcv = [(VL + 2 * tt + h, T + 4 * tt + 2 * h) for tt in range(5) for h in range(2)]
    pad = lambda n: [cvt(*tcv.pop(0)) for _ in range(n)]
    pad(1)
    e(f"v_permlane32_swap_b32 v{M}, v{M + 1}")
    e(f"v_permlane32_swap_b32 v{M + 2}, v{M + 3}")
    e(f"v_max_f32 v{M}, v{M}, v{M + 1}")
    e(f"v_max_f32 v{M + 2}, v{M + 2}, v{M + 3}")
    pad(2)
    e(f"v_permlane16_swap_b32 v{M}, v{M + 2}")
    e(f"v_max_f32 v{M}, v{M}, v{M + 2}")
    e(f"v_mul_f32 v{M}, {f32(-c)}, v{M}")
    e(f"v_mov_b32 v{M + 2}, v{M}")
    pad(2)
    e(f"v_permlane16_swap_b32 v{M}, v{M + 2}")
    e(f"v_mov_b32 v{M + 1}, v{M}")
    e(f"v_mov_b32 v{M + 3}, v{M + 2}")
    pad(2)
    e(f"v_permlane32_swap_b32 v{M}, v{M + 1}")
    e(f"v_permlane32_swap_b32 v{M + 2}, v{M + 3}")
    pad(3)
    OA, OL, R, OUT, LO = 100, 116, 96, 212, 220
    for i in range(4):
        s = S + 8 * i
        for r in range(8):
            e(f"v_fma_f32 v{s + r}, v{s + r}, s18, v{M + i}")
        for r in range(8):
            e(f"v_exp_f32 v{s + r}, v{s + r}")
        if i:
            mf(OA + 4 * (i - 1), VO + 2 * (i - 1), P + 4 * (i - 1), "0")
            mf(OL + 4 * (i - 1), VL + 2 * (i - 1), P + 4 * (i - 1), "0")
        else:
            e("s_nop 0")
        for r in range(4):
            cvt(P + 4 * i + r, s + 2 * r)
    e(f"v_rcp_f32 v{R}, v{OL + 2}")
    e(f"v_rcp_f32 v{R + 1}, v{OL + 6}")
    mf(OA + 12, VO + 6, P + 12, "0")
    mf(OL + 12, VL + 6, P + 12, "0")

    def scale(i):
        sel = "op_sel:[1,0] op_sel_hi:[1,1]" if i & 1 else "op_sel:[0,0] op_sel_hi:[0,1]"
        rp = R + (i & 2)
        for o in (OA + 4 * i, OA + 4 * i + 2, OL + 4 * i):
            e(f"v_pk_mul_f32 v[{o}:{o + 1}], v[{rp}:{rp + 1}], v[{o}:{o + 1}] {sel}")
        cvt(OUT + 2 * i, OA + 4 * i); cvt(OUT + 2 * i + 1, OA + 4 * i + 2); cvt(LO + i, OL + 4 * i)

    scale(0)
    e(f"v_rcp_f32 v{R + 2}, v{OL + 10}")
    scale(1)
    e(f"v_rcp_f32 v{R + 3}, v{OL + 14}")
    e(f"v_permlane16_swap_b32 v{OUT}, v{OUT + 2}")
    e(f"v_permlane16_swap_b32 v{OUT + 1}, v{OUT + 3}")
    scale(2)
    scale(3)
    LX = 92 * KB
    e("s_lshl_b32 s7, s3, 2")
    e(f"s_add_u32 s7, s7, {LX}")
    e(f"v_permlane16_swap_b32 v{LO}, v{LO + 1}")
    e(f"v_permlane16_swap_b32 v{LO + 2}, v{LO + 3}")
    e("v_add_u32 v11, s7, v253")
    e("v_lshrrev_b32 v10, 3, v0")
    e(f"v_permlane32_swap_b32 v{LO}, v{LO + 2}")
    e(f"v_mul_u32_u24 v10, {GB}, v10")
    e(f"ds_write_b32 v11, v{LO}")
    e(f"v_permlane16_swap_b32 v{OUT + 4}, v{OUT + 6}")
    e(f"v_permlane16_swap_b32 v{OUT + 5}, v{OUT + 7}")
    step = max(1, len(body) // len(early))
    for i, t in enumerate(body):
        a(t)
        if early and i % step == step - 1:
            a(early.pop(0))
    for t in early:
        a(t)
    a("s_mul_i32 s7, s40, 1152")
    a("s_add_u32 s22, s22, s7")
    a(f"s_add_u32 s22, s22, {OO}")
    a("s_lshl_b32 s7, s3, 8")
    a("s_add_u32 s23, s22, s7")
    a(f"s_add_u32 s24, s23, {4 * GB}")
    a(f"buffer_store_dwordx4 v[{OUT}:{OUT + 3}], v9, s[8:11], s23 offen sc1")
    a(f"buffer_store_dwordx4 v[{OUT + 4}:{OUT + 7}], v9, s[8:11], s24 offen sc1")
    a("v_and_b32 v11, 7, v0")
    a("v_lshl_add_u32 v10, v11, 4, v10")
    a("s_cmp_eq_u32 s3, 3")
    a(f"s_cselect_b32 s7, 0, {OOB}")
    a("v_add_u32 v10, s7, v10")
    a(f"v_add_u32 v11, {LX}, v253")
    a("s_waitcnt lgkmcnt(0)")
    a("s_barrier")
    a(f"ds_read_b128 v[{LO}:{LO + 3}], v11")
    a("s_waitcnt lgkmcnt(0)")
    a(f"buffer_store_dwordx4 v[{LO}:{LO + 3}], v10, s[8:11], s22 offen offset:1024 sc1")
    mark(a, 3)
    publish(a, PH_QKV)
    mark(a, 4)


def phase_wo(a, abort):
    RES, BF, ACC, T = 240, 160, 100, 124
    z0, z1, z2 = a.label("swz"), a.label("swz"), a.label("swz")
    a("s_cmp_lg_u32 s42, 0")
    a(f"s_cbranch_scc1 {z0}")
    zst = ffn_transpose(a)
    for t in zst[:6]:
        a(t)
    a(f"{z0}:")
    a("s_and_b32 s7, s3, 1")
    a(f"s_mul_i32 s7, s7, {2 * GB}")
    a("s_add_u32 s24, s30, s7")
    a("s_lshr_b32 s7, s3, 1")
    a("s_lshl_b32 s7, s7, 9")
    a("s_add_u32 s24, s24, s7")
    a(f"s_add_u32 s24, s24, {OO}")
    a("s_mov_b32 s16, 0xffff0000")
    for sl in range(3):
        for i in range(4):
            a(f"v_lshlrev_b32 v{T + 8 * sl + 2 * i}, 16, v{RES + 4 * sl + i}")
            a(f"v_and_b32 v{T + 8 * sl + 2 * i + 1}, s16, v{RES + 4 * sl + i}")
    MX = 40 * KB
    a("s_cmp_eq_u32 s3, 1")
    a("s_cselect_b32 s7, 16, 0")
    a("v_lshlrev_b32 v12, 2, v0")
    a("v_cmp_gt_u32 vcc, s7, v0")
    a(f"v_add_u32 v10, {MX}, v12")
    a(f"v_add_u32 v11, {MX + 512}, v12")
    a("v_cndmask_b32 v10, v11, v10, vcc")
    a("v_and_b32 v11, 0x7c, v12")
    a("v_cmp_gt_u32 vcc, 32, v0")
    a(f"v_mov_b32 v13, {OOB}")
    a("s_and_b32 s7, s40, 3")
    a("s_lshl_b32 s45, s45, 2")
    a("v_cndmask_b32 v8, v13, v12, vcc")
    a("s_add_u32 s6, s7, s3")
    a("s_cmp_eq_u32 s6, 0")
    a(f"s_cselect_b32 s6, 0, {OOB}")
    a("v_add_u32 v6, s6, v8")
    a("s_add_u32 s45, s45, s7")
    a("s_lshl_b32 s45, s45, 2")
    a("s_add_u32 s45, s45, s3")
    a("s_lshl_b32 s45, s45, 7")
    a("s_add_u32 s45, s45, s43")
    a(f"s_add_u32 s45, s45, {STAT}")
    a("s_cmp_eq_u32 s3, 0")
    a("s_cselect_b32 s35, 1.0, 0")
    ring = ffn_ring_setup(a)
    wait_flags(a, PH_QKV * FPH, abort)
    mark(a, 5)
    a("s_lshl_b32 m0, s3, 10")
    for m in range(9):
        if m:
            a("s_add_u32 m0, m0, 4096")
            a("s_add_u32 s24, s24, 1024")
        else:
            a("s_nop 0")
        a("buffer_load_dwordx4 v2, s[8:11], s24 offen sc1 lds")
    a("s_cmp_lg_u32 s42, 0")
    a(f"s_cbranch_scc1 {z1}")
    for t in zst[6:]:
        a(t)
    a("s_waitcnt vmcnt(10)")
    a(f"s_branch {z2}")
    a(f"{z1}:")
    a("s_waitcnt vmcnt(0)")
    a(f"{z2}:")
    a("s_barrier")
    mark(a, 6)
    for tt in range(2):
        a(f"ds_read_b128 v[{BF + 4 * tt}:{BF + 4 * tt + 3}], v253 offset:{tt * KB}")
    for ks in range(18):
        cur, nxt = BF + 8 * (ks & 1), BF + 8 * ((ks + 1) & 1)
        a("s_waitcnt lgkmcnt(0)")
        i = 0
        for sl in range(3):
            for tt in range(2):
                c = ACC + 4 * (2 * sl + tt)
                w = wo_reg(ks, sl)
                src = "0" if ks == 0 else f"v[{c}:{c + 3}]"
                a(f"v_mfma_f32_16x16x32_bf16 v[{c}:{c + 3}], a[{w}:{w + 3}], v[{cur + 4 * tt}:{cur + 4 * tt + 3}], {src}")
                if i < 2 and ks < 17:
                    a(f"ds_read_b128 v[{nxt + 4 * i}:{nxt + 4 * i + 3}], v253 offset:{((ks + 1) * 2 + i) * KB}")
                if i == 3 and ring:
                    a(ring.pop(0))
                i += 1
    mark(a, 7)
    XR = 148
    a("s_nop 3")
    for r in range(4):
        a(f"v_permlane16_swap_b32 v{ACC + r}, v{ACC + 4 + r}")
    a(f"v_add_f32 v12, v{ACC + 16}, v{ACC + 17}")
    a(f"v_add_f32 v13, v{ACC + 20}, v{ACC + 21}")
    a("ds_write_b32 v10, v12")
    a("ds_write_b32 v10, v13 offset:64")
    for sl in (1, 2):
        for r in range(4):
            a(f"v_permlane16_swap_b32 v{ACC + 8 * sl + r}, v{ACC + 8 * sl + 4 + r}")
    a("s_waitcnt lgkmcnt(0)")
    a("s_barrier")
    a(f"ds_read_b32 v12, v11 offset:{MX}")
    for sl in range(3):
        for i in range(4):
            t, c = T + 8 * sl + 2 * i, ACC + 8 * sl + 2 * i
            a(f"v_pk_add_f32 v[{t}:{t + 1}], v[{t}:{t + 1}], v[{c}:{c + 1}]")
    a("v_mov_b32 v14, 0")
    a("v_mov_b32 v15, 0")
    a("s_waitcnt lgkmcnt(0)")
    a("v_add_f32 v12, v12, v252")
    for sl in range(3):
        for i in range(4):
            t, c = T + 8 * sl + 2 * i, ACC + 8 * sl + 2 * i
            a(f"v_pk_add_f32 v[{c}:{c + 1}], v[{t}:{t + 1}], v[12:13] op_sel_hi:[1,0] neg_lo:[0,1] neg_hi:[0,1]")
        for i in range(4):
            c = ACC + 8 * sl + 2 * i
            a(f"v_cvt_pk_bf16_f32 v{XR + 4 * sl + i}, v{c}, v{c + 1}")
        a(f"buffer_store_dwordx4 v[{XR + 4 * sl}:{XR + 4 * sl + 3}], v{7 if sl == 2 else 9}, s[8:11], s46 offen offset:{sl * KB} sc1")
    for i in range(12):
        a(f"v_dot2c_f32_bf16 v{15 if i >= 8 else 14}, v{XR + i}, v{XR + i}")
    a("buffer_store_dword v12, v6, s[8:11], s36 offen sc1")
    a("s_nop 1")
    a("v_fma_f32 v14, v15, s35, v14")
    a("v_mov_b32 v15, v14")
    a("s_nop 1")
    a("v_permlane32_swap_b32 v14, v15")
    a("v_add_f32 v14, v14, v15")
    a("buffer_store_dword v14, v8, s[8:11], s45 offen sc1")

    def more(skip):
        a("s_cmp_lg_u32 s42, 0")
        a(f"s_cbranch_scc1 {skip}")
        column_flag(a, SL_WF)

    publish(a, PH_WO, more)
    mark(a, 8)


FFN_LDS = 144 * KB
HB = 72 * KB


def pack_gaps(n_gaps, pinned, ops, start=0, cap=2):
    gaps = [list(pinned.get(g, [])) for g in range(n_gaps)]
    g = start
    for text, cost, earliest in ops:
        g = max(g, earliest)
        while sum(c for _, c in gaps[g]) + cost > cap:
            g += 1
        gaps[g].append((text, cost))
    return gaps


def check_stage_reads(mf, gaps, base, n):
    stage = {("v", base + i) for i in range(n)}
    wr = {}
    for i, t in enumerate(mf):
        for r in hazards.I(t, 0).w & stage:
            wr[r] = i
    for i, g in enumerate(gaps):
        for t, _ in g:
            for r in hazards.I(t, 0).r & stage:
                assert i < wr[r], (i, t, wr[r])


RING, VB = 16, 184
RING_EXT = [104, 108, 112, 116, 172, 176, 180, 196, 200, 204, 208, 212, 216, 136, 140, 144, 148, 160]


def slot_reg(slot):
    return RING + 4 * slot if slot < 18 else RING_EXT[slot - 18]


def wload(slot, n):
    r = slot_reg(slot)
    return f"buffer_load_dwordx4 v[{r}:{r + 3}], v{VB + n // 4}, s[48:51], s23 offen offset:{(n % 4) * KB} {Cfg.wflag}"


def ffn_ring_setup(a):
    a("s_lshl_b32 s7, s40, 2")
    a("s_add_u32 s7, s7, s3")
    a(f"s_mul_i32 s23, s7, {WSTR}")
    a(f"s_add_u32 s23, s23, {WF}")
    a(f"s_add_u32 s50, s23, {WSTR}")
    a("s_mul_i32 s50, s50, s42")
    a(f"v_mov_b32 v{VB}, v253")
    for m in range(1, 9):
        a(f"v_add_u32 v{VB + m}, {4096 * m}, v253")
    return [wload(n, n) for n in range(15)]


def phase_ffn(a, abort):
    ACC, STG, TMP = 88, 120, 152
    xreg = lambda tt, ks: reg(256 + 4 * (tt * 18 + ks), 4) if tt * 18 + ks < 64 else reg(220 + 4 * (tt * 18 + ks - 64), 4)
    a("s_lshl_b32 s7, s41, 2")
    a("s_add_u32 s7, s7, s3")
    a(f"s_mul_i32 s22, s7, {2 * GB}")
    a("s_add_u32 s22, s22, s43")
    a(f"s_add_u32 s22, s22, {XC}")
    a(f"s_mul_i32 s24, s3, {18 * KB}")
    a("s_lshl_b32 s25, s41, 12")
    a("s_add_u32 s25, s25, s43")
    a(f"s_add_u32 s25, s25, {STAT}")
    a("v_lshrrev_b32 v3, 5, v0")
    a("v_and_b32 v10, 31, v0")
    a("v_lshlrev_b32 v10, 2, v10")
    a("v_lshl_add_u32 v3, v3, 11, v10")
    a(f"v_add_u32 v11, {36 * KB}, v{VB}")

    def more(out):
        a("s_cmp_lg_u32 s42, 0")
        a(f"s_cbranch_scc1 {out}")
        column_wait(a, SL_WF, abort)

    wait_flags(a, PH_WO * FPH, abort, extra=more)
    mark(a, 9)
    C0, C1, VV, SS = [4, 5, 6, 7], [8, 9, 13, 14], [193, 194, 195, 252], 88
    for i in range(16):
        a(f"buffer_load_dword v{SS + i}, v3, s[8:11], s25 offen offset:{128 * i} sc1")
    for ks in range(18):
        a(f"s_add_u32 m0, s24, {ks * KB - (ks % 8) * 512}")
        a("s_add_u32 s22, s22, 4096" if ks and ks % 8 == 0 else "s_nop 0")
        a(f"buffer_load_dwordx4 v2, s[8:11], s22 offen offset:{(ks % 8) * 512} sc1 lds")
    k0 = -2.0 * math.sqrt(2.0 / math.pi) * math.log2(math.e)
    a(f"s_add_u32 s50, s23, {WSTR}")
    a("s_waitcnt vmcnt(18)")
    for n in (8, 4, 2):
        for i in range(0, n, 2):
            a(f"v_pk_add_f32 v[{SS + i}:{SS + i + 1}], v[{SS + i}:{SS + i + 1}], v[{SS + n + i}:{SS + n + i + 1}]")
    a(f"v_add_f32 v{SS}, v{SS}, v{SS + 1}")
    a(f"v_mov_b32 v{SS + 1}, {f32(1e-5)}")
    a(f"v_fmac_f32 v{SS + 1}, {f32(1.0 / 576)}, v{SS}")
    a(f"v_mov_b32 v{VV[0]}, v{SS + 1}")
    a("s_nop 1")
    a(f"v_permlane16_swap_b32 v{VV[0]}, v{SS + 1}")
    a(f"v_mov_b32 v{VV[2]}, v{VV[0]}")
    a(f"v_mov_b32 v{VV[1]}, v{SS + 1}")
    a(f"v_mov_b32 v{VV[3]}, v{SS + 1}")
    a(f"v_permlane32_swap_b32 v{VV[0]}, v{VV[2]}")
    a("s_nop 0")
    a(f"v_permlane32_swap_b32 v{VV[1]}, v{VV[3]}")
    for tt in range(4):
        a(f"v_rsq_f32 v{C0[tt]}, v{VV[tt]}")
    for tt in range(4):
        a(f"v_mul_f32 v{C1[tt]}, v{C0[tt]}, v{C0[tt]}")
    for tt in range(4):
        a(f"v_mul_f32 v{C0[tt]}, {f32(k0)}, v{C0[tt]}")
    for tt in range(4):
        a(f"v_mul_f32 v{C1[tt]}, {f32(0.044715)}, v{C1[tt]}")
    for tt in range(4):
        a(f"v_mul_f32 v{C1[tt]}, v{C1[tt]}, v{C0[tt]}")
    mark(a, 10)
    for st in range(3):
        a(f"s_waitcnt vmcnt({12 - 6 * st})")
        a("s_barrier")
        if st == 2:
            late = a.label("ring")
            a("s_cmp_lg_u32 s42, 0")
            a(f"s_cbranch_scc1 {late}")
            for n in range(15):
                a(wload(n, n))
            a(f"{late}:")
            a(f"s_add_u32 s23, s23, {15 * KB}")
        for ks in range(6 * st, 6 * st + 6):
            for tt in range(4):
                f = tt * 18 + ks
                a(f"ds_read_b128 {xreg(tt, ks)}, v{VB if f < 36 else 11} offset:{(f % 36) * KB}")
    a("s_lshr_b32 s7, s3, 1")
    a("s_lshl_b32 s7, s7, 10")
    a("s_and_b32 s6, s3, 1")
    a("s_lshl_b32 s6, s6, 3")
    a("s_add_u32 s24, s7, s6")
    a(f"s_add_u32 s24, s24, {HB}")
    a(f"s_add_u32 s7, s24, {16 * KB}")
    a(f"v_add_u32 v12, s7, v{VB}")
    a("s_mov_b32 s25, 0")
    a("s_waitcnt lgkmcnt(0)")
    mark(a, 12)

    def gelu_ops(first_gap):
        ops = []
        for tt in range(4):
            t, p, o = TMP + 10 * (tt & 1), TMP + 10 * (tt & 1) + 4, TMP + 10 * (tt & 1) + 8
            g, u = STG + 4 * tt, STG + 16 + 4 * tt
            e = first_gap(tt)
            for r in range(4):
                ops.append((f"v_mul_f32 v{t + r}, v{g + r}, v{g + r}", 1, e))
            for r in range(4):
                ops.append((f"v_fma_f32 v{t + r}, v{t + r}, v{C1[tt]}, v{C0[tt]}", 1, e))
            for r in range(4):
                ops.append((f"v_mul_f32 v{t + r}, v{g + r}, v{t + r}", 1, e))
            for r in range(4):
                ops.append((f"v_exp_f32 v{t + r}, v{t + r}", 2, e))
            for r in range(4):
                ops.append((f"v_mul_f32 v{p + r}, v{g + r}, v{u + r}", 1, e))
            for r in range(4):
                ops.append((f"v_fma_f32 v{t + r}, v{t + r}, v{VV[tt]}, v{VV[tt]}", 1, e))
            for r in range(4):
                ops.append((f"v_rcp_f32 v{t + r}, v{t + r}", 2, e))
            for r in range(4):
                ops.append((f"v_mul_f32 v{p + r}, v{p + r}, v{t + r}", 1, e))
            ops.append((f"v_cvt_pk_bf16_f32 v{o}, v{p}, v{p + 1}", 1, e))
            ops.append((f"v_cvt_pk_bf16_f32 v{o + 1}, v{p + 2}, v{p + 3}", 1, e))
            ops.append((f"ds_write_b64 v12, v[{o}:{o + 1}] offset:{tt * 18 * KB}", 2, e))
        return ops

    lp = a.label("ffn_gu")
    a(f"{lp}:")
    mf, pinned = [], {}
    for G in range(12):
        gu, grp = G & 1, G >> 1
        for tt in range(4):
            for kk in range(3):
                ks = 3 * grp + kk
                c = ACC + 16 * gu + 4 * tt
                d = STG + 16 * gu + 4 * tt if ks == 17 else c
                src = "0" if ks == 0 else f"v[{c}:{c + 3}]"
                w = RING + 4 * ((3 * G + kk) % 18)
                mf.append(f"v_mfma_f32_16x16x32_bf16 v[{d}:{d + 3}], v[{w}:{w + 3}], {xreg(tt, ks)}, {src}")
        for kk in range(3):
            n = 3 * G + kk
            pinned[12 * G + 4 * kk + 1] = [(wload((n + 15) % 18, n), 2)]
    gaps = pack_gaps(144, pinned, gelu_ops(lambda tt: 2))
    check_stage_reads(mf, gaps, STG, 32)
    for i in range(144):
        if i % 12 == 0:
            a("s_waitcnt vmcnt(12)")
        a(mf[i])
        for text, _ in gaps[i]:
            a(text)
        if i == 139:
            a("s_lshl_b32 s7, s25, 11")
        if i == 140:
            a("s_add_u32 s7, s7, s24")
        if i == 142:
            a(f"s_add_u32 s23, s23, {36 * KB}")
    a(f"v_add_u32 v12, s7, v{VB}")
    a("s_add_u32 s25, s25, 1")
    a("s_cmp_lt_u32 s25, 9")
    a(f"s_cbranch_scc1 {lp}")
    mark(a, 13)
    a(f"v_add_u32 v10, {HB}, v{VB}")
    a(f"v_add_u32 v11, {HB + 36 * KB}, v{VB}")
    a("s_waitcnt lgkmcnt(0)")
    a("s_barrier")
    hread = lambda tt, ks: f"ds_read_b128 {xreg(tt, ks)}, v{10 if tt < 2 else 11} offset:{((tt * 18 + ks) % 36) * KB}"
    reads = [hread(tt, ks) for ks in range(16) for tt in range(4)]
    ops = []
    for tt in range(4):
        t, p, o = TMP + 10 * (tt & 1), TMP + 10 * (tt & 1) + 4, TMP + 10 * (tt & 1) + 8
        g, u = STG + 4 * tt, STG + 16 + 4 * tt
        pr = lambda r: f"v[{r}:{r + 1}]"
        bc = lambda r: (pr(r & ~1), r & 1)

        def pkfma(d, x, y, z):
            (ry, sy), (rz, sz) = bc(y), bc(z)
            return f"v_pk_fma_f32 {pr(d)}, {pr(x)}, {ry}, {rz} op_sel:[0,{sy},{sz}] op_sel_hi:[1,{sy},{sz}]"
        ops += [f"v_pk_mul_f32 {pr(t + r)}, {pr(g + r)}, {pr(g + r)}" for r in (0, 2)]
        ops += [pkfma(t + r, t + r, C1[tt], C0[tt]) for r in (0, 2)]
        ops += [f"v_pk_mul_f32 {pr(t + r)}, {pr(g + r)}, {pr(t + r)}" for r in (0, 2)]
        ops += [f"v_exp_f32 v{t + r}, v{t + r}" for r in range(4)]
        ops += [f"v_pk_mul_f32 {pr(p + r)}, {pr(g + r)}, {pr(u + r)}" for r in (0, 2)]
        ops += [pkfma(t + r, t + r, VV[tt], VV[tt]) for r in (0, 2)]
        ops += [f"v_rcp_f32 v{t + r}, v{t + r}" for r in range(4)]
        ops += ["s_nop 0"]
        ops += [f"v_pk_mul_f32 {pr(p + r)}, {pr(p + r)}, {pr(t + r)}" for r in (0, 2)]
        ops += [f"v_cvt_pk_bf16_f32 v{o}, v{p}, v{p + 1}", f"v_cvt_pk_bf16_f32 v{o + 1}, v{p + 2}, v{p + 3}"]
        ops += [f"ds_write_b64 v12, v[{o}:{o + 1}] offset:{tt * 18 * KB}"]
    ahead = [wload(15 + n, n) for n in range(18)]
    for i, t in enumerate(ops):
        a(t)
        if reads and i % 4 != 3:
            a(reads.pop(0))
        if i % 6 == 5 and len(ahead) > 2:
            a(ahead.pop(0))
    for t in reads + ahead:
        a(t)
    a(f"s_add_u32 s23, s23, {18 * KB}")
    dtile_voff(a, "v2", "v1", None, 8 * GB)
    a(f"v_add_u32 v3, {32 * GB}, v2")
    a(f"s_mul_i32 s26, s41, {64 * GB}")
    a("s_add_u32 s26, s26, s43")
    a(f"s_mul_i32 s7, s40, {GB}")
    a("s_add_u32 s26, s26, s7")
    a(f"s_mul_i32 s7, s3, {9 * 256}")
    a("s_add_u32 s26, s26, s7")
    a(f"s_add_u32 s26, s26, {PART}")
    a(f"s_add_u32 s27, s26, {8 * 256}")
    a("s_waitcnt lgkmcnt(0)")
    a("s_barrier")
    for ks in (16, 17):
        for tt in range(4):
            a(hread(tt, ks))
    a("s_mov_b32 s25, 0")
    a("s_waitcnt lgkmcnt(0)")
    mark(a, 14)

    def down_epi(e):
        ops = []
        for pr in range(2):
            o = TMP + 4 * pr
            for h in range(2):
                s = STG + 4 * (2 * pr + h)
                ops.append((f"v_cvt_pk_bf16_f32 v{o + 2 * h}, v{s}, v{s + 1}", 1, e))
                ops.append((f"v_cvt_pk_bf16_f32 v{o + 2 * h + 1}, v{s + 2}, v{s + 3}", 1, e))
        for pr in range(2):
            o = TMP + 4 * pr
            ops.append((f"v_permlane16_swap_b32 v{o}, v{o + 2}", 2, e))
            ops.append((f"v_permlane16_swap_b32 v{o + 1}, v{o + 3}", 2, e))
        for pr in range(2):
            o = TMP + 4 * pr
            if not Cfg.nostore:
                ops.append((f"buffer_store_dwordx4 v[{o}:{o + 3}], v{2 + pr}, s[8:11], s27 offen sc1", 2, e))
        return ops

    def down_trip(half):
        base = 0 if half else 18
        mf, pinned = [], {}
        for G in range(6):
            for tt in range(4):
                for kk in range(3):
                    ks = 3 * G + kk
                    c = ACC + 4 * tt
                    d = STG + 4 * tt if ks == 17 else c
                    src = "0" if ks == 0 else f"v[{c}:{c + 3}]"
                    w = slot_reg(base + ks)
                    mf.append(f"v_mfma_f32_16x16x32_bf16 v[{d}:{d + 3}], v[{w}:{w + 3}], {xreg(tt, ks)}, {src}")
            for kk in range(3):
                n = 3 * G + kk
                pinned[12 * G + 4 * kk + 1] = [(wload((base + n + 33) % 36, n), 2)]
        gaps = pack_gaps(72, pinned, down_epi(6))
        check_stage_reads(mf, gaps, STG, 16)
        store_groups = [i // 12 for i in range(72) for t, _ in gaps[i] if "store" in t]
        for i in range(72):
            if i % 12 == 0:
                G = i // 12
                extra = sum(1 for sg in store_groups if sg < G)
                if not half:
                    extra += sum(1 for sg in store_groups if sg >= G - 4)
                a(f"s_waitcnt vmcnt({30 + extra})")
            a(mf[i])
            for text, _ in gaps[i]:
                a(text)
            if i == 66:
                a("s_lshl_b32 s7, s25, 8")
            if i == 67:
                a("s_add_u32 s27, s26, s7")
            if i == 68:
                a("s_add_u32 s25, s25, 1")
            if i == 70:
                a(f"s_add_u32 s23, s23, {18 * KB}")

    lp, mid = a.label("ffn_dn"), a.label("ffn_dn_mid")
    a(f"s_branch {mid}")
    a(f"{lp}:")
    down_trip(0)
    a(f"{mid}:")
    down_trip(1)
    a("s_cmp_lt_u32 s25, 9")
    a(f"s_cbranch_scc1 {lp}")
    mark(a, 15)
    a("s_nop 7")
    prev = None
    for t, _, _ in down_epi(0):
        if "permlane" in t and "cvt" in prev:
            a("s_nop 1")
        a(t)
        prev = t
    publish(a, PH_FFN)
    mark(a, 20)


def k_main(a):
    name = NAME + "_kernel"
    kernel_begin(a, name)
    end, last, loop = "L_main_end", "L_main_last", "L_main_layer"
    Cfg.sv = 254
    entry(a, 256, end, ["s_load_dwordx4 s[16:19], s[0:1], 0", "s_load_dwordx2 s[22:23], s[0:1], 16",
                        "s_load_dwordx8 s[24:31], s[0:1], 32"])
    a(f"s_mov_b32 s7, {EPOCH}")
    a("s_load_dword s76, s[4:5], s7")
    a("s_mov_b64 s[20:21], s[18:19]")
    a("s_mov_b64 s[18:19], s[16:17]")
    srd(a, 48, "s4", "s5", WS_SIZE)
    tile_map(a, "s40", "s41", Cfg.jx)
    a("s_mov_b32 s42, 0")
    a("s_mov_b32 s43, 0")
    a("s_lshl_b32 s44, s41, 10")
    a(f"s_add_u32 s44, s44, {FLAGS + FPH}")
    a("v_lshlrev_b32 v253, 4, v0")
    if Cfg.stamps:
        a("v_mov_b32 v254, 0")
        a("v_mov_b32 v255, 0")
    mark(a, 31)
    phase_prep(a, end)
    qkv_prefetch(a, 0, 6)
    a(f"{loop}:")
    phase_qkv(a, end)
    phase_wo(a, end)
    phase_ffn(a, end)
    tail = phase_red(a, end, last)
    a("s_mov_b32 s42, 1")
    a(f"s_mov_b32 s43, {LSTR}")
    a(f"s_add_u32 s44, s44, {4 * FPH}")
    a("s_mov_b32 s74, 0")
    a(f"s_branch {loop}")
    a(f"{last}:")
    tail()
    done = a.label("done")
    a("s_or_b32 s7, s40, s41")
    a("s_or_b32 s7, s7, s3")
    a(f"s_cbranch_scc1 {done}")
    a("v_mov_b32 v1, s76")
    a(f"s_mov_b32 s7, {EPOCH}")
    a("s_mov_b64 exec, 1")
    a("buffer_store_dword v1, off, s[8:11], s7 sc1")
    a("s_mov_b64 exec, -1")
    a(f"{done}:")
    if Cfg.stamps:
        a("s_waitcnt vmcnt(0)")
        mark(a, 19)
        dump_marks(a, 1)
    a(f"{end}:")
    a("s_endpgm")
    return name, 256, 256


def build(stamps=False):
    Cfg.stamps = stamps
    a = Asm()
    a('.amdgcn_target "amdgcn-amd-amdhsa--gfx950"')
    name, nv, na = k_main(a)
    kernel_desc(a, name, nv, na, 100)
    text = HEADER + f"; @launch grid=(256,1,1) block=(256,1,1) lds={160 * KB}\n" + a.text()
    bad = hazards.check(text)
    if bad:
        print("\n".join(bad[:40]), file=sys.stderr)
        raise SystemExit(f"{len(bad)} hazards")
    return text


if __name__ == "__main__":
    out = sys.argv[1] if len(sys.argv) > 1 else os.path.join(os.path.dirname(os.path.abspath(__file__)), "..", NAME + ".s")
    stamps = "--stamps" in sys.argv
    for x in sys.argv[2:]:
        if x.startswith("--set="):
            for kv in x[6:].split(","):
                k, v = kv.split(":")
                setattr(Cfg, k, int(v) if v.isdigit() else v.replace("+", " "))
    open(out, "w").write(build(stamps))
```

```python
import math
import os
import struct
import sys

sys.path.insert(0, os.path.dirname(os.path.abspath(__file__)))
from asmlib import Asm, kernel_begin, kernel_desc, reg, srd
import hazards

NAME = "interleave_layers__sliding_local_dilated__glu_gated_geglu__prompt"
KB = 1024
GB = 9216
WS_SIZE = 256 << 20
WQ = 0
WO = 0x240000
WF = 0x300000
WSTR = 486 * KB
FLAGS = 0x1240000
FPH = 256 * 128
SL_WQ, SL_WF, SL_WO, SL_EARLY = 9, 10, 11, 12
EPOCH = 0x12C0000
PART = 0x1300000
XN = 0x2500000
OO = 0x2740000
X2 = 0x2980000
XC = 0x2BC0000
MEAN = 0x2E00000
STAT = 0x2E10000
MEAN1 = 0x2E30000
LSTR = 0x940000
OOB = 0x40000000
STAMP_OFF = 255 << 20

HEADER = """; Kernarg layout for this problem (80 bytes, ptrs only, base s[0:1]):
"""


def f32(x):
    return "0x%08x" % struct.unpack("<I", struct.pack("<f", x))[0]


def sdiv(a, dst, src, d, hi):
    m = -(-(1 << 20) // d)
    assert all((x * m) >> 20 == x // d for x in range(hi + 1)) and hi * m < (1 << 32)
    a(f"s_mul_i32 {dst}, {src}, {m}")
    a(f"s_lshr_b32 {dst}, {dst}, 20")


def sdivmod(a, q, r, src, d, hi):
    sdiv(a, q, src, d, hi)
    a(f"s_mul_i32 {r}, {q}, {d}")
    a(f"s_sub_u32 {r}, {src}, {r}")


def csel(a, dst, x, y):
    a(f"s_mov_b32 {dst}, {y}")
    a(f"s_cmov_b32 {dst}, {x}")


class Vm:
    def __init__(self):
        self.ops = []

    def issue(self, tag):
        self.ops.append(tag)

    def count(self, *tags):
        last = max(i for i, t in enumerate(self.ops) if t in tags)
        return len(self.ops) - 1 - last


class Cfg:
    stamps = False
    jx = 4
    wflag = "sc1"
    nostore = 0
    nogelu = 0
    noload = 0
    ldpos = 1
    gcap = 2
    pflag = "sc1"
    epi_gap = 6
    wo_per_ks = 4
    w_per_ks = 3
    code_warm = 1
    xflag = "sc1"
    wo_gap = 8
    red_pre = 4
    red_feed = 2
    raw_early = 6
    raw_flag = "nt"
    z_early = 6
    sleep = 0
    pw = 0


def tile_map(a, sj, smt, jx):
    lg = jx.bit_length() - 1
    a(f"s_and_b32 {sj}, s2, {8 // jx - 1}")
    a(f"s_lshl_b32 {sj}, {sj}, {lg}")
    a(f"s_bfe_u32 s7, s2, {3 | (lg << 16)}")
    a(f"s_add_u32 {sj}, {sj}, s7")
    a(f"s_bfe_u32 {smt}, s2, {(3 - lg) | (lg << 16)}")
    a(f"s_lshl_b32 {smt}, {smt}, {5 - lg}")
    a(f"s_lshr_b32 s7, s2, {3 + lg}")
    a(f"s_add_u32 {smt}, {smt}, s7")


def entry(a, nwg, end, extra_loads=()):
    a(f"s_cmp_ge_u32 s2, {nwg}")
    a(f"s_cbranch_scc1 {end}")
    a("s_load_dwordx2 s[4:5], s[0:1], 72")
    for l in extra_loads:
        a(l)
    a("v_lshrrev_b32 v1, 6, v0")
    a("v_and_b32 v0, 63, v0")
    a("v_readfirstlane_b32 s3, v1")
    a("s_waitcnt lgkmcnt(0)")
    srd(a, 8, "s4", "s5", WS_SIZE)


def mark(a, idx):
    if Cfg.stamps:
        a("s_memrealtime s[100:101]")
        a("s_memtime vcc")
        a("s_lshl_b32 m0, s42, 5")
        a(f"s_add_u32 m0, m0, {idx}")
        a("s_waitcnt lgkmcnt(0)")
        a(f"v_writelane_b32 v{Cfg.sv}, s100, m0")
        a(f"v_writelane_b32 v{Cfg.sv + 1}, vcc_lo, m0")


def dump_marks(a, slot):
    if Cfg.stamps:
        a("s_lshl_b32 s7, s2, 2")
        a("s_add_u32 s7, s7, s3")
        a("s_lshl_b32 s7, s7, 9")
        a(f"s_add_u32 s7, s7, {STAMP_OFF + slot * 0x80000}")
        a("v_lshlrev_b32 v1, 2, v0")
        a(f"buffer_store_dword v{Cfg.sv}, v1, s[8:11], s7 offen")
        a(f"buffer_store_dword v{Cfg.sv + 1}, v1, s[8:11], s7 offen offset:256")


PH_QKV, PH_WO, PH_FFN, PH_RED = range(4)


def publish(a, phase, extra=None):
    skip = a.label("pub")
    a("v_lshlrev_b32 v15, 7, v0")
    a("s_lshl_b32 s6, s40, 2")
    a("s_add_u32 s6, s6, s44")
    if phase > 0:
        a(f"s_add_u32 s6, s6, {phase * FPH}")
    elif phase < 0:
        a(f"s_sub_u32 s6, s6, {-phase * FPH}")
    a("v_mov_b32 v1, s76")
    a("s_mov_b64 vcc, 0xff")
    if phase % 4 == PH_RED:
        a("v_lshrrev_b32 v14, 3, v0")
        a("v_lshl_add_u32 v15, v14, 3, v15")
        a("s_cmp_ge_u32 s40, 6")
        a("s_cselect_b32 s7, s41, 31")
        a("s_cmp_lt_u32 s7, 31")
        a("s_cmov_b64 vcc, 0xffff")
    a("s_waitcnt vmcnt(0)")
    a("s_barrier")
    a(f"s_cmp_lg_u32 s3, {Cfg.pw}")
    a(f"s_cbranch_scc1 {skip}")
    a("s_mov_b64 exec, vcc")
    a("buffer_store_dword v1, v15, s[8:11], s6 offen sc1")
    if extra:
        extra(skip)
    a(f"{skip}:")
    a("s_mov_b64 exec, -1")


def column_flag(a, slot):
    a("v_lshlrev_b32 v15, 10, v0")
    a("s_lshl_b32 s6, s40, 7")
    a("s_lshl_b32 s7, s41, 2")
    a("s_add_u32 s6, s6, s7")
    a(f"s_add_u32 s6, s6, {FLAGS + slot * FPH}")
    a("s_mov_b64 exec, 0xffffffff")
    a("v_lshlrev_b32 v15, 10, v0")
    a("v_mov_b32 v1, s76")
    a("buffer_store_dword v1, v15, s[8:11], s6 offen sc1")


def spin_words(a, soff, vaddr, abort):
    lp, ok = a.label("spin"), a.label("spun")
    a("s_mov_b32 s6, 0")
    a(f"{lp}:")
    a(f"buffer_load_dword v1, {vaddr}, s[8:11], {soff} offen sc1")
    a("s_add_u32 s6, s6, 1")
    a("s_waitcnt vmcnt(0)")
    a("v_cmp_eq_u32 vcc, s76, v1")
    a("s_cmp_eq_u64 vcc, exec")
    a(f"s_cbranch_scc1 {ok}")
    a(f"s_cmp_lt_u32 s6, {1 << 20}")
    a(f"s_cbranch_scc1 {lp}")
    a(f"s_branch {abort}")
    a(f"{ok}:")


def column_wait(a, slot, abort):
    lp, again, ok = a.label("cpoll"), a.label("cpoll"), a.label("cpolled")
    a("s_lshl_b32 s7, s41, 3")
    a("s_add_u32 s7, s7, s40")
    a("s_lshl_b32 s7, s7, 7")
    a(f"s_add_u32 s7, s7, {FLAGS + slot * FPH}")
    a("s_add_u32 s68, s4, s7")
    a("s_addc_u32 s69, s5, 0")
    a("s_mov_b32 s6, 0")
    a("s_mov_b32 s7, 0")
    a(f"{lp}:")
    a("s_load_dwordx16 s[52:67], s[68:69], s7 glc")
    a("s_add_u32 s6, s6, 1")
    a("s_waitcnt lgkmcnt(0)")
    for r in range(52, 68, 2):
        a(f"s_xor_b64 s[{r}:{r + 1}], s[{r}:{r + 1}], s[76:77]")
    for n in (8, 4, 2):
        for r in range(52, 52 + n, 2):
            a(f"s_or_b64 s[{r}:{r + 1}], s[{r}:{r + 1}], s[{r + n}:{r + n + 1}]")
    a(f"s_cbranch_scc1 {again}")
    a("s_add_u32 s7, s7, 64")
    a("s_cmp_eq_u32 s7, 128")
    a(f"s_cbranch_scc1 {ok}")
    a(f"{again}:")
    a(f"s_cmp_lt_u32 s6, {1 << 20}")
    a(f"s_cbranch_scc1 {lp}")
    a(f"s_branch {abort}")
    a(f"{ok}:")


def wait_flags(a, off, abort, halo=False, extra=None):
    lp, ok, out = a.label("poll"), a.label("polled"), a.label("pollout")
    a(f"s_cmp_lg_u32 s3, {Cfg.pw}")
    a(f"s_cbranch_scc1 {out}")
    a("s_lshl_b32 s7, s40, 7")
    a("s_add_u32 s7, s7, s44")
    if off > 0:
        a(f"s_add_u32 s7, s7, {off}")
    elif off < 0:
        a(f"s_sub_u32 s7, s7, {-off}")
    a("s_add_u32 s52, s4, s7")
    a("s_addc_u32 s53, s5, 0")
    if halo:
        a("s_cmp_eq_u32 s41, 0")
        a("s_cselect_b32 s7, 0, 32")
    a("s_mov_b32 s6, 0")
    a(f"{lp}:")
    a("s_load_dwordx8 s[56:63], s[52:53], 0 glc")
    if halo:
        a("s_load_dwordx2 s[54:55], s[52:53], s7 glc")
    a("s_add_u32 s6, s6, 1")
    a("s_waitcnt lgkmcnt(0)")
    for r in ([54] if halo else []) + [56, 58, 60, 62]:
        a(f"s_xor_b64 s[{r}:{r + 1}], s[{r}:{r + 1}], s[76:77]")
    a("s_or_b64 s[56:57], s[56:57], s[58:59]")
    a("s_or_b64 s[60:61], s[60:61], s[62:63]")
    if halo:
        a("s_or_b64 s[56:57], s[56:57], s[54:55]")
    a("s_or_b64 s[56:57], s[56:57], s[60:61]")
    a(f"s_cbranch_scc0 {ok}")
    a(f"s_cmp_lt_u32 s6, {1 << 20}")
    a(f"s_cbranch_scc1 {lp}")
    a(f"s_branch {abort}")
    a(f"{ok}:")
    if extra:
        extra(out)
    a(f"{out}:")
    a("s_barrier")


def bfrag_voff(a, dst, tmp):
    a(f"v_bfe_u32 {tmp}, v0, 3, 1")
    a(f"v_mul_u32_u24 {dst}, {GB}, {tmp}")
    a(f"v_lshrrev_b32 {tmp}, 4, v0")
    a(f"v_lshl_add_u32 {dst}, {tmp}, 7, {dst}")
    a(f"v_and_b32 {tmp}, 7, v0")
    a(f"v_lshl_add_u32 {dst}, {tmp}, 4, {dst}")


def dtile_voff(a, dst, tmp, tmp2, gstride):
    a(f"v_bfe_u32 {tmp}, v0, 3, 2")
    a(f"s_mov_b32 s7, {gstride}")
    a(f"v_mul_lo_u32 {dst}, {tmp}, s7")
    a(f"v_lshrrev_b32 {tmp}, 5, v0")
    a(f"v_lshl_add_u32 {dst}, {tmp}, 7, {dst}")
    a(f"v_and_b32 {tmp}, 7, v0")
    a(f"v_lshl_add_u32 {dst}, {tmp}, 4, {dst}")


def rowsum_16_32(a, vals, tmp):
    for swap in ("v_permlane32_swap_b32", "v_permlane16_swap_b32"):
        for i, v in enumerate(vals):
            a(f"v_mov_b32 {tmp[i]}, {v}")
        a("s_nop 1")
        for i, v in enumerate(vals):
            a(f"{swap} {tmp[i]}, {v}")
        for i, v in enumerate(vals):
            a(f"v_add_f32 {v}, {v}, {tmp[i]}")


def ln_coeffs(a, vs, vss, rstd, nb):
    a(f"v_mul_f32 {vs}, {f32(1.0 / 576)}, {vs}")
    a(f"v_mul_f32 {vss}, {f32(1.0 / 576)}, {vss}")
    a(f"v_fma_f32 {vss}, -{vs}, {vs}, {vss}")
    a(f"v_max_f32 {vss}, 0, {vss}")
    a(f"v_add_f32 {vss}, {f32(1e-5)}, {vss}")
    a(f"v_rsq_f32 v{rstd}, {vss}")
    a("s_nop 0")
    a(f"v_mul_f32 v{nb}, {vs}, v{rstd}")
    a(f"v_mov_b32 v{rstd + 1}, v{rstd}")
    a(f"v_sub_f32 v{nb}, 0, v{nb}")
    a(f"v_mov_b32 v{nb + 1}, v{nb}")


def normalize(a, src, dst, n, rstd, nb, tmp):
    for i0 in range(0, n, 4):
        k = min(4, n - i0)
        for i in range(k):
            a(f"v_lshlrev_b32 v{tmp + 2 * i}, 16, v{src + i0 + i}")
            a(f"v_and_b32 v{tmp + 2 * i + 1}, s16, v{src + i0 + i}")
        for i in range(k):
            t = tmp + 2 * i
            a(f"v_pk_fma_f32 v[{t}:{t + 1}], v[{t}:{t + 1}], v[{rstd}:{rstd + 1}], v[{nb}:{nb + 1}]")
        for i in range(k):
            t = tmp + 2 * i
            a(f"v_cvt_pk_bf16_f32 v{dst + i0 + i}, v{t}, v{t + 1}")


VR, VM = 172, 175


def red_offsets(a):
    a("s_mov_b32 s16, 0xffff0000")
    a("s_lshl_b32 s7, s3, 10")
    a(f"v_add_u32 v{VR}, s7, v253")
    a(f"v_add_u32 v{VR + 2}, 5120, v{VR}")
    a("v_and_b32 v178, 7, v0")
    a("v_mul_u32_u24 v178, 1152, v178")
    a("v_lshrrev_b32 v179, 3, v0")
    a("v_lshl_add_u32 v178, v179, 4, v178")
    a("s_lshl_b32 s7, s3, 7")
    a(f"v_add_u32 v{VM}, s7, v178")
    a(f"v_add_u32 v{VM + 2}, 640, v{VM}")
    a("s_cmp_eq_u32 s3, 0")
    csel(a, "s17", 4096, OOB)
    a(f"v_add_u32 v{VR + 1}, s17, v{VR}")
    csel(a, "s17", 512, OOB)
    a(f"v_add_u32 v{VM + 1}, s17, v{VM}")


def red_ln_store(a, XB, sX2, sXN, sMEAN, flag):
    for b in range(3):
        a(f"buffer_store_dwordx4 v[{XB + 4 * b}:{XB + 4 * b + 3}], v{VR + b}, s[8:11], {sX2} offen {flag}")
    a("s_mov_b32 s17, 0x3f803f80")
    for i in range(4):
        a(f"v_mov_b32 v{8 + i}, 0")
    for i in range(12):
        a(f"v_dot2c_f32_bf16 v{8 + 2 * (i & 1)}, s17, v{XB + i}")
        a(f"v_dot2c_f32_bf16 v{9 + 2 * (i & 1)}, v{XB + i}, v{XB + i}")
    a("v_and_b32 v12, 7, v0")
    a("v_lshlrev_b32 v12, 3, v12")
    a("s_lshl_b32 s7, s3, 6")
    a("v_add_u32 v13, s7, v12")
    a("v_pk_add_f32 v[8:9], v[8:9], v[10:11]")
    a("s_nop 1")
    a("v_add_f32_dpp v8, v8, v8 row_ror:8 row_mask:0xf bank_mask:0xf")
    a("v_add_f32_dpp v9, v9, v9 row_ror:8 row_mask:0xf bank_mask:0xf")
    rowsum_16_32(a, ["v8", "v9"], ["v10", "v11"])
    a("ds_write_b64 v13, v[8:9]")
    a("s_waitcnt lgkmcnt(0)")
    a("s_barrier")
    T = 40
    for w in range(4):
        a(f"ds_read_b64 v[{T + 2 * w}:{T + 2 * w + 1}], v12 offset:{64 * w}")
    a("s_waitcnt lgkmcnt(0)")
    a(f"v_pk_add_f32 v[{T}:{T + 1}], v[{T}:{T + 1}], v[{T + 2}:{T + 3}]")
    a(f"v_pk_add_f32 v[{T + 4}:{T + 5}], v[{T + 4}:{T + 5}], v[{T + 6}:{T + 7}]")
    a(f"v_pk_add_f32 v[8:9], v[{T}:{T + 1}], v[{T + 4}:{T + 5}]")
    ln_coeffs(a, "v8", "v9", 10, 12)
    a("s_cmp_eq_u32 s3, 0")
    a("s_cselect_b32 s7, 32, 0")
    a("v_lshlrev_b32 v14, 2, v0")
    a("v_cmp_gt_u32 vcc, s7, v0")
    a(f"v_mov_b32 v9, {OOB}")
    a("s_nop 0")
    a("v_cndmask_b32 v14, v9, v14, vcc")
    a(f"buffer_store_dword v8, v14, s[8:11], {sMEAN} offen {flag}")
    normalize(a, XB, 48, 12, 10, 12, T)
    for b in range(3):
        a(f"buffer_store_dwordx4 v[{48 + 4 * b}:{51 + 4 * b}], v{VR + b}, s[8:11], {sXN} offen {flag}")


def red_setup(a):
    red_offsets(a)
    a("s_lshl_b32 s21, s41, 3")
    a("s_add_u32 s21, s21, s40")
    a(f"s_mul_i32 s18, s21, {GB}")
    a(f"s_mul_i32 s20, s21, {8 * GB}")
    a(f"s_add_u32 s20, s20, {PART}")
    a("s_mov_b32 s19, s20")
    loads = []
    for j in range(8):
        for b in range(2):
            r = slot_reg(18 + 2 * j + b)
            t = f"buffer_load_dwordx4 v[{r}:{r + 3}], v{VR + b}, s[8:11], s19 offen sc1"
            if b == 1 and j < 7:
                t += f"\ns_add_u32 s19, s19, {GB}"
            loads.append(t)
    return loads


def phase_red(a, abort, last):
    ACC, TMP, LD, XR, XB = 16, 40, 60, 92, 120
    a("s_add_u32 s19, s18, s43")
    a(f"s_add_u32 s22, s19, {XC}")
    a("s_lshl_b32 s23, s21, 5")
    a("s_add_u32 s23, s23, s43")
    a(f"s_add_u32 s23, s23, {MEAN1}")
    a("v_and_b32 v12, 7, v0")
    a("v_lshlrev_b32 v12, 2, v12")
    a("buffer_load_dword v10, v12, s[8:11], s23 offen sc1")
    for b in range(3):
        a(f"buffer_load_dwordx4 v[{XR + 4 * b}:{XR + 4 * b + 3}], v{VR + b}, s[8:11], s22 offen sc1")

    def unpack(dst, r):
        for i in range(4):
            a(f"v_lshlrev_b32 v{dst + 2 * i}, 16, v{r + i}")
            a(f"v_and_b32 v{dst + 2 * i + 1}, s16, v{r + i}")

    def add(b, r):
        unpack(TMP, r)
        for i in range(4):
            c = ACC + 8 * b + 2 * i
            a(f"v_pk_add_f32 v[{c}:{c + 1}], v[{c}:{c + 1}], v[{TMP + 2 * i}:{TMP + 2 * i + 1}]")

    for b in range(2):
        unpack(ACC + 8 * b, slot_reg(18 + b))
    for j in range(1, Cfg.red_pre):
        for b in range(2):
            add(b, slot_reg(18 + 2 * j + b))
    wait_flags(a, PH_FFN * FPH, abort)
    mark(a, 16)
    vm = Vm()
    for j in range(8):
        a(f"buffer_load_dwordx4 v[{LD + 4 * j}:{LD + 4 * j + 3}], v{VR + 2}, s[8:11], s20 offen sc1")
        vm.issue(j)
        if j < 7:
            a(f"s_add_u32 s20, s20, {GB}")
    pf = Asm()
    qkv_prefetch(pf, 0, 6, "s42")
    queue, chunk = [], ""
    for ln in pf.lines:
        chunk += ln + "\n"
        if "buffer_load" in ln:
            queue.append(chunk)
            chunk = ""

    def feed(n):
        for _ in range(n):
            if queue:
                a(queue.pop(0))
                vm.issue("w")

    for j in range(Cfg.red_pre, 8):
        for b in range(2):
            add(b, slot_reg(18 + 2 * j + b))
    a("s_cmp_eq_u32 s3, 0")
    a("s_cselect_b32 s7, 1.0, 0")
    a("s_waitcnt vmcnt(8)")
    a("v_mul_f32 v11, s7, v10")
    for b in range(2):
        add(b, XR + 4 * b)
    unpack(ACC + 16, XR + 8)
    for b in range(3):
        for i in range(4):
            c = ACC + 8 * b + 2 * i
            sel = "op_sel:[0,1] op_sel_hi:[1,1]" if b == 1 else "op_sel_hi:[1,0]"
            a(f"v_pk_add_f32 v[{c}:{c + 1}], v[{c}:{c + 1}], v[10:11] {sel}")
    for j in range(8):
        a(f"s_waitcnt vmcnt({vm.count(j)})")
        feed(Cfg.red_feed)
        add(2, LD + 4 * j)
    feed(99)
    a(chunk)
    for b in range(3):
        for i in range(4):
            c = ACC + 8 * b + 2 * i
            a(f"v_cvt_pk_bf16_f32 v{XB + 4 * b + i}, v{c}, v{c + 1}")
    mark(a, 17)
    a("s_cmp_lg_u32 s42, 0")
    a(f"s_cbranch_scc1 {last}")
    a(f"s_add_u32 s19, s18, {X2 + LSTR}")
    a(f"s_add_u32 s20, s18, {XN + LSTR}")
    a("s_lshl_b32 s22, s21, 7")
    a(f"s_add_u32 s22, s22, {MEAN + LSTR}")
    red_ln_store(a, XB, "s19", "s20", "s22", "sc1")
    mark(a, 18)
    publish(a, PH_RED)
    mark(a, 19)

    def tail():
        for b in range(3):
            a(f"buffer_store_dwordx4 v[{XB + 4 * b}:{XB + 4 * b + 3}], v{VM + b}, s[12:15], s18 offen")
    return tail


ZB = 96 * KB


def o_row(a, dst, vc, vj, t0, t1):
    a(f"v_mul_u32_u24 {t0}, 7282, {vc}")
    a(f"v_lshrrev_b32 {t0}, 16, {t0}")
    a(f"v_mul_u32_u24 {t1}, 9, {t0}")
    a(f"v_sub_u32 {t1}, {vc}, {t1}")
    a(f"v_mul_u32_u24 {t0}, 72, {t0}")
    a(f"v_cmp_eq_u32 vcc, 8, {t1}")
    a(f"v_lshrrev_b32 {dst}, 1, {t1}")
    a(f"v_mad_u32_u24 {dst}, {dst}, 18, {t0}")
    a(f"v_and_b32 {t1}, 1, {t1}")
    a(f"v_lshl_add_u32 {dst}, {t1}, 3, {dst}")
    a(f"v_add_u32 {dst}, {dst}, {vj}")
    a(f"v_lshrrev_b32 {t1}, 1, {vj}")
    a(f"v_mad_u32_u24 {t0}, {t1}, 18, {t0}")
    a(f"v_and_b32 {t1}, 1, {vj}")
    a(f"v_add3_u32 {t0}, {t0}, {t1}, 16")
    a(f"v_cndmask_b32 {dst}, {dst}, {t0}, vcc")


def tr_rows(a, dst, tmp, shift, pitch):
    a(f"v_lshrrev_b32 {dst}, 4, v0")
    a(f"v_lshlrev_b32 {dst}, {shift}, {dst}")
    a(f"v_bfe_u32 {tmp}, v0, 2, 2")
    a(f"v_add_u32 {dst}, {dst}, {tmp}")
    a(f"v_mul_u32_u24 {dst}, {pitch}, {dst}")
    a(f"v_and_b32 {tmp}, 3, v0")
    a(f"v_lshl_add_u32 {dst}, {tmp}, 3, {dst}")


def phase_prep(a, abort):
    srd(a, 12, "s18", "s19", 2048 * 1152)
    srd(a, 64, "s20", "s21", 576 * 3456)
    srd(a, 68, "s22", "s23", 576 * 1152)
    red_offsets(a)
    a("s_lshl_b32 s21, s41, 3")
    a("s_add_u32 s21, s21, s40")
    a(f"s_mul_i32 s18, s21, {GB}")
    for b in range(3):
        a(f"buffer_load_dwordx4 v[{16 + 4 * b}:{19 + 4 * b}], v{VM + b}, s[12:15], s18 offen")
    srd(a, 12, "s30", "s31", 2048 * 1152)
    a("s_lshl_b32 s79, s3, 14")
    a(f"s_add_u32 s79, s79, {ZB}")
    a("s_lshl_b32 s78, s3, 13")
    a(f"s_add_u32 s78, s78, {8 * KB}")
    nq, nq2 = a.label("noq"), a.label("noq")
    a("s_lshl_b32 s32, s3, 5")
    a("s_add_u32 s32, s32, s41")
    a("s_cmp_ge_u32 s32, 72")
    a(f"s_cbranch_scc1 {nq}")
    sdivmod(a, "s33", "s34", "s32", 18, 71)
    a("s_lshl_b32 s7, s40, 2")
    a("s_add_u32 s33, s33, s7")
    a(f"s_mul_i32 s35, s34, {32 * 3456}")
    a("s_mul_i32 s7, s33, 36")
    a("s_add_u32 s35, s35, s7")
    a(f"v_mov_b32 v13, {OOB}")
    for i in range(5):
        a(f"v_add_u32 v8, {64 * i}, v0")
        a("v_mul_u32_u24 v9, 21846, v8")
        a("v_lshrrev_b32 v9, 16, v9")
        a("v_mul_u32_u24 v10, 3, v9")
        a("v_sub_u32 v10, v8, v10")
        a("v_and_b32 v11, 31, v9")
        a("v_mul_u32_u24 v11, 3456, v11")
        a("v_lshl_add_u32 v11, v10, 4, v11")
        a("v_lshrrev_b32 v9, 5, v9")
        a("v_mul_u32_u24 v9, 1152, v9")
        a(f"s_add_u32 m0, s78, {i * KB}")
        a("v_add_u32 v11, v11, v9")
        if i == 4:
            a("v_cmp_gt_u32 vcc, 32, v0")
            a("s_nop 1")
            a("v_cndmask_b32 v11, v13, v11, vcc")
        a("buffer_load_dwordx4 v11, s[64:67], s35 offen lds")
    a(f"{nq}:")
    lw, l3, l4, l5 = a.label("wbar"), a.label("p3"), a.label("wbar"), a.label("p3")
    a("s_lshl_b32 s36, s41, 1")
    a("s_lshr_b32 s7, s40, 2")
    a("s_add_u32 s36, s36, s7")
    a("s_and_b32 s37, s40, 3")
    a("s_cmp_eq_u32 s3, 3")
    a(f"s_cbranch_scc1 {lw}")
    a("s_mul_i32 s38, s36, 3")
    a("s_add_u32 s38, s38, s3")
    a("s_cmp_ge_u32 s38, 162")
    a(f"s_cbranch_scc1 {l3}")
    sdivmod(a, "s39", "s45", "s38", 18, 161)
    a("s_mul_i32 s7, s37, 9")
    a("s_add_u32 s39, s39, s7")
    a("s_lshl_b32 s7, s45, 2")
    a("v_lshrrev_b32 v8, 4, v0")
    a("v_add_u32 v8, s7, v8")
    a("v_bfe_u32 v9, v0, 1, 3")
    o_row(a, "v10", "v8", "v9", "v11", "v12")
    a("v_mul_u32_u24 v10, 1152, v10")
    a("v_and_b32 v9, 1, v0")
    a("v_lshl_add_u32 v10, v9, 4, v10")
    a(f"s_add_u32 m0, s78, {6 * KB}")
    a("s_lshl_b32 s7, s39, 5")
    a("buffer_load_dwordx4 v10, s[68:71], s7 offen lds")
    a(f"s_branch {l3}")
    a(f"{lw}:")
    a("s_cmp_ge_u32 s36, 36")
    a(f"s_cbranch_scc1 {l3}")
    a("s_lshl_b32 s7, s36, 1")
    a("v_bfe_u32 v8, v0, 3, 1")
    a("v_add_u32 v8, s7, v8")
    a("v_and_b32 v9, 7, v0")
    o_row(a, "v10", "v8", "v9", "v11", "v12")
    a("v_mul_u32_u24 v10, 1152, v10")
    a("v_lshrrev_b32 v9, 4, v0")
    a("v_lshl_add_u32 v10, v9, 4, v10")
    for ks in range(18):
        a(f"buffer_load_dwordx4 v[{64 + 4 * ks}:{67 + 4 * ks}], v10, s[68:71], 0 offen offset:{64 * ks}")
    a(f"{l3}:")
    a("s_lshl_b32 s7, s41, 2")
    a("s_add_u32 s7, s7, s3")
    sdiv(a, "s93", "s7", 41, 127)
    a("s_min_u32 s93, s93, 2")
    a("s_mul_i32 s6, s93, 41")
    a("s_sub_u32 s7, s7, s6")
    a("s_lshl_b32 s46, s7, 2")
    a("s_cmp_eq_u32 s93, 1")
    a("s_cselect_b32 s72, s26, s24")
    a("s_cselect_b32 s73, s27, s25")
    a("s_cmp_eq_u32 s93, 2")
    a("s_cselect_b32 s72, s28, s72")
    a("s_cselect_b32 s73, s29, s73")
    csel(a, "s92", 8 * 1152, 8 * 9216)
    csel(a, "s47", 18 * 32 * 1152, 1152)
    a("s_and_b32 s73, s73, 0xffff")
    a(f"s_mov_b32 s74, {576 * 9216}")
    a("s_mov_b32 s75, 0x20000")
    a("s_mul_i32 s47, s47, s40")
    for b in range(4):
        a(f"s_add_u32 s7, s46, {b}")
        a("s_min_u32 s7, s7, 161")
        sdivmod(a, f"s{84 + b}", f"s{88 + b}", "s7", 9, 161)
        a(f"s_mul_i32 s7, s{84 + b}, s92")
        a("s_lshl_b32 s7, s7, 2")
        a("s_add_u32 s7, s7, s47")
        a(f"s_lshl_b32 s6, s{88 + b}, 7")
        a(f"s_add_u32 s{80 + b}, s7, s6")
    a("s_lshr_b32 s7, s92, 3")
    a("v_lshrrev_b32 v224, 3, v0")
    a("v_mul_lo_u32 v224, v224, s7")
    a("v_and_b32 v8, 7, v0")
    a("v_lshl_add_u32 v224, v8, 4, v224")
    a("s_waitcnt lgkmcnt(0)")
    a("s_mul_i32 s76, s76, 0x9e3779b1")
    a("s_add_u32 s76, s76, 0x7f4a7c15")
    a("s_mov_b32 s77, s76")
    tr_rows(a, "v8", "v9", 3, 48)
    a("v_add_u32 v8, s78, v8")
    a("v_and_b32 v9, 3, v0")
    a("v_min_u32 v10, 2, v9")
    a("v_mul_u32_u24 v10, 1536, v10")
    a("v_lshlrev_b32 v9, 3, v9")
    a("v_sub_u32 v10, v10, v9")
    a("v_add3_u32 v10, v10, v8, 32")
    a("v_and_b32 v9, 15, v0")
    a("v_cmp_gt_u32 s[22:23], 6, v9")
    a("v_lshrrev_b32 v11, 1, v9")
    a("v_and_b32 v12, 0x31, v0")
    a("v_lshl_add_u32 v11, v11, 2, v12")
    a("v_lshlrev_b32 v11, 2, v11")
    for i in range(Cfg.raw_early):
        a(ffn_raw_dma(i))
    a(f"s_waitcnt vmcnt({Cfg.raw_early})")
    mark(a, 28)
    a("s_cmp_ge_u32 s32, 72")
    a(f"s_cbranch_scc1 {nq2}")
    a("ds_read_b64_tr_b16 v[44:45], v10")
    a("ds_read_b64_tr_b16 v[46:47], v10 offset:192")
    for t in range(3):
        a(f"ds_read_b64_tr_b16 v[{32 + 4 * t}:{33 + 4 * t}], v8 offset:{t * 1536}")
        a(f"ds_read_b64_tr_b16 v[{34 + 4 * t}:{35 + 4 * t}], v8 offset:{t * 1536 + 192}")
    a("s_mul_i32 s33, s33, 18")
    a("s_add_u32 s33, s33, s34")
    a("s_lshl_b32 s33, s33, 12")
    if WQ:
        a(f"s_add_u32 s33, s33, {WQ}")
    a("s_waitcnt lgkmcnt(6)")
    for i in range(4):
        a(f"ds_bpermute_b32 v{44 + i}, v11, v{44 + i}")
    a("s_waitcnt lgkmcnt(4)")
    for t in range(3):
        a(f"buffer_store_dwordx4 v[{32 + 4 * t}:{35 + 4 * t}], v253, s[8:11], s33 offen offset:{t * KB} sc1")
    a("s_waitcnt lgkmcnt(0)")
    for i in range(4):
        a(f"v_cndmask_b32 v{44 + i}, 0, v{44 + i}, s[22:23]")
    a(f"buffer_store_dwordx4 v[44:47], v253, s[8:11], s33 offen offset:{3 * KB} sc1")
    a(f"{nq2}:")
    a("s_cmp_eq_u32 s3, 3")
    a(f"s_cbranch_scc1 {l4}")
    a("s_cmp_ge_u32 s38, 162")
    a(f"s_cbranch_scc1 {l5}")
    tr_rows(a, "v8", "v9", 3, 32)
    a("v_add_u32 v8, s78, v8")
    a(f"ds_read_b64_tr_b16 v[28:29], v8 offset:{6 * KB}")
    a(f"ds_read_b64_tr_b16 v[30:31], v8 offset:{6 * KB + 128}")
    a("s_mul_i32 s39, s39, 18")
    a("s_add_u32 s39, s39, s45")
    a("s_lshl_b32 s39, s39, 10")
    a(f"s_add_u32 s39, s39, {WO}")
    a("s_waitcnt lgkmcnt(0)")
    a("buffer_store_dwordx4 v[28:31], v253, s[8:11], s39 offen sc1")
    a(f"s_branch {l5}")
    a(f"{l4}:")
    a("s_cmp_ge_u32 s36, 36")
    a(f"s_cbranch_scc1 {l5}")
    for i in range(4):
        a(f"v_mov_b32 v{28 + i}, 0x3f803f80")
    a("v_and_b32 v9, 15, v0")
    a("v_cmp_eq_u32 vcc, 0, v9")
    a("v_cmp_eq_u32 s[22:23], 1, v9")
    for ks in range(18):
        a(f"v_mfma_f32_16x16x32_bf16 v[32:35], v[{64 + 4 * ks}:{67 + 4 * ks}], v[28:31], {'0' if ks == 0 else 'v[32:35]'}")
    a("v_lshrrev_b32 v10, 5, v0")
    a("v_lshlrev_b32 v10, 8, v10")
    a("v_lshl_add_u32 v10, v9, 4, v10")
    a("v_bfe_u32 v9, v0, 4, 1")
    a("v_lshl_add_u32 v10, v9, 3, v10")
    a("s_lshl_b32 s7, s36, 9")
    a(f"s_mul_i32 s6, s37, {18 * KB}")
    a("s_add_u32 s7, s7, s6")
    a(f"s_add_u32 s7, s7, {WO + 36 * 18 * KB}")
    for r in range(4):
        a(f"v_mul_f32 v{32 + r}, {f32(1.0 / 576)}, v{32 + r}")
    a("v_cvt_pk_bf16_f32 v36, v32, v33")
    a("v_cvt_pk_bf16_f32 v37, v34, v35")
    for h in range(2):
        a(f"v_lshlrev_b32 v38, 16, v{36 + h}")
        a(f"v_and_b32 v39, s16, v{36 + h}")
        a(f"v_sub_f32 v38, v{32 + 2 * h}, v38")
        a(f"v_sub_f32 v39, v{33 + 2 * h}, v39")
        a(f"v_cvt_pk_bf16_f32 v{28 + h}, v38, v39")
        a(f"v_cndmask_b32 v{28 + h}, 0, v{28 + h}, s[22:23]")
        a(f"v_cndmask_b32 v{28 + h}, v{28 + h}, v{36 + h}, vcc")
    a("buffer_store_dwordx2 v[28:29], v10, s[8:11], s7 offen sc1")
    a(f"{l5}:")
    a(f"s_add_u32 s19, s18, {X2}")
    a(f"s_add_u32 s20, s18, {XN}")
    a("s_lshl_b32 s22, s21, 7")
    a(f"s_add_u32 s22, s22, {MEAN}")
    red_ln_store(a, 16, "s19", "s20", "s22", "sc1")
    mark(a, 29)

    def more(skip):
        column_flag(a, SL_WQ)
        a("s_lshl_b32 s6, s37, 8")
        a("s_lshl_b32 s7, s36, 2")
        a("s_add_u32 s6, s6, s7")
        a(f"s_add_u32 s6, s6, {FLAGS + SL_WO * FPH}")
        a("s_mov_b64 exec, 1")
        a("buffer_store_dword v1, off, s[8:11], s6 sc1")

    publish(a, PH_RED - 4, more)
    mark(a, 30)
    for i in range(Cfg.raw_early, 16):
        a(ffn_raw_dma(i))
    out = a.label("wq_ready")
    a(f"s_cmp_lg_u32 s3, {Cfg.pw}")
    a(f"s_cbranch_scc1 {out}")
    column_wait(a, SL_WQ, abort)
    a(f"{out}:")
    a("s_barrier")
    mark(a, 27)


def ffn_raw_dma(i):
    b, m = divmod(i, 4)
    step = f"s_mov_b32 s47, s{80 + b}" if m == 0 else "s_add_u32 s47, s47, s92"
    return f"s_add_u32 m0, s79, {i * KB}\n{step}\nbuffer_load_dwordx4 v224, s[72:75], s47 offen {Cfg.raw_flag} lds"


ZQ = list(range(76, 100, 4)) + [176, 180] + list(range(196, 224, 4)) + [228]


def ffn_transpose_reads(a):
    a("s_cmp_eq_u32 s93, 2")
    a("s_cselect_b32 s6, 2, 3")
    csel(a, "s7", 2048, 512)
    tr_rows(a, "v14", "v15", "s6", 128)
    a("v_add_u32 v14, s79, v14")
    a("v_add_u32 v15, s7, v14")
    for b in range(4):
        for t in range(4):
            r = ZQ[4 * b + t]
            a(f"ds_read_b64_tr_b16 v[{r}:{r + 1}], v14 offset:{b * 4096 + t * 32}")
            a(f"ds_read_b64_tr_b16 v[{r + 2}:{r + 3}], v15 offset:{b * 4096 + t * 32}")


def ffn_transpose(a):
    ffn_transpose_reads(a)
    dn, dd = a.label("swz_down"), a.label("swz_dest")
    dest = [80, 81, 82, 83, 64, 65, 18, 19, 20, 21, 22, 25, 26, 27, 28, 29]
    a(f"s_mul_i32 s68, s40, {4 * WSTR}")
    a(f"s_add_u32 s68, s68, {WF}")
    a("s_cmp_eq_u32 s93, 2")
    a(f"s_cbranch_scc1 {dn}")
    for b in range(4):
        sdivmod(a, "s6", "s7", f"s{84 + b}", 3, 17)
        a("s_mul_i32 s6, s6, 6")
        a("s_add_u32 s7, s7, s6")
        a(f"s_mul_i32 s6, s{88 + b}, 36")
        a("s_add_u32 s7, s7, s6")
        a("s_mul_i32 s6, s93, 3")
        a("s_add_u32 s7, s7, s6")
        a("s_lshl_b32 s7, s7, 10")
        a("s_add_u32 s7, s7, s68")
        for t in range(4):
            a(f"s_add_u32 s{dest[4 * b + t]}, s7, {t * WSTR}")
    a(f"s_branch {dd}")
    a(f"{dn}:")
    for b in range(4):
        a(f"s_mul_i32 s7, s{88 + b}, 18")
        a(f"s_add_u32 s7, s7, s{84 + b}")
        a("s_add_u32 s7, s7, 324")
        a("s_lshl_b32 s7, s7, 10")
        a("s_add_u32 s7, s7, s68")
        for t in range(4):
            a(f"s_add_u32 s{dest[4 * b + t]}, s7, {t * WSTR}")
    a(f"{dd}:")
    return [f"buffer_store_dwordx4 v[{ZQ[i]}:{ZQ[i] + 3}], v253, s[72:75], s{dest[i]} offen sc1" for i in range(16)]


BIG = -1e30


QR = 10
WO_FREE = [(160 + 4 * i, -1) for i in range(24)] + \
    [(16 * (k % QR) + 4 * t, k) for k in range(18 - QR, 18) for t in range(4)]


def wo_reg(ks, sl):
    return WO_FREE[ks * 3 + sl][0]


def qkv_prefetch(a, k0, k1, skip=None):
    if k0 == 0:
        a("s_lshl_b32 s28, s40, 2")
        a("s_add_u32 s28, s28, s3")
        a(f"s_mul_i32 s28, s28, {72 * KB}")
        if WQ:
            a(f"s_add_u32 s28, s28, {WQ}")
    v = "v253"
    if skip:
        a(f"s_mul_i32 s7, {skip}, {OOB}")
        a("v_add_u32 v1, s7, v253")
        v = "v1"
    for ks in range(k0, k1):
        for l in qkv_wload(ks, v):
            a(l)
        a("s_add_u32 s28, s28, 4096")


def qkv_wload(ks, v="v253"):
    for t in range(4):
        r = 16 * (ks % QR) + 4 * t
        yield f"buffer_load_dwordx4 a[{r}:{r + 3}], {v}, s[8:11], s28 offen offset:{t * KB} {Cfg.wflag}"


def wo_weight_loads(a):
    setup = []
    s = setup.append
    s("s_lshl_b32 s45, s41, 1")
    s("s_lshr_b32 s7, s40, 2")
    s("s_add_u32 s45, s45, s7")
    s(f"s_mul_i32 s30, s45, {4 * GB}")
    s("s_add_u32 s30, s30, s43")
    s("s_and_b32 s31, s40, 3")
    s("s_mul_i32 s31, s31, 9")
    s("s_add_u32 s31, s31, s3")
    s(f"s_mul_i32 s32, s31, {18 * KB}")
    s(f"s_add_u32 s32, s32, {WO}")
    s(f"s_add_u32 s33, s32, {4 * 18 * KB}")
    s(f"s_add_u32 s34, s32, {8 * 18 * KB}")
    s("s_and_b32 s7, s40, 3")
    s(f"s_mul_i32 s6, s7, {18 * KB}")
    s(f"s_add_u32 s6, s6, {WO + 36 * 18 * KB}")
    s("s_lshl_b32 s39, s7, 8")
    s(f"s_add_u32 s39, s39, {FLAGS + SL_WO * FPH}")
    s("v_lshlrev_b32 v226, 2, v0")
    s("s_cmp_eq_u32 s3, 1")
    s("s_cmov_b32 s34, s6")
    s("s_cmp_lt_u32 s3, 2")
    s(f"s_cselect_b32 s35, 0, {OOB}")
    s("v_add_u32 v5, s35, v253")
    s("s_cmp_eq_u32 s3, 0")
    s(f"s_cselect_b32 s35, 0, {OOB}")
    s("v_add_u32 v7, s35, v9")
    s("s_lshl_b32 s7, s31, 8")
    s("s_add_u32 s36, s30, s7")
    s(f"s_add_u32 s37, s36, {X2}")
    s(f"s_add_u32 s46, s36, {XC}")
    s("s_lshl_b32 s36, s45, 7")
    s("s_add_u32 s36, s36, s43")
    s(f"s_add_u32 s36, s36, {MEAN1}")
    s("s_lshl_b32 s47, s45, 9")
    s("s_add_u32 s47, s47, s43")
    s(f"s_add_u32 s47, s47, {MEAN}")
    s("v_bfe_u32 v10, v0, 3, 2")
    s("v_and_b32 v8, 7, v0")
    s("v_lshlrev_b32 v8, 2, v8")
    s("v_lshl_add_u32 v8, v10, 7, v8")
    loads = []
    for ks in range(18):
        for sl in range(3):
            r = wo_reg(ks, sl)
            t = f"buffer_load_dwordx4 a[{r}:{r + 3}], v{5 if sl == 2 else 253}, s[8:11], s{32 + sl} offen offset:{(ks & 3) * KB} {Cfg.wflag}"
            if ks & 3 == 3:
                t += f"\ns_add_u32 s{32 + sl}, s{32 + sl}, 4096"
            loads.append((t, WO_FREE[ks * 3 + sl][1]))
    for sl in range(3):
        loads.append((f"buffer_load_dwordx4 v[{240 + 4 * sl}:{243 + 4 * sl}], v{7 if sl == 2 else 9}, s[8:11], s37 offen offset:{sl * KB} sc1", -1))
    loads.append(("buffer_load_dword v252, v8, s[8:11], s47 offen sc1", -1))
    return setup, loads


def phase_qkv(a, abort):
    BF, ACC, QO, KO, VO, VL, SEL, CI, BP, BC, BP1 = 16, 56, 132, 152, 172, 182, 192, 196, 200, 204, 208
    qkv_prefetch(a, 6, QR - 1)
    bfrag_voff(a, "v2", "v3")
    dtile_voff(a, "v9", "v3", None, GB)
    a(f"s_mul_i32 s22, s41, {8 * GB}")
    a("s_add_u32 s22, s22, s43")
    a(f"s_add_u32 s23, s22, {XN}")
    a(f"s_mul_i32 s7, s3, {2 * GB}")
    a("s_add_u32 s24, s23, s7")
    a("s_cmp_eq_u32 s41, 0")
    a(f"s_cselect_b32 s7, 0, {2 * GB}")
    a("s_sub_u32 s23, s23, s7")
    units = [(0, tt) for tt in range(1, 5)] + [(t, tt) for t in range(1, 4) for tt in range(5)]
    acc = {u: ACC + 4 * i for i, u in enumerate(units)}
    a("s_lshl_b32 s25, s3, 10")
    a("s_add_u32 s25, s25, 1024")
    a("s_mul_i32 s26, s3, 5120")
    a("s_lshl_b32 s7, s3, 9")
    a("s_add_u32 s27, s23, s7")
    a("s_and_b32 s7, s3, 1")
    a("s_add_u32 s7, s7, 4")
    a("s_mul_i32 s29, s7, 5120")
    a("s_lshl_b32 s7, s7, 9")
    a("s_add_u32 s23, s23, s7")
    wait_flags(a, (PH_RED - 4) * FPH, abort, halo=True)
    mark(a, 0)
    def xdma(st):
        for kk in range(6):
            ks = 6 * st + kk
            t = f"s_add_u32 m0, s25, {ks * 5120 - (ks % 8) * 512}\n"
            t += "s_add_u32 s24, s24, 4096\n" if ks and ks % 8 == 0 else "s_nop 0\n"
            yield t + f"buffer_load_dwordx4 v2, s[8:11], s24 offen offset:{(ks % 8) * 512} {Cfg.xflag} lds"
        for sm, so in (("s26", "s27"), ("s29", "s23")):
            yield (f"s_add_u32 m0, {sm}, {st * 30720}\ns_add_u32 s7, {so}, {st * 3072}\n"
                   f"buffer_load_dwordx4 v2, s[8:11], s7 offen {Cfg.xflag} lds")

    vm = Vm()
    for t in xdma(0):
        a(t)
        vm.issue(("x", 0))
    for r in [QO, QO + 1, SEL, SEL + 1, SEL + 3] + [QO + 4 * t + 3 for t in range(5)] + [KO + 4 * t + 3 for t in range(5)]:
        a(f"v_mov_b32 v{r}, 0")
    a("v_cmp_eq_u32 vcc, 16, v0")
    a("v_mov_b32 v10, 0x3f80")
    a("v_cmp_eq_u32 s[20:21], 17, v0")
    a(f"v_cndmask_b32 v{SEL + 2}, 0, v10, vcc")
    a("v_and_b32 v11, 3, v0")
    a(f"v_cndmask_b32 v{SEL + 2}, v{SEL + 2}, 1.0, s[20:21]")
    a("v_cmp_eq_u32 vcc, 2, v11")
    a("v_and_b32 v10, 15, v0")
    a("v_lshrrev_b32 v11, 4, v0")
    for r in range(4):
        a(f"v_cndmask_b32 v{CI + r}, 0, 1.0, vcc")
    a("v_lshlrev_b32 v11, 2, v11")
    a("v_sub_u32 v10, v11, v10")
    a(f"v_mov_b32 v12, {f32(BIG)}")
    a("s_cmp_eq_u32 s41, 0")
    a("s_cselect_b64 s[38:39], 0, -1")
    for r in range(4):
        a(f"v_add_u32 v11, {r}, v10")
        a("v_and_b32 v13, 1, v11")
        a("v_cmp_eq_u32 s[20:21], 0, v13")
        a("v_cmp_lt_i32 vcc, 1, v11")
        a("v_cmp_gt_i32 s[18:19], 1, v11")
        a("s_and_b64 vcc, vcc, s[20:21]")
        a("s_and_b64 s[18:19], s[18:19], s[20:21]")
        a("s_and_b64 s[20:21], vcc, s[38:39]")
        a(f"v_cndmask_b32 v{BP + r}, v12, 0, vcc")
        a(f"v_cndmask_b32 v{BC + r}, v12, 0, s[18:19]")
        a(f"v_cndmask_b32 v{BP1 + r}, v12, 0, s[20:21]")
    setup, early = wo_weight_loads(a)
    for t in setup:
        a(t)
    a(f"v_add_u32 v6, {45 * KB}, v253")
    a("s_waitcnt vmcnt(0)")
    a("s_barrier")
    mark(a, 1)

    def xread(ks, tt):
        r = BF + 20 * (ks & 1) + 4 * tt
        f = ks * 5 + tt
        return f"ds_read_b128 v[{r}:{r + 3}], v{253 if f < 45 else 6} offset:{(f % 45) * KB}"

    for tt in range(5):
        a(xread(0, tt))
    stage = {1: list(xdma(1)), 2: list(xdma(2))}
    wq = []
    for k in range(QR - 1, 18):
        ls = list(qkv_wload(k))
        ls[3] += "\ns_add_u32 s28, s28, 4096"
        wq += [(l, ("w", k)) for l in ls]
    for ks in range(18):
        cur = BF + 20 * (ks & 1)
        fill = {}
        if ks < 17:
            for tt in range(5):
                fill[tt] = [(xread(ks + 1, tt), None)]
        vq = []
        st = 1 if ks < 4 else 2
        for _ in range(2):
            if stage[st] and ks != 4:
                vq.append((stage[st].pop(0), ("x", st)))
        for _ in range(Cfg.w_per_ks):
            if wq and wq[0][1][1] - QR < ks:
                vq.append(wq.pop(0))
        while ks >= 18 - QR + 1 and len(vq) < Cfg.wo_per_ks and early[0][1] < ks:
            vq.append((early.pop(0)[0], "o"))
        for i, op in enumerate(vq):
            fill[5 + 2 * i] = [op]
        if ks == 4:
            fill[5 + 2 * len(vq)] = [("buffer_load_dword v225, v226, s[8:11], s39 offen sc1", "b")]
        need = ([("w", ks)] if ks >= QR - 1 else []) + ([("x", (ks + 1) // 6)] if ks in (5, 11) else [])
        if ks == 18 - QR + 1:
            need.append("b")
        a(f"s_waitcnt vmcnt({vm.count(*need)}) lgkmcnt(0)" if need else "s_waitcnt lgkmcnt(0)")
        if ks == 18 - QR + 1:
            ok = a.label("wo_ready")
            a("v_cmp_eq_u32 vcc, s76, v225")
            a("s_cmp_eq_u64 vcc, exec")
            a(f"s_cbranch_scc1 {ok}")
            spin_words(a, "s39", "v226", abort)
            a(f"{ok}:")
        if ks in (5, 11):
            a("s_barrier")
        for u, (t, tt) in enumerate(units):
            c = acc[(t, tt)]
            wr = 16 * (ks % QR) + 4 * t
            w, x = f"a[{wr}:{wr + 3}]", f"v[{cur + 4 * tt}:{cur + 4 * tt + 3}]"
            if t == 2:
                w, x = x, w
            a(f"v_mfma_f32_16x16x32_bf16 v[{c}:{c + 3}], {w}, {x}, {'0' if ks == 0 else f'v[{c}:{c + 3}]'}")
            for text, tag in fill.get(u, []):
                a(text)
                if tag:
                    vm.issue(tag)
    assert not stage[1] and not stage[2]
    assert not wq
    early = [t for t, _ in early]
    nw = len(early) - 4
    tail_loads = early[nw - Cfg.wo_gap:nw]
    early = early[:nw - Cfg.wo_gap] + early[nw:]
    mark(a, 2)
    body = []
    e = body.append
    cvt = lambda d, s: e(f"v_cvt_pk_bf16_f32 v{d}, v{s}, v{s + 1}")
    mf = lambda d, x, y, c: e(f"v_mfma_f32_16x16x32_bf16 v[{d}:{d + 3}], v[{x}:{x + 3}], v[{y}:{y + 3}], {c}")
    quad = lambda r: f"v[{r}:{r + 3}]"
    for tt in range(1, 5):
        cvt(QO + 4 * tt, acc[(0, tt)]); cvt(QO + 4 * tt + 1, acc[(0, tt)] + 2)
    for tt in range(5):
        cvt(KO + 4 * tt, acc[(1, tt)]); cvt(KO + 4 * tt + 1, acc[(1, tt)] + 2)
    for tt in range(5):
        cvt(QO + 4 * tt + 2, acc[(3, tt)]); cvt(KO + 4 * tt + 2, acc[(3, tt)] + 2)
    for tt in range(5):
        cvt(VO + 2 * tt, acc[(2, tt)]); cvt(VO + 2 * tt + 1, acc[(2, tt)] + 2)
    S, T, P, M = 16, 56, 76, 92
    for tt in range(1, 5):
        s = S + 8 * (tt - 1)
        mf(s, KO + 4 * (tt - 1), QO + 4 * tt, quad(BP1 if tt == 1 else BP))
        mf(s + 4, KO + 4 * tt, QO + 4 * tt, quad(BC))
    for tt in range(5):
        mf(T + 4 * tt, QO + 4 * tt, SEL, quad(CI))
    for i in range(4):
        s = S + 8 * i
        e(f"v_max3_f32 v{M + i}, v{s}, v{s + 1}, v{s + 2}")
        e(f"v_max3_f32 v{M + 4 + i}, v{s + 3}, v{s + 4}, v{s + 5}")
    for i in range(4):
        s = S + 8 * i
        e(f"v_max3_f32 v{M + i}, v{M + i}, v{s + 6}, v{s + 7}")
    for i in range(4):
        e(f"v_max_f32 v{M + i}, v{M + i}, v{M + 4 + i}")
    c = 18 ** -0.5 * math.log2(math.e)
    e(f"s_mov_b32 s18, {f32(c)}")
    tcv = [(VL + 2 * tt + h, T + 4 * tt + 2 * h) for tt in range(5) for h in range(2)]
    pad = lambda n: [cvt(*tcv.pop(0)) for _ in range(n)]
    pad(1)
    e(f"v_permlane32_swap_b32 v{M}, v{M + 1}")
    e(f"v_permlane32_swap_b32 v{M + 2}, v{M + 3}")
    e(f"v_max_f32 v{M}, v{M}, v{M + 1}")
    e(f"v_max_f32 v{M + 2}, v{M + 2}, v{M + 3}")
    pad(2)
    e(f"v_permlane16_swap_b32 v{M}, v{M + 2}")
    e(f"v_max_f32 v{M}, v{M}, v{M + 2}")
    e(f"v_mul_f32 v{M}, {f32(-c)}, v{M}")
    e(f"v_mov_b32 v{M + 2}, v{M}")
    pad(2)
    e(f"v_permlane16_swap_b32 v{M}, v{M + 2}")
    e(f"v_mov_b32 v{M + 1}, v{M}")
    e(f"v_mov_b32 v{M + 3}, v{M + 2}")
    pad(2)
    e(f"v_permlane32_swap_b32 v{M}, v{M + 1}")
    e(f"v_permlane32_swap_b32 v{M + 2}, v{M + 3}")
    pad(3)
    OA, OL, R, OUT, LO = 100, 116, 96, 212, 220
    for i in range(4):
        s = S + 8 * i
        for r in range(8):
            e(f"v_fma_f32 v{s + r}, v{s + r}, s18, v{M + i}")
        for r in range(8):
            e(f"v_exp_f32 v{s + r}, v{s + r}")
        if i:
            mf(OA + 4 * (i - 1), VO + 2 * (i - 1), P + 4 * (i - 1), "0")
            mf(OL + 4 * (i - 1), VL + 2 * (i - 1), P + 4 * (i - 1), "0")
        else:
            e("s_nop 0")
        for r in range(4):
            cvt(P + 4 * i + r, s + 2 * r)
    e(f"v_rcp_f32 v{R}, v{OL + 2}")
    e(f"v_rcp_f32 v{R + 1}, v{OL + 6}")
    mf(OA + 12, VO + 6, P + 12, "0")
    mf(OL + 12, VL + 6, P + 12, "0")

    def scale(i):
        sel = "op_sel:[1,0] op_sel_hi:[1,1]" if i & 1 else "op_sel:[0,0] op_sel_hi:[0,1]"
        rp = R + (i & 2)
        for o in (OA + 4 * i, OA + 4 * i + 2, OL + 4 * i):
            e(f"v_pk_mul_f32 v[{o}:{o + 1}], v[{rp}:{rp + 1}], v[{o}:{o + 1}] {sel}")
        cvt(OUT + 2 * i, OA + 4 * i); cvt(OUT + 2 * i + 1, OA + 4 * i + 2); cvt(LO + i, OL + 4 * i)

    scale(0)
    e(f"v_rcp_f32 v{R + 2}, v{OL + 10}")
    scale(1)
    e(f"v_rcp_f32 v{R + 3}, v{OL + 14}")
    e(f"v_permlane16_swap_b32 v{OUT}, v{OUT + 2}")
    e(f"v_permlane16_swap_b32 v{OUT + 1}, v{OUT + 3}")
    scale(2)
    scale(3)
    LX = 92 * KB
    e("s_lshl_b32 s7, s3, 2")
    e(f"s_add_u32 s7, s7, {LX}")
    e(f"v_permlane16_swap_b32 v{LO}, v{LO + 1}")
    e(f"v_permlane16_swap_b32 v{LO + 2}, v{LO + 3}")
    e("v_add_u32 v11, s7, v253")
    e("v_lshrrev_b32 v10, 3, v0")
    e(f"v_permlane32_swap_b32 v{LO}, v{LO + 2}")
    e(f"v_mul_u32_u24 v10, {GB}, v10")
    e(f"ds_write_b32 v11, v{LO}")
    e(f"v_permlane16_swap_b32 v{OUT + 4}, v{OUT + 6}")
    e(f"v_permlane16_swap_b32 v{OUT + 5}, v{OUT + 7}")
    step = max(1, len(body) // len(early))
    for i, t in enumerate(body):
        a(t)
        if early and i % step == step - 1:
            a(early.pop(0))
    for t in early:
        a(t)
    a("s_mul_i32 s7, s40, 1152")
    a("s_add_u32 s22, s22, s7")
    a(f"s_add_u32 s22, s22, {OO}")
    a("s_lshl_b32 s7, s3, 8")
    a("s_add_u32 s23, s22, s7")
    a(f"s_add_u32 s24, s23, {4 * GB}")
    a(f"buffer_store_dwordx4 v[{OUT}:{OUT + 3}], v9, s[8:11], s23 offen sc1")
    a(f"buffer_store_dwordx4 v[{OUT + 4}:{OUT + 7}], v9, s[8:11], s24 offen sc1")
    a("v_and_b32 v11, 7, v0")
    a("v_lshl_add_u32 v10, v11, 4, v10")
    a("s_cmp_eq_u32 s3, 3")
    a(f"s_cselect_b32 s7, 0, {OOB}")
    a("v_add_u32 v10, s7, v10")
    a(f"v_add_u32 v11, {LX}, v253")
    a("s_waitcnt lgkmcnt(0)")
    a("s_barrier")
    a(f"ds_read_b128 v[{LO}:{LO + 3}], v11")
    a("s_waitcnt lgkmcnt(0)")
    a(f"buffer_store_dwordx4 v[{LO}:{LO + 3}], v10, s[8:11], s22 offen offset:1024 sc1")
    mark(a, 3)
    publish(a, PH_QKV)
    mark(a, 4)
    for t in tail_loads:
        a(t)


def phase_wo(a, abort):
    RES, BF, ACC, T = 240, 160, 100, 124
    z0 = a.label("swz")
    a("s_cmp_lg_u32 s42, 0")
    a(f"s_cbranch_scc1 {z0}")
    zst = ffn_transpose(a)
    a("s_mov_b32 s72, s8")
    a("s_mov_b32 s73, s9")
    a(f"s_mov_b32 s74, {WS_SIZE}")
    a("s_waitcnt lgkmcnt(0)")
    for _ in range(Cfg.z_early):
        a(zst.pop(0))
    a(f"{z0}:")
    a("s_and_b32 s7, s3, 1")
    a(f"s_mul_i32 s7, s7, {2 * GB}")
    a("s_add_u32 s24, s30, s7")
    a("s_lshr_b32 s7, s3, 1")
    a("s_lshl_b32 s7, s7, 9")
    a("s_add_u32 s24, s24, s7")
    a(f"s_add_u32 s24, s24, {OO}")
    a("s_mov_b32 s16, 0xffff0000")
    for sl in range(3):
        for i in range(4):
            a(f"v_lshlrev_b32 v{T + 8 * sl + 2 * i}, 16, v{RES + 4 * sl + i}")
            a(f"v_and_b32 v{T + 8 * sl + 2 * i + 1}, s16, v{RES + 4 * sl + i}")
    MX = 40 * KB
    a("s_cmp_eq_u32 s3, 1")
    a("s_cselect_b32 s7, 16, 0")
    a("v_lshlrev_b32 v12, 2, v0")
    a("v_cmp_gt_u32 vcc, s7, v0")
    a(f"v_add_u32 v10, {MX}, v12")
    a(f"v_add_u32 v11, {MX + 512}, v12")
    a("v_cndmask_b32 v10, v11, v10, vcc")
    a("v_and_b32 v11, 0x7c, v12")
    a("v_cmp_gt_u32 vcc, 32, v0")
    a(f"v_mov_b32 v13, {OOB}")
    a("s_and_b32 s7, s40, 3")
    a("s_lshl_b32 s45, s45, 2")
    a("v_cndmask_b32 v8, v13, v12, vcc")
    a("s_add_u32 s6, s7, s3")
    a("s_cmp_eq_u32 s6, 0")
    a(f"s_cselect_b32 s6, 0, {OOB}")
    a("v_add_u32 v6, s6, v8")
    a("s_add_u32 s45, s45, s7")
    a("s_lshl_b32 s45, s45, 2")
    a("s_add_u32 s45, s45, s3")
    a("s_lshl_b32 s45, s45, 7")
    a("s_add_u32 s45, s45, s43")
    a(f"s_add_u32 s45, s45, {STAT}")
    a("s_cmp_eq_u32 s3, 0")
    a("s_cselect_b32 s35, 1.0, 0")
    ring = ffn_ring_setup(a)
    wait_flags(a, PH_QKV * FPH, abort)
    mark(a, 5)
    a("s_lshl_b32 m0, s3, 10")
    for m in range(9):
        if m:
            a("s_add_u32 m0, m0, 4096")
            a("s_add_u32 s24, s24, 1024")
        else:
            a("s_nop 0")
        a(f"buffer_load_dwordx4 v2, s[8:11], s24 offen {Cfg.xflag} lds")
    z1, z2 = a.label("swz"), a.label("swz")
    a("s_cmp_lg_u32 s42, 0")
    a(f"s_cbranch_scc1 {z1}")
    for t in zst:
        a(t)
    a(f"s_waitcnt vmcnt({len(zst)})")
    a(f"s_branch {z2}")
    a(f"{z1}:")
    a("s_waitcnt vmcnt(0)")
    a(f"{z2}:")
    a("s_barrier")
    mark(a, 6)
    for tt in range(2):
        a(f"ds_read_b128 v[{BF + 4 * tt}:{BF + 4 * tt + 3}], v253 offset:{tt * KB}")
    for ks in range(18):
        cur, nxt = BF + 8 * (ks & 1), BF + 8 * ((ks + 1) & 1)
        a("s_waitcnt lgkmcnt(0)")
        i = 0
        for sl in range(3):
            for tt in range(2):
                c = ACC + 4 * (2 * sl + tt)
                w = wo_reg(ks, sl)
                src = "0" if ks == 0 else f"v[{c}:{c + 3}]"
                a(f"v_mfma_f32_16x16x32_bf16 v[{c}:{c + 3}], a[{w}:{w + 3}], v[{cur + 4 * tt}:{cur + 4 * tt + 3}], {src}")
                if i < 2 and ks < 17:
                    a(f"ds_read_b128 v[{nxt + 4 * i}:{nxt + 4 * i + 3}], v253 offset:{((ks + 1) * 2 + i) * KB}")
                if i == 3 and ring:
                    a(ring.pop(0))
                i += 1
    mark(a, 7)
    XR = 148
    a("s_nop 3")
    for r in range(4):
        a(f"v_permlane16_swap_b32 v{ACC + r}, v{ACC + 4 + r}")
    a(f"v_add_f32 v12, v{ACC + 16}, v{ACC + 17}")
    a(f"v_add_f32 v13, v{ACC + 20}, v{ACC + 21}")
    a("ds_write_b32 v10, v12")
    a("ds_write_b32 v10, v13 offset:64")
    for sl in (1, 2):
        for r in range(4):
            a(f"v_permlane16_swap_b32 v{ACC + 8 * sl + r}, v{ACC + 8 * sl + 4 + r}")
    a("s_waitcnt lgkmcnt(0)")
    a("s_barrier")
    a(f"ds_read_b32 v12, v11 offset:{MX}")
    for sl in range(3):
        for i in range(4):
            t, c = T + 8 * sl + 2 * i, ACC + 8 * sl + 2 * i
            a(f"v_pk_add_f32 v[{t}:{t + 1}], v[{t}:{t + 1}], v[{c}:{c + 1}]")
    a("v_mov_b32 v14, 0")
    a("v_mov_b32 v15, 0")
    a("s_waitcnt lgkmcnt(0)")
    a("v_add_f32 v12, v12, v252")
    for sl in range(3):
        for i in range(4):
            t, c = T + 8 * sl + 2 * i, ACC + 8 * sl + 2 * i
            a(f"v_pk_add_f32 v[{c}:{c + 1}], v[{t}:{t + 1}], v[12:13] op_sel_hi:[1,0] neg_lo:[0,1] neg_hi:[0,1]")
        for i in range(4):
            c = ACC + 8 * sl + 2 * i
            a(f"v_cvt_pk_bf16_f32 v{XR + 4 * sl + i}, v{c}, v{c + 1}")
        a(f"buffer_store_dwordx4 v[{XR + 4 * sl}:{XR + 4 * sl + 3}], v{7 if sl == 2 else 9}, s[8:11], s46 offen offset:{sl * KB} sc1")
    for i in range(12):
        a(f"v_dot2c_f32_bf16 v{15 if i >= 8 else 14}, v{XR + i}, v{XR + i}")
    a("buffer_store_dword v12, v6, s[8:11], s36 offen sc1")
    a("s_nop 1")
    a("v_fma_f32 v14, v15, s35, v14")
    a("v_mov_b32 v15, v14")
    a("s_nop 1")
    a("v_permlane32_swap_b32 v14, v15")
    a("v_add_f32 v14, v14, v15")
    a("buffer_store_dword v14, v8, s[8:11], s45 offen sc1")

    def more(skip):
        a("s_cmp_lg_u32 s42, 0")
        a(f"s_cbranch_scc1 {skip}")
        column_flag(a, SL_WF)

    publish(a, PH_WO, more)
    mark(a, 8)


FFN_LDS = 144 * KB
HB = 72 * KB


def pack_gaps(n_gaps, pinned, ops, start=0, cap=2):
    gaps = [list(pinned.get(g, [])) for g in range(n_gaps)]
    g = start
    for text, cost, earliest in ops:
        g = max(g, earliest)
        while sum(c for _, c in gaps[g]) + cost > cap:
            g += 1
        gaps[g].append((text, cost))
    return gaps


def check_stage_reads(mf, gaps, base, n):
    stage = {("v", base + i) for i in range(n)}
    wr = {}
    for i, t in enumerate(mf):
        for r in hazards.I(t, 0).w & stage:
            wr[r] = i
    for i, g in enumerate(gaps):
        for t, _ in g:
            for r in hazards.I(t.split("\n")[-1], 0).r & stage:
                assert i < wr[r], (i, t, wr[r])


RING, VB = 16, 184
RING_EXT = [104, 108, 112, 116, 180, 196, 200, 204, 208, 212, 216, 136, 140, 144, 148, 160, 164, 168]


def slot_reg(slot):
    return RING + 4 * slot if slot < 18 else RING_EXT[slot - 18]


def wload(slot, n):
    r = slot_reg(slot)
    return f"buffer_load_dwordx4 v[{r}:{r + 3}], v{VB + n // 4}, s[48:51], s23 offen offset:{(n % 4) * KB} {Cfg.wflag}"


def ffn_ring_setup(a):
    a("s_lshl_b32 s7, s40, 2")
    a("s_add_u32 s7, s7, s3")
    a(f"s_mul_i32 s23, s7, {WSTR}")
    a(f"s_add_u32 s23, s23, {WF}")
    a(f"s_add_u32 s50, s23, {WSTR}")
    a("s_mul_i32 s50, s50, s42")
    a(f"v_mov_b32 v{VB}, v253")
    for m in range(1, 9):
        a(f"v_add_u32 v{VB + m}, {4096 * m}, v253")
    return [wload(n, n) for n in range(15)]


def phase_ffn(a, abort):
    ACC, STG, TMP = 88, 120, 152
    xreg = lambda tt, ks: reg(256 + 4 * (tt * 18 + ks), 4) if tt * 18 + ks < 64 else reg(220 + 4 * (tt * 18 + ks - 64), 4)
    a("s_lshl_b32 s7, s41, 2")
    a("s_add_u32 s7, s7, s3")
    a(f"s_mul_i32 s22, s7, {2 * GB}")
    a("s_add_u32 s22, s22, s43")
    a(f"s_add_u32 s22, s22, {XC}")
    a(f"s_mul_i32 s24, s3, {18 * KB}")
    a("s_lshl_b32 s25, s41, 12")
    a("s_add_u32 s25, s25, s43")
    a(f"s_add_u32 s25, s25, {STAT}")
    a("v_lshrrev_b32 v3, 5, v0")
    a("v_and_b32 v10, 31, v0")
    a("v_lshlrev_b32 v10, 2, v10")
    a("v_lshl_add_u32 v3, v3, 11, v10")
    a(f"v_add_u32 v11, {36 * KB}, v{VB}")
    early = red_setup(a)
    dtile_voff(a, "v178", "v1", None, 8 * GB)
    a(f"v_add_u32 v179, {32 * GB}, v178")
    a(f"s_mul_i32 s26, s41, {64 * GB}")
    a(f"s_mul_i32 s7, s40, {GB}")
    a("s_add_u32 s26, s26, s7")
    a("s_lshl_b32 s7, s3, 8")
    a("s_add_u32 s27, s26, s7")
    a(f"s_add_u32 s27, s27, {PART - KB}")
    a("s_mov_b32 s74, 0")
    a(f"s_mul_i32 s7, s42, {3 * FPH}")
    a("s_sub_u32 s29, s44, s7")
    a(f"s_add_u32 s29, s29, {(SL_EARLY - 1) * FPH}")
    a("s_lshl_b32 s7, s40, 7")
    a("s_add_u32 s7, s7, s29")
    a("s_add_u32 s38, s4, s7")
    a("s_addc_u32 s39, s5, 0")
    a("s_lshl_b32 s7, s40, 2")
    a("s_add_u32 s29, s29, s7")

    def more(out):
        a("s_cmp_lg_u32 s42, 0")
        a(f"s_cbranch_scc1 {out}")
        column_wait(a, SL_WF, abort)

    wait_flags(a, PH_WO * FPH, abort, extra=more)
    mark(a, 9)
    C0, C1, VV, SS = [4, 5, 6, 7], [8, 9, 13, 14], [193, 194, 195, 252], 136
    k0 = -2.0 * math.sqrt(2.0 / math.pi) * math.log2(math.e)

    def xdma(ks):
        return (f"s_add_u32 m0, s24, {ks * KB - (ks % 8) * 512}\n"
                + ("s_add_u32 s22, s22, 4096\n" if ks and ks % 8 == 0 else "s_nop 0\n")
                + f"buffer_load_dwordx4 v2, s[8:11], s22 offen offset:{(ks % 8) * 512} {Cfg.xflag} lds")

    def xread(tt, ks):
        f = tt * 18 + ks
        return f"ds_read_b128 {xreg(tt, ks)}, v{VB if f < 36 else 11} offset:{(f % 36) * KB}"

    hread = lambda tt, ks: f"ds_read_b128 {xreg(tt, ks)}, v{10 if tt < 2 else 11} offset:{((tt * 18 + ks) % 36) * KB}"
    vm0 = Vm()
    a(f"s_add_u32 s50, s23, {WSTR}")
    late = a.label("ring")
    a("s_cmp_lg_u32 s42, 0")
    a(f"s_cbranch_scc1 {late}")
    for n in range(15):
        a(wload(n, n))
    a(f"{late}:")
    for n in range(15):
        vm0.issue(("w", n))
    for ks in range(12):
        a(xdma(ks))
        vm0.issue(("x", ks))
    a(f"s_add_u32 s23, s23, {15 * KB}")
    a("s_lshr_b32 s7, s3, 1")
    a("s_lshl_b32 s7, s7, 10")
    a("s_and_b32 s6, s3, 1")
    a("s_lshl_b32 s6, s6, 3")
    a("s_add_u32 s28, s7, s6")
    a(f"s_add_u32 s28, s28, {HB}")
    if Cfg.noload:
        a("s_mov_b32 s50, 0")
    a(f"s_waitcnt vmcnt({vm0.count(('x', 5))})")
    a("s_barrier")
    mark(a, 10)
    for ks in range(3):
        for tt in range(4):
            a(xread(tt, ks))

    def const_ops(e):
        ops = []
        for n in (8, 4, 2, 1):
            ops += [(f"v_add_f32 v{SS + i}, v{SS + i}, v{SS + n + i}", 1, e) for i in range(n)]
        ops += [(f"v_mov_b32 v{SS + 1}, {f32(1e-5)}", 1, e), (f"v_fmac_f32 v{SS + 1}, {f32(1.0 / 576)}, v{SS}", 1, e),
                (f"v_mov_b32 v{VV[0]}, v{SS + 1}", 1, e),
                (f"s_nop 0\nv_permlane16_swap_b32 v{VV[0]}, v{SS + 1}", 2, e),
                (f"v_mov_b32 v{VV[2]}, v{VV[0]}", 1, e), (f"v_mov_b32 v{VV[1]}, v{SS + 1}", 1, e),
                (f"v_mov_b32 v{VV[3]}, v{SS + 1}", 1, e),
                (f"s_nop 0\nv_permlane32_swap_b32 v{VV[0]}, v{VV[2]}", 2, e),
                (f"v_permlane32_swap_b32 v{VV[1]}, v{VV[3]}", 2, e)]
        ops += [(f"v_rsq_f32 v{C0[tt]}, v{VV[tt]}", 2, e) for tt in range(4)]
        ops += [(f"v_mul_f32 v{C1[tt]}, v{C0[tt]}, v{C0[tt]}", 1, e) for tt in range(4)]
        ops += [(f"v_mul_f32 v{C0[tt]}, {f32(k0)}, v{C0[tt]}", 1, e) for tt in range(4)]
        ops += [(f"v_mul_f32 v{C1[tt]}, {f32(0.044715)}, v{C1[tt]}", 1, e) for tt in range(4)]
        ops += [(f"v_mul_f32 v{C1[tt]}, v{C1[tt]}, v{C0[tt]}", 1, e) for tt in range(4)]
        return ops

    def gelu_ops(first_gap):
        ops = []
        for tt in range(4):
            t, p, o = TMP + 10 * (tt & 1), TMP + 10 * (tt & 1) + 4, TMP + 10 * (tt & 1) + 8
            g, u = STG + 4 * tt, STG + 16 + 4 * tt
            e = first_gap(tt)
            for r in range(4):
                ops.append((f"v_mul_f32 v{t + r}, v{g + r}, v{g + r}", 1, e))
            for r in range(4):
                ops.append((f"v_fma_f32 v{t + r}, v{t + r}, v{C1[tt]}, v{C0[tt]}", 1, e))
            for r in range(4):
                ops.append((f"v_mul_f32 v{t + r}, v{g + r}, v{t + r}", 1, e))
            for r in range(4):
                ops.append((f"v_exp_f32 v{t + r}, v{t + r}", 2, e))
            for r in range(4):
                ops.append((f"v_mul_f32 v{p + r}, v{g + r}, v{u + r}", 1, e))
            for r in range(4):
                ops.append((f"v_fma_f32 v{t + r}, v{t + r}, v{VV[tt]}, v{VV[tt]}", 1, e))
            for r in range(4):
                ops.append((f"v_rcp_f32 v{t + r}, v{t + r}", 2, e))
            for r in range(4):
                ops.append((f"v_mul_f32 v{p + r}, v{p + r}, v{t + r}", 1, e))
            ops.append((f"v_cvt_pk_bf16_f32 v{o}, v{p}, v{p + 1}", 1, e))
            ops.append((f"v_cvt_pk_bf16_f32 v{o + 1}, v{p + 2}, v{p + 3}", 1, e))
            ops.append((f"ds_write_b64 v12, v[{o}:{o + 1}] offset:{tt * 18 * KB}", 2, e))
        return ops

    def gu_step(kind):
        mf, pinned = [], {}
        for G in range(12):
            gu, grp = G & 1, G >> 1
            for tt in range(4):
                for kk in range(3):
                    ks = 3 * grp + kk
                    c = ACC + 16 * gu + 4 * tt
                    d = STG + 16 * gu + 4 * tt if ks == 17 else c
                    src = "0" if ks == 0 else f"v[{c}:{c + 3}]"
                    w = RING + 4 * ((3 * G + kk) % 18)
                    mf.append(f"v_mfma_f32_16x16x32_bf16 v[{d}:{d + 3}], v[{w}:{w + 3}], {xreg(tt, ks)}, {src}")
            for kk in range(3):
                n = 3 * G + kk
                pinned[12 * G + 4 * kk + Cfg.ldpos] = [(wload((n + 15) % 18, n), 2)]
        if kind == "first":
            for k in range(6):
                pinned[4 * k + 3] = [(xdma(12 + k), 2)]
            for k in range(16):
                pinned[24 + 12 * (k // 5) + (3, 6, 7, 10, 11)[k % 5]] = \
                    [(f"buffer_load_dword v{SS + k}, v3, s[8:11], s25 offen offset:{128 * k} sc1", 2)]
            ops = [(xread(tt, ks), 1, 24 * (ks // 3 - 1) + (4 * (ks % 3) + tt) * 3 // 2) for ks in range(3, 18) for tt in range(4)]
            gaps = pack_gaps(144, pinned, ops)
            gaps = pack_gaps(144, dict(enumerate(gaps)), const_ops(96))
        else:
            gaps = pack_gaps(144, pinned, [] if Cfg.nogelu else gelu_ops(lambda tt: 2), cap=Cfg.gcap)
        if kind == "last":
            g = 0
            for ks in range(14):
                for tt in range(4):
                    g = max(g + 1, 24 * (ks // 3) + 12 + 3 * tt + ks % 3)
                    while g < 143 and any("buffer_" in t or "ds_" in t for t, _ in gaps[g]):
                        g += 1
                    gaps[min(g, 143)].append((hread(tt, ks), 1))
        check_stage_reads(mf, gaps, STG, 32)
        lg = Vm()
        lg.issue(2)
        for i in range(144):
            G = i // 12
            if i % 12 == 0 and kind == "first":
                need = [("w", 3 * G + 2)] + {2: [("x", 11)], 6: [("x", 17)], 8: ["s"]}.get(G, [])
                a(f"s_waitcnt vmcnt({vm0.count(*need)}) lgkmcnt({min(15, lg.count(3 * (G // 2) + 2))})")
                if G in (2, 6):
                    a("s_barrier")
            elif i % 12 == 0:
                a("s_waitcnt vmcnt(12)")
            a(mf[i])
            for text, _ in gaps[i]:
                a(text)
                if kind == "first":
                    if "s[48:51]" in text:
                        vm0.issue(("w", 3 * G + (i % 12) // 4 + 15))
                    elif " lds" in text:
                        vm0.issue(("x", 12 + i // 4))
                    elif "buffer_load_dword " in text:
                        vm0.issue("s")
                    elif "ds_read" in text:
                        lg.issue(int(text.split("offset:")[1]) // KB % 18)
            if i == 139:
                a("s_lshl_b32 s7, s25, 11" if kind != "first" else "s_mov_b32 s25, 0")
            if i == 140:
                a("s_add_u32 s7, s7, s28" if kind != "first" else "s_mov_b32 s7, s28")
            if i == 142:
                a(f"s_add_u32 s23, s23, {36 * KB}")
        a(f"v_add_u32 v12, s7, v{VB}")
        a("s_add_u32 s25, s25, 1")

    gu_step("first")
    mark(a, 12)
    lp = a.label("ffn_gu")
    a(f"{lp}:")
    gu_step("loop")
    a("s_cmp_lt_u32 s25, 8")
    a(f"s_cbranch_scc1 {lp}")
    a(f"v_add_u32 v10, {HB}, v{VB}")
    a(f"v_add_u32 v11, {HB + 36 * KB}, v{VB}")
    a("s_waitcnt lgkmcnt(0)")
    a("s_barrier")
    gu_step("last")
    mark(a, 13)
    a("s_waitcnt lgkmcnt(0)")
    a("s_barrier")
    reads = [hread(tt, ks) for ks in (14, 15) for tt in range(4)]
    ops = []
    for tt in range(4):
        t, p, o = TMP + 10 * (tt & 1), TMP + 10 * (tt & 1) + 4, TMP + 10 * (tt & 1) + 8
        g, u = STG + 4 * tt, STG + 16 + 4 * tt
        pr = lambda r: f"v[{r}:{r + 1}]"
        bc = lambda r: (pr(r & ~1), r & 1)

        def pkfma(d, x, y, z):
            (ry, sy), (rz, sz) = bc(y), bc(z)
            return f"v_pk_fma_f32 {pr(d)}, {pr(x)}, {ry}, {rz} op_sel:[0,{sy},{sz}] op_sel_hi:[1,{sy},{sz}]"
        ops += [f"v_pk_mul_f32 {pr(t + r)}, {pr(g + r)}, {pr(g + r)}" for r in (0, 2)]
        ops += [pkfma(t + r, t + r, C1[tt], C0[tt]) for r in (0, 2)]
        ops += [f"v_pk_mul_f32 {pr(t + r)}, {pr(g + r)}, {pr(t + r)}" for r in (0, 2)]
        ops += [f"v_exp_f32 v{t + r}, v{t + r}" for r in range(4)]
        ops += [f"v_pk_mul_f32 {pr(p + r)}, {pr(g + r)}, {pr(u + r)}" for r in (0, 2)]
        ops += [pkfma(t + r, t + r, VV[tt], VV[tt]) for r in (0, 2)]
        ops += [f"v_rcp_f32 v{t + r}, v{t + r}" for r in range(4)]
        ops += ["s_nop 0"]
        ops += [f"v_pk_mul_f32 {pr(p + r)}, {pr(p + r)}, {pr(t + r)}" for r in (0, 2)]
        ops += [f"v_cvt_pk_bf16_f32 v{o}, v{p}, v{p + 1}", f"v_cvt_pk_bf16_f32 v{o + 1}, v{p + 2}, v{p + 3}"]
        ops += [f"ds_write_b64 v12, v[{o}:{o + 1}] offset:{tt * 18 * KB}"]
    ahead = [wload(15 + n, n) for n in range(18)]
    for i, t in enumerate(ops):
        a(t)
        if reads and i % 4 != 3:
            a(reads.pop(0))
        if i % 6 == 5 and len(ahead) > 4:
            a(ahead.pop(0))
    for t in reads + ahead:
        a(t)
    a(f"s_add_u32 s23, s23, {18 * KB}")
    a("s_waitcnt lgkmcnt(0)")
    a("s_barrier")
    for ks in (16, 17):
        for tt in range(4):
            a(hread(tt, ks))
    a("s_mov_b32 s25, 0")
    a("s_waitcnt lgkmcnt(0)")
    mark(a, 14)

    def down_epi(e):
        ops = []
        for pr in range(2):
            o = TMP + 4 * pr
            for h in range(2):
                s = STG + 4 * (2 * pr + h)
                ops.append((f"v_cvt_pk_bf16_f32 v{o + 2 * h}, v{s}, v{s + 1}", 1, e))
                ops.append((f"v_cvt_pk_bf16_f32 v{o + 2 * h + 1}, v{s + 2}, v{s + 3}", 1, e))
        for pr in range(2):
            o = TMP + 4 * pr
            ops.append((f"v_permlane16_swap_b32 v{o}, v{o + 2}", 2, e))
            ops.append((f"v_permlane16_swap_b32 v{o + 1}, v{o + 3}", 2, e))
        for pr in range(2):
            o = TMP + 4 * pr
            if not Cfg.nostore:
                ops.append((f"buffer_store_dwordx4 v[{o}:{o + 3}], v{178 + pr}, s[72:75], s27 offen {Cfg.pflag}", 2, e))
        return ops

    def down_trip(half, vm, last=0, emit=True):
        out = a if emit else Asm()
        base = 0 if half else 18
        mf, pinned = [], {}
        for G in range(6):
            for tt in range(4):
                for kk in range(3):
                    ks = 3 * G + kk
                    c = ACC + 4 * tt
                    d = STG + 4 * tt if ks == 17 else c
                    src = "0" if ks == 0 else f"v[{c}:{c + 3}]"
                    w = slot_reg(base + ks)
                    mf.append(f"v_mfma_f32_16x16x32_bf16 v[{d}:{d + 3}], v[{w}:{w + 3}], {xreg(tt, ks)}, {src}")
            for kk in range(3):
                n = 3 * G + kk
                if not last or (last == 1 and G == 0):
                    pinned[12 * G + 4 * kk + 1] = [(wload((base + n + 33) % 36, n), 2)]
                elif early and (last == 2 or G >= 2):
                    pinned[12 * G + 4 * kk + 1] = [(early.pop(0), 2)]
        gaps = pack_gaps(72, pinned, down_epi(Cfg.epi_gap))
        check_stage_reads(mf, gaps, STG, 16)
        store_groups = [i // 12 for i in range(72) for t, _ in gaps[i] if "store" in t]
        for i in range(72):
            G = i // 12
            if i % 12 == 0 and last:
                out(f"s_waitcnt vmcnt({vm.count(('w', base + 3 * G + 2))})")
            elif i % 12 == 0:
                extra = sum(1 for sg in store_groups if sg < G)
                if not half:
                    extra += sum(1 for sg in store_groups if sg >= G - 4)
                out(f"s_waitcnt vmcnt({30 + extra})")
            if i == 36 and half and not last and emit:
                skip = a.label("early")
                a("s_cmp_lg_u32 s25, 6")
                a(f"s_cbranch_scc1 {skip}")
                a(f"s_waitcnt vmcnt({vm.count(('s', 0))})")
                a("s_barrier")
                a(f"s_cmp_lg_u32 s3, {Cfg.pw}")
                a(f"s_cbranch_scc1 {skip}")
                a("v_lshlrev_b32 v15, 7, v0")
                a("v_mov_b32 v1, s76")
                a("s_mov_b64 exec, 0xff")
                a("buffer_store_dword v1, v15, s[8:11], s29 offen sc1")
                a("s_mov_b64 exec, -1")
                a(f"{skip}:")
            if i == 24 and last == 1:
                lp, ok = a.label("epoll"), a.label("epolled")
                a(f"{lp}:")
                a("s_waitcnt lgkmcnt(0)")
                for r in (56, 58, 60, 62):
                    a(f"s_xor_b64 s[{r}:{r + 1}], s[{r}:{r + 1}], s[76:77]")
                a("s_or_b64 s[56:57], s[56:57], s[58:59]")
                a("s_or_b64 s[60:61], s[60:61], s[62:63]")
                a("s_or_b64 s[56:57], s[56:57], s[60:61]")
                a(f"s_cbranch_scc0 {ok}")
                a("s_load_dwordx8 s[56:63], s[38:39], 0 glc")
                a("s_add_u32 s6, s6, 1")
                a(f"s_cmp_lt_u32 s6, {1 << 20}")
                a(f"s_cbranch_scc1 {lp}")
                a(f"s_branch {abort}")
                a(f"{ok}:")
            out(mf[i])
            for text, _ in gaps[i]:
                out(text)
                if "buffer_store" in text:
                    vm.issue(("s", half))
                elif "s[48:51]" in text:
                    vm.issue(("w", (base + 3 * G + (i % 12) // 4 + 33) % 36))
                elif "buffer_load" in text:
                    vm.issue("e")
            if i == 14 and last == 1:
                out("s_load_dwordx8 s[56:63], s[38:39], 0 glc")
            if i == 15 and last == 1:
                out("s_mov_b32 s6, 0")
            if i == 66:
                out(f"s_mov_b32 s74, {WS_SIZE}")
            if i == 67:
                out(f"s_add_u32 s27, s27, {KB}")
            if i == 68:
                out("s_add_u32 s25, s25, 1")
            if i == 70:
                out(f"s_add_u32 s23, s23, {18 * KB}")

    lp, mid = a.label("ffn_dn"), a.label("ffn_dn_mid")
    vm = Vm()
    down_trip(1, vm, emit=False)
    a(f"s_branch {mid}")
    a(f"{lp}:")
    down_trip(0, vm)
    a(f"{mid}:")
    down_trip(1, vm)
    a("s_cmp_lt_u32 s25, 7")
    a(f"s_cbranch_scc1 {lp}")
    down_trip(0, vm, last=1)
    down_trip(1, vm, last=2)
    assert not early
    mark(a, 15)
    a("s_nop 7")
    prev = None
    for t, _, _ in down_epi(0):
        if "permlane" in t and "cvt" in prev:
            a("s_nop 1")
        a(t)
        prev = t
    publish(a, PH_FFN)
    mark(a, 20)


def k_main(a):
    name = NAME + "_kernel"
    kernel_begin(a, name)
    end, last, loop = "L_main_end", "L_main_last", "L_main_layer"
    Cfg.sv = 254
    entry(a, 256, end, ["s_load_dwordx4 s[16:19], s[0:1], 0", "s_load_dwordx2 s[22:23], s[0:1], 16",
                        "s_load_dwordx8 s[24:31], s[0:1], 32"])
    a(f"s_mov_b32 s7, {EPOCH}")
    a("s_load_dword s76, s[4:5], s7")
    a("s_mov_b64 s[20:21], s[18:19]")
    a("s_mov_b64 s[18:19], s[16:17]")
    srd(a, 48, "s4", "s5", WS_SIZE)
    tile_map(a, "s40", "s41", Cfg.jx)
    a("s_mov_b32 s42, 0")
    a("s_mov_b32 s43, 0")
    a("s_lshl_b32 s44, s41, 10")
    a(f"s_add_u32 s44, s44, {FLAGS + FPH}")
    a("v_lshlrev_b32 v253, 4, v0")
    if Cfg.stamps:
        a("v_mov_b32 v254, 0")
        a("v_mov_b32 v255, 0")
    if Cfg.code_warm:
        a("s_getpc_b64 s[52:53]")
        a("L_main_pc:")
        a(f"s_sub_u32 s52, s52, L_main_pc-{name}")
        a("s_subb_u32 s53, s53, 0")
        a("s_and_b32 s53, s53, 0xffff")
        a(f"s_mov_b32 s54, L_main_code_end-{name}")
        a("s_mov_b32 s55, 0x20000")
        a("s_lshr_b32 s7, s2, 3")
        a("s_lshl_b32 s7, s7, 2")
        a("s_add_u32 s7, s7, s3")
        a("s_lshl_b32 s7, s7, 9")
        a("v_lshrrev_b32 v1, 1, v253")
        a("v_add_u32 v1, s7, v1")
        a("buffer_load_dwordx2 v[2:3], v1, s[52:55], 0 offen")
    mark(a, 31)
    phase_prep(a, end)
    qkv_prefetch(a, 0, 6)
    a(f"{loop}:")
    phase_qkv(a, end)
    phase_wo(a, end)
    phase_ffn(a, end)
    tail = phase_red(a, end, last)
    a("s_mov_b32 s42, 1")
    a(f"s_mov_b32 s43, {LSTR}")
    a(f"s_add_u32 s44, s44, {4 * FPH}")
    a(f"s_branch {loop}")
    a(f"{last}:")
    tail()
    done = a.label("done")
    a("s_or_b32 s7, s40, s41")
    a("s_or_b32 s7, s7, s3")
    a(f"s_cbranch_scc1 {done}")
    a("v_mov_b32 v1, s76")
    a(f"s_mov_b32 s7, {EPOCH}")
    a("s_mov_b64 exec, 1")
    a("buffer_store_dword v1, off, s[8:11], s7 sc1")
    a("s_mov_b64 exec, -1")
    a(f"{done}:")
    if Cfg.stamps:
        a("s_waitcnt vmcnt(0)")
        mark(a, 19)
        dump_marks(a, 1)
    a(f"{end}:")
    a("s_endpgm")
    a("L_main_code_end:")
    return name, 256, 256


def build(stamps=False):
    Cfg.stamps = stamps
    a = Asm()
    a('.amdgcn_target "amdgcn-amd-amdhsa--gfx950"')
    name, nv, na = k_main(a)
    kernel_desc(a, name, nv, na, 102)
    text = HEADER + f"; @launch grid=(256,1,1) block=(256,1,1) lds={160 * KB}\n" + a.text()
    bad = hazards.check(text)
    if bad:
        print("\n".join(bad[:40]), file=sys.stderr)
        raise SystemExit(f"{len(bad)} hazards")
    return text


if __name__ == "__main__":
    out = sys.argv[1] if len(sys.argv) > 1 else os.path.join(os.path.dirname(os.path.abspath(__file__)), "..", NAME + ".s")
    stamps = "--stamps" in sys.argv
    for x in sys.argv[2:]:
        if x.startswith("--set="):
            for kv in x[6:].split(","):
                k, v = kv.split(":")
                setattr(Cfg, k, int(v) if v.isdigit() else [int(y) for y in v.split("/")] if "/" in v else v.replace("+", " "))
    open(out, "w").write(build(stamps))
```

```python
import math
import os
import struct
import sys

sys.path.insert(0, os.path.dirname(os.path.abspath(__file__)))
from asmlib import Asm, kernel_begin, kernel_desc, reg, srd
import hazards

NAME = "interleave_layers__sliding_local_dilated__glu_gated_geglu__prompt"
KB = 1024
GB = 9216
WS_SIZE = 256 << 20
WQ = 0
WO = 0x240000
WF = 0x300000
WSTR = 486 * KB
FLAGS = 0x1240000
FPH = 256 * 128
SL_WQ, SL_WF, SL_WO, SL_EARLY = 9, 10, 11, 12
EPOCH = 0x12C0000
PART = 0x1300000
XN = 0x2500000
OO = 0x2740000
X2 = 0x2980000
XC = 0x2BC0000
MEAN = 0x2E00000
STAT = 0x2E10000
MEAN1 = 0x2E30000
LSTR = 0x940000
OOB = 0x40000000
STAMP_OFF = 255 << 20

HEADER = """; Kernarg layout for this problem (80 bytes, ptrs only, base s[0:1]):
"""


def f32(x):
    return "0x%08x" % struct.unpack("<I", struct.pack("<f", x))[0]


def sdiv(a, dst, src, d, hi):
    m = -(-(1 << 20) // d)
    assert all((x * m) >> 20 == x // d for x in range(hi + 1)) and hi * m < (1 << 32)
    a(f"s_mul_i32 {dst}, {src}, {m}")
    a(f"s_lshr_b32 {dst}, {dst}, 20")


def sdivmod(a, q, r, src, d, hi):
    sdiv(a, q, src, d, hi)
    a(f"s_mul_i32 {r}, {q}, {d}")
    a(f"s_sub_u32 {r}, {src}, {r}")


def csel(a, dst, x, y):
    a(f"s_mov_b32 {dst}, {y}")
    a(f"s_cmov_b32 {dst}, {x}")


class Vm:
    def __init__(self):
        self.ops = []

    def issue(self, tag):
        self.ops.append(tag)

    def count(self, *tags):
        last = max(i for i, t in enumerate(self.ops) if t in tags)
        return len(self.ops) - 1 - last


MARK_NAMES = {21: "pre.x0", 22: "pre.q", 23: "pre.o", 24: "pre.set", 25: "pre.raw"}
MARK_ORDER = [31, 21, 23, 24, 25, 28, 29, 30, 27, 0, 1, 2, 3, 4, 5, 6, 7, 8, 9, 10, 11, 12, 13, 14, 15, 20, 16, 17, 18, 19]


class Cfg:
    stamps = False
    jx = 4
    wflag = "sc1"
    nostore = 0
    nogelu = 0
    noload = 0
    ldpos = 1
    gcap = 2
    pflag = "sc1"
    epi_gap = 6
    wo_per_ks = 4
    w_per_ks = 3
    oflag = ""
    pollw = 3
    code_warm = 3
    xflag = "sc1"
    wo_gap = 8
    red_pre = 4
    red_feed = 2
    raw_early = 3
    raw_mid = 16
    raw_flag = "nt"
    z_early = 16
    sleep = 0
    pw = 0


def tile_map(a, sj, smt, jx):
    lg = jx.bit_length() - 1
    a(f"s_and_b32 {sj}, s2, {8 // jx - 1}")
    a(f"s_lshl_b32 {sj}, {sj}, {lg}")
    a(f"s_bfe_u32 s7, s2, {3 | (lg << 16)}")
    a(f"s_add_u32 {sj}, {sj}, s7")
    a(f"s_bfe_u32 {smt}, s2, {(3 - lg) | (lg << 16)}")
    a(f"s_lshl_b32 {smt}, {smt}, {5 - lg}")
    a(f"s_lshr_b32 s7, s2, {3 + lg}")
    a(f"s_add_u32 {smt}, {smt}, s7")


def entry(a, nwg, end, extra_loads=()):
    a(f"s_cmp_ge_u32 s2, {nwg}")
    a(f"s_cbranch_scc1 {end}")
    a("s_load_dwordx2 s[4:5], s[0:1], 72")
    for l in extra_loads:
        a(l)
    a("v_lshrrev_b32 v1, 6, v0")
    a("v_and_b32 v0, 63, v0")
    a("v_readfirstlane_b32 s3, v1")
    a("s_waitcnt lgkmcnt(0)")
    srd(a, 8, "s4", "s5", WS_SIZE)


def mark(a, idx):
    if Cfg.stamps:
        a("s_memrealtime s[100:101]")
        a("s_memtime vcc")
        a("s_lshl_b32 m0, s42, 5")
        a(f"s_add_u32 m0, m0, {idx}")
        a("s_waitcnt lgkmcnt(0)")
        a(f"v_writelane_b32 v{Cfg.sv}, s100, m0")
        a(f"v_writelane_b32 v{Cfg.sv + 1}, vcc_lo, m0")


def dump_marks(a, slot):
    if Cfg.stamps:
        a("s_lshl_b32 s7, s2, 2")
        a("s_add_u32 s7, s7, s3")
        a("s_lshl_b32 s7, s7, 9")
        a(f"s_add_u32 s7, s7, {STAMP_OFF + slot * 0x80000}")
        a("v_lshlrev_b32 v1, 2, v0")
        a(f"buffer_store_dword v{Cfg.sv}, v1, s[8:11], s7 offen")
        a(f"buffer_store_dword v{Cfg.sv + 1}, v1, s[8:11], s7 offen offset:256")


def code_warm(a, dst):
    if Cfg.code_warm:
        a("s_lshr_b32 s7, s2, 3")
        a("s_lshl_b32 s7, s7, 2")
        a("s_add_u32 s7, s7, s3")
        a("s_lshl_b32 s7, s7, 9")
        a("v_lshrrev_b32 v1, 1, v253")
        a("v_add_u32 v1, s7, v1")
        a(f"buffer_load_dwordx2 {dst}, v1, s[96:99], 0 offen")


PH_QKV, PH_WO, PH_FFN, PH_RED = range(4)


def publish(a, phase, extra=None):
    skip = a.label("pub")
    a("v_lshlrev_b32 v15, 7, v0")
    a("s_lshl_b32 s6, s40, 2")
    a("s_add_u32 s6, s6, s44")
    if phase > 0:
        a(f"s_add_u32 s6, s6, {phase * FPH}")
    elif phase < 0:
        a(f"s_sub_u32 s6, s6, {-phase * FPH}")
    a("v_mov_b32 v1, s76")
    a("s_mov_b64 vcc, 0xff")
    if phase % 4 == PH_RED:
        a("v_lshrrev_b32 v14, 3, v0")
        a("v_lshl_add_u32 v15, v14, 3, v15")
        a("s_cmp_ge_u32 s40, 6")
        a("s_cselect_b32 s7, s41, 31")
        a("s_cmp_lt_u32 s7, 31")
        a("s_cmov_b64 vcc, 0xffff")
    a("s_waitcnt vmcnt(0)")
    a("s_barrier")
    a(f"s_cmp_lg_u32 s3, {Cfg.pw}")
    a(f"s_cbranch_scc1 {skip}")
    a("s_mov_b64 exec, vcc")
    a("buffer_store_dword v1, v15, s[8:11], s6 offen sc1")
    if extra:
        extra(skip)
    a(f"{skip}:")
    a("s_mov_b64 exec, -1")


def column_flag(a, slot):
    a("v_lshlrev_b32 v15, 10, v0")
    a("s_lshl_b32 s6, s40, 7")
    a("s_lshl_b32 s7, s41, 2")
    a("s_add_u32 s6, s6, s7")
    a(f"s_add_u32 s6, s6, {FLAGS + slot * FPH}")
    a("s_mov_b64 exec, 0xffffffff")
    a("v_lshlrev_b32 v15, 10, v0")
    a("v_mov_b32 v1, s76")
    a("buffer_store_dword v1, v15, s[8:11], s6 offen sc1")


def column_wait(a, slot, abort):
    lp, again, ok = a.label("cpoll"), a.label("cpoll"), a.label("cpolled")
    a("s_lshl_b32 s7, s41, 3")
    a("s_add_u32 s7, s7, s40")
    a("s_lshl_b32 s7, s7, 7")
    a(f"s_add_u32 s7, s7, {FLAGS + slot * FPH}")
    a("s_add_u32 s68, s4, s7")
    a("s_addc_u32 s69, s5, 0")
    a("s_mov_b32 s6, 0")
    a("s_mov_b32 s7, 0")
    a(f"{lp}:")
    a("s_load_dwordx16 s[52:67], s[68:69], s7 glc")
    a("s_add_u32 s6, s6, 1")
    a("s_waitcnt lgkmcnt(0)")
    for r in range(52, 68, 2):
        a(f"s_xor_b64 s[{r}:{r + 1}], s[{r}:{r + 1}], s[76:77]")
    for n in (8, 4, 2):
        for r in range(52, 52 + n, 2):
            a(f"s_or_b64 s[{r}:{r + 1}], s[{r}:{r + 1}], s[{r + n}:{r + n + 1}]")
    a(f"s_cbranch_scc1 {again}")
    a("s_add_u32 s7, s7, 64")
    a("s_cmp_eq_u32 s7, 128")
    a(f"s_cbranch_scc1 {ok}")
    a(f"{again}:")
    a(f"s_cmp_lt_u32 s6, {1 << 20}")
    a(f"s_cbranch_scc1 {lp}")
    a(f"s_branch {abort}")
    a(f"{ok}:")


def wait_flags(a, off, abort, halo=False, extra=None):
    lp, ok, out = a.label("poll"), a.label("polled"), a.label("pollout")
    a(f"s_cmp_lg_u32 s3, {Cfg.pollw}")
    a(f"s_cbranch_scc1 {out}")
    a("s_lshl_b32 s7, s40, 7")
    a("s_add_u32 s7, s7, s44")
    if off > 0:
        a(f"s_add_u32 s7, s7, {off}")
    elif off < 0:
        a(f"s_sub_u32 s7, s7, {-off}")
    a("s_add_u32 s52, s4, s7")
    a("s_addc_u32 s53, s5, 0")
    if halo:
        a("s_cmp_eq_u32 s41, 0")
        a("s_cselect_b32 s7, 0, 32")
    a("s_mov_b32 s6, 0")
    a(f"{lp}:")
    a("s_load_dwordx8 s[56:63], s[52:53], 0 glc")
    if halo:
        a("s_load_dwordx2 s[54:55], s[52:53], s7 glc")
    a("s_add_u32 s6, s6, 1")
    a("s_waitcnt lgkmcnt(0)")
    for r in ([54] if halo else []) + [56, 58, 60, 62]:
        a(f"s_xor_b64 s[{r}:{r + 1}], s[{r}:{r + 1}], s[76:77]")
    a("s_or_b64 s[56:57], s[56:57], s[58:59]")
    a("s_or_b64 s[60:61], s[60:61], s[62:63]")
    if halo:
        a("s_or_b64 s[56:57], s[56:57], s[54:55]")
    a("s_or_b64 s[56:57], s[56:57], s[60:61]")
    a(f"s_cbranch_scc0 {ok}")
    a(f"s_cmp_lt_u32 s6, {1 << 20}")
    a(f"s_cbranch_scc1 {lp}")
    a(f"s_branch {abort}")
    a(f"{ok}:")
    if extra:
        extra(out)
    a(f"{out}:")
    a("s_barrier")


def bfrag_voff(a, dst, tmp):
    a(f"v_bfe_u32 {tmp}, v0, 3, 1")
    a(f"v_mul_u32_u24 {dst}, {GB}, {tmp}")
    a(f"v_lshrrev_b32 {tmp}, 4, v0")
    a(f"v_lshl_add_u32 {dst}, {tmp}, 7, {dst}")
    a(f"v_and_b32 {tmp}, 7, v0")
    a(f"v_lshl_add_u32 {dst}, {tmp}, 4, {dst}")


def dtile_voff(a, dst, tmp, tmp2, gstride):
    a(f"v_bfe_u32 {tmp}, v0, 3, 2")
    a(f"s_mov_b32 s7, {gstride}")
    a(f"v_mul_lo_u32 {dst}, {tmp}, s7")
    a(f"v_lshrrev_b32 {tmp}, 5, v0")
    a(f"v_lshl_add_u32 {dst}, {tmp}, 7, {dst}")
    a(f"v_and_b32 {tmp}, 7, v0")
    a(f"v_lshl_add_u32 {dst}, {tmp}, 4, {dst}")


def rowsum_16_32(a, vals, tmp):
    for swap in ("v_permlane32_swap_b32", "v_permlane16_swap_b32"):
        for i, v in enumerate(vals):
            a(f"v_mov_b32 {tmp[i]}, {v}")
        a("s_nop 1")
        for i, v in enumerate(vals):
            a(f"{swap} {tmp[i]}, {v}")
        for i, v in enumerate(vals):
            a(f"v_add_f32 {v}, {v}, {tmp[i]}")


def ln_coeffs(a, vs, vss, rstd, nb):
    a(f"v_mul_f32 {vs}, {f32(1.0 / 576)}, {vs}")
    a(f"v_mul_f32 {vss}, {f32(1.0 / 576)}, {vss}")
    a(f"v_fma_f32 {vss}, -{vs}, {vs}, {vss}")
    a(f"v_max_f32 {vss}, 0, {vss}")
    a(f"v_add_f32 {vss}, {f32(1e-5)}, {vss}")
    a(f"v_rsq_f32 v{rstd}, {vss}")
    a("s_nop 0")
    a(f"v_mul_f32 v{nb}, {vs}, v{rstd}")
    a(f"v_mov_b32 v{rstd + 1}, v{rstd}")
    a(f"v_sub_f32 v{nb}, 0, v{nb}")
    a(f"v_mov_b32 v{nb + 1}, v{nb}")


def normalize(a, src, dst, n, rstd, nb, tmp):
    for i0 in range(0, n, 4):
        k = min(4, n - i0)
        for i in range(k):
            a(f"v_lshlrev_b32 v{tmp + 2 * i}, 16, v{src + i0 + i}")
            a(f"v_and_b32 v{tmp + 2 * i + 1}, s16, v{src + i0 + i}")
        for i in range(k):
            t = tmp + 2 * i
            a(f"v_pk_fma_f32 v[{t}:{t + 1}], v[{t}:{t + 1}], v[{rstd}:{rstd + 1}], v[{nb}:{nb + 1}]")
        for i in range(k):
            t = tmp + 2 * i
            a(f"v_cvt_pk_bf16_f32 v{dst + i0 + i}, v{t}, v{t + 1}")


VR, VM = 172, 175


def red_offsets(a):
    a("s_mov_b32 s16, 0xffff0000")
    a("s_lshl_b32 s7, s3, 10")
    a(f"v_add_u32 v{VR}, s7, v253")
    a(f"v_add_u32 v{VR + 2}, 5120, v{VR}")
    a("v_and_b32 v178, 7, v0")
    a("v_mul_u32_u24 v178, 1152, v178")
    a("v_lshrrev_b32 v179, 3, v0")
    a("v_lshl_add_u32 v178, v179, 4, v178")
    a("s_lshl_b32 s7, s3, 7")
    a(f"v_add_u32 v{VM}, s7, v178")
    a(f"v_add_u32 v{VM + 2}, 640, v{VM}")
    a("s_cmp_eq_u32 s3, 0")
    csel(a, "s17", 4096, OOB)
    a(f"v_add_u32 v{VR + 1}, s17, v{VR}")
    csel(a, "s17", 512, OOB)
    a(f"v_add_u32 v{VM + 1}, s17, v{VM}")


def red_ln_store(a, XB, sX2, sXN, sMEAN, flag):
    for b in range(3):
        a(f"buffer_store_dwordx4 v[{XB + 4 * b}:{XB + 4 * b + 3}], v{VR + b}, s[8:11], {sX2} offen {flag}")
    a("s_mov_b32 s17, 0x3f803f80")
    for i in range(4):
        a(f"v_mov_b32 v{8 + i}, 0")
    for i in range(12):
        a(f"v_dot2c_f32_bf16 v{8 + 2 * (i & 1)}, s17, v{XB + i}")
        a(f"v_dot2c_f32_bf16 v{9 + 2 * (i & 1)}, v{XB + i}, v{XB + i}")
    a("v_and_b32 v12, 7, v0")
    a("v_lshlrev_b32 v12, 3, v12")
    a("s_lshl_b32 s7, s3, 6")
    a("v_add_u32 v13, s7, v12")
    a("v_pk_add_f32 v[8:9], v[8:9], v[10:11]")
    a("s_nop 1")
    a("v_add_f32_dpp v8, v8, v8 row_ror:8 row_mask:0xf bank_mask:0xf")
    a("v_add_f32_dpp v9, v9, v9 row_ror:8 row_mask:0xf bank_mask:0xf")
    rowsum_16_32(a, ["v8", "v9"], ["v10", "v11"])
    a("ds_write_b64 v13, v[8:9]")
    a("s_waitcnt lgkmcnt(0)")
    a("s_barrier")
    T = 40
    for w in range(4):
        a(f"ds_read_b64 v[{T + 2 * w}:{T + 2 * w + 1}], v12 offset:{64 * w}")
    a("s_waitcnt lgkmcnt(0)")
    a(f"v_pk_add_f32 v[{T}:{T + 1}], v[{T}:{T + 1}], v[{T + 2}:{T + 3}]")
    a(f"v_pk_add_f32 v[{T + 4}:{T + 5}], v[{T + 4}:{T + 5}], v[{T + 6}:{T + 7}]")
    a(f"v_pk_add_f32 v[8:9], v[{T}:{T + 1}], v[{T + 4}:{T + 5}]")
    ln_coeffs(a, "v8", "v9", 10, 12)
    a("s_cmp_eq_u32 s3, 0")
    a("s_cselect_b32 s7, 32, 0")
    a("v_lshlrev_b32 v14, 2, v0")
    a("v_cmp_gt_u32 vcc, s7, v0")
    a(f"v_mov_b32 v9, {OOB}")
    a("s_nop 0")
    a("v_cndmask_b32 v14, v9, v14, vcc")
    a(f"buffer_store_dword v8, v14, s[8:11], {sMEAN} offen {flag}")
    normalize(a, XB, 48, 12, 10, 12, T)
    for b in range(3):
        a(f"buffer_store_dwordx4 v[{48 + 4 * b}:{51 + 4 * b}], v{VR + b}, s[8:11], {sXN} offen {flag}")


def red_setup(a):
    red_offsets(a)
    a("s_lshl_b32 s21, s41, 3")
    a("s_add_u32 s21, s21, s40")
    a(f"s_mul_i32 s18, s21, {GB}")
    a(f"s_mul_i32 s20, s21, {8 * GB}")
    a(f"s_add_u32 s20, s20, {PART}")
    a("s_mov_b32 s19, s20")
    loads = []
    for j in range(8):
        for b in range(2):
            r = slot_reg(18 + 2 * j + b)
            t = f"buffer_load_dwordx4 v[{r}:{r + 3}], v{VR + b}, s[8:11], s19 offen sc1"
            if b == 1 and j < 7:
                t += f"\ns_add_u32 s19, s19, {GB}"
            loads.append(t)
    return loads


def phase_red(a, abort, last):
    ACC, TMP, LD, XR, XB = 16, 40, 60, 92, 120
    a("s_add_u32 s19, s18, s43")
    a(f"s_add_u32 s22, s19, {XC}")
    a("s_lshl_b32 s23, s21, 5")
    a("s_add_u32 s23, s23, s43")
    a(f"s_add_u32 s23, s23, {MEAN1}")
    a("v_and_b32 v12, 7, v0")
    a("v_lshlrev_b32 v12, 2, v12")
    a("buffer_load_dword v10, v12, s[8:11], s23 offen sc1")
    for b in range(3):
        a(f"buffer_load_dwordx4 v[{XR + 4 * b}:{XR + 4 * b + 3}], v{VR + b}, s[8:11], s22 offen sc1")

    def unpack(dst, r):
        for i in range(4):
            a(f"v_lshlrev_b32 v{dst + 2 * i}, 16, v{r + i}")
            a(f"v_and_b32 v{dst + 2 * i + 1}, s16, v{r + i}")

    def add(b, r):
        unpack(TMP, r)
        for i in range(4):
            c = ACC + 8 * b + 2 * i
            a(f"v_pk_add_f32 v[{c}:{c + 1}], v[{c}:{c + 1}], v[{TMP + 2 * i}:{TMP + 2 * i + 1}]")

    for b in range(2):
        unpack(ACC + 8 * b, slot_reg(18 + b))
    for j in range(1, Cfg.red_pre):
        for b in range(2):
            add(b, slot_reg(18 + 2 * j + b))
    wait_flags(a, PH_FFN * FPH, abort)
    mark(a, 16)
    vm = Vm()
    for j in range(8):
        a(f"buffer_load_dwordx4 v[{LD + 4 * j}:{LD + 4 * j + 3}], v{VR + 2}, s[8:11], s20 offen sc1")
        vm.issue(j)
        if j < 7:
            a(f"s_add_u32 s20, s20, {GB}")
    pf = Asm()
    qkv_prefetch(pf, 0, 6, "s42")
    queue, chunk = [], ""
    for ln in pf.lines:
        chunk += ln + "\n"
        if "buffer_load" in ln:
            queue.append(chunk)
            chunk = ""

    def feed(n):
        for _ in range(n):
            if queue:
                a(queue.pop(0))
                vm.issue("w")

    for j in range(Cfg.red_pre, 8):
        for b in range(2):
            add(b, slot_reg(18 + 2 * j + b))
    a("s_cmp_eq_u32 s3, 0")
    a("s_cselect_b32 s7, 1.0, 0")
    a("s_waitcnt vmcnt(8)")
    a("v_mul_f32 v11, s7, v10")
    for b in range(2):
        add(b, XR + 4 * b)
    unpack(ACC + 16, XR + 8)
    for b in range(3):
        for i in range(4):
            c = ACC + 8 * b + 2 * i
            sel = "op_sel:[0,1] op_sel_hi:[1,1]" if b == 1 else "op_sel_hi:[1,0]"
            a(f"v_pk_add_f32 v[{c}:{c + 1}], v[{c}:{c + 1}], v[10:11] {sel}")
    for j in range(8):
        a(f"s_waitcnt vmcnt({vm.count(j)})")
        feed(Cfg.red_feed)
        add(2, LD + 4 * j)
    feed(99)
    a(chunk)
    for b in range(3):
        for i in range(4):
            c = ACC + 8 * b + 2 * i
            a(f"v_cvt_pk_bf16_f32 v{XB + 4 * b + i}, v{c}, v{c + 1}")
    mark(a, 17)
    a("s_cmp_lg_u32 s42, 0")
    a(f"s_cbranch_scc1 {last}")
    a(f"s_add_u32 s19, s18, {X2 + LSTR}")
    a(f"s_add_u32 s20, s18, {XN + LSTR}")
    a("s_lshl_b32 s22, s21, 7")
    a(f"s_add_u32 s22, s22, {MEAN + LSTR}")
    red_ln_store(a, XB, "s19", "s20", "s22", "sc1")
    mark(a, 18)
    publish(a, PH_RED)
    mark(a, 19)

    def tail():
        for b in range(3):
            a(f"buffer_store_dwordx4 v[{XB + 4 * b}:{XB + 4 * b + 3}], v{VM + b}, s[12:15], s18 offen {Cfg.oflag}")
    return tail


ZB = 96 * KB


def o_row(a, dst, vc, vj, t0, t1):
    a(f"v_mul_u32_u24 {t0}, 7282, {vc}")
    a(f"v_lshrrev_b32 {t0}, 16, {t0}")
    a(f"v_mul_u32_u24 {t1}, 9, {t0}")
    a(f"v_sub_u32 {t1}, {vc}, {t1}")
    a(f"v_mul_u32_u24 {t0}, 72, {t0}")
    a(f"v_cmp_eq_u32 vcc, 8, {t1}")
    a(f"v_lshrrev_b32 {dst}, 1, {t1}")
    a(f"v_mad_u32_u24 {dst}, {dst}, 18, {t0}")
    a(f"v_and_b32 {t1}, 1, {t1}")
    a(f"v_lshl_add_u32 {dst}, {t1}, 3, {dst}")
    a(f"v_add_u32 {dst}, {dst}, {vj}")
    a(f"v_lshrrev_b32 {t1}, 1, {vj}")
    a(f"v_mad_u32_u24 {t0}, {t1}, 18, {t0}")
    a(f"v_and_b32 {t1}, 1, {vj}")
    a(f"v_add3_u32 {t0}, {t0}, {t1}, 16")
    a(f"v_cndmask_b32 {dst}, {dst}, {t0}, vcc")


def tr_rows(a, dst, tmp, shift, pitch):
    a(f"v_lshrrev_b32 {dst}, 4, v0")
    a(f"v_lshlrev_b32 {dst}, {shift}, {dst}")
    a(f"v_bfe_u32 {tmp}, v0, 2, 2")
    a(f"v_add_u32 {dst}, {dst}, {tmp}")
    a(f"v_mul_u32_u24 {dst}, {pitch}, {dst}")
    a(f"v_and_b32 {tmp}, 3, v0")
    a(f"v_lshl_add_u32 {dst}, {tmp}, 3, {dst}")


def qfrag(a, t, pending):
    a(f"s_waitcnt lgkmcnt({pending})")
    for i in range(4):
        a(f"v_lshl_or_b32 v{32 + 4 * t + i}, v{137 + 8 * t + 2 * i}, 16, v{136 + 8 * t + 2 * i}")
        if t == 3:
            a(f"v_cndmask_b32 v{32 + 4 * t + i}, 0, v{32 + 4 * t + i}, s[22:23]")
    a(f"buffer_store_dwordx4 v[{32 + 4 * t}:{35 + 4 * t}], v253, s[8:11], s33 offen offset:{t * KB} sc1")


def phase_prep(a, abort):
    srd(a, 12, "s18", "s19", 2048 * 1152)
    srd(a, 64, "s20", "s21", 576 * 3456)
    srd(a, 68, "s22", "s23", 576 * 1152)
    red_offsets(a)
    a("s_lshl_b32 s21, s41, 3")
    a("s_add_u32 s21, s21, s40")
    a(f"s_mul_i32 s18, s21, {GB}")
    for b in range(3):
        a(f"buffer_load_dwordx4 v[{16 + 4 * b}:{19 + 4 * b}], v{VM + b}, s[12:15], s18 offen")
    mark(a, 21)
    srd(a, 12, "s30", "s31", 2048 * 1152)
    a("s_lshl_b32 s79, s3, 14")
    a(f"s_add_u32 s79, s79, {ZB}")
    PS = 8 * KB
    lo, lw, l3 = a.label("prep_o"), a.label("prep_m"), a.label("prep_go")
    nq2, l4, l5 = a.label("prep_o"), a.label("prep_m"), a.label("prep_done")
    a("s_sub_u32 s36, s21, 144")
    a("s_cmp_ge_u32 s41, 18")
    a(f"s_cbranch_scc1 {lo}")
    a(f"s_mul_i32 s35, s41, {32 * 3456}")
    a("s_mul_i32 s7, s40, 144")
    a("s_and_b32 s46, s7, 127")
    a("s_sub_u32 s7, s7, s46")
    a("s_add_u32 s35, s35, s7")
    a(f"s_mul_i32 s7, s3, {4 * 3456}")
    a("s_add_u32 s35, s35, s7")
    a("v_lshrrev_b32 v8, 4, v0")
    a("v_mul_u32_u24 v8, 3456, v8")
    a("v_and_b32 v9, 15, v0")
    a("v_lshl_add_u32 v8, v9, 4, v8")
    a("s_lshl_b32 s34, s3, 10")
    for m in range(6):
        a(f"s_add_u32 m0, s34, {PS + m * 4 * KB}")
        a(f"s_add_u32 s7, s35, {(m & 1) * 16 * 3456 + (m >> 1) * 1152}")
        a("buffer_load_dwordx4 v8, s[64:67], s7 offen lds")
    a(f"s_branch {l3}")
    a(f"{lo}:")
    a("s_cmp_ge_u32 s36, 54")
    a(f"s_cbranch_scc1 {lw}")
    sdivmod(a, "s33", "s34", "s36", 3, 53)
    a("s_lshl_b32 s7, s33, 2")
    a("s_add_u32 s7, s7, s3")
    a("v_mov_b32 v8, s7")
    a("v_lshrrev_b32 v9, 3, v0")
    o_row(a, "v10", "v8", "v9", "v11", "v12")
    a("v_mul_u32_u24 v10, 1152, v10")
    a("v_and_b32 v9, 7, v0")
    a("v_lshl_add_u32 v10, v9, 4, v10")
    a("s_mul_i32 s35, s34, 384")
    a("s_lshl_b32 s6, s3, 10")
    for m in range(3):
        a(f"s_add_u32 m0, s6, {PS + m * 4 * KB}")
        a(f"s_add_u32 s7, s35, {m * 128}")
        a("buffer_load_dwordx4 v10, s[68:71], s7 offen lds")
    a(f"s_branch {l3}")
    a(f"{lw}:")
    a("s_sub_u32 s37, s36, 54")
    a("s_lshl_b32 s7, s3, 6")
    a("s_add_u32 s37, s37, s7")
    a("s_cmp_ge_u32 s37, 36")
    a(f"s_cbranch_scc1 {l3}")
    a("s_lshl_b32 s7, s37, 1")
    a("v_bfe_u32 v8, v0, 3, 1")
    a("v_add_u32 v8, s7, v8")
    a("v_and_b32 v9, 7, v0")
    o_row(a, "v10", "v8", "v9", "v11", "v12")
    a("v_mul_u32_u24 v10, 1152, v10")
    a("v_lshrrev_b32 v9, 4, v0")
    a("v_lshl_add_u32 v10, v9, 4, v10")
    for ks in range(18):
        a(f"buffer_load_dwordx4 v[{64 + 4 * ks}:{67 + 4 * ks}], v10, s[68:71], 0 offen offset:{64 * ks}")
    a(f"{l3}:")
    mark(a, 23)
    a("s_lshl_b32 s7, s41, 2")
    a("s_add_u32 s7, s7, s3")
    sdiv(a, "s93", "s7", 41, 127)
    a("s_min_u32 s93, s93, 2")
    a("s_mul_i32 s6, s93, 41")
    a("s_sub_u32 s7, s7, s6")
    a("s_lshl_b32 s17, s7, 2")
    a("s_cmp_eq_u32 s93, 1")
    a("s_cselect_b32 s72, s26, s24")
    a("s_cselect_b32 s73, s27, s25")
    a("s_cmp_eq_u32 s93, 2")
    a("s_cselect_b32 s72, s28, s72")
    a("s_cselect_b32 s73, s29, s73")
    csel(a, "s92", 8 * 1152, 8 * 9216)
    csel(a, "s47", 18 * 32 * 1152, 1152)
    a("s_and_b32 s73, s73, 0xffff")
    a(f"s_mov_b32 s74, {576 * 9216}")
    a("s_mov_b32 s75, 0x20000")
    a("s_mul_i32 s47, s47, s40")
    for b in range(4):
        a(f"s_add_u32 s7, s17, {b}")
        a("s_min_u32 s7, s7, 161")
        sdivmod(a, f"s{84 + b}", f"s{88 + b}", "s7", 9, 161)
        a(f"s_mul_i32 s7, s{84 + b}, s92")
        a("s_lshl_b32 s7, s7, 2")
        a("s_add_u32 s7, s7, s47")
        a(f"s_lshl_b32 s6, s{88 + b}, 7")
        a(f"s_add_u32 s{80 + b}, s7, s6")
    a("s_lshr_b32 s7, s92, 3")
    a("v_lshrrev_b32 v224, 3, v0")
    a("v_mul_lo_u32 v224, v224, s7")
    a("v_and_b32 v8, 7, v0")
    a("v_lshl_add_u32 v224, v8, 4, v224")
    a("s_waitcnt lgkmcnt(0)")
    a("s_mul_i32 s76, s76, 0x9e3779b1")
    a("s_add_u32 s76, s76, 0x7f4a7c15")
    a("s_mov_b32 s77, s76")
    mark(a, 24)
    for i in range(Cfg.raw_early):
        a(ffn_raw_dma(i))
    mark(a, 25)
    a(f"s_waitcnt vmcnt({Cfg.raw_early})")
    a("s_barrier")
    mark(a, 28)
    a("s_cmp_ge_u32 s41, 18")
    a(f"s_cbranch_scc1 {nq2}")
    a("s_mul_i32 s7, s3, 36")
    a("s_add_u32 s7, s7, s46")
    a("v_lshrrev_b32 v8, 4, v0")
    a("v_lshlrev_b32 v8, 11, v8")
    a("v_add_u32 v8, s7, v8")
    a("v_and_b32 v9, 15, v0")
    a("v_cmp_gt_u32 s[22:23], 6, v9")
    a("v_lshrrev_b32 v10, 1, v9")
    a("v_min_u32 v10, 2, v10")
    a("v_lshl_add_u32 v10, v10, 13, v8")
    a("v_and_b32 v11, 1, v0")
    a("v_lshl_add_u32 v10, v11, 1, v10")
    a("v_lshl_add_u32 v8, v9, 1, v8")
    for t in range(4):
        for j in range(8):
            a(f"ds_read_u16 v{136 + 8 * t + j}, v8 offset:{PS + t * 8192 + j * 256}" if t < 3 else
              f"ds_read_u16 v{136 + 8 * t + j}, v10 offset:{PS + 32 + j * 256}")
        if t == 0:
            a("s_lshl_b32 s33, s40, 2")
            a("s_add_u32 s33, s33, s3")
            a("s_mul_i32 s33, s33, 18")
            a("s_add_u32 s33, s33, s41")
            a("s_lshl_b32 s33, s33, 12")
            if WQ:
                a(f"s_add_u32 s33, s33, {WQ}")
        if t:
            qfrag(a, t - 1, 8)
    qfrag(a, 3, 0)
    a(f"s_branch {l5}")
    a(f"{nq2}:")
    a("s_cmp_ge_u32 s36, 54")
    a(f"s_cbranch_scc1 {l4}")
    tr_rows(a, "v8", "v9", 3, 128)
    a("s_lshl_b32 s7, s3, 5")
    a("v_add_u32 v8, s7, v8")
    for m in range(3):
        a(f"ds_read_b64_tr_b16 v[{32 + 4 * m}:{33 + 4 * m}], v8 offset:{PS + m * 4 * KB}")
        a(f"ds_read_b64_tr_b16 v[{34 + 4 * m}:{35 + 4 * m}], v8 offset:{PS + m * 4 * KB + 512}")
    a("s_mul_i32 s34, s34, 12")
    a("s_add_u32 s34, s34, s3")
    a("s_mul_i32 s34, s34, 18")
    a("s_add_u32 s34, s34, s33")
    a("s_lshl_b32 s34, s34, 10")
    for m in range(3):
        a(f"s_add_u32 s7, s34, {WO + m * 4 * 18 * KB}")
        a(f"s_waitcnt lgkmcnt({4 - 2 * m})")
        a(f"buffer_store_dwordx4 v[{32 + 4 * m}:{35 + 4 * m}], v253, s[8:11], s7 offen sc1")
    a(f"s_branch {l5}")
    a(f"{l4}:")
    a("s_cmp_ge_u32 s37, 36")
    a(f"s_cbranch_scc1 {l5}")
    for i in range(4):
        a(f"v_mov_b32 v{28 + i}, 0x3f803f80")
    a("v_and_b32 v9, 15, v0")
    a("v_cmp_eq_u32 vcc, 0, v9")
    a("v_cmp_eq_u32 s[22:23], 1, v9")
    for ks in range(18):
        a(f"v_mfma_f32_16x16x32_bf16 v[32:35], v[{64 + 4 * ks}:{67 + 4 * ks}], v[28:31], {'0' if ks == 0 else 'v[32:35]'}")
    a("v_lshrrev_b32 v10, 5, v0")
    a("v_lshlrev_b32 v10, 8, v10")
    a("v_lshl_add_u32 v10, v9, 4, v10")
    a("v_bfe_u32 v9, v0, 4, 1")
    a("v_lshl_add_u32 v10, v9, 3, v10")
    a("s_lshl_b32 s7, s37, 9")
    a(f"s_add_u32 s7, s7, {WO + 36 * 18 * KB}")
    a("s_nop 0")
    for r in range(4):
        a(f"v_mul_f32 v{32 + r}, {f32(1.0 / 576)}, v{32 + r}")
    a("v_cvt_pk_bf16_f32 v36, v32, v33")
    a("v_cvt_pk_bf16_f32 v37, v34, v35")
    for h in range(2):
        a(f"v_lshlrev_b32 v38, 16, v{36 + h}")
        a(f"v_and_b32 v39, s16, v{36 + h}")
        a(f"v_sub_f32 v38, v{32 + 2 * h}, v38")
        a(f"v_sub_f32 v39, v{33 + 2 * h}, v39")
        a(f"v_cvt_pk_bf16_f32 v{28 + h}, v38, v39")
        a(f"v_cndmask_b32 v{28 + h}, 0, v{28 + h}, s[22:23]")
        a(f"v_cndmask_b32 v{28 + h}, v{28 + h}, v{36 + h}, vcc")
    a("buffer_store_dwordx2 v[28:29], v10, s[8:11], s7 offen sc1")
    a(f"{l5}:")
    a(f"s_add_u32 s19, s18, {X2}")
    a(f"s_add_u32 s20, s18, {XN}")
    a("s_lshl_b32 s22, s21, 7")
    a(f"s_add_u32 s22, s22, {MEAN}")
    red_ln_store(a, 16, "s19", "s20", "s22", "sc1")
    mark(a, 29)

    def more(skip):
        column_flag(a, SL_WQ)
        a("s_cmp_lt_u32 s41, 18")
        a(f"s_cbranch_scc1 {skip}")
        a("s_lshl_b32 s6, s36, 2")
        a(f"s_add_u32 s6, s6, {FLAGS + SL_WO * FPH}")
        a("s_mov_b64 exec, 1")
        a("buffer_store_dword v1, off, s[8:11], s6 sc1")

    publish(a, PH_RED - 4, more)
    mark(a, 30)
    for i in range(Cfg.raw_early, Cfg.raw_mid):
        a(ffn_raw_dma(i))
    out = a.label("wq_ready")
    a(f"s_cmp_lg_u32 s3, {Cfg.pw}")
    a(f"s_cbranch_scc1 {out}")
    column_wait(a, SL_WQ, abort)
    a(f"{out}:")
    a("s_barrier")
    mark(a, 27)


def ffn_raw_dma(i):
    b, m = divmod(i, 4)
    step = f"s_mov_b32 s71, s{80 + b}" if m == 0 else "s_add_u32 s71, s71, s92"
    return f"s_add_u32 m0, s79, {i * KB}\n{step}\nbuffer_load_dwordx4 v224, s[72:75], s71 offen {Cfg.raw_flag} lds"


ZQ = list(range(76, 100, 4)) + [176, 180] + list(range(196, 224, 4)) + [228]


def ffn_transpose_reads(a):
    a("s_cmp_eq_u32 s93, 2")
    a("s_cselect_b32 s6, 2, 3")
    csel(a, "s7", 2048, 512)
    tr_rows(a, "v14", "v15", "s6", 128)
    a("v_add_u32 v14, s79, v14")
    a("v_add_u32 v15, s7, v14")
    for b in range(4):
        for t in range(4):
            r = ZQ[4 * b + t]
            a(f"ds_read_b64_tr_b16 v[{r}:{r + 1}], v14 offset:{b * 4096 + t * 32}")
            a(f"ds_read_b64_tr_b16 v[{r + 2}:{r + 3}], v15 offset:{b * 4096 + t * 32}")


def ffn_transpose(a):
    ffn_transpose_reads(a)
    dn, dd = a.label("swz_down"), a.label("swz_dest")
    dest = [80, 81, 82, 83, 64, 65, 18, 19, 20, 21, 22, 25, 26, 27, 28, 29]
    a(f"s_mul_i32 s68, s40, {4 * WSTR}")
    a(f"s_add_u32 s68, s68, {WF}")
    a("s_cmp_eq_u32 s93, 2")
    a(f"s_cbranch_scc1 {dn}")
    for b in range(4):
        sdivmod(a, "s6", "s7", f"s{84 + b}", 3, 17)
        a("s_mul_i32 s6, s6, 6")
        a("s_add_u32 s7, s7, s6")
        a(f"s_mul_i32 s6, s{88 + b}, 36")
        a("s_add_u32 s7, s7, s6")
        a("s_mul_i32 s6, s93, 3")
        a("s_add_u32 s7, s7, s6")
        a("s_lshl_b32 s7, s7, 10")
        a("s_add_u32 s7, s7, s68")
        for t in range(4):
            a(f"s_add_u32 s{dest[4 * b + t]}, s7, {t * WSTR}")
    a(f"s_branch {dd}")
    a(f"{dn}:")
    for b in range(4):
        a(f"s_mul_i32 s7, s{88 + b}, 18")
        a(f"s_add_u32 s7, s7, s{84 + b}")
        a("s_add_u32 s7, s7, 324")
        a("s_lshl_b32 s7, s7, 10")
        a("s_add_u32 s7, s7, s68")
        for t in range(4):
            a(f"s_add_u32 s{dest[4 * b + t]}, s7, {t * WSTR}")
    a(f"{dd}:")
    return [f"buffer_store_dwordx4 v[{ZQ[i]}:{ZQ[i] + 3}], v253, s[72:75], s{dest[i]} offen sc1" for i in range(16)]


BIG = -1e30


QR = 10
WO_FREE = [(160 + 4 * i, -1) for i in range(24)] + \
    [(16 * (k % QR) + 4 * t, k) for k in range(18 - QR, 18) for t in range(4)]


def wo_reg(ks, sl):
    return WO_FREE[ks * 3 + sl][0]


def qkv_prefetch(a, k0, k1, skip=None):
    if k0 == 0:
        a("s_lshl_b32 s28, s40, 2")
        a("s_add_u32 s28, s28, s3")
        a(f"s_mul_i32 s28, s28, {72 * KB}")
        if WQ:
            a(f"s_add_u32 s28, s28, {WQ}")
    v = "v253"
    if skip:
        a(f"s_mul_i32 s7, {skip}, {OOB}")
        a("v_add_u32 v1, s7, v253")
        v = "v1"
    for ks in range(k0, k1):
        for l in qkv_wload(ks, v):
            a(l)
        a("s_add_u32 s28, s28, 4096")


def qkv_wload(ks, v="v253"):
    for t in range(4):
        r = 16 * (ks % QR) + 4 * t
        yield f"buffer_load_dwordx4 a[{r}:{r + 3}], {v}, s[8:11], s28 offen offset:{t * KB} {Cfg.wflag}"


def wo_weight_loads(a):
    setup = []
    s = setup.append
    s("s_lshl_b32 s45, s41, 1")
    s("s_lshr_b32 s7, s40, 2")
    s("s_add_u32 s45, s45, s7")
    s(f"s_mul_i32 s30, s45, {4 * GB}")
    s("s_add_u32 s30, s30, s43")
    s("s_and_b32 s31, s40, 3")
    s("s_mul_i32 s31, s31, 9")
    s("s_add_u32 s31, s31, s3")
    s(f"s_mul_i32 s32, s31, {18 * KB}")
    s(f"s_add_u32 s32, s32, {WO}")
    s(f"s_add_u32 s33, s32, {4 * 18 * KB}")
    s(f"s_add_u32 s34, s32, {8 * 18 * KB}")
    s(f"s_mov_b32 s39, {FLAGS + SL_WO * FPH}")
    s("v_min_u32 v228, 44, v0")
    s("v_lshlrev_b32 v228, 3, v228")
    s("s_cmp_eq_u32 s3, 1")
    s(f"s_cmov_b32 s34, {WO + 36 * 18 * KB}")
    s("s_cmp_lt_u32 s3, 2")
    s(f"s_cselect_b32 s35, 0, {OOB}")
    s("v_add_u32 v5, s35, v253")
    s("s_cmp_eq_u32 s3, 0")
    s(f"s_cselect_b32 s35, 0, {OOB}")
    s("v_add_u32 v7, s35, v9")
    s("s_lshl_b32 s7, s31, 8")
    s("s_add_u32 s36, s30, s7")
    s(f"s_add_u32 s37, s36, {X2}")
    s(f"s_add_u32 s46, s36, {XC}")
    s("s_lshl_b32 s36, s45, 7")
    s("s_add_u32 s36, s36, s43")
    s(f"s_add_u32 s36, s36, {MEAN1}")
    s("s_lshl_b32 s47, s45, 9")
    s("s_add_u32 s47, s47, s43")
    s(f"s_add_u32 s47, s47, {MEAN}")
    s("v_bfe_u32 v10, v0, 3, 2")
    s("v_and_b32 v8, 7, v0")
    s("v_lshlrev_b32 v8, 2, v8")
    s("v_lshl_add_u32 v8, v10, 7, v8")
    loads = []
    for ks in range(18):
        for sl in range(3):
            r = wo_reg(ks, sl)
            t = f"buffer_load_dwordx4 a[{r}:{r + 3}], v{5 if sl == 2 else 253}, s[8:11], s{32 + sl} offen offset:{(ks & 3) * KB} {Cfg.wflag}"
            if ks & 3 == 3:
                t += f"\ns_add_u32 s{32 + sl}, s{32 + sl}, 4096"
            loads.append((t, WO_FREE[ks * 3 + sl][1]))
    for sl in range(3):
        loads.append((f"buffer_load_dwordx4 v[{240 + 4 * sl}:{243 + 4 * sl}], v{7 if sl == 2 else 9}, s[8:11], s37 offen offset:{sl * KB} sc1", -1))
    loads.append(("buffer_load_dword v252, v8, s[8:11], s47 offen sc1", -1))
    return setup, loads


def phase_qkv(a, abort):
    BF, ACC, QO, KO, VO, VL, SEL, CI, BP, BC, BP1 = 16, 56, 132, 152, 172, 182, 192, 196, 200, 204, 208
    qkv_prefetch(a, 6, QR - 1)
    bfrag_voff(a, "v2", "v3")
    dtile_voff(a, "v9", "v3", None, GB)
    a(f"s_mul_i32 s22, s41, {8 * GB}")
    a("s_add_u32 s22, s22, s43")
    a(f"s_add_u32 s23, s22, {XN}")
    a(f"s_mul_i32 s7, s3, {2 * GB}")
    a("s_add_u32 s24, s23, s7")
    a("s_cmp_eq_u32 s41, 0")
    a(f"s_cselect_b32 s7, 0, {2 * GB}")
    a("s_sub_u32 s23, s23, s7")
    units = [(0, tt) for tt in range(1, 5)] + [(t, tt) for t in range(1, 4) for tt in range(5)]
    acc = {u: ACC + 4 * i for i, u in enumerate(units)}
    a("s_lshl_b32 s25, s3, 10")
    a("s_add_u32 s25, s25, 1024")
    a("s_mul_i32 s26, s3, 5120")
    a("s_lshl_b32 s7, s3, 9")
    a("s_add_u32 s27, s23, s7")
    a("s_and_b32 s7, s3, 1")
    a("s_add_u32 s7, s7, 4")
    a("s_mul_i32 s29, s7, 5120")
    a("s_lshl_b32 s7, s7, 9")
    a("s_add_u32 s23, s23, s7")
    wait_flags(a, (PH_RED - 4) * FPH, abort, halo=True)
    mark(a, 0)
    def xdma(st):
        for kk in range(6):
            ks = 6 * st + kk
            t = f"s_add_u32 m0, s25, {ks * 5120 - (ks % 8) * 512}\n"
            t += "s_add_u32 s24, s24, 4096\n" if ks and ks % 8 == 0 else "s_nop 0\n"
            yield t + f"buffer_load_dwordx4 v2, s[8:11], s24 offen offset:{(ks % 8) * 512} {Cfg.xflag} lds"
        for sm, so in (("s26", "s27"), ("s29", "s23")):
            yield (f"s_add_u32 m0, {sm}, {st * 30720}\ns_add_u32 s7, {so}, {st * 3072}\n"
                   f"buffer_load_dwordx4 v2, s[8:11], s7 offen {Cfg.xflag} lds")

    vm = Vm()
    for t in xdma(0):
        a(t)
        vm.issue(("x", 0))
    for r in [QO, QO + 1, SEL, SEL + 1, SEL + 3] + [QO + 4 * t + 3 for t in range(5)] + [KO + 4 * t + 3 for t in range(5)]:
        a(f"v_mov_b32 v{r}, 0")
    a("v_cmp_eq_u32 vcc, 16, v0")
    a("v_mov_b32 v10, 0x3f80")
    a("v_cmp_eq_u32 s[20:21], 17, v0")
    a(f"v_cndmask_b32 v{SEL + 2}, 0, v10, vcc")
    a("v_and_b32 v11, 3, v0")
    a(f"v_cndmask_b32 v{SEL + 2}, v{SEL + 2}, 1.0, s[20:21]")
    a("v_cmp_eq_u32 vcc, 2, v11")
    a("v_and_b32 v10, 15, v0")
    a("v_lshrrev_b32 v11, 4, v0")
    for r in range(4):
        a(f"v_cndmask_b32 v{CI + r}, 0, 1.0, vcc")
    a("v_lshlrev_b32 v11, 2, v11")
    a("v_sub_u32 v10, v11, v10")
    a(f"v_mov_b32 v12, {f32(BIG)}")
    a("s_cmp_eq_u32 s41, 0")
    a("s_cselect_b64 s[38:39], 0, -1")
    for r in range(4):
        a(f"v_add_u32 v11, {r}, v10")
        a("v_and_b32 v13, 1, v11")
        a("v_cmp_eq_u32 s[20:21], 0, v13")
        a("v_cmp_lt_i32 vcc, 1, v11")
        a("v_cmp_gt_i32 s[18:19], 1, v11")
        a("s_and_b64 vcc, vcc, s[20:21]")
        a("s_and_b64 s[18:19], s[18:19], s[20:21]")
        a("s_and_b64 s[20:21], vcc, s[38:39]")
        a(f"v_cndmask_b32 v{BP + r}, v12, 0, vcc")
        a(f"v_cndmask_b32 v{BC + r}, v12, 0, s[18:19]")
        a(f"v_cndmask_b32 v{BP1 + r}, v12, 0, s[20:21]")
    setup, early = wo_weight_loads(a)
    for t in setup:
        a(t)
    a(f"v_add_u32 v6, {45 * KB}, v253")
    a("s_waitcnt vmcnt(0)")
    a("s_barrier")
    mark(a, 1)

    def xread(ks, tt):
        r = BF + 20 * (ks & 1) + 4 * tt
        f = ks * 5 + tt
        return f"ds_read_b128 v[{r}:{r + 3}], v{253 if f < 45 else 6} offset:{(f % 45) * KB}"

    for tt in range(5):
        a(xread(0, tt))
    stage = {1: list(xdma(1)), 2: list(xdma(2))}
    raw = [ffn_raw_dma(i) for i in range(Cfg.raw_mid, 16)]
    wq = []
    for k in range(QR - 1, 18):
        ls = list(qkv_wload(k))
        ls[3] += "\ns_add_u32 s28, s28, 4096"
        wq += [(l, ("w", k)) for l in ls]
    for ks in range(18):
        cur = BF + 20 * (ks & 1)
        fill = {}
        if ks < 17:
            for tt in range(5):
                fill[tt] = [(xread(ks + 1, tt), None)]
        vq = []
        st = 1 if ks < 4 else 2
        for _ in range(2):
            if stage[st] and ks != 4:
                vq.append((stage[st].pop(0), ("x", st)))
        for _ in range(Cfg.w_per_ks):
            if wq and wq[0][1][1] - QR < ks:
                vq.append(wq.pop(0))
        while ks >= 18 - QR + 1 and len(vq) < Cfg.wo_per_ks and early[0][1] < ks:
            vq.append((early.pop(0)[0], "o"))
        for i, op in enumerate(vq):
            fill[5 + 2 * i] = [op]
        if raw and ks >= 1:
            fill[18] = [(raw.pop(0), "z")]
        if ks == 4:
            fill[5 + 2 * len(vq)] = [("buffer_load_dwordx2 v[226:227], v228, s[8:11], s39 offen sc1", "b")]
        need = ([("w", ks)] if ks >= QR - 1 else []) + ([("x", (ks + 1) // 6)] if ks in (5, 11) else [])
        if ks == 18 - QR + 1:
            need.append("b")
        a(f"s_waitcnt vmcnt({vm.count(*need)}) lgkmcnt(0)" if need else "s_waitcnt lgkmcnt(0)")
        if ks == 18 - QR + 1:
            lp, ok = a.label("wo_poll"), a.label("wo_ready")
            a("s_mov_b32 s6, 0")
            a(f"{lp}:")
            a("v_cmp_eq_u32 vcc, s76, v226")
            a("v_cmp_eq_u32 s[20:21], s76, v227")
            a("s_and_b64 vcc, vcc, s[20:21]")
            a("s_cmp_eq_u64 vcc, exec")
            a(f"s_cbranch_scc1 {ok}")
            a("buffer_load_dwordx2 v[226:227], v228, s[8:11], s39 offen sc1")
            a("s_add_u32 s6, s6, 1")
            a(f"s_cmp_lt_u32 s6, {1 << 20}")
            a("s_waitcnt vmcnt(0)")
            a(f"s_cbranch_scc1 {lp}")
            a(f"s_branch {abort}")
            a(f"{ok}:")
        if ks in (5, 11):
            a("s_barrier")
        for u, (t, tt) in enumerate(units):
            c = acc[(t, tt)]
            wr = 16 * (ks % QR) + 4 * t
            w, x = f"a[{wr}:{wr + 3}]", f"v[{cur + 4 * tt}:{cur + 4 * tt + 3}]"
            if t == 2:
                w, x = x, w
            a(f"v_mfma_f32_16x16x32_bf16 v[{c}:{c + 3}], {w}, {x}, {'0' if ks == 0 else f'v[{c}:{c + 3}]'}")
            for text, tag in fill.get(u, []):
                a(text)
                if tag:
                    vm.issue(tag)
    assert not stage[1] and not stage[2]
    assert not wq
    early = [t for t, _ in early]
    nw = len(early) - 4
    tail_loads = early[nw - Cfg.wo_gap:nw]
    early = early[:nw - Cfg.wo_gap] + early[nw:]
    mark(a, 2)
    body = []
    e = body.append
    cvt = lambda d, s: e(f"v_cvt_pk_bf16_f32 v{d}, v{s}, v{s + 1}")
    mf = lambda d, x, y, c: e(f"v_mfma_f32_16x16x32_bf16 v[{d}:{d + 3}], v[{x}:{x + 3}], v[{y}:{y + 3}], {c}")
    quad = lambda r: f"v[{r}:{r + 3}]"
    for tt in range(1, 5):
        cvt(QO + 4 * tt, acc[(0, tt)]); cvt(QO + 4 * tt + 1, acc[(0, tt)] + 2)
    for tt in range(5):
        cvt(KO + 4 * tt, acc[(1, tt)]); cvt(KO + 4 * tt + 1, acc[(1, tt)] + 2)
    for tt in range(5):
        cvt(QO + 4 * tt + 2, acc[(3, tt)]); cvt(KO + 4 * tt + 2, acc[(3, tt)] + 2)
    for tt in range(5):
        cvt(VO + 2 * tt, acc[(2, tt)]); cvt(VO + 2 * tt + 1, acc[(2, tt)] + 2)
    S, T, P, M = 16, 56, 76, 92
    for tt in range(1, 5):
        s = S + 8 * (tt - 1)
        mf(s, KO + 4 * (tt - 1), QO + 4 * tt, quad(BP1 if tt == 1 else BP))
        mf(s + 4, KO + 4 * tt, QO + 4 * tt, quad(BC))
    for tt in range(5):
        mf(T + 4 * tt, QO + 4 * tt, SEL, quad(CI))
    for i in range(4):
        s = S + 8 * i
        e(f"v_max3_f32 v{M + i}, v{s}, v{s + 1}, v{s + 2}")
        e(f"v_max3_f32 v{M + 4 + i}, v{s + 3}, v{s + 4}, v{s + 5}")
    for i in range(4):
        s = S + 8 * i
        e(f"v_max3_f32 v{M + i}, v{M + i}, v{s + 6}, v{s + 7}")
    for i in range(4):
        e(f"v_max_f32 v{M + i}, v{M + i}, v{M + 4 + i}")
    c = 18 ** -0.5 * math.log2(math.e)
    e(f"s_mov_b32 s18, {f32(c)}")
    tcv = [(VL + 2 * tt + h, T + 4 * tt + 2 * h) for tt in range(5) for h in range(2)]
    pad = lambda n: [cvt(*tcv.pop(0)) for _ in range(n)]
    pad(1)
    e(f"v_permlane32_swap_b32 v{M}, v{M + 1}")
    e(f"v_permlane32_swap_b32 v{M + 2}, v{M + 3}")
    e(f"v_max_f32 v{M}, v{M}, v{M + 1}")
    e(f"v_max_f32 v{M + 2}, v{M + 2}, v{M + 3}")
    pad(2)
    e(f"v_permlane16_swap_b32 v{M}, v{M + 2}")
    e(f"v_max_f32 v{M}, v{M}, v{M + 2}")
    e(f"v_mul_f32 v{M}, {f32(-c)}, v{M}")
    e(f"v_mov_b32 v{M + 2}, v{M}")
    pad(2)
    e(f"v_permlane16_swap_b32 v{M}, v{M + 2}")
    e(f"v_mov_b32 v{M + 1}, v{M}")
    e(f"v_mov_b32 v{M + 3}, v{M + 2}")
    pad(2)
    e(f"v_permlane32_swap_b32 v{M}, v{M + 1}")
    e(f"v_permlane32_swap_b32 v{M + 2}, v{M + 3}")
    pad(3)
    OA, OL, R, OUT, LO = 100, 116, 96, 212, 220
    for i in range(4):
        s = S + 8 * i
        for r in range(8):
            e(f"v_fma_f32 v{s + r}, v{s + r}, s18, v{M + i}")
        for r in range(8):
            e(f"v_exp_f32 v{s + r}, v{s + r}")
        if i:
            mf(OA + 4 * (i - 1), VO + 2 * (i - 1), P + 4 * (i - 1), "0")
            mf(OL + 4 * (i - 1), VL + 2 * (i - 1), P + 4 * (i - 1), "0")
        else:
            e("s_nop 0")
        for r in range(4):
            cvt(P + 4 * i + r, s + 2 * r)
    e(f"v_rcp_f32 v{R}, v{OL + 2}")
    e(f"v_rcp_f32 v{R + 1}, v{OL + 6}")
    mf(OA + 12, VO + 6, P + 12, "0")
    mf(OL + 12, VL + 6, P + 12, "0")

    def scale(i):
        sel = "op_sel:[1,0] op_sel_hi:[1,1]" if i & 1 else "op_sel:[0,0] op_sel_hi:[0,1]"
        rp = R + (i & 2)
        for o in (OA + 4 * i, OA + 4 * i + 2, OL + 4 * i):
            e(f"v_pk_mul_f32 v[{o}:{o + 1}], v[{rp}:{rp + 1}], v[{o}:{o + 1}] {sel}")
        cvt(OUT + 2 * i, OA + 4 * i); cvt(OUT + 2 * i + 1, OA + 4 * i + 2); cvt(LO + i, OL + 4 * i)

    scale(0)
    e(f"v_rcp_f32 v{R + 2}, v{OL + 10}")
    scale(1)
    e(f"v_rcp_f32 v{R + 3}, v{OL + 14}")
    e(f"v_permlane16_swap_b32 v{OUT}, v{OUT + 2}")
    e(f"v_permlane16_swap_b32 v{OUT + 1}, v{OUT + 3}")
    scale(2)
    scale(3)
    LX = 92 * KB
    e("s_lshl_b32 s7, s3, 2")
    e(f"s_add_u32 s7, s7, {LX}")
    e(f"v_permlane16_swap_b32 v{LO}, v{LO + 1}")
    e(f"v_permlane16_swap_b32 v{LO + 2}, v{LO + 3}")
    e("v_add_u32 v11, s7, v253")
    e("v_lshrrev_b32 v10, 3, v0")
    e(f"v_permlane32_swap_b32 v{LO}, v{LO + 2}")
    e(f"v_mul_u32_u24 v10, {GB}, v10")
    e(f"ds_write_b32 v11, v{LO}")
    e(f"v_permlane16_swap_b32 v{OUT + 4}, v{OUT + 6}")
    e(f"v_permlane16_swap_b32 v{OUT + 5}, v{OUT + 7}")
    step = max(1, len(body) // len(early))
    for i, t in enumerate(body):
        a(t)
        if early and i % step == step - 1:
            a(early.pop(0))
    for t in early:
        a(t)
    a("s_mul_i32 s7, s40, 1152")
    a("s_add_u32 s22, s22, s7")
    a(f"s_add_u32 s22, s22, {OO}")
    a("s_lshl_b32 s7, s3, 8")
    a("s_add_u32 s23, s22, s7")
    a(f"s_add_u32 s24, s23, {4 * GB}")
    a(f"buffer_store_dwordx4 v[{OUT}:{OUT + 3}], v9, s[8:11], s23 offen sc1")
    a(f"buffer_store_dwordx4 v[{OUT + 4}:{OUT + 7}], v9, s[8:11], s24 offen sc1")
    a("v_and_b32 v11, 7, v0")
    a("v_lshl_add_u32 v10, v11, 4, v10")
    a("s_cmp_eq_u32 s3, 3")
    a(f"s_cselect_b32 s7, 0, {OOB}")
    a("v_add_u32 v10, s7, v10")
    a(f"v_add_u32 v11, {LX}, v253")
    a("s_waitcnt lgkmcnt(0)")
    a("s_barrier")
    a(f"ds_read_b128 v[{LO}:{LO + 3}], v11")
    a("s_waitcnt lgkmcnt(0)")
    a(f"buffer_store_dwordx4 v[{LO}:{LO + 3}], v10, s[8:11], s22 offen offset:1024 sc1")
    mark(a, 3)
    publish(a, PH_QKV)
    mark(a, 4)
    for t in tail_loads:
        a(t)


def phase_wo(a, abort):
    RES, BF, ACC, T = 240, 160, 100, 124
    z0 = a.label("swz")
    a("s_cmp_lg_u32 s42, 0")
    a(f"s_cbranch_scc1 {z0}")
    zst = ffn_transpose(a)
    a("s_mov_b32 s72, s8")
    a("s_mov_b32 s73, s9")
    a(f"s_mov_b32 s74, {WS_SIZE}")
    a("s_waitcnt lgkmcnt(0)")
    for _ in range(Cfg.z_early):
        a(zst.pop(0))
    if Cfg.code_warm > 2:
        code_warm(a, "v[14:15]")
    a(f"{z0}:")
    a("s_and_b32 s7, s3, 1")
    a(f"s_mul_i32 s7, s7, {2 * GB}")
    a("s_add_u32 s24, s30, s7")
    a("s_lshr_b32 s7, s3, 1")
    a("s_lshl_b32 s7, s7, 9")
    a("s_add_u32 s24, s24, s7")
    a(f"s_add_u32 s24, s24, {OO}")
    a("s_mov_b32 s16, 0xffff0000")
    for sl in range(3):
        for i in range(4):
            a(f"v_lshlrev_b32 v{T + 8 * sl + 2 * i}, 16, v{RES + 4 * sl + i}")
            a(f"v_and_b32 v{T + 8 * sl + 2 * i + 1}, s16, v{RES + 4 * sl + i}")
    MX = 40 * KB
    a("s_cmp_eq_u32 s3, 1")
    a("s_cselect_b32 s7, 16, 0")
    a("v_lshlrev_b32 v12, 2, v0")
    a("v_cmp_gt_u32 vcc, s7, v0")
    a(f"v_add_u32 v10, {MX}, v12")
    a(f"v_add_u32 v11, {MX + 512}, v12")
    a("v_cndmask_b32 v10, v11, v10, vcc")
    a("v_and_b32 v11, 0x7c, v12")
    a("v_cmp_gt_u32 vcc, 32, v0")
    a(f"v_mov_b32 v13, {OOB}")
    a("s_and_b32 s7, s40, 3")
    a("s_lshl_b32 s45, s45, 2")
    a("v_cndmask_b32 v8, v13, v12, vcc")
    a("s_add_u32 s6, s7, s3")
    a("s_cmp_eq_u32 s6, 0")
    a(f"s_cselect_b32 s6, 0, {OOB}")
    a("v_add_u32 v6, s6, v8")
    a("s_add_u32 s45, s45, s7")
    a("s_lshl_b32 s45, s45, 2")
    a("s_add_u32 s45, s45, s3")
    a("s_lshl_b32 s45, s45, 7")
    a("s_add_u32 s45, s45, s43")
    a(f"s_add_u32 s45, s45, {STAT}")
    a("s_cmp_eq_u32 s3, 0")
    a("s_cselect_b32 s35, 1.0, 0")
    ring = ffn_ring_setup(a)
    wait_flags(a, PH_QKV * FPH, abort)
    mark(a, 5)
    a("s_lshl_b32 m0, s3, 10")
    for m in range(9):
        if m:
            a("s_add_u32 m0, m0, 4096")
            a("s_add_u32 s24, s24, 1024")
        else:
            a("s_nop 0")
        a(f"buffer_load_dwordx4 v2, s[8:11], s24 offen {Cfg.xflag} lds")
    z1 = a.label("swz")
    assert not zst
    a("s_waitcnt vmcnt(0)")
    a("s_barrier")
    a("s_add_u32 s7, s42, s3" if Cfg.pw == 0 else "s_nop 0")
    a("s_cmp_lg_u32 s7, 0")
    a(f"s_cbranch_scc1 {z1}")
    column_flag(a, SL_WF)
    a("s_mov_b64 exec, -1")
    a(f"{z1}:")
    mark(a, 6)
    for tt in range(2):
        a(f"ds_read_b128 v[{BF + 4 * tt}:{BF + 4 * tt + 3}], v253 offset:{tt * KB}")
    for ks in range(18):
        cur, nxt = BF + 8 * (ks & 1), BF + 8 * ((ks + 1) & 1)
        a("s_waitcnt lgkmcnt(0)")
        i = 0
        for sl in range(3):
            for tt in range(2):
                c = ACC + 4 * (2 * sl + tt)
                w = wo_reg(ks, sl)
                src = "0" if ks == 0 else f"v[{c}:{c + 3}]"
                a(f"v_mfma_f32_16x16x32_bf16 v[{c}:{c + 3}], a[{w}:{w + 3}], v[{cur + 4 * tt}:{cur + 4 * tt + 3}], {src}")
                if i < 2 and ks < 17:
                    a(f"ds_read_b128 v[{nxt + 4 * i}:{nxt + 4 * i + 3}], v253 offset:{((ks + 1) * 2 + i) * KB}")
                if i == 3 and ring:
                    a(ring.pop(0))
                i += 1
    mark(a, 7)
    XR = 148
    a("s_nop 3")
    for r in range(4):
        a(f"v_permlane16_swap_b32 v{ACC + r}, v{ACC + 4 + r}")
    a(f"v_add_f32 v12, v{ACC + 16}, v{ACC + 17}")
    a(f"v_add_f32 v13, v{ACC + 20}, v{ACC + 21}")
    a("ds_write_b32 v10, v12")
    a("ds_write_b32 v10, v13 offset:64")
    for sl in (1, 2):
        for r in range(4):
            a(f"v_permlane16_swap_b32 v{ACC + 8 * sl + r}, v{ACC + 8 * sl + 4 + r}")
    a("s_waitcnt lgkmcnt(0)")
    a("s_barrier")
    a(f"ds_read_b32 v12, v11 offset:{MX}")
    for sl in range(3):
        for i in range(4):
            t, c = T + 8 * sl + 2 * i, ACC + 8 * sl + 2 * i
            a(f"v_pk_add_f32 v[{t}:{t + 1}], v[{t}:{t + 1}], v[{c}:{c + 1}]")
    a("v_mov_b32 v14, 0")
    a("v_mov_b32 v15, 0")
    a("s_waitcnt lgkmcnt(0)")
    a("v_add_f32 v12, v12, v252")
    for sl in range(3):
        for i in range(4):
            t, c = T + 8 * sl + 2 * i, ACC + 8 * sl + 2 * i
            a(f"v_pk_add_f32 v[{c}:{c + 1}], v[{t}:{t + 1}], v[12:13] op_sel_hi:[1,0] neg_lo:[0,1] neg_hi:[0,1]")
        for i in range(4):
            c = ACC + 8 * sl + 2 * i
            a(f"v_cvt_pk_bf16_f32 v{XR + 4 * sl + i}, v{c}, v{c + 1}")
        a(f"buffer_store_dwordx4 v[{XR + 4 * sl}:{XR + 4 * sl + 3}], v{7 if sl == 2 else 9}, s[8:11], s46 offen offset:{sl * KB} sc1")
    for i in range(12):
        a(f"v_dot2c_f32_bf16 v{15 if i >= 8 else 14}, v{XR + i}, v{XR + i}")
    a("buffer_store_dword v12, v6, s[8:11], s36 offen sc1")
    a("s_nop 1")
    a("v_fma_f32 v14, v15, s35, v14")
    a("v_mov_b32 v15, v14")
    a("s_nop 1")
    a("v_permlane32_swap_b32 v14, v15")
    a("v_add_f32 v14, v14, v15")
    a("buffer_store_dword v14, v8, s[8:11], s45 offen sc1")
    publish(a, PH_WO)
    mark(a, 8)


FFN_LDS = 144 * KB
HB = 72 * KB


def pack_gaps(n_gaps, pinned, ops, start=0, cap=2):
    gaps = [list(pinned.get(g, [])) for g in range(n_gaps)]
    g = start
    for text, cost, earliest in ops:
        g = max(g, earliest)
        while sum(c for _, c in gaps[g]) + cost > cap:
            g += 1
        gaps[g].append((text, cost))
    return gaps


def check_stage_reads(mf, gaps, base, n):
    stage = {("v", base + i) for i in range(n)}
    wr = {}
    for i, t in enumerate(mf):
        for r in hazards.I(t, 0).w & stage:
            wr[r] = i
    for i, g in enumerate(gaps):
        for t, _ in g:
            for r in hazards.I(t.split("\n")[-1], 0).r & stage:
                assert i < wr[r], (i, t, wr[r])


RING, VB = 16, 184
RING_EXT = [104, 108, 112, 116, 180, 196, 200, 204, 208, 212, 216, 136, 140, 144, 148, 160, 164, 168]


def slot_reg(slot):
    return RING + 4 * slot if slot < 18 else RING_EXT[slot - 18]


def wload(slot, n):
    r = slot_reg(slot)
    return f"buffer_load_dwordx4 v[{r}:{r + 3}], v{VB + n // 4}, s[48:51], s23 offen offset:{(n % 4) * KB} {Cfg.wflag}"


def ffn_ring_setup(a):
    a("s_lshl_b32 s7, s40, 2")
    a("s_add_u32 s7, s7, s3")
    a(f"s_mul_i32 s23, s7, {WSTR}")
    a(f"s_add_u32 s23, s23, {WF}")
    a(f"s_add_u32 s50, s23, {WSTR}")
    a("s_mul_i32 s50, s50, s42")
    a(f"v_mov_b32 v{VB}, v253")
    for m in range(1, 9):
        a(f"v_add_u32 v{VB + m}, {4096 * m}, v253")
    return [wload(n, n) for n in range(15)]


def phase_ffn(a, abort):
    ACC, STG, TMP = 88, 120, 152
    xreg = lambda tt, ks: reg(256 + 4 * (tt * 18 + ks), 4) if tt * 18 + ks < 64 else reg(220 + 4 * (tt * 18 + ks - 64), 4)
    a("s_lshl_b32 s7, s41, 2")
    a("s_add_u32 s7, s7, s3")
    a(f"s_mul_i32 s22, s7, {2 * GB}")
    a("s_add_u32 s22, s22, s43")
    a(f"s_add_u32 s22, s22, {XC}")
    a(f"s_mul_i32 s24, s3, {18 * KB}")
    a("s_lshl_b32 s25, s41, 12")
    a("s_add_u32 s25, s25, s43")
    a(f"s_add_u32 s25, s25, {STAT}")
    a("v_lshrrev_b32 v3, 5, v0")
    a("v_and_b32 v10, 31, v0")
    a("v_lshlrev_b32 v10, 2, v10")
    a("v_lshl_add_u32 v3, v3, 11, v10")
    a(f"v_add_u32 v11, {36 * KB}, v{VB}")
    early = red_setup(a)
    dtile_voff(a, "v178", "v1", None, 8 * GB)
    a(f"v_add_u32 v179, {32 * GB}, v178")
    a(f"s_mul_i32 s26, s41, {64 * GB}")
    a(f"s_mul_i32 s7, s40, {GB}")
    a("s_add_u32 s26, s26, s7")
    a("s_lshl_b32 s7, s3, 8")
    a("s_add_u32 s27, s26, s7")
    a(f"s_add_u32 s27, s27, {PART - KB}")
    a("s_mov_b32 s74, 0")
    a(f"s_mul_i32 s7, s42, {3 * FPH}")
    a("s_sub_u32 s29, s44, s7")
    a(f"s_add_u32 s29, s29, {(SL_EARLY - 1) * FPH}")
    a("s_lshl_b32 s7, s40, 7")
    a("s_add_u32 s7, s7, s29")
    a("s_add_u32 s38, s4, s7")
    a("s_addc_u32 s39, s5, 0")
    a("s_lshl_b32 s7, s40, 2")
    a("s_add_u32 s29, s29, s7")
    a(f"s_add_u32 s50, s23, {WSTR}")
    late, seen = a.label("ring"), a.label("ring")
    a("s_cmp_lg_u32 s42, 0")
    a(f"s_cbranch_scc1 {late}")
    a(f"s_cmp_lg_u32 s3, {Cfg.pw}")
    a(f"s_cbranch_scc1 {seen}")
    column_wait(a, SL_WF, abort)
    a(f"{seen}:")
    a("s_barrier")
    for n in range(15):
        a(wload(n, n))
    a(f"{late}:")
    wait_flags(a, PH_WO * FPH, abort)
    mark(a, 9)
    C0, C1, VV, SS = [4, 5, 6, 7], [8, 9, 13, 14], [193, 194, 195, 252], 136
    k0 = -2.0 * math.sqrt(2.0 / math.pi) * math.log2(math.e)

    def xdma(ks):
        return (f"s_add_u32 m0, s24, {ks * KB - (ks % 8) * 512}\n"
                + ("s_add_u32 s22, s22, 4096\n" if ks and ks % 8 == 0 else "s_nop 0\n")
                + f"buffer_load_dwordx4 v2, s[8:11], s22 offen offset:{(ks % 8) * 512} {Cfg.xflag} lds")

    def xread(tt, ks):
        f = tt * 18 + ks
        return f"ds_read_b128 {xreg(tt, ks)}, v{VB if f < 36 else 11} offset:{(f % 36) * KB}"

    hread = lambda tt, ks: f"ds_read_b128 {xreg(tt, ks)}, v{10 if tt < 2 else 11} offset:{((tt * 18 + ks) % 36) * KB}"
    vm0 = Vm()
    for n in range(15):
        vm0.issue(("w", n))
    for ks in range(12):
        a(xdma(ks))
        vm0.issue(("x", ks))
    a(f"s_add_u32 s23, s23, {15 * KB}")
    a("s_lshr_b32 s7, s3, 1")
    a("s_lshl_b32 s7, s7, 10")
    a("s_and_b32 s6, s3, 1")
    a("s_lshl_b32 s6, s6, 3")
    a("s_add_u32 s28, s7, s6")
    a(f"s_add_u32 s28, s28, {HB}")
    if Cfg.noload:
        a("s_mov_b32 s50, 0")
    a(f"s_waitcnt vmcnt({vm0.count(('x', 5))})")
    a("s_barrier")
    mark(a, 10)
    for ks in range(3):
        for tt in range(4):
            a(xread(tt, ks))

    def const_ops(e):
        ops = []
        for n in (8, 4, 2, 1):
            ops += [(f"v_add_f32 v{SS + i}, v{SS + i}, v{SS + n + i}", 1, e) for i in range(n)]
        ops += [(f"v_mov_b32 v{SS + 1}, {f32(1e-5)}", 1, e), (f"v_fmac_f32 v{SS + 1}, {f32(1.0 / 576)}, v{SS}", 1, e),
                (f"v_mov_b32 v{VV[0]}, v{SS + 1}", 1, e),
                (f"s_nop 0\nv_permlane16_swap_b32 v{VV[0]}, v{SS + 1}", 2, e),
                (f"v_mov_b32 v{VV[2]}, v{VV[0]}", 1, e), (f"v_mov_b32 v{VV[1]}, v{SS + 1}", 1, e),
                (f"v_mov_b32 v{VV[3]}, v{SS + 1}", 1, e),
                (f"s_nop 0\nv_permlane32_swap_b32 v{VV[0]}, v{VV[2]}", 2, e),
                (f"v_permlane32_swap_b32 v{VV[1]}, v{VV[3]}", 2, e)]
        ops += [(f"v_rsq_f32 v{C0[tt]}, v{VV[tt]}", 2, e) for tt in range(4)]
        ops += [(f"v_mul_f32 v{C1[tt]}, v{C0[tt]}, v{C0[tt]}", 1, e) for tt in range(4)]
        ops += [(f"v_mul_f32 v{C0[tt]}, {f32(k0)}, v{C0[tt]}", 1, e) for tt in range(4)]
        ops += [(f"v_mul_f32 v{C1[tt]}, {f32(0.044715)}, v{C1[tt]}", 1, e) for tt in range(4)]
        ops += [(f"v_mul_f32 v{C1[tt]}, v{C1[tt]}, v{C0[tt]}", 1, e) for tt in range(4)]
        return ops

    def gelu_ops(first_gap):
        ops = []
        for tt in range(4):
            t, p, o = TMP + 10 * (tt & 1), TMP + 10 * (tt & 1) + 4, TMP + 10 * (tt & 1) + 8
            g, u = STG + 4 * tt, STG + 16 + 4 * tt
            e = first_gap(tt)
            for r in range(4):
                ops.append((f"v_mul_f32 v{t + r}, v{g + r}, v{g + r}", 1, e))
            for r in range(4):
                ops.append((f"v_fma_f32 v{t + r}, v{t + r}, v{C1[tt]}, v{C0[tt]}", 1, e))
            for r in range(4):
                ops.append((f"v_mul_f32 v{t + r}, v{g + r}, v{t + r}", 1, e))
            for r in range(4):
                ops.append((f"v_exp_f32 v{t + r}, v{t + r}", 2, e))
            for r in range(4):
                ops.append((f"v_mul_f32 v{p + r}, v{g + r}, v{u + r}", 1, e))
            for r in range(4):
                ops.append((f"v_fma_f32 v{t + r}, v{t + r}, v{VV[tt]}, v{VV[tt]}", 1, e))
            for r in range(4):
                ops.append((f"v_rcp_f32 v{t + r}, v{t + r}", 2, e))
            for r in range(4):
                ops.append((f"v_mul_f32 v{p + r}, v{p + r}, v{t + r}", 1, e))
            ops.append((f"v_cvt_pk_bf16_f32 v{o}, v{p}, v{p + 1}", 1, e))
            ops.append((f"v_cvt_pk_bf16_f32 v{o + 1}, v{p + 2}, v{p + 3}", 1, e))
            ops.append((f"ds_write_b64 v12, v[{o}:{o + 1}] offset:{tt * 18 * KB}", 2, e))
        return ops

    def gu_step(kind):
        mf, pinned = [], {}
        for G in range(12):
            gu, grp = G & 1, G >> 1
            for tt in range(4):
                for kk in range(3):
                    ks = 3 * grp + kk
                    c = ACC + 16 * gu + 4 * tt
                    d = STG + 16 * gu + 4 * tt if ks == 17 else c
                    src = "0" if ks == 0 else f"v[{c}:{c + 3}]"
                    w = RING + 4 * ((3 * G + kk) % 18)
                    mf.append(f"v_mfma_f32_16x16x32_bf16 v[{d}:{d + 3}], v[{w}:{w + 3}], {xreg(tt, ks)}, {src}")
            for kk in range(3):
                n = 3 * G + kk
                pinned[12 * G + 4 * kk + Cfg.ldpos] = [(wload((n + 15) % 18, n), 2)]
        if kind == "first":
            for k in range(6):
                pinned[4 * k + 3] = [(xdma(12 + k), 2)]
            for k in range(16):
                pinned[24 + 12 * (k // 5) + (3, 6, 7, 10, 11)[k % 5]] = \
                    [(f"buffer_load_dword v{SS + k}, v3, s[8:11], s25 offen offset:{128 * k} sc1", 2)]
            ops = [(xread(tt, ks), 1, 24 * (ks // 3 - 1) + (4 * (ks % 3) + tt) * 3 // 2) for ks in range(3, 18) for tt in range(4)]
            gaps = pack_gaps(144, pinned, ops)
            gaps = pack_gaps(144, dict(enumerate(gaps)), const_ops(96))
        else:
            gaps = pack_gaps(144, pinned, [] if Cfg.nogelu else gelu_ops(lambda tt: 2), cap=Cfg.gcap)
        if kind == "last":
            g = 0
            for ks in range(14):
                for tt in range(4):
                    g = max(g + 1, 24 * (ks // 3) + 12 + 3 * tt + ks % 3)
                    while g < 143 and any("buffer_" in t or "ds_" in t for t, _ in gaps[g]):
                        g += 1
                    gaps[min(g, 143)].append((hread(tt, ks), 1))
        check_stage_reads(mf, gaps, STG, 32)
        lg = Vm()
        lg.issue(2)
        for i in range(144):
            G = i // 12
            if i % 12 == 0 and kind == "first":
                need = [("w", 3 * G + 2)] + {2: [("x", 11)], 6: [("x", 17)], 8: ["s"]}.get(G, [])
                a(f"s_waitcnt vmcnt({vm0.count(*need)}) lgkmcnt({min(15, lg.count(3 * (G // 2) + 2))})")
                if G in (2, 6):
                    a("s_barrier")
            elif i % 12 == 0:
                a("s_waitcnt vmcnt(12)")
            a(mf[i])
            for text, _ in gaps[i]:
                a(text)
                if kind == "first":
                    if "s[48:51]" in text:
                        vm0.issue(("w", 3 * G + (i % 12) // 4 + 15))
                    elif " lds" in text:
                        vm0.issue(("x", 12 + i // 4))
                    elif "buffer_load_dword " in text:
                        vm0.issue("s")
                    elif "ds_read" in text:
                        lg.issue(int(text.split("offset:")[1]) // KB % 18)
            if i == 139:
                a("s_lshl_b32 s7, s25, 11" if kind != "first" else "s_mov_b32 s25, 0")
            if i == 140:
                a("s_add_u32 s7, s7, s28" if kind != "first" else "s_mov_b32 s7, s28")
            if i == 142:
                a(f"s_add_u32 s23, s23, {36 * KB}")
        a(f"v_add_u32 v12, s7, v{VB}")
        a("s_add_u32 s25, s25, 1")

    gu_step("first")
    mark(a, 12)
    lp = a.label("ffn_gu")
    a(f"{lp}:")
    gu_step("loop")
    a("s_cmp_lt_u32 s25, 8")
    a(f"s_cbranch_scc1 {lp}")
    a(f"v_add_u32 v10, {HB}, v{VB}")
    a(f"v_add_u32 v11, {HB + 36 * KB}, v{VB}")
    if Cfg.code_warm > 1:
        code_warm(a, "v[2:3]")
    a("s_waitcnt lgkmcnt(0)")
    a("s_barrier")
    gu_step("last")
    mark(a, 13)
    a("s_waitcnt lgkmcnt(0)")
    a("s_barrier")
    reads = [hread(tt, ks) for ks in (14, 15) for tt in range(4)]
    ops = []
    for tt in range(4):
        t, p, o = TMP + 10 * (tt & 1), TMP + 10 * (tt & 1) + 4, TMP + 10 * (tt & 1) + 8
        g, u = STG + 4 * tt, STG + 16 + 4 * tt
        pr = lambda r: f"v[{r}:{r + 1}]"
        bc = lambda r: (pr(r & ~1), r & 1)

        def pkfma(d, x, y, z):
            (ry, sy), (rz, sz) = bc(y), bc(z)
            return f"v_pk_fma_f32 {pr(d)}, {pr(x)}, {ry}, {rz} op_sel:[0,{sy},{sz}] op_sel_hi:[1,{sy},{sz}]"
        ops += [f"v_pk_mul_f32 {pr(t + r)}, {pr(g + r)}, {pr(g + r)}" for r in (0, 2)]
        ops += [pkfma(t + r, t + r, C1[tt], C0[tt]) for r in (0, 2)]
        ops += [f"v_pk_mul_f32 {pr(t + r)}, {pr(g + r)}, {pr(t + r)}" for r in (0, 2)]
        ops += [f"v_exp_f32 v{t + r}, v{t + r}" for r in range(4)]
        ops += [f"v_pk_mul_f32 {pr(p + r)}, {pr(g + r)}, {pr(u + r)}" for r in (0, 2)]
        ops += [pkfma(t + r, t + r, VV[tt], VV[tt]) for r in (0, 2)]
        ops += [f"v_rcp_f32 v{t + r}, v{t + r}" for r in range(4)]
        ops += ["s_nop 0"]
        ops += [f"v_pk_mul_f32 {pr(p + r)}, {pr(p + r)}, {pr(t + r)}" for r in (0, 2)]
        ops += [f"v_cvt_pk_bf16_f32 v{o}, v{p}, v{p + 1}", f"v_cvt_pk_bf16_f32 v{o + 1}, v{p + 2}, v{p + 3}"]
        ops += [f"ds_write_b64 v12, v[{o}:{o + 1}] offset:{tt * 18 * KB}"]
    ahead = [wload(15 + n, n) for n in range(18)]
    for i, t in enumerate(ops):
        a(t)
        if reads and i % 4 != 3:
            a(reads.pop(0))
        if i % 6 == 5 and len(ahead) > 4:
            a(ahead.pop(0))
    for t in reads + ahead:
        a(t)
    a(f"s_add_u32 s23, s23, {18 * KB}")
    a("s_waitcnt lgkmcnt(0)")
    a("s_barrier")
    for ks in (16, 17):
        for tt in range(4):
            a(hread(tt, ks))
    a("s_mov_b32 s25, 0")
    a("s_waitcnt lgkmcnt(0)")
    mark(a, 14)

    def down_epi(e):
        ops = []
        for pr in range(2):
            o = TMP + 4 * pr
            for h in range(2):
                s = STG + 4 * (2 * pr + h)
                ops.append((f"v_cvt_pk_bf16_f32 v{o + 2 * h}, v{s}, v{s + 1}", 1, e))
                ops.append((f"v_cvt_pk_bf16_f32 v{o + 2 * h + 1}, v{s + 2}, v{s + 3}", 1, e))
        for pr in range(2):
            o = TMP + 4 * pr
            ops.append((f"v_permlane16_swap_b32 v{o}, v{o + 2}", 2, e))
            ops.append((f"v_permlane16_swap_b32 v{o + 1}, v{o + 3}", 2, e))
        for pr in range(2):
            o = TMP + 4 * pr
            if not Cfg.nostore:
                ops.append((f"buffer_store_dwordx4 v[{o}:{o + 3}], v{178 + pr}, s[72:75], s27 offen {Cfg.pflag}", 2, e))
        return ops

    def down_trip(half, vm, last=0, emit=True):
        out = a if emit else Asm()
        base = 0 if half else 18
        mf, pinned = [], {}
        for G in range(6):
            for tt in range(4):
                for kk in range(3):
                    ks = 3 * G + kk
                    c = ACC + 4 * tt
                    d = STG + 4 * tt if ks == 17 else c
                    src = "0" if ks == 0 else f"v[{c}:{c + 3}]"
                    w = slot_reg(base + ks)
                    mf.append(f"v_mfma_f32_16x16x32_bf16 v[{d}:{d + 3}], v[{w}:{w + 3}], {xreg(tt, ks)}, {src}")
            for kk in range(3):
                n = 3 * G + kk
                if not last or (last == 1 and G == 0):
                    pinned[12 * G + 4 * kk + 1] = [(wload((base + n + 33) % 36, n), 2)]
                elif early and (last == 2 or G >= 2):
                    pinned[12 * G + 4 * kk + 1] = [(early.pop(0), 2)]
        gaps = pack_gaps(72, pinned, down_epi(Cfg.epi_gap))
        check_stage_reads(mf, gaps, STG, 16)
        store_groups = [i // 12 for i in range(72) for t, _ in gaps[i] if "store" in t]
        for i in range(72):
            G = i // 12
            if i % 12 == 0 and last:
                out(f"s_waitcnt vmcnt({vm.count(('w', base + 3 * G + 2))})")
            elif i % 12 == 0:
                extra = sum(1 for sg in store_groups if sg < G)
                if not half:
                    extra += sum(1 for sg in store_groups if sg >= G - 4)
                out(f"s_waitcnt vmcnt({30 + extra})")
            if i == 36 and half and not last and emit:
                skip = a.label("early")
                a("s_cmp_lg_u32 s25, 6")
                a(f"s_cbranch_scc1 {skip}")
                a(f"s_waitcnt vmcnt({vm.count(('s', 0))})")
                a("s_barrier")
                a(f"s_cmp_lg_u32 s3, {Cfg.pw}")
                a(f"s_cbranch_scc1 {skip}")
                a("v_lshlrev_b32 v15, 7, v0")
                a("v_mov_b32 v1, s76")
                a("s_mov_b64 exec, 0xff")
                a("buffer_store_dword v1, v15, s[8:11], s29 offen sc1")
                a("s_mov_b64 exec, -1")
                a(f"{skip}:")
            if i == 24 and last == 1:
                lp, ok = a.label("epoll"), a.label("epolled")
                a(f"{lp}:")
                a("s_waitcnt lgkmcnt(0)")
                for r in (56, 58, 60, 62):
                    a(f"s_xor_b64 s[{r}:{r + 1}], s[{r}:{r + 1}], s[76:77]")
                a("s_or_b64 s[56:57], s[56:57], s[58:59]")
                a("s_or_b64 s[60:61], s[60:61], s[62:63]")
                a("s_or_b64 s[56:57], s[56:57], s[60:61]")
                a(f"s_cbranch_scc0 {ok}")
                a("s_load_dwordx8 s[56:63], s[38:39], 0 glc")
                a("s_add_u32 s6, s6, 1")
                a(f"s_cmp_lt_u32 s6, {1 << 20}")
                a(f"s_cbranch_scc1 {lp}")
                a(f"s_branch {abort}")
                a(f"{ok}:")
            out(mf[i])
            for text, _ in gaps[i]:
                out(text)
                if "buffer_store" in text:
                    vm.issue(("s", half))
                elif "s[48:51]" in text:
                    vm.issue(("w", (base + 3 * G + (i % 12) // 4 + 33) % 36))
                elif "buffer_load" in text:
                    vm.issue("e")
            if i == 14 and last == 1:
                out("s_load_dwordx8 s[56:63], s[38:39], 0 glc")
            if i == 15 and last == 1:
                out("s_mov_b32 s6, 0")
            if i == 66:
                out(f"s_mov_b32 s74, {WS_SIZE}")
            if i == 67:
                out(f"s_add_u32 s27, s27, {KB}")
            if i == 68:
                out("s_add_u32 s25, s25, 1")
            if i == 70:
                out(f"s_add_u32 s23, s23, {18 * KB}")

    lp, mid = a.label("ffn_dn"), a.label("ffn_dn_mid")
    vm = Vm()
    down_trip(1, vm, emit=False)
    a(f"s_branch {mid}")
    a(f"{lp}:")
    down_trip(0, vm)
    a(f"{mid}:")
    down_trip(1, vm)
    a("s_cmp_lt_u32 s25, 7")
    a(f"s_cbranch_scc1 {lp}")
    down_trip(0, vm, last=1)
    down_trip(1, vm, last=2)
    assert not early
    mark(a, 15)
    a("s_nop 7")
    prev = None
    for t, _, _ in down_epi(0):
        if "permlane" in t and "cvt" in prev:
            a("s_nop 1")
        a(t)
        prev = t
    publish(a, PH_FFN)
    mark(a, 20)


def k_main(a):
    name = NAME + "_kernel"
    kernel_begin(a, name)
    end, last, loop = "L_main_end", "L_main_last", "L_main_layer"
    Cfg.sv = 254
    entry(a, 256, end, ["s_load_dwordx4 s[16:19], s[0:1], 0", "s_load_dwordx2 s[22:23], s[0:1], 16",
                        "s_load_dwordx8 s[24:31], s[0:1], 32"])
    a(f"s_mov_b32 s7, {EPOCH}")
    a("s_load_dword s76, s[4:5], s7")
    a("s_mov_b64 s[20:21], s[18:19]")
    a("s_mov_b64 s[18:19], s[16:17]")
    srd(a, 48, "s4", "s5", WS_SIZE)
    tile_map(a, "s40", "s41", Cfg.jx)
    a("s_mov_b32 s42, 0")
    a("s_mov_b32 s43, 0")
    a("s_lshl_b32 s44, s41, 10")
    a(f"s_add_u32 s44, s44, {FLAGS + FPH}")
    a("v_lshlrev_b32 v253, 4, v0")
    if Cfg.stamps:
        a("v_mov_b32 v254, 0")
        a("v_mov_b32 v255, 0")
    if Cfg.code_warm:
        a("s_getpc_b64 s[96:97]")
        a("L_main_pc:")
        a(f"s_sub_u32 s96, s96, L_main_pc-{name}")
        a("s_subb_u32 s97, s97, 0")
        a("s_and_b32 s97, s97, 0xffff")
        a(f"s_mov_b32 s98, L_main_code_end-{name}")
        a("s_mov_b32 s99, 0x20000")
        code_warm(a, "v[2:3]")
    mark(a, 31)
    phase_prep(a, end)
    qkv_prefetch(a, 0, 6)
    a(f"{loop}:")
    phase_qkv(a, end)
    phase_wo(a, end)
    phase_ffn(a, end)
    tail = phase_red(a, end, last)
    a("s_mov_b32 s42, 1")
    a(f"s_mov_b32 s43, {LSTR}")
    a(f"s_add_u32 s44, s44, {4 * FPH}")
    a("s_mov_b32 s74, 0")
    a(f"s_branch {loop}")
    a(f"{last}:")
    tail()
    done = a.label("done")
    a("s_or_b32 s7, s40, s41")
    a("s_or_b32 s7, s7, s3")
    a(f"s_cbranch_scc1 {done}")
    a("v_mov_b32 v1, s76")
    a(f"s_mov_b32 s7, {EPOCH}")
    a("s_mov_b64 exec, 1")
    a("buffer_store_dword v1, off, s[8:11], s7 sc1")
    a("s_mov_b64 exec, -1")
    a(f"{done}:")
    if Cfg.stamps:
        a("s_waitcnt vmcnt(0)")
        mark(a, 19)
        dump_marks(a, 1)
    a(f"{end}:")
    a("s_endpgm")
    a("L_main_code_end:")
    return name, 256, 256


def build(stamps=False):
    Cfg.stamps = stamps
    a = Asm()
    a('.amdgcn_target "amdgcn-amd-amdhsa--gfx950"')
    name, nv, na = k_main(a)
    kernel_desc(a, name, nv, na, 102)
    text = HEADER + f"; @launch grid=(256,1,1) block=(256,1,1) lds={160 * KB}\n" + a.text()
    bad = hazards.check(text)
    if bad:
        print("\n".join(bad[:40]), file=sys.stderr)
        raise SystemExit(f"{len(bad)} hazards")
    return text


if __name__ == "__main__":
    out = sys.argv[1] if len(sys.argv) > 1 else os.path.join(os.path.dirname(os.path.abspath(__file__)), "..", NAME + ".s")
    stamps = "--stamps" in sys.argv
    for x in sys.argv[2:]:
        if x.startswith("--set="):
            for kv in x[6:].split(","):
                k, v = kv.split(":")
                setattr(Cfg, k, int(v) if v.isdigit() else [int(y) for y in v.split("/")] if "/" in v else v.replace("+", " "))
    open(out, "w").write(build(stamps))
```

```python
import math
import os
import struct
import sys

sys.path.insert(0, os.path.dirname(os.path.abspath(__file__)))
from asmlib import Asm, kernel_begin, kernel_desc, reg, srd
import hazards

NAME = "interleave_layers__sliding_local_dilated__glu_gated_geglu__prompt"
KB = 1024
GB = 9216
WS_SIZE = 256 << 20
WQ = 0
WO = 0x240000
WF = 0x300000
WSTR = 486 * KB
FLAGS = 0x1240000
FPH = 256 * 128
SL_WQ, SL_WF, SL_WO, SL_EARLY = 9, 10, 11, 12
EPOCH = 0x12C0000
PART = 0x1300000
XN = 0x2500000
OO = 0x2740000
X2 = 0x2980000
XC = 0x2BC0000
MEAN = 0x2E00000
STAT = 0x2E10000
MEAN1 = 0x2E30000
LSTR = 0x940000
OOB = 0x40000000
STAMP_OFF = 255 << 20

HEADER = """; Kernarg layout for this problem (80 bytes, ptrs only, base s[0:1]):
"""


def f32(x):
    return "0x%08x" % struct.unpack("<I", struct.pack("<f", x))[0]


def sdiv(a, dst, src, d, hi):
    m = -(-(1 << 20) // d)
    assert all((x * m) >> 20 == x // d for x in range(hi + 1)) and hi * m < (1 << 32)
    a(f"s_mul_i32 {dst}, {src}, {m}")
    a(f"s_lshr_b32 {dst}, {dst}, 20")


def sdivmod(a, q, r, src, d, hi):
    sdiv(a, q, src, d, hi)
    a(f"s_mul_i32 {r}, {q}, {d}")
    a(f"s_sub_u32 {r}, {src}, {r}")


def csel(a, dst, x, y):
    a(f"s_mov_b32 {dst}, {y}")
    a(f"s_cmov_b32 {dst}, {x}")


class Vm:
    def __init__(self):
        self.ops = []

    def issue(self, tag):
        self.ops.append(tag)

    def count(self, *tags):
        last = max(i for i, t in enumerate(self.ops) if t in tags)
        return len(self.ops) - 1 - last


MARK_NAMES = {21: "pre.x0", 22: "pre.q", 23: "pre.o", 24: "pre.set", 25: "pre.raw"}
MARK_ORDER = [31, 21, 23, 24, 25, 28, 29, 30, 27, 0, 1, 2, 3, 4, 5, 6, 7, 8, 9, 10, 11, 12, 13, 14, 15, 20, 16, 17, 18, 19]


class Cfg:
    stamps = False
    jx = 4
    wflag = "sc1"
    nostore = 0
    nogelu = 0
    noload = 0
    ldpos = 1
    gcap = 2
    pflag = "sc1"
    epi_gap = 6
    wo_per_ks = 4
    w_per_ks = 3
    oflag = "sc0 sc1"
    pollw = 3
    code_warm = 3
    xflag = "sc1"
    wo_gap = 8
    red_pre = 4
    red_feed = 2
    raw_early = 3
    raw_mid = 16
    raw_flag = "nt"
    z_early = 16
    sleep = 0
    pw = 0


def tile_map(a, sj, smt, jx):
    lg = jx.bit_length() - 1
    a(f"s_and_b32 {sj}, s2, {8 // jx - 1}")
    a(f"s_lshl_b32 {sj}, {sj}, {lg}")
    a(f"s_bfe_u32 s7, s2, {3 | (lg << 16)}")
    a(f"s_add_u32 {sj}, {sj}, s7")
    a(f"s_bfe_u32 {smt}, s2, {(3 - lg) | (lg << 16)}")
    a(f"s_lshl_b32 {smt}, {smt}, {5 - lg}")
    a(f"s_lshr_b32 s7, s2, {3 + lg}")
    a(f"s_add_u32 {smt}, {smt}, s7")


def entry(a, nwg, end, extra_loads=()):
    a(f"s_cmp_ge_u32 s2, {nwg}")
    a(f"s_cbranch_scc1 {end}")
    a("s_load_dwordx2 s[4:5], s[0:1], 72")
    for l in extra_loads:
        a(l)
    a("v_lshrrev_b32 v1, 6, v0")
    a("v_and_b32 v0, 63, v0")
    a("v_readfirstlane_b32 s3, v1")
    a("s_waitcnt lgkmcnt(0)")
    srd(a, 8, "s4", "s5", WS_SIZE)


def mark(a, idx):
    if Cfg.stamps:
        a("s_memrealtime s[100:101]")
        a("s_memtime vcc")
        a("s_lshl_b32 m0, s42, 5")
        a(f"s_add_u32 m0, m0, {idx}")
        a("s_waitcnt lgkmcnt(0)")
        a(f"v_writelane_b32 v{Cfg.sv}, s100, m0")
        a(f"v_writelane_b32 v{Cfg.sv + 1}, vcc_lo, m0")


def dump_marks(a, slot):
    if Cfg.stamps:
        a("s_lshl_b32 s7, s2, 2")
        a("s_add_u32 s7, s7, s3")
        a("s_lshl_b32 s7, s7, 9")
        a(f"s_add_u32 s7, s7, {STAMP_OFF + slot * 0x80000}")
        a("v_lshlrev_b32 v1, 2, v0")
        a(f"buffer_store_dword v{Cfg.sv}, v1, s[8:11], s7 offen")
        a(f"buffer_store_dword v{Cfg.sv + 1}, v1, s[8:11], s7 offen offset:256")


def code_warm(a, dst):
    if Cfg.code_warm:
        a("s_lshr_b32 s7, s2, 3")
        a("s_lshl_b32 s7, s7, 2")
        a("s_add_u32 s7, s7, s3")
        a("s_lshl_b32 s7, s7, 9")
        a("v_lshrrev_b32 v1, 1, v253")
        a("v_add_u32 v1, s7, v1")
        a(f"buffer_load_dwordx2 {dst}, v1, s[96:99], 0 offen")


PH_QKV, PH_WO, PH_FFN, PH_RED = range(4)


def publish(a, phase, extra=None):
    skip = a.label("pub")
    a("v_lshlrev_b32 v15, 7, v0")
    a("s_lshl_b32 s6, s40, 2")
    a("s_add_u32 s6, s6, s44")
    if phase > 0:
        a(f"s_add_u32 s6, s6, {phase * FPH}")
    elif phase < 0:
        a(f"s_sub_u32 s6, s6, {-phase * FPH}")
    a("v_mov_b32 v1, s76")
    a("s_mov_b64 vcc, 0xff")
    if phase % 4 == PH_RED:
        a("v_lshrrev_b32 v14, 3, v0")
        a("v_lshl_add_u32 v15, v14, 3, v15")
        a("s_cmp_ge_u32 s40, 6")
        a("s_cselect_b32 s7, s41, 31")
        a("s_cmp_lt_u32 s7, 31")
        a("s_cmov_b64 vcc, 0xffff")
    a("s_waitcnt vmcnt(0)")
    a("s_barrier")
    a(f"s_cmp_lg_u32 s3, {Cfg.pw}")
    a(f"s_cbranch_scc1 {skip}")
    a("s_mov_b64 exec, vcc")
    a("buffer_store_dword v1, v15, s[8:11], s6 offen sc1")
    if extra:
        extra(skip)
    a(f"{skip}:")
    a("s_mov_b64 exec, -1")


def column_flag(a, slot):
    a("v_lshlrev_b32 v15, 10, v0")
    a("s_lshl_b32 s6, s40, 7")
    a("s_lshl_b32 s7, s41, 2")
    a("s_add_u32 s6, s6, s7")
    a(f"s_add_u32 s6, s6, {FLAGS + slot * FPH}")
    a("s_mov_b64 exec, 0xffffffff")
    a("v_lshlrev_b32 v15, 10, v0")
    a("v_mov_b32 v1, s76")
    a("buffer_store_dword v1, v15, s[8:11], s6 offen sc1")


def column_wait(a, slot, abort):
    lp, again, ok = a.label("cpoll"), a.label("cpoll"), a.label("cpolled")
    a("s_lshl_b32 s7, s41, 3")
    a("s_add_u32 s7, s7, s40")
    a("s_lshl_b32 s7, s7, 7")
    a(f"s_add_u32 s7, s7, {FLAGS + slot * FPH}")
    a("s_add_u32 s68, s4, s7")
    a("s_addc_u32 s69, s5, 0")
    a("s_mov_b32 s6, 0")
    a("s_mov_b32 s7, 0")
    a(f"{lp}:")
    a("s_load_dwordx16 s[52:67], s[68:69], s7 glc")
    a("s_add_u32 s6, s6, 1")
    a("s_waitcnt lgkmcnt(0)")
    for r in range(52, 68, 2):
        a(f"s_xor_b64 s[{r}:{r + 1}], s[{r}:{r + 1}], s[76:77]")
    for n in (8, 4, 2):
        for r in range(52, 52 + n, 2):
            a(f"s_or_b64 s[{r}:{r + 1}], s[{r}:{r + 1}], s[{r + n}:{r + n + 1}]")
    a(f"s_cbranch_scc1 {again}")
    a("s_add_u32 s7, s7, 64")
    a("s_cmp_eq_u32 s7, 128")
    a(f"s_cbranch_scc1 {ok}")
    a(f"{again}:")
    a(f"s_cmp_lt_u32 s6, {1 << 20}")
    a(f"s_cbranch_scc1 {lp}")
    a(f"s_branch {abort}")
    a(f"{ok}:")


def wait_flags(a, off, abort, halo=False, extra=None):
    lp, ok, out = a.label("poll"), a.label("polled"), a.label("pollout")
    a(f"s_cmp_lg_u32 s3, {Cfg.pollw}")
    a(f"s_cbranch_scc1 {out}")
    a("s_lshl_b32 s7, s40, 7")
    a("s_add_u32 s7, s7, s44")
    if off > 0:
        a(f"s_add_u32 s7, s7, {off}")
    elif off < 0:
        a(f"s_sub_u32 s7, s7, {-off}")
    a("s_add_u32 s52, s4, s7")
    a("s_addc_u32 s53, s5, 0")
    if halo:
        a("s_cmp_eq_u32 s41, 0")
        a("s_cselect_b32 s7, 0, 32")
    a("s_mov_b32 s6, 0")
    a(f"{lp}:")
    a("s_load_dwordx8 s[56:63], s[52:53], 0 glc")
    if halo:
        a("s_load_dwordx2 s[54:55], s[52:53], s7 glc")
    a("s_add_u32 s6, s6, 1")
    a("s_waitcnt lgkmcnt(0)")
    for r in ([54] if halo else []) + [56, 58, 60, 62]:
        a(f"s_xor_b64 s[{r}:{r + 1}], s[{r}:{r + 1}], s[76:77]")
    a("s_or_b64 s[56:57], s[56:57], s[58:59]")
    a("s_or_b64 s[60:61], s[60:61], s[62:63]")
    if halo:
        a("s_or_b64 s[56:57], s[56:57], s[54:55]")
    a("s_or_b64 s[56:57], s[56:57], s[60:61]")
    a(f"s_cbranch_scc0 {ok}")
    a(f"s_cmp_lt_u32 s6, {1 << 20}")
    a(f"s_cbranch_scc1 {lp}")
    a(f"s_branch {abort}")
    a(f"{ok}:")
    if extra:
        extra(out)
    a(f"{out}:")
    a("s_barrier")


def bfrag_voff(a, dst, tmp):
    a(f"v_bfe_u32 {tmp}, v0, 3, 1")
    a(f"v_mul_u32_u24 {dst}, {GB}, {tmp}")
    a(f"v_lshrrev_b32 {tmp}, 4, v0")
    a(f"v_lshl_add_u32 {dst}, {tmp}, 7, {dst}")
    a(f"v_and_b32 {tmp}, 7, v0")
    a(f"v_lshl_add_u32 {dst}, {tmp}, 4, {dst}")


def dtile_voff(a, dst, tmp, tmp2, gstride):
    a(f"v_bfe_u32 {tmp}, v0, 3, 2")
    a(f"s_mov_b32 s7, {gstride}")
    a(f"v_mul_lo_u32 {dst}, {tmp}, s7")
    a(f"v_lshrrev_b32 {tmp}, 5, v0")
    a(f"v_lshl_add_u32 {dst}, {tmp}, 7, {dst}")
    a(f"v_and_b32 {tmp}, 7, v0")
    a(f"v_lshl_add_u32 {dst}, {tmp}, 4, {dst}")


def rowsum_16_32(a, vals, tmp):
    for swap in ("v_permlane32_swap_b32", "v_permlane16_swap_b32"):
        for i, v in enumerate(vals):
            a(f"v_mov_b32 {tmp[i]}, {v}")
        a("s_nop 1")
        for i, v in enumerate(vals):
            a(f"{swap} {tmp[i]}, {v}")
        for i, v in enumerate(vals):
            a(f"v_add_f32 {v}, {v}, {tmp[i]}")


def ln_coeffs(a, vs, vss, rstd, nb):
    a(f"v_mul_f32 {vs}, {f32(1.0 / 576)}, {vs}")
    a(f"v_mul_f32 {vss}, {f32(1.0 / 576)}, {vss}")
    a(f"v_fma_f32 {vss}, -{vs}, {vs}, {vss}")
    a(f"v_max_f32 {vss}, 0, {vss}")
    a(f"v_add_f32 {vss}, {f32(1e-5)}, {vss}")
    a(f"v_rsq_f32 v{rstd}, {vss}")
    a("s_nop 0")
    a(f"v_mul_f32 v{nb}, {vs}, v{rstd}")
    a(f"v_mov_b32 v{rstd + 1}, v{rstd}")
    a(f"v_sub_f32 v{nb}, 0, v{nb}")
    a(f"v_mov_b32 v{nb + 1}, v{nb}")


def normalize(a, src, dst, n, rstd, nb, tmp):
    for i0 in range(0, n, 4):
        k = min(4, n - i0)
        for i in range(k):
            a(f"v_lshlrev_b32 v{tmp + 2 * i}, 16, v{src + i0 + i}")
            a(f"v_and_b32 v{tmp + 2 * i + 1}, s16, v{src + i0 + i}")
        for i in range(k):
            t = tmp + 2 * i
            a(f"v_pk_fma_f32 v[{t}:{t + 1}], v[{t}:{t + 1}], v[{rstd}:{rstd + 1}], v[{nb}:{nb + 1}]")
        for i in range(k):
            t = tmp + 2 * i
            a(f"v_cvt_pk_bf16_f32 v{dst + i0 + i}, v{t}, v{t + 1}")


VR, VM = 172, 175


def red_offsets(a):
    a("s_mov_b32 s16, 0xffff0000")
    a("s_lshl_b32 s7, s3, 10")
    a(f"v_add_u32 v{VR}, s7, v253")
    a(f"v_add_u32 v{VR + 2}, 5120, v{VR}")
    a("v_and_b32 v178, 7, v0")
    a("v_mul_u32_u24 v178, 1152, v178")
    a("v_lshrrev_b32 v179, 3, v0")
    a("v_lshl_add_u32 v178, v179, 4, v178")
    a("s_lshl_b32 s7, s3, 7")
    a(f"v_add_u32 v{VM}, s7, v178")
    a(f"v_add_u32 v{VM + 2}, 640, v{VM}")
    a("s_cmp_eq_u32 s3, 0")
    csel(a, "s17", 4096, OOB)
    a(f"v_add_u32 v{VR + 1}, s17, v{VR}")
    csel(a, "s17", 512, OOB)
    a(f"v_add_u32 v{VM + 1}, s17, v{VM}")


def red_ln_store(a, XB, sX2, sXN, sMEAN, flag):
    for b in range(3):
        a(f"buffer_store_dwordx4 v[{XB + 4 * b}:{XB + 4 * b + 3}], v{VR + b}, s[8:11], {sX2} offen {flag}")
    a("s_mov_b32 s17, 0x3f803f80")
    for i in range(4):
        a(f"v_mov_b32 v{8 + i}, 0")
    for i in range(12):
        a(f"v_dot2c_f32_bf16 v{8 + 2 * (i & 1)}, s17, v{XB + i}")
        a(f"v_dot2c_f32_bf16 v{9 + 2 * (i & 1)}, v{XB + i}, v{XB + i}")
    a("v_and_b32 v12, 7, v0")
    a("v_lshlrev_b32 v12, 3, v12")
    a("s_lshl_b32 s7, s3, 6")
    a("v_add_u32 v13, s7, v12")
    a("v_pk_add_f32 v[8:9], v[8:9], v[10:11]")
    a("s_nop 1")
    a("v_add_f32_dpp v8, v8, v8 row_ror:8 row_mask:0xf bank_mask:0xf")
    a("v_add_f32_dpp v9, v9, v9 row_ror:8 row_mask:0xf bank_mask:0xf")
    rowsum_16_32(a, ["v8", "v9"], ["v10", "v11"])
    a("ds_write_b64 v13, v[8:9]")
    a("s_waitcnt lgkmcnt(0)")
    a("s_barrier")
    T = 40
    for w in range(4):
        a(f"ds_read_b64 v[{T + 2 * w}:{T + 2 * w + 1}], v12 offset:{64 * w}")
    a("s_waitcnt lgkmcnt(0)")
    a(f"v_pk_add_f32 v[{T}:{T + 1}], v[{T}:{T + 1}], v[{T + 2}:{T + 3}]")
    a(f"v_pk_add_f32 v[{T + 4}:{T + 5}], v[{T + 4}:{T + 5}], v[{T + 6}:{T + 7}]")
    a(f"v_pk_add_f32 v[8:9], v[{T}:{T + 1}], v[{T + 4}:{T + 5}]")
    ln_coeffs(a, "v8", "v9", 10, 12)
    a("s_cmp_eq_u32 s3, 0")
    a("s_cselect_b32 s7, 32, 0")
    a("v_lshlrev_b32 v14, 2, v0")
    a("v_cmp_gt_u32 vcc, s7, v0")
    a(f"v_mov_b32 v9, {OOB}")
    a("s_nop 0")
    a("v_cndmask_b32 v14, v9, v14, vcc")
    a(f"buffer_store_dword v8, v14, s[8:11], {sMEAN} offen {flag}")
    normalize(a, XB, 48, 12, 10, 12, T)
    for b in range(3):
        a(f"buffer_store_dwordx4 v[{48 + 4 * b}:{51 + 4 * b}], v{VR + b}, s[8:11], {sXN} offen {flag}")


def red_setup(a):
    red_offsets(a)
    a("s_lshl_b32 s21, s41, 3")
    a("s_add_u32 s21, s21, s40")
    a(f"s_mul_i32 s18, s21, {GB}")
    a(f"s_mul_i32 s20, s21, {8 * GB}")
    a(f"s_add_u32 s20, s20, {PART}")
    a("s_mov_b32 s19, s20")
    loads = []
    for j in range(8):
        for b in range(2):
            r = slot_reg(18 + 2 * j + b)
            t = f"buffer_load_dwordx4 v[{r}:{r + 3}], v{VR + b}, s[8:11], s19 offen sc1"
            if b == 1 and j < 7:
                t += f"\ns_add_u32 s19, s19, {GB}"
            loads.append(t)
    return loads


def phase_red(a, abort, last):
    ACC, TMP, LD, XR, XB = 16, 40, 60, 92, 120
    a("s_add_u32 s19, s18, s43")
    a(f"s_add_u32 s22, s19, {XC}")
    a("s_lshl_b32 s23, s21, 5")
    a("s_add_u32 s23, s23, s43")
    a(f"s_add_u32 s23, s23, {MEAN1}")
    a("v_and_b32 v12, 7, v0")
    a("v_lshlrev_b32 v12, 2, v12")
    a("buffer_load_dword v10, v12, s[8:11], s23 offen sc1")
    for b in range(3):
        a(f"buffer_load_dwordx4 v[{XR + 4 * b}:{XR + 4 * b + 3}], v{VR + b}, s[8:11], s22 offen sc1")

    def unpack(dst, r):
        for i in range(4):
            a(f"v_lshlrev_b32 v{dst + 2 * i}, 16, v{r + i}")
            a(f"v_and_b32 v{dst + 2 * i + 1}, s16, v{r + i}")

    def add(b, r):
        unpack(TMP, r)
        for i in range(4):
            c = ACC + 8 * b + 2 * i
            a(f"v_pk_add_f32 v[{c}:{c + 1}], v[{c}:{c + 1}], v[{TMP + 2 * i}:{TMP + 2 * i + 1}]")

    for b in range(2):
        unpack(ACC + 8 * b, slot_reg(18 + b))
    for j in range(1, Cfg.red_pre):
        for b in range(2):
            add(b, slot_reg(18 + 2 * j + b))
    wait_flags(a, PH_FFN * FPH, abort)
    mark(a, 16)
    vm = Vm()
    for j in range(8):
        a(f"buffer_load_dwordx4 v[{LD + 4 * j}:{LD + 4 * j + 3}], v{VR + 2}, s[8:11], s20 offen sc1")
        vm.issue(j)
        if j < 7:
            a(f"s_add_u32 s20, s20, {GB}")
    pf = Asm()
    qkv_prefetch(pf, 0, 6, "s42")
    queue, chunk = [], ""
    for ln in pf.lines:
        chunk += ln + "\n"
        if "buffer_load" in ln:
            queue.append(chunk)
            chunk = ""

    def feed(n):
        for _ in range(n):
            if queue:
                a(queue.pop(0))
                vm.issue("w")

    for j in range(Cfg.red_pre, 8):
        for b in range(2):
            add(b, slot_reg(18 + 2 * j + b))
    a("s_cmp_eq_u32 s3, 0")
    a("s_cselect_b32 s7, 1.0, 0")
    a("s_waitcnt vmcnt(8)")
    a("v_mul_f32 v11, s7, v10")
    for b in range(2):
        add(b, XR + 4 * b)
    unpack(ACC + 16, XR + 8)
    for b in range(3):
        for i in range(4):
            c = ACC + 8 * b + 2 * i
            sel = "op_sel:[0,1] op_sel_hi:[1,1]" if b == 1 else "op_sel_hi:[1,0]"
            a(f"v_pk_add_f32 v[{c}:{c + 1}], v[{c}:{c + 1}], v[10:11] {sel}")
    for j in range(8):
        a(f"s_waitcnt vmcnt({vm.count(j)})")
        feed(Cfg.red_feed)
        add(2, LD + 4 * j)
    feed(99)
    a(chunk)
    for b in range(3):
        for i in range(4):
            c = ACC + 8 * b + 2 * i
            a(f"v_cvt_pk_bf16_f32 v{XB + 4 * b + i}, v{c}, v{c + 1}")
    mark(a, 17)
    a("s_cmp_lg_u32 s42, 0")
    a(f"s_cbranch_scc1 {last}")
    a(f"s_add_u32 s19, s18, {X2 + LSTR}")
    a(f"s_add_u32 s20, s18, {XN + LSTR}")
    a("s_lshl_b32 s22, s21, 7")
    a(f"s_add_u32 s22, s22, {MEAN + LSTR}")
    red_ln_store(a, XB, "s19", "s20", "s22", "sc1")
    mark(a, 18)
    publish(a, PH_RED)
    mark(a, 19)

    def tail():
        for b in range(3):
            a(f"buffer_store_dwordx4 v[{XB + 4 * b}:{XB + 4 * b + 3}], v{VM + b}, s[12:15], s18 offen {Cfg.oflag}")
    return tail


ZB = 96 * KB


def o_row(a, dst, vc, vj, t0, t1):
    a(f"v_mul_u32_u24 {t0}, 7282, {vc}")
    a(f"v_lshrrev_b32 {t0}, 16, {t0}")
    a(f"v_mul_u32_u24 {t1}, 9, {t0}")
    a(f"v_sub_u32 {t1}, {vc}, {t1}")
    a(f"v_mul_u32_u24 {t0}, 72, {t0}")
    a(f"v_cmp_eq_u32 vcc, 8, {t1}")
    a(f"v_lshrrev_b32 {dst}, 1, {t1}")
    a(f"v_mad_u32_u24 {dst}, {dst}, 18, {t0}")
    a(f"v_and_b32 {t1}, 1, {t1}")
    a(f"v_lshl_add_u32 {dst}, {t1}, 3, {dst}")
    a(f"v_add_u32 {dst}, {dst}, {vj}")
    a(f"v_lshrrev_b32 {t1}, 1, {vj}")
    a(f"v_mad_u32_u24 {t0}, {t1}, 18, {t0}")
    a(f"v_and_b32 {t1}, 1, {vj}")
    a(f"v_add3_u32 {t0}, {t0}, {t1}, 16")
    a(f"v_cndmask_b32 {dst}, {dst}, {t0}, vcc")


def tr_rows(a, dst, tmp, shift, pitch):
    a(f"v_lshrrev_b32 {dst}, 4, v0")
    a(f"v_lshlrev_b32 {dst}, {shift}, {dst}")
    a(f"v_bfe_u32 {tmp}, v0, 2, 2")
    a(f"v_add_u32 {dst}, {dst}, {tmp}")
    a(f"v_mul_u32_u24 {dst}, {pitch}, {dst}")
    a(f"v_and_b32 {tmp}, 3, v0")
    a(f"v_lshl_add_u32 {dst}, {tmp}, 3, {dst}")


def qfrag(a, t, pending):
    a(f"s_waitcnt lgkmcnt({pending})")
    for i in range(4):
        a(f"v_lshl_or_b32 v{32 + 4 * t + i}, v{137 + 8 * t + 2 * i}, 16, v{136 + 8 * t + 2 * i}")
        if t == 3:
            a(f"v_cndmask_b32 v{32 + 4 * t + i}, 0, v{32 + 4 * t + i}, s[22:23]")
    a(f"buffer_store_dwordx4 v[{32 + 4 * t}:{35 + 4 * t}], v253, s[8:11], s33 offen offset:{t * KB} sc1")


def phase_prep(a, abort):
    srd(a, 12, "s18", "s19", 2048 * 1152)
    srd(a, 64, "s20", "s21", 576 * 3456)
    srd(a, 68, "s22", "s23", 576 * 1152)
    red_offsets(a)
    a("s_lshl_b32 s21, s41, 3")
    a("s_add_u32 s21, s21, s40")
    a(f"s_mul_i32 s18, s21, {GB}")
    for b in range(3):
        a(f"buffer_load_dwordx4 v[{16 + 4 * b}:{19 + 4 * b}], v{VM + b}, s[12:15], s18 offen")
    mark(a, 21)
    srd(a, 12, "s30", "s31", 2048 * 1152)
    a("s_lshl_b32 s79, s3, 14")
    a(f"s_add_u32 s79, s79, {ZB}")
    PS = 8 * KB
    lo, lw, l3 = a.label("prep_o"), a.label("prep_m"), a.label("prep_go")
    nq2, l4, l5 = a.label("prep_o"), a.label("prep_m"), a.label("prep_done")
    a("s_sub_u32 s36, s21, 144")
    a("s_cmp_ge_u32 s41, 18")
    a(f"s_cbranch_scc1 {lo}")
    a(f"s_mul_i32 s35, s41, {32 * 3456}")
    a("s_mul_i32 s7, s40, 144")
    a("s_and_b32 s46, s7, 127")
    a("s_sub_u32 s7, s7, s46")
    a("s_add_u32 s35, s35, s7")
    a(f"s_mul_i32 s7, s3, {4 * 3456}")
    a("s_add_u32 s35, s35, s7")
    a("v_lshrrev_b32 v8, 4, v0")
    a("v_mul_u32_u24 v8, 3456, v8")
    a("v_and_b32 v9, 15, v0")
    a("v_lshl_add_u32 v8, v9, 4, v8")
    a("s_lshl_b32 s34, s3, 10")
    for m in range(6):
        a(f"s_add_u32 m0, s34, {PS + m * 4 * KB}")
        a(f"s_add_u32 s7, s35, {(m & 1) * 16 * 3456 + (m >> 1) * 1152}")
        a("buffer_load_dwordx4 v8, s[64:67], s7 offen lds")
    a(f"s_branch {l3}")
    a(f"{lo}:")
    a("s_cmp_ge_u32 s36, 54")
    a(f"s_cbranch_scc1 {lw}")
    sdivmod(a, "s33", "s34", "s36", 3, 53)
    a("s_lshl_b32 s7, s33, 2")
    a("s_add_u32 s7, s7, s3")
    a("v_mov_b32 v8, s7")
    a("v_lshrrev_b32 v9, 3, v0")
    o_row(a, "v10", "v8", "v9", "v11", "v12")
    a("v_mul_u32_u24 v10, 1152, v10")
    a("v_and_b32 v9, 7, v0")
    a("v_lshl_add_u32 v10, v9, 4, v10")
    a("s_mul_i32 s35, s34, 384")
    a("s_lshl_b32 s6, s3, 10")
    for m in range(3):
        a(f"s_add_u32 m0, s6, {PS + m * 4 * KB}")
        a(f"s_add_u32 s7, s35, {m * 128}")
        a("buffer_load_dwordx4 v10, s[68:71], s7 offen lds")
    a(f"s_branch {l3}")
    a(f"{lw}:")
    a("s_sub_u32 s37, s36, 54")
    a("s_lshl_b32 s7, s3, 6")
    a("s_add_u32 s37, s37, s7")
    a("s_cmp_ge_u32 s37, 36")
    a(f"s_cbranch_scc1 {l3}")
    a("s_lshl_b32 s7, s37, 1")
    a("v_bfe_u32 v8, v0, 3, 1")
    a("v_add_u32 v8, s7, v8")
    a("v_and_b32 v9, 7, v0")
    o_row(a, "v10", "v8", "v9", "v11", "v12")
    a("v_mul_u32_u24 v10, 1152, v10")
    a("v_lshrrev_b32 v9, 4, v0")
    a("v_lshl_add_u32 v10, v9, 4, v10")
    for ks in range(18):
        a(f"buffer_load_dwordx4 v[{64 + 4 * ks}:{67 + 4 * ks}], v10, s[68:71], 0 offen offset:{64 * ks}")
    a(f"{l3}:")
    mark(a, 23)
    a("s_lshl_b32 s7, s41, 2")
    a("s_add_u32 s7, s7, s3")
    sdiv(a, "s93", "s7", 41, 127)
    a("s_min_u32 s93, s93, 2")
    a("s_mul_i32 s6, s93, 41")
    a("s_sub_u32 s7, s7, s6")
    a("s_lshl_b32 s17, s7, 2")
    a("s_cmp_eq_u32 s93, 1")
    a("s_cselect_b32 s72, s26, s24")
    a("s_cselect_b32 s73, s27, s25")
    a("s_cmp_eq_u32 s93, 2")
    a("s_cselect_b32 s72, s28, s72")
    a("s_cselect_b32 s73, s29, s73")
    csel(a, "s92", 8 * 1152, 8 * 9216)
    csel(a, "s47", 18 * 32 * 1152, 1152)
    a("s_and_b32 s73, s73, 0xffff")
    a(f"s_mov_b32 s74, {576 * 9216}")
    a("s_mov_b32 s75, 0x20000")
    a("s_mul_i32 s47, s47, s40")
    for b in range(4):
        a(f"s_add_u32 s7, s17, {b}")
        a("s_min_u32 s7, s7, 161")
        sdivmod(a, f"s{84 + b}", f"s{88 + b}", "s7", 9, 161)
        a(f"s_mul_i32 s7, s{84 + b}, s92")
        a("s_lshl_b32 s7, s7, 2")
        a("s_add_u32 s7, s7, s47")
        a(f"s_lshl_b32 s6, s{88 + b}, 7")
        a(f"s_add_u32 s{80 + b}, s7, s6")
    a("s_lshr_b32 s7, s92, 3")
    a("v_lshrrev_b32 v224, 3, v0")
    a("v_mul_lo_u32 v224, v224, s7")
    a("v_and_b32 v8, 7, v0")
    a("v_lshl_add_u32 v224, v8, 4, v224")
    a("s_waitcnt lgkmcnt(0)")
    a("s_mul_i32 s76, s76, 0x9e3779b1")
    a("s_add_u32 s76, s76, 0x7f4a7c15")
    a("s_mov_b32 s77, s76")
    mark(a, 24)
    for i in range(Cfg.raw_early):
        a(ffn_raw_dma(i))
    mark(a, 25)
    a(f"s_waitcnt vmcnt({Cfg.raw_early})")
    a("s_barrier")
    mark(a, 28)
    a("s_cmp_ge_u32 s41, 18")
    a(f"s_cbranch_scc1 {nq2}")
    a("s_mul_i32 s7, s3, 36")
    a("s_add_u32 s7, s7, s46")
    a("v_lshrrev_b32 v8, 4, v0")
    a("v_lshlrev_b32 v8, 11, v8")
    a("v_add_u32 v8, s7, v8")
    a("v_and_b32 v9, 15, v0")
    a("v_cmp_gt_u32 s[22:23], 6, v9")
    a("v_lshrrev_b32 v10, 1, v9")
    a("v_min_u32 v10, 2, v10")
    a("v_lshl_add_u32 v10, v10, 13, v8")
    a("v_and_b32 v11, 1, v0")
    a("v_lshl_add_u32 v10, v11, 1, v10")
    a("v_lshl_add_u32 v8, v9, 1, v8")
    for t in range(4):
        for j in range(8):
            a(f"ds_read_u16 v{136 + 8 * t + j}, v8 offset:{PS + t * 8192 + j * 256}" if t < 3 else
              f"ds_read_u16 v{136 + 8 * t + j}, v10 offset:{PS + 32 + j * 256}")
        if t == 0:
            a("s_lshl_b32 s33, s40, 2")
            a("s_add_u32 s33, s33, s3")
            a("s_mul_i32 s33, s33, 18")
            a("s_add_u32 s33, s33, s41")
            a("s_lshl_b32 s33, s33, 12")
            if WQ:
                a(f"s_add_u32 s33, s33, {WQ}")
        if t:
            qfrag(a, t - 1, 8)
    qfrag(a, 3, 0)
    a(f"s_branch {l5}")
    a(f"{nq2}:")
    a("s_cmp_ge_u32 s36, 54")
    a(f"s_cbranch_scc1 {l4}")
    tr_rows(a, "v8", "v9", 3, 128)
    a("s_lshl_b32 s7, s3, 5")
    a("v_add_u32 v8, s7, v8")
    for m in range(3):
        a(f"ds_read_b64_tr_b16 v[{32 + 4 * m}:{33 + 4 * m}], v8 offset:{PS + m * 4 * KB}")
        a(f"ds_read_b64_tr_b16 v[{34 + 4 * m}:{35 + 4 * m}], v8 offset:{PS + m * 4 * KB + 512}")
    a("s_mul_i32 s34, s34, 12")
    a("s_add_u32 s34, s34, s3")
    a("s_mul_i32 s34, s34, 18")
    a("s_add_u32 s34, s34, s33")
    a("s_lshl_b32 s34, s34, 10")
    for m in range(3):
        a(f"s_add_u32 s7, s34, {WO + m * 4 * 18 * KB}")
        a(f"s_waitcnt lgkmcnt({4 - 2 * m})")
        a(f"buffer_store_dwordx4 v[{32 + 4 * m}:{35 + 4 * m}], v253, s[8:11], s7 offen sc1")
    a(f"s_branch {l5}")
    a(f"{l4}:")
    a("s_cmp_ge_u32 s37, 36")
    a(f"s_cbranch_scc1 {l5}")
    for i in range(4):
        a(f"v_mov_b32 v{28 + i}, 0x3f803f80")
    a("v_and_b32 v9, 15, v0")
    a("v_cmp_eq_u32 vcc, 0, v9")
    a("v_cmp_eq_u32 s[22:23], 1, v9")
    for ks in range(18):
        a(f"v_mfma_f32_16x16x32_bf16 v[32:35], v[{64 + 4 * ks}:{67 + 4 * ks}], v[28:31], {'0' if ks == 0 else 'v[32:35]'}")
    a("v_lshrrev_b32 v10, 5, v0")
    a("v_lshlrev_b32 v10, 8, v10")
    a("v_lshl_add_u32 v10, v9, 4, v10")
    a("v_bfe_u32 v9, v0, 4, 1")
    a("v_lshl_add_u32 v10, v9, 3, v10")
    a("s_lshl_b32 s7, s37, 9")
    a(f"s_add_u32 s7, s7, {WO + 36 * 18 * KB}")
    a("s_nop 0")
    for r in range(4):
        a(f"v_mul_f32 v{32 + r}, {f32(1.0 / 576)}, v{32 + r}")
    a("v_cvt_pk_bf16_f32 v36, v32, v33")
    a("v_cvt_pk_bf16_f32 v37, v34, v35")
    for h in range(2):
        a(f"v_lshlrev_b32 v38, 16, v{36 + h}")
        a(f"v_and_b32 v39, s16, v{36 + h}")
        a(f"v_sub_f32 v38, v{32 + 2 * h}, v38")
        a(f"v_sub_f32 v39, v{33 + 2 * h}, v39")
        a(f"v_cvt_pk_bf16_f32 v{28 + h}, v38, v39")
        a(f"v_cndmask_b32 v{28 + h}, 0, v{28 + h}, s[22:23]")
        a(f"v_cndmask_b32 v{28 + h}, v{28 + h}, v{36 + h}, vcc")
    a("buffer_store_dwordx2 v[28:29], v10, s[8:11], s7 offen sc1")
    a(f"{l5}:")
    a(f"s_add_u32 s19, s18, {X2}")
    a(f"s_add_u32 s20, s18, {XN}")
    a("s_lshl_b32 s22, s21, 7")
    a(f"s_add_u32 s22, s22, {MEAN}")
    red_ln_store(a, 16, "s19", "s20", "s22", "sc1")
    mark(a, 29)

    def more(skip):
        column_flag(a, SL_WQ)
        a("s_cmp_lt_u32 s41, 18")
        a(f"s_cbranch_scc1 {skip}")
        a("s_lshl_b32 s6, s36, 2")
        a(f"s_add_u32 s6, s6, {FLAGS + SL_WO * FPH}")
        a("s_mov_b64 exec, 1")
        a("buffer_store_dword v1, off, s[8:11], s6 sc1")

    publish(a, PH_RED - 4, more)
    mark(a, 30)
    for i in range(Cfg.raw_early, Cfg.raw_mid):
        a(ffn_raw_dma(i))
    out = a.label("wq_ready")
    a(f"s_cmp_lg_u32 s3, {Cfg.pw}")
    a(f"s_cbranch_scc1 {out}")
    column_wait(a, SL_WQ, abort)
    a(f"{out}:")
    a("s_barrier")
    mark(a, 27)


def ffn_raw_dma(i):
    b, m = divmod(i, 4)
    step = f"s_mov_b32 s71, s{80 + b}" if m == 0 else "s_add_u32 s71, s71, s92"
    return f"s_add_u32 m0, s79, {i * KB}\n{step}\nbuffer_load_dwordx4 v224, s[72:75], s71 offen {Cfg.raw_flag} lds"


ZQ = list(range(76, 100, 4)) + [176, 180] + list(range(196, 224, 4)) + [228]


def ffn_transpose_reads(a):
    a("s_cmp_eq_u32 s93, 2")
    a("s_cselect_b32 s6, 2, 3")
    csel(a, "s7", 2048, 512)
    tr_rows(a, "v14", "v15", "s6", 128)
    a("v_add_u32 v14, s79, v14")
    a("v_add_u32 v15, s7, v14")
    for b in range(4):
        for t in range(4):
            r = ZQ[4 * b + t]
            a(f"ds_read_b64_tr_b16 v[{r}:{r + 1}], v14 offset:{b * 4096 + t * 32}")
            a(f"ds_read_b64_tr_b16 v[{r + 2}:{r + 3}], v15 offset:{b * 4096 + t * 32}")


def ffn_transpose(a):
    ffn_transpose_reads(a)
    dn, dd = a.label("swz_down"), a.label("swz_dest")
    dest = [80, 81, 82, 83, 64, 65, 18, 19, 20, 21, 22, 25, 26, 27, 28, 29]
    a(f"s_mul_i32 s68, s40, {4 * WSTR}")
    a(f"s_add_u32 s68, s68, {WF}")
    a("s_cmp_eq_u32 s93, 2")
    a(f"s_cbranch_scc1 {dn}")
    for b in range(4):
        sdivmod(a, "s6", "s7", f"s{84 + b}", 3, 17)
        a("s_mul_i32 s6, s6, 6")
        a("s_add_u32 s7, s7, s6")
        a(f"s_mul_i32 s6, s{88 + b}, 36")
        a("s_add_u32 s7, s7, s6")
        a("s_mul_i32 s6, s93, 3")
        a("s_add_u32 s7, s7, s6")
        a("s_lshl_b32 s7, s7, 10")
        a("s_add_u32 s7, s7, s68")
        for t in range(4):
            a(f"s_add_u32 s{dest[4 * b + t]}, s7, {t * WSTR}")
    a(f"s_branch {dd}")
    a(f"{dn}:")
    for b in range(4):
        a(f"s_mul_i32 s7, s{88 + b}, 18")
        a(f"s_add_u32 s7, s7, s{84 + b}")
        a("s_add_u32 s7, s7, 324")
        a("s_lshl_b32 s7, s7, 10")
        a("s_add_u32 s7, s7, s68")
        for t in range(4):
            a(f"s_add_u32 s{dest[4 * b + t]}, s7, {t * WSTR}")
    a(f"{dd}:")
    return [f"buffer_store_dwordx4 v[{ZQ[i]}:{ZQ[i] + 3}], v253, s[72:75], s{dest[i]} offen sc1" for i in range(16)]


BIG = -1e30


QR = 10
WO_FREE = [(160 + 4 * i, -1) for i in range(24)] + \
    [(16 * (k % QR) + 4 * t, k) for k in range(18 - QR, 18) for t in range(4)]


def wo_reg(ks, sl):
    return WO_FREE[ks * 3 + sl][0]


def qkv_prefetch(a, k0, k1, skip=None):
    if k0 == 0:
        a("s_lshl_b32 s28, s40, 2")
        a("s_add_u32 s28, s28, s3")
        a(f"s_mul_i32 s28, s28, {72 * KB}")
        if WQ:
            a(f"s_add_u32 s28, s28, {WQ}")
    v = "v253"
    if skip:
        a(f"s_mul_i32 s7, {skip}, {OOB}")
        a("v_add_u32 v1, s7, v253")
        v = "v1"
    for ks in range(k0, k1):
        for l in qkv_wload(ks, v):
            a(l)
        a("s_add_u32 s28, s28, 4096")


def qkv_wload(ks, v="v253"):
    for t in range(4):
        r = 16 * (ks % QR) + 4 * t
        yield f"buffer_load_dwordx4 a[{r}:{r + 3}], {v}, s[8:11], s28 offen offset:{t * KB} {Cfg.wflag}"


def wo_weight_loads(a):
    setup = []
    s = setup.append
    s("s_lshl_b32 s45, s41, 1")
    s("s_lshr_b32 s7, s40, 2")
    s("s_add_u32 s45, s45, s7")
    s(f"s_mul_i32 s30, s45, {4 * GB}")
    s("s_add_u32 s30, s30, s43")
    s("s_and_b32 s31, s40, 3")
    s("s_mul_i32 s31, s31, 9")
    s("s_add_u32 s31, s31, s3")
    s(f"s_mul_i32 s32, s31, {18 * KB}")
    s(f"s_add_u32 s32, s32, {WO}")
    s(f"s_add_u32 s33, s32, {4 * 18 * KB}")
    s(f"s_add_u32 s34, s32, {8 * 18 * KB}")
    s(f"s_mov_b32 s39, {FLAGS + SL_WO * FPH}")
    s("v_min_u32 v228, 44, v0")
    s("v_lshlrev_b32 v228, 3, v228")
    s("s_cmp_eq_u32 s3, 1")
    s(f"s_cmov_b32 s34, {WO + 36 * 18 * KB}")
    s("s_cmp_lt_u32 s3, 2")
    s(f"s_cselect_b32 s35, 0, {OOB}")
    s("v_add_u32 v5, s35, v253")
    s("s_cmp_eq_u32 s3, 0")
    s(f"s_cselect_b32 s35, 0, {OOB}")
    s("v_add_u32 v7, s35, v9")
    s("s_lshl_b32 s7, s31, 8")
    s("s_add_u32 s36, s30, s7")
    s(f"s_add_u32 s37, s36, {X2}")
    s(f"s_add_u32 s46, s36, {XC}")
    s("s_lshl_b32 s36, s45, 7")
    s("s_add_u32 s36, s36, s43")
    s(f"s_add_u32 s36, s36, {MEAN1}")
    s("s_lshl_b32 s47, s45, 9")
    s("s_add_u32 s47, s47, s43")
    s(f"s_add_u32 s47, s47, {MEAN}")
    s("v_bfe_u32 v10, v0, 3, 2")
    s("v_and_b32 v8, 7, v0")
    s("v_lshlrev_b32 v8, 2, v8")
    s("v_lshl_add_u32 v8, v10, 7, v8")
    loads = []
    for ks in range(18):
        for sl in range(3):
            r = wo_reg(ks, sl)
            t = f"buffer_load_dwordx4 a[{r}:{r + 3}], v{5 if sl == 2 else 253}, s[8:11], s{32 + sl} offen offset:{(ks & 3) * KB} {Cfg.wflag}"
            if ks & 3 == 3:
                t += f"\ns_add_u32 s{32 + sl}, s{32 + sl}, 4096"
            loads.append((t, WO_FREE[ks * 3 + sl][1]))
    for sl in range(3):
        loads.append((f"buffer_load_dwordx4 v[{240 + 4 * sl}:{243 + 4 * sl}], v{7 if sl == 2 else 9}, s[8:11], s37 offen offset:{sl * KB} sc1", -1))
    loads.append(("buffer_load_dword v252, v8, s[8:11], s47 offen sc1", -1))
    return setup, loads


def phase_qkv(a, abort):
    BF, ACC, QO, KO, VO, VL, SEL, CI, BP, BC, BP1 = 16, 56, 132, 152, 172, 182, 192, 196, 200, 204, 208
    qkv_prefetch(a, 6, QR - 1)
    bfrag_voff(a, "v2", "v3")
    dtile_voff(a, "v9", "v3", None, GB)
    a(f"s_mul_i32 s22, s41, {8 * GB}")
    a("s_add_u32 s22, s22, s43")
    a(f"s_add_u32 s23, s22, {XN}")
    a(f"s_mul_i32 s7, s3, {2 * GB}")
    a("s_add_u32 s24, s23, s7")
    a("s_cmp_eq_u32 s41, 0")
    a(f"s_cselect_b32 s7, 0, {2 * GB}")
    a("s_sub_u32 s23, s23, s7")
    units = [(0, tt) for tt in range(1, 5)] + [(t, tt) for t in range(1, 4) for tt in range(5)]
    acc = {u: ACC + 4 * i for i, u in enumerate(units)}
    a("s_lshl_b32 s25, s3, 10")
    a("s_add_u32 s25, s25, 1024")
    a("s_mul_i32 s26, s3, 5120")
    a("s_lshl_b32 s7, s3, 9")
    a("s_add_u32 s27, s23, s7")
    a("s_and_b32 s7, s3, 1")
    a("s_add_u32 s7, s7, 4")
    a("s_mul_i32 s29, s7, 5120")
    a("s_lshl_b32 s7, s7, 9")
    a("s_add_u32 s23, s23, s7")
    wait_flags(a, (PH_RED - 4) * FPH, abort, halo=True)
    mark(a, 0)
    def xdma(st):
        for kk in range(6):
            ks = 6 * st + kk
            t = f"s_add_u32 m0, s25, {ks * 5120 - (ks % 8) * 512}\n"
            t += "s_add_u32 s24, s24, 4096\n" if ks and ks % 8 == 0 else "s_nop 0\n"
            yield t + f"buffer_load_dwordx4 v2, s[8:11], s24 offen offset:{(ks % 8) * 512} {Cfg.xflag} lds"
        for sm, so in (("s26", "s27"), ("s29", "s23")):
            yield (f"s_add_u32 m0, {sm}, {st * 30720}\ns_add_u32 s7, {so}, {st * 3072}\n"
                   f"buffer_load_dwordx4 v2, s[8:11], s7 offen {Cfg.xflag} lds")

    vm = Vm()
    for t in xdma(0):
        a(t)
        vm.issue(("x", 0))
    for r in [QO, QO + 1, SEL, SEL + 1, SEL + 3] + [QO + 4 * t + 3 for t in range(5)] + [KO + 4 * t + 3 for t in range(5)]:
        a(f"v_mov_b32 v{r}, 0")
    a("v_cmp_eq_u32 vcc, 16, v0")
    a("v_mov_b32 v10, 0x3f80")
    a("v_cmp_eq_u32 s[20:21], 17, v0")
    a(f"v_cndmask_b32 v{SEL + 2}, 0, v10, vcc")
    a("v_and_b32 v11, 3, v0")
    a(f"v_cndmask_b32 v{SEL + 2}, v{SEL + 2}, 1.0, s[20:21]")
    a("v_cmp_eq_u32 vcc, 2, v11")
    a("v_and_b32 v10, 15, v0")
    a("v_lshrrev_b32 v11, 4, v0")
    for r in range(4):
        a(f"v_cndmask_b32 v{CI + r}, 0, 1.0, vcc")
    a("v_lshlrev_b32 v11, 2, v11")
    a("v_sub_u32 v10, v11, v10")
    a(f"v_mov_b32 v12, {f32(BIG)}")
    a("s_cmp_eq_u32 s41, 0")
    a("s_cselect_b64 s[38:39], 0, -1")
    for r in range(4):
        a(f"v_add_u32 v11, {r}, v10")
        a("v_and_b32 v13, 1, v11")
        a("v_cmp_eq_u32 s[20:21], 0, v13")
        a("v_cmp_lt_i32 vcc, 1, v11")
        a("v_cmp_gt_i32 s[18:19], 1, v11")
        a("s_and_b64 vcc, vcc, s[20:21]")
        a("s_and_b64 s[18:19], s[18:19], s[20:21]")
        a("s_and_b64 s[20:21], vcc, s[38:39]")
        a(f"v_cndmask_b32 v{BP + r}, v12, 0, vcc")
        a(f"v_cndmask_b32 v{BC + r}, v12, 0, s[18:19]")
        a(f"v_cndmask_b32 v{BP1 + r}, v12, 0, s[20:21]")
    setup, early = wo_weight_loads(a)
    for t in setup:
        a(t)
    a(f"v_add_u32 v6, {45 * KB}, v253")
    a("s_waitcnt vmcnt(0)")
    a("s_barrier")
    mark(a, 1)

    def xread(ks, tt):
        r = BF + 20 * (ks & 1) + 4 * tt
        f = ks * 5 + tt
        return f"ds_read_b128 v[{r}:{r + 3}], v{253 if f < 45 else 6} offset:{(f % 45) * KB}"

    for tt in range(5):
        a(xread(0, tt))
    stage = {1: list(xdma(1)), 2: list(xdma(2))}
    raw = [ffn_raw_dma(i) for i in range(Cfg.raw_mid, 16)]
    wq = []
    for k in range(QR - 1, 18):
        ls = list(qkv_wload(k))
        ls[3] += "\ns_add_u32 s28, s28, 4096"
        wq += [(l, ("w", k)) for l in ls]
    for ks in range(18):
        cur = BF + 20 * (ks & 1)
        fill = {}
        if ks < 17:
            for tt in range(5):
                fill[tt] = [(xread(ks + 1, tt), None)]
        vq = []
        st = 1 if ks < 4 else 2
        for _ in range(2):
            if stage[st] and ks != 4:
                vq.append((stage[st].pop(0), ("x", st)))
        for _ in range(Cfg.w_per_ks):
            if wq and wq[0][1][1] - QR < ks:
                vq.append(wq.pop(0))
        while ks >= 18 - QR + 1 and len(vq) < Cfg.wo_per_ks and early[0][1] < ks:
            vq.append((early.pop(0)[0], "o"))
        for i, op in enumerate(vq):
            fill[5 + 2 * i] = [op]
        if raw and ks >= 1:
            fill[18] = [(raw.pop(0), "z")]
        if ks == 4:
            fill[5 + 2 * len(vq)] = [("buffer_load_dwordx2 v[226:227], v228, s[8:11], s39 offen sc1", "b")]
        need = ([("w", ks)] if ks >= QR - 1 else []) + ([("x", (ks + 1) // 6)] if ks in (5, 11) else [])
        if ks == 18 - QR + 1:
            need.append("b")
        a(f"s_waitcnt vmcnt({vm.count(*need)}) lgkmcnt(0)" if need else "s_waitcnt lgkmcnt(0)")
        if ks == 18 - QR + 1:
            lp, ok = a.label("wo_poll"), a.label("wo_ready")
            a("s_mov_b32 s6, 0")
            a(f"{lp}:")
            a("v_cmp_eq_u32 vcc, s76, v226")
            a("v_cmp_eq_u32 s[20:21], s76, v227")
            a("s_and_b64 vcc, vcc, s[20:21]")
            a("s_cmp_eq_u64 vcc, exec")
            a(f"s_cbranch_scc1 {ok}")
            a("buffer_load_dwordx2 v[226:227], v228, s[8:11], s39 offen sc1")
            a("s_add_u32 s6, s6, 1")
            a(f"s_cmp_lt_u32 s6, {1 << 20}")
            a("s_waitcnt vmcnt(0)")
            a(f"s_cbranch_scc1 {lp}")
            a(f"s_branch {abort}")
            a(f"{ok}:")
        if ks in (5, 11):
            a("s_barrier")
        for u, (t, tt) in enumerate(units):
            c = acc[(t, tt)]
            wr = 16 * (ks % QR) + 4 * t
            w, x = f"a[{wr}:{wr + 3}]", f"v[{cur + 4 * tt}:{cur + 4 * tt + 3}]"
            if t == 2:
                w, x = x, w
            a(f"v_mfma_f32_16x16x32_bf16 v[{c}:{c + 3}], {w}, {x}, {'0' if ks == 0 else f'v[{c}:{c + 3}]'}")
            for text, tag in fill.get(u, []):
                a(text)
                if tag:
                    vm.issue(tag)
    assert not stage[1] and not stage[2]
    assert not wq
    early = [t for t, _ in early]
    nw = len(early) - 4
    tail_loads = early[nw - Cfg.wo_gap:nw]
    early = early[:nw - Cfg.wo_gap] + early[nw:]
    mark(a, 2)
    body = []
    e = body.append
    cvt = lambda d, s: e(f"v_cvt_pk_bf16_f32 v{d}, v{s}, v{s + 1}")
    mf = lambda d, x, y, c: e(f"v_mfma_f32_16x16x32_bf16 v[{d}:{d + 3}], v[{x}:{x + 3}], v[{y}:{y + 3}], {c}")
    quad = lambda r: f"v[{r}:{r + 3}]"
    for tt in range(1, 5):
        cvt(QO + 4 * tt, acc[(0, tt)]); cvt(QO + 4 * tt + 1, acc[(0, tt)] + 2)
    for tt in range(5):
        cvt(KO + 4 * tt, acc[(1, tt)]); cvt(KO + 4 * tt + 1, acc[(1, tt)] + 2)
    for tt in range(5):
        cvt(QO + 4 * tt + 2, acc[(3, tt)]); cvt(KO + 4 * tt + 2, acc[(3, tt)] + 2)
    for tt in range(5):
        cvt(VO + 2 * tt, acc[(2, tt)]); cvt(VO + 2 * tt + 1, acc[(2, tt)] + 2)
    S, T, P, M = 16, 56, 76, 92
    for tt in range(1, 5):
        s = S + 8 * (tt - 1)
        mf(s, KO + 4 * (tt - 1), QO + 4 * tt, quad(BP1 if tt == 1 else BP))
        mf(s + 4, KO + 4 * tt, QO + 4 * tt, quad(BC))
    for tt in range(5):
        mf(T + 4 * tt, QO + 4 * tt, SEL, quad(CI))
    for i in range(4):
        s = S + 8 * i
        e(f"v_max3_f32 v{M + i}, v{s}, v{s + 1}, v{s + 2}")
        e(f"v_max3_f32 v{M + 4 + i}, v{s + 3}, v{s + 4}, v{s + 5}")
    for i in range(4):
        s = S + 8 * i
        e(f"v_max3_f32 v{M + i}, v{M + i}, v{s + 6}, v{s + 7}")
    for i in range(4):
        e(f"v_max_f32 v{M + i}, v{M + i}, v{M + 4 + i}")
    c = 18 ** -0.5 * math.log2(math.e)
    e(f"s_mov_b32 s18, {f32(c)}")
    tcv = [(VL + 2 * tt + h, T + 4 * tt + 2 * h) for tt in range(5) for h in range(2)]
    pad = lambda n: [cvt(*tcv.pop(0)) for _ in range(n)]
    pad(1)
    e(f"v_permlane32_swap_b32 v{M}, v{M + 1}")
    e(f"v_permlane32_swap_b32 v{M + 2}, v{M + 3}")
    e(f"v_max_f32 v{M}, v{M}, v{M + 1}")
    e(f"v_max_f32 v{M + 2}, v{M + 2}, v{M + 3}")
    pad(2)
    e(f"v_permlane16_swap_b32 v{M}, v{M + 2}")
    e(f"v_max_f32 v{M}, v{M}, v{M + 2}")
    e(f"v_mul_f32 v{M}, {f32(-c)}, v{M}")
    e(f"v_mov_b32 v{M + 2}, v{M}")
    pad(2)
    e(f"v_permlane16_swap_b32 v{M}, v{M + 2}")
    e(f"v_mov_b32 v{M + 1}, v{M}")
    e(f"v_mov_b32 v{M + 3}, v{M + 2}")
    pad(2)
    e(f"v_permlane32_swap_b32 v{M}, v{M + 1}")
    e(f"v_permlane32_swap_b32 v{M + 2}, v{M + 3}")
    pad(3)
    OA, OL, R, OUT, LO = 100, 116, 96, 212, 220
    for i in range(4):
        s = S + 8 * i
        for r in range(8):
            e(f"v_fma_f32 v{s + r}, v{s + r}, s18, v{M + i}")
        for r in range(8):
            e(f"v_exp_f32 v{s + r}, v{s + r}")
        if i:
            mf(OA + 4 * (i - 1), VO + 2 * (i - 1), P + 4 * (i - 1), "0")
            mf(OL + 4 * (i - 1), VL + 2 * (i - 1), P + 4 * (i - 1), "0")
        else:
            e("s_nop 0")
        for r in range(4):
            cvt(P + 4 * i + r, s + 2 * r)
    e(f"v_rcp_f32 v{R}, v{OL + 2}")
    e(f"v_rcp_f32 v{R + 1}, v{OL + 6}")
    mf(OA + 12, VO + 6, P + 12, "0")
    mf(OL + 12, VL + 6, P + 12, "0")

    def scale(i):
        sel = "op_sel:[1,0] op_sel_hi:[1,1]" if i & 1 else "op_sel:[0,0] op_sel_hi:[0,1]"
        rp = R + (i & 2)
        for o in (OA + 4 * i, OA + 4 * i + 2, OL + 4 * i):
            e(f"v_pk_mul_f32 v[{o}:{o + 1}], v[{rp}:{rp + 1}], v[{o}:{o + 1}] {sel}")
        cvt(OUT + 2 * i, OA + 4 * i); cvt(OUT + 2 * i + 1, OA + 4 * i + 2); cvt(LO + i, OL + 4 * i)

    scale(0)
    e(f"v_rcp_f32 v{R + 2}, v{OL + 10}")
    scale(1)
    e(f"v_rcp_f32 v{R + 3}, v{OL + 14}")
    e(f"v_permlane16_swap_b32 v{OUT}, v{OUT + 2}")
    e(f"v_permlane16_swap_b32 v{OUT + 1}, v{OUT + 3}")
    scale(2)
    scale(3)
    LX = 92 * KB
    e("s_lshl_b32 s7, s3, 2")
    e(f"s_add_u32 s7, s7, {LX}")
    e(f"v_permlane16_swap_b32 v{LO}, v{LO + 1}")
    e(f"v_permlane16_swap_b32 v{LO + 2}, v{LO + 3}")
    e("v_add_u32 v11, s7, v253")
    e("v_lshrrev_b32 v10, 3, v0")
    e(f"v_permlane32_swap_b32 v{LO}, v{LO + 2}")
    e(f"v_mul_u32_u24 v10, {GB}, v10")
    e(f"ds_write_b32 v11, v{LO}")
    e(f"v_permlane16_swap_b32 v{OUT + 4}, v{OUT + 6}")
    e(f"v_permlane16_swap_b32 v{OUT + 5}, v{OUT + 7}")
    step = max(1, len(body) // len(early))
    for i, t in enumerate(body):
        a(t)
        if early and i % step == step - 1:
            a(early.pop(0))
    for t in early:
        a(t)
    a("s_mul_i32 s7, s40, 1152")
    a("s_add_u32 s22, s22, s7")
    a(f"s_add_u32 s22, s22, {OO}")
    a("s_lshl_b32 s7, s3, 8")
    a("s_add_u32 s23, s22, s7")
    a(f"s_add_u32 s24, s23, {4 * GB}")
    a(f"buffer_store_dwordx4 v[{OUT}:{OUT + 3}], v9, s[8:11], s23 offen sc1")
    a(f"buffer_store_dwordx4 v[{OUT + 4}:{OUT + 7}], v9, s[8:11], s24 offen sc1")
    a("v_and_b32 v11, 7, v0")
    a("v_lshl_add_u32 v10, v11, 4, v10")
    a("s_cmp_eq_u32 s3, 3")
    a(f"s_cselect_b32 s7, 0, {OOB}")
    a("v_add_u32 v10, s7, v10")
    a(f"v_add_u32 v11, {LX}, v253")
    a("s_waitcnt lgkmcnt(0)")
    a("s_barrier")
    a(f"ds_read_b128 v[{LO}:{LO + 3}], v11")
    a("s_waitcnt lgkmcnt(0)")
    a(f"buffer_store_dwordx4 v[{LO}:{LO + 3}], v10, s[8:11], s22 offen offset:1024 sc1")
    mark(a, 3)
    publish(a, PH_QKV)
    mark(a, 4)
    for t in tail_loads:
        a(t)


def phase_wo(a, abort):
    RES, BF, ACC, T = 240, 160, 100, 124
    z0 = a.label("swz")
    a("s_cmp_lg_u32 s42, 0")
    a(f"s_cbranch_scc1 {z0}")
    zst = ffn_transpose(a)
    a("s_mov_b32 s72, s8")
    a("s_mov_b32 s73, s9")
    a(f"s_mov_b32 s74, {WS_SIZE}")
    a("s_waitcnt lgkmcnt(0)")
    for _ in range(Cfg.z_early):
        a(zst.pop(0))
    if Cfg.code_warm > 2:
        code_warm(a, "v[14:15]")
    a(f"{z0}:")
    a("s_and_b32 s7, s3, 1")
    a(f"s_mul_i32 s7, s7, {2 * GB}")
    a("s_add_u32 s24, s30, s7")
    a("s_lshr_b32 s7, s3, 1")
    a("s_lshl_b32 s7, s7, 9")
    a("s_add_u32 s24, s24, s7")
    a(f"s_add_u32 s24, s24, {OO}")
    a("s_mov_b32 s16, 0xffff0000")
    for sl in range(3):
        for i in range(4):
            a(f"v_lshlrev_b32 v{T + 8 * sl + 2 * i}, 16, v{RES + 4 * sl + i}")
            a(f"v_and_b32 v{T + 8 * sl + 2 * i + 1}, s16, v{RES + 4 * sl + i}")
    MX = 40 * KB
    a("s_cmp_eq_u32 s3, 1")
    a("s_cselect_b32 s7, 16, 0")
    a("v_lshlrev_b32 v12, 2, v0")
    a("v_cmp_gt_u32 vcc, s7, v0")
    a(f"v_add_u32 v10, {MX}, v12")
    a(f"v_add_u32 v11, {MX + 512}, v12")
    a("v_cndmask_b32 v10, v11, v10, vcc")
    a("v_and_b32 v11, 0x7c, v12")
    a("v_cmp_gt_u32 vcc, 32, v0")
    a(f"v_mov_b32 v13, {OOB}")
    a("s_and_b32 s7, s40, 3")
    a("s_lshl_b32 s45, s45, 2")
    a("v_cndmask_b32 v8, v13, v12, vcc")
    a("s_add_u32 s6, s7, s3")
    a("s_cmp_eq_u32 s6, 0")
    a(f"s_cselect_b32 s6, 0, {OOB}")
    a("v_add_u32 v6, s6, v8")
    a("s_add_u32 s45, s45, s7")
    a("s_lshl_b32 s45, s45, 2")
    a("s_add_u32 s45, s45, s3")
    a("s_lshl_b32 s45, s45, 7")
    a("s_add_u32 s45, s45, s43")
    a(f"s_add_u32 s45, s45, {STAT}")
    a("s_cmp_eq_u32 s3, 0")
    a("s_cselect_b32 s35, 1.0, 0")
    ring = ffn_ring_setup(a)
    wait_flags(a, PH_QKV * FPH, abort)
    mark(a, 5)
    a("s_lshl_b32 m0, s3, 10")
    for m in range(9):
        if m:
            a("s_add_u32 m0, m0, 4096")
            a("s_add_u32 s24, s24, 1024")
        else:
            a("s_nop 0")
        a(f"buffer_load_dwordx4 v2, s[8:11], s24 offen {Cfg.xflag} lds")
    z1 = a.label("swz")
    assert not zst
    a("s_waitcnt vmcnt(4)")
    a("s_barrier")
    mark(a, 6)
    for tt in range(2):
        a(f"ds_read_b128 v[{BF + 4 * tt}:{BF + 4 * tt + 3}], v253 offset:{tt * KB}")
    for ks in range(18):
        cur, nxt = BF + 8 * (ks & 1), BF + 8 * ((ks + 1) & 1)
        if ks == 9:
            a("s_waitcnt vmcnt(9) lgkmcnt(0)")
            a("s_barrier")
            a(f"s_xor_b32 s7, s3, {Cfg.pw}")
            a("s_or_b32 s7, s7, s42")
            a(f"s_cbranch_scc1 {z1}")
            column_flag(a, SL_WF)
            a("s_mov_b64 exec, -1")
            a(f"{z1}:")
        else:
            a("s_waitcnt lgkmcnt(0)")
        i = 0
        for sl in range(3):
            for tt in range(2):
                c = ACC + 4 * (2 * sl + tt)
                w = wo_reg(ks, sl)
                src = "0" if ks == 0 else f"v[{c}:{c + 3}]"
                a(f"v_mfma_f32_16x16x32_bf16 v[{c}:{c + 3}], a[{w}:{w + 3}], v[{cur + 4 * tt}:{cur + 4 * tt + 3}], {src}")
                if i < 2 and ks < 17:
                    a(f"ds_read_b128 v[{nxt + 4 * i}:{nxt + 4 * i + 3}], v253 offset:{((ks + 1) * 2 + i) * KB}")
                if i == 3 and ring:
                    a(ring.pop(0))
                i += 1
    mark(a, 7)
    XR = 148
    a("s_nop 3")
    for r in range(4):
        a(f"v_permlane16_swap_b32 v{ACC + r}, v{ACC + 4 + r}")
    a(f"v_add_f32 v12, v{ACC + 16}, v{ACC + 17}")
    a(f"v_add_f32 v13, v{ACC + 20}, v{ACC + 21}")
    a("ds_write_b32 v10, v12")
    a("ds_write_b32 v10, v13 offset:64")
    for sl in (1, 2):
        for r in range(4):
            a(f"v_permlane16_swap_b32 v{ACC + 8 * sl + r}, v{ACC + 8 * sl + 4 + r}")
    a("s_waitcnt lgkmcnt(0)")
    a("s_barrier")
    a(f"ds_read_b32 v12, v11 offset:{MX}")
    for sl in range(3):
        for i in range(4):
            t, c = T + 8 * sl + 2 * i, ACC + 8 * sl + 2 * i
            a(f"v_pk_add_f32 v[{t}:{t + 1}], v[{t}:{t + 1}], v[{c}:{c + 1}]")
    a("v_mov_b32 v14, 0")
    a("v_mov_b32 v15, 0")
    a("s_waitcnt lgkmcnt(0)")
    a("v_add_f32 v12, v12, v252")
    for sl in range(3):
        for i in range(4):
            t, c = T + 8 * sl + 2 * i, ACC + 8 * sl + 2 * i
            a(f"v_pk_add_f32 v[{c}:{c + 1}], v[{t}:{t + 1}], v[12:13] op_sel_hi:[1,0] neg_lo:[0,1] neg_hi:[0,1]")
        for i in range(4):
            c = ACC + 8 * sl + 2 * i
            a(f"v_cvt_pk_bf16_f32 v{XR + 4 * sl + i}, v{c}, v{c + 1}")
        a(f"buffer_store_dwordx4 v[{XR + 4 * sl}:{XR + 4 * sl + 3}], v{7 if sl == 2 else 9}, s[8:11], s46 offen offset:{sl * KB} sc1")
    for i in range(12):
        a(f"v_dot2c_f32_bf16 v{15 if i >= 8 else 14}, v{XR + i}, v{XR + i}")
    a("buffer_store_dword v12, v6, s[8:11], s36 offen sc1")
    a("s_nop 1")
    a("v_fma_f32 v14, v15, s35, v14")
    a("v_mov_b32 v15, v14")
    a("s_nop 1")
    a("v_permlane32_swap_b32 v14, v15")
    a("v_add_f32 v14, v14, v15")
    a("buffer_store_dword v14, v8, s[8:11], s45 offen sc1")
    publish(a, PH_WO)
    mark(a, 8)


FFN_LDS = 144 * KB
HB = 72 * KB


def pack_gaps(n_gaps, pinned, ops, start=0, cap=2):
    gaps = [list(pinned.get(g, [])) for g in range(n_gaps)]
    g = start
    for text, cost, earliest in ops:
        g = max(g, earliest)
        while sum(c for _, c in gaps[g]) + cost > cap:
            g += 1
        gaps[g].append((text, cost))
    return gaps


def check_stage_reads(mf, gaps, base, n):
    stage = {("v", base + i) for i in range(n)}
    wr = {}
    for i, t in enumerate(mf):
        for r in hazards.I(t, 0).w & stage:
            wr[r] = i
    for i, g in enumerate(gaps):
        for t, _ in g:
            for r in hazards.I(t.split("\n")[-1], 0).r & stage:
                assert i < wr[r], (i, t, wr[r])


RING, VB = 16, 184
RING_EXT = [104, 108, 112, 116, 180, 196, 200, 204, 208, 212, 216, 136, 140, 144, 148, 160, 164, 168]


def slot_reg(slot):
    return RING + 4 * slot if slot < 18 else RING_EXT[slot - 18]


def wload(slot, n):
    r = slot_reg(slot)
    return f"buffer_load_dwordx4 v[{r}:{r + 3}], v{VB + n // 4}, s[48:51], s23 offen offset:{(n % 4) * KB} {Cfg.wflag}"


def ffn_ring_setup(a):
    a("s_lshl_b32 s7, s40, 2")
    a("s_add_u32 s7, s7, s3")
    a(f"s_mul_i32 s23, s7, {WSTR}")
    a(f"s_add_u32 s23, s23, {WF}")
    a(f"s_add_u32 s50, s23, {WSTR}")
    a("s_mul_i32 s50, s50, s42")
    a(f"v_mov_b32 v{VB}, v253")
    for m in range(1, 9):
        a(f"v_add_u32 v{VB + m}, {4096 * m}, v253")
    return [wload(n, n) for n in range(15)]


def phase_ffn(a, abort):
    ACC, STG, TMP = 88, 120, 152
    xreg = lambda tt, ks: reg(256 + 4 * (tt * 18 + ks), 4) if tt * 18 + ks < 64 else reg(220 + 4 * (tt * 18 + ks - 64), 4)
    a("s_lshl_b32 s7, s41, 2")
    a("s_add_u32 s7, s7, s3")
    a(f"s_mul_i32 s22, s7, {2 * GB}")
    a("s_add_u32 s22, s22, s43")
    a(f"s_add_u32 s22, s22, {XC}")
    a(f"s_mul_i32 s24, s3, {18 * KB}")
    a("s_lshl_b32 s25, s41, 12")
    a("s_add_u32 s25, s25, s43")
    a(f"s_add_u32 s25, s25, {STAT}")
    a("v_lshrrev_b32 v3, 5, v0")
    a("v_and_b32 v10, 31, v0")
    a("v_lshlrev_b32 v10, 2, v10")
    a("v_lshl_add_u32 v3, v3, 11, v10")
    a(f"v_add_u32 v11, {36 * KB}, v{VB}")
    early = red_setup(a)
    dtile_voff(a, "v178", "v1", None, 8 * GB)
    a(f"v_add_u32 v179, {32 * GB}, v178")
    a(f"s_mul_i32 s26, s41, {64 * GB}")
    a(f"s_mul_i32 s7, s40, {GB}")
    a("s_add_u32 s26, s26, s7")
    a("s_lshl_b32 s7, s3, 8")
    a("s_add_u32 s27, s26, s7")
    a(f"s_add_u32 s27, s27, {PART - KB}")
    a("s_mov_b32 s74, 0")
    a(f"s_mul_i32 s7, s42, {3 * FPH}")
    a("s_sub_u32 s29, s44, s7")
    a(f"s_add_u32 s29, s29, {(SL_EARLY - 1) * FPH}")
    a("s_lshl_b32 s7, s40, 7")
    a("s_add_u32 s7, s7, s29")
    a("s_add_u32 s38, s4, s7")
    a("s_addc_u32 s39, s5, 0")
    a("s_lshl_b32 s7, s40, 2")
    a("s_add_u32 s29, s29, s7")
    a(f"s_add_u32 s50, s23, {WSTR}")
    late, seen = a.label("ring"), a.label("ring")
    a("s_cmp_lg_u32 s42, 0")
    a(f"s_cbranch_scc1 {late}")
    a(f"s_cmp_lg_u32 s3, {Cfg.pw}")
    a(f"s_cbranch_scc1 {seen}")
    column_wait(a, SL_WF, abort)
    a(f"{seen}:")
    a("s_barrier")
    for n in range(15):
        a(wload(n, n))
    a(f"{late}:")
    wait_flags(a, PH_WO * FPH, abort)
    mark(a, 9)
    C0, C1, VV, SS = [4, 5, 6, 7], [8, 9, 13, 14], [193, 194, 195, 252], 136
    k0 = -2.0 * math.sqrt(2.0 / math.pi) * math.log2(math.e)

    def xdma(ks):
        return (f"s_add_u32 m0, s24, {ks * KB - (ks % 8) * 512}\n"
                + ("s_add_u32 s22, s22, 4096\n" if ks and ks % 8 == 0 else "s_nop 0\n")
                + f"buffer_load_dwordx4 v2, s[8:11], s22 offen offset:{(ks % 8) * 512} {Cfg.xflag} lds")

    def xread(tt, ks):
        f = tt * 18 + ks
        return f"ds_read_b128 {xreg(tt, ks)}, v{VB if f < 36 else 11} offset:{(f % 36) * KB}"

    hread = lambda tt, ks: f"ds_read_b128 {xreg(tt, ks)}, v{10 if tt < 2 else 11} offset:{((tt * 18 + ks) % 36) * KB}"
    vm0 = Vm()
    for n in range(15):
        vm0.issue(("w", n))
    for ks in range(12):
        a(xdma(ks))
        vm0.issue(("x", ks))
    a(f"s_add_u32 s23, s23, {15 * KB}")
    a("s_lshr_b32 s7, s3, 1")
    a("s_lshl_b32 s7, s7, 10")
    a("s_and_b32 s6, s3, 1")
    a("s_lshl_b32 s6, s6, 3")
    a("s_add_u32 s28, s7, s6")
    a(f"s_add_u32 s28, s28, {HB}")
    if Cfg.noload:
        a("s_mov_b32 s50, 0")
    a(f"s_waitcnt vmcnt({vm0.count(('x', 5))})")
    a("s_barrier")
    mark(a, 10)
    for ks in range(3):
        for tt in range(4):
            a(xread(tt, ks))

    def const_ops(e):
        ops = []
        for n in (8, 4, 2, 1):
            ops += [(f"v_add_f32 v{SS + i}, v{SS + i}, v{SS + n + i}", 1, e) for i in range(n)]
        ops += [(f"v_mov_b32 v{SS + 1}, {f32(1e-5)}", 1, e), (f"v_fmac_f32 v{SS + 1}, {f32(1.0 / 576)}, v{SS}", 1, e),
                (f"v_mov_b32 v{VV[0]}, v{SS + 1}", 1, e),
                (f"s_nop 0\nv_permlane16_swap_b32 v{VV[0]}, v{SS + 1}", 2, e),
                (f"v_mov_b32 v{VV[2]}, v{VV[0]}", 1, e), (f"v_mov_b32 v{VV[1]}, v{SS + 1}", 1, e),
                (f"v_mov_b32 v{VV[3]}, v{SS + 1}", 1, e),
                (f"s_nop 0\nv_permlane32_swap_b32 v{VV[0]}, v{VV[2]}", 2, e),
                (f"v_permlane32_swap_b32 v{VV[1]}, v{VV[3]}", 2, e)]
        ops += [(f"v_rsq_f32 v{C0[tt]}, v{VV[tt]}", 2, e) for tt in range(4)]
        ops += [(f"v_mul_f32 v{C1[tt]}, v{C0[tt]}, v{C0[tt]}", 1, e) for tt in range(4)]
        ops += [(f"v_mul_f32 v{C0[tt]}, {f32(k0)}, v{C0[tt]}", 1, e) for tt in range(4)]
        ops += [(f"v_mul_f32 v{C1[tt]}, {f32(0.044715)}, v{C1[tt]}", 1, e) for tt in range(4)]
        ops += [(f"v_mul_f32 v{C1[tt]}, v{C1[tt]}, v{C0[tt]}", 1, e) for tt in range(4)]
        return ops

    def gelu_ops(first_gap):
        ops = []
        for tt in range(4):
            t, p, o = TMP + 10 * (tt & 1), TMP + 10 * (tt & 1) + 4, TMP + 10 * (tt & 1) + 8
            g, u = STG + 4 * tt, STG + 16 + 4 * tt
            e = first_gap(tt)
            for r in range(4):
                ops.append((f"v_mul_f32 v{t + r}, v{g + r}, v{g + r}", 1, e))
            for r in range(4):
                ops.append((f"v_fma_f32 v{t + r}, v{t + r}, v{C1[tt]}, v{C0[tt]}", 1, e))
            for r in range(4):
                ops.append((f"v_mul_f32 v{t + r}, v{g + r}, v{t + r}", 1, e))
            for r in range(4):
                ops.append((f"v_exp_f32 v{t + r}, v{t + r}", 2, e))
            for r in range(4):
                ops.append((f"v_mul_f32 v{p + r}, v{g + r}, v{u + r}", 1, e))
            for r in range(4):
                ops.append((f"v_fma_f32 v{t + r}, v{t + r}, v{VV[tt]}, v{VV[tt]}", 1, e))
            for r in range(4):
                ops.append((f"v_rcp_f32 v{t + r}, v{t + r}", 2, e))
            for r in range(4):
                ops.append((f"v_mul_f32 v{p + r}, v{p + r}, v{t + r}", 1, e))
            ops.append((f"v_cvt_pk_bf16_f32 v{o}, v{p}, v{p + 1}", 1, e))
            ops.append((f"v_cvt_pk_bf16_f32 v{o + 1}, v{p + 2}, v{p + 3}", 1, e))
            ops.append((f"ds_write_b64 v12, v[{o}:{o + 1}] offset:{tt * 18 * KB}", 2, e))
        return ops

    def gu_step(kind):
        mf, pinned = [], {}
        for G in range(12):
            gu, grp = G & 1, G >> 1
            for tt in range(4):
                for kk in range(3):
                    ks = 3 * grp + kk
                    c = ACC + 16 * gu + 4 * tt
                    d = STG + 16 * gu + 4 * tt if ks == 17 else c
                    src = "0" if ks == 0 else f"v[{c}:{c + 3}]"
                    w = RING + 4 * ((3 * G + kk) % 18)
                    mf.append(f"v_mfma_f32_16x16x32_bf16 v[{d}:{d + 3}], v[{w}:{w + 3}], {xreg(tt, ks)}, {src}")
            for kk in range(3):
                n = 3 * G + kk
                pinned[12 * G + 4 * kk + Cfg.ldpos] = [(wload((n + 15) % 18, n), 2)]
        if kind == "first":
            for k in range(6):
                pinned[4 * k + 3] = [(xdma(12 + k), 2)]
            for k in range(16):
                pinned[24 + 12 * (k // 5) + (3, 6, 7, 10, 11)[k % 5]] = \
                    [(f"buffer_load_dword v{SS + k}, v3, s[8:11], s25 offen offset:{128 * k} sc1", 2)]
            ops = [(xread(tt, ks), 1, 24 * (ks // 3 - 1) + (4 * (ks % 3) + tt) * 3 // 2) for ks in range(3, 18) for tt in range(4)]
            gaps = pack_gaps(144, pinned, ops)
            gaps = pack_gaps(144, dict(enumerate(gaps)), const_ops(96))
        else:
            gaps = pack_gaps(144, pinned, [] if Cfg.nogelu else gelu_ops(lambda tt: 2), cap=Cfg.gcap)
        if kind == "last":
            g = 0
            for ks in range(14):
                for tt in range(4):
                    g = max(g + 1, 24 * (ks // 3) + 12 + 3 * tt + ks % 3)
                    while g < 143 and any("buffer_" in t or "ds_" in t for t, _ in gaps[g]):
                        g += 1
                    gaps[min(g, 143)].append((hread(tt, ks), 1))
        check_stage_reads(mf, gaps, STG, 32)
        lg = Vm()
        lg.issue(2)
        for i in range(144):
            G = i // 12
            if i % 12 == 0 and kind == "first":
                need = [("w", 3 * G + 2)] + {2: [("x", 11)], 6: [("x", 17)], 8: ["s"]}.get(G, [])
                a(f"s_waitcnt vmcnt({vm0.count(*need)}) lgkmcnt({min(15, lg.count(3 * (G // 2) + 2))})")
                if G in (2, 6):
                    a("s_barrier")
            elif i % 12 == 0:
                a("s_waitcnt vmcnt(12)")
            a(mf[i])
            for text, _ in gaps[i]:
                a(text)
                if kind == "first":
                    if "s[48:51]" in text:
                        vm0.issue(("w", 3 * G + (i % 12) // 4 + 15))
                    elif " lds" in text:
                        vm0.issue(("x", 12 + i // 4))
                    elif "buffer_load_dword " in text:
                        vm0.issue("s")
                    elif "ds_read" in text:
                        lg.issue(int(text.split("offset:")[1]) // KB % 18)
            if i == 139:
                a("s_lshl_b32 s7, s25, 11" if kind != "first" else "s_mov_b32 s25, 0")
            if i == 140:
                a("s_add_u32 s7, s7, s28" if kind != "first" else "s_mov_b32 s7, s28")
            if i == 142:
                a(f"s_add_u32 s23, s23, {36 * KB}")
        a(f"v_add_u32 v12, s7, v{VB}")
        a("s_add_u32 s25, s25, 1")

    gu_step("first")
    mark(a, 12)
    lp = a.label("ffn_gu")
    a(f"{lp}:")
    gu_step("loop")
    a("s_cmp_lt_u32 s25, 8")
    a(f"s_cbranch_scc1 {lp}")
    a(f"v_add_u32 v10, {HB}, v{VB}")
    a(f"v_add_u32 v11, {HB + 36 * KB}, v{VB}")
    if Cfg.code_warm > 1:
        code_warm(a, "v[2:3]")
    a("s_waitcnt lgkmcnt(0)")
    a("s_barrier")
    gu_step("last")
    mark(a, 13)
    a("s_waitcnt lgkmcnt(0)")
    a("s_barrier")
    reads = [hread(tt, ks) for ks in (14, 15) for tt in range(4)]
    ops = []
    for tt in range(4):
        t, p, o = TMP + 10 * (tt & 1), TMP + 10 * (tt & 1) + 4, TMP + 10 * (tt & 1) + 8
        g, u = STG + 4 * tt, STG + 16 + 4 * tt
        pr = lambda r: f"v[{r}:{r + 1}]"
        bc = lambda r: (pr(r & ~1), r & 1)

        def pkfma(d, x, y, z):
            (ry, sy), (rz, sz) = bc(y), bc(z)
            return f"v_pk_fma_f32 {pr(d)}, {pr(x)}, {ry}, {rz} op_sel:[0,{sy},{sz}] op_sel_hi:[1,{sy},{sz}]"
        ops += [f"v_pk_mul_f32 {pr(t + r)}, {pr(g + r)}, {pr(g + r)}" for r in (0, 2)]
        ops += [pkfma(t + r, t + r, C1[tt], C0[tt]) for r in (0, 2)]
        ops += [f"v_pk_mul_f32 {pr(t + r)}, {pr(g + r)}, {pr(t + r)}" for r in (0, 2)]
        ops += [f"v_exp_f32 v{t + r}, v{t + r}" for r in range(4)]
        ops += [f"v_pk_mul_f32 {pr(p + r)}, {pr(g + r)}, {pr(u + r)}" for r in (0, 2)]
        ops += [pkfma(t + r, t + r, VV[tt], VV[tt]) for r in (0, 2)]
        ops += [f"v_rcp_f32 v{t + r}, v{t + r}" for r in range(4)]
        ops += ["s_nop 0"]
        ops += [f"v_pk_mul_f32 {pr(p + r)}, {pr(p + r)}, {pr(t + r)}" for r in (0, 2)]
        ops += [f"v_cvt_pk_bf16_f32 v{o}, v{p}, v{p + 1}", f"v_cvt_pk_bf16_f32 v{o + 1}, v{p + 2}, v{p + 3}"]
        ops += [f"ds_write_b64 v12, v[{o}:{o + 1}] offset:{tt * 18 * KB}"]
    ahead = [wload(15 + n, n) for n in range(18)]
    for i, t in enumerate(ops):
        a(t)
        if reads and i % 4 != 3:
            a(reads.pop(0))
        if i % 6 == 5 and len(ahead) > 4:
            a(ahead.pop(0))
    for t in reads + ahead:
        a(t)
    a(f"s_add_u32 s23, s23, {18 * KB}")
    a("s_waitcnt lgkmcnt(0)")
    a("s_barrier")
    for ks in (16, 17):
        for tt in range(4):
            a(hread(tt, ks))
    a("s_mov_b32 s25, 0")
    a("s_waitcnt lgkmcnt(0)")
    mark(a, 14)

    def down_epi(e):
        ops = []
        for pr in range(2):
            o = TMP + 4 * pr
            for h in range(2):
                s = STG + 4 * (2 * pr + h)
                ops.append((f"v_cvt_pk_bf16_f32 v{o + 2 * h}, v{s}, v{s + 1}", 1, e))
                ops.append((f"v_cvt_pk_bf16_f32 v{o + 2 * h + 1}, v{s + 2}, v{s + 3}", 1, e))
        for pr in range(2):
            o = TMP + 4 * pr
            ops.append((f"v_permlane16_swap_b32 v{o}, v{o + 2}", 2, e))
            ops.append((f"v_permlane16_swap_b32 v{o + 1}, v{o + 3}", 2, e))
        for pr in range(2):
            o = TMP + 4 * pr
            if not Cfg.nostore:
                ops.append((f"buffer_store_dwordx4 v[{o}:{o + 3}], v{178 + pr}, s[72:75], s27 offen {Cfg.pflag}", 2, e))
        return ops

    def down_trip(half, vm, last=0, emit=True):
        out = a if emit else Asm()
        base = 0 if half else 18
        mf, pinned = [], {}
        for G in range(6):
            for tt in range(4):
                for kk in range(3):
                    ks = 3 * G + kk
                    c = ACC + 4 * tt
                    d = STG + 4 * tt if ks == 17 else c
                    src = "0" if ks == 0 else f"v[{c}:{c + 3}]"
                    w = slot_reg(base + ks)
                    mf.append(f"v_mfma_f32_16x16x32_bf16 v[{d}:{d + 3}], v[{w}:{w + 3}], {xreg(tt, ks)}, {src}")
            for kk in range(3):
                n = 3 * G + kk
                if not last or (last == 1 and G == 0):
                    pinned[12 * G + 4 * kk + 1] = [(wload((base + n + 33) % 36, n), 2)]
                elif early and (last == 2 or G >= 2):
                    pinned[12 * G + 4 * kk + 1] = [(early.pop(0), 2)]
        gaps = pack_gaps(72, pinned, down_epi(Cfg.epi_gap))
        check_stage_reads(mf, gaps, STG, 16)
        store_groups = [i // 12 for i in range(72) for t, _ in gaps[i] if "store" in t]
        for i in range(72):
            G = i // 12
            if i % 12 == 0 and last:
                out(f"s_waitcnt vmcnt({vm.count(('w', base + 3 * G + 2))})")
            elif i % 12 == 0:
                extra = sum(1 for sg in store_groups if sg < G)
                if not half:
                    extra += sum(1 for sg in store_groups if sg >= G - 4)
                out(f"s_waitcnt vmcnt({30 + extra})")
            if i == 36 and half and not last and emit:
                skip = a.label("early")
                a("s_cmp_lg_u32 s25, 6")
                a(f"s_cbranch_scc1 {skip}")
                a(f"s_waitcnt vmcnt({vm.count(('s', 0))})")
                a("s_barrier")
                a(f"s_cmp_lg_u32 s3, {Cfg.pw}")
                a(f"s_cbranch_scc1 {skip}")
                a("v_lshlrev_b32 v15, 7, v0")
                a("v_mov_b32 v1, s76")
                a("s_mov_b64 exec, 0xff")
                a("buffer_store_dword v1, v15, s[8:11], s29 offen sc1")
                a("s_mov_b64 exec, -1")
                a(f"{skip}:")
            if i == 24 and last == 1:
                lp, ok = a.label("epoll"), a.label("epolled")
                a(f"{lp}:")
                a("s_waitcnt lgkmcnt(0)")
                for r in (56, 58, 60, 62):
                    a(f"s_xor_b64 s[{r}:{r + 1}], s[{r}:{r + 1}], s[76:77]")
                a("s_or_b64 s[56:57], s[56:57], s[58:59]")
                a("s_or_b64 s[60:61], s[60:61], s[62:63]")
                a("s_or_b64 s[56:57], s[56:57], s[60:61]")
                a(f"s_cbranch_scc0 {ok}")
                a("s_load_dwordx8 s[56:63], s[38:39], 0 glc")
                a("s_add_u32 s6, s6, 1")
                a(f"s_cmp_lt_u32 s6, {1 << 20}")
                a(f"s_cbranch_scc1 {lp}")
                a(f"s_branch {abort}")
                a(f"{ok}:")
            out(mf[i])
            for text, _ in gaps[i]:
                out(text)
                if "buffer_store" in text:
                    vm.issue(("s", half))
                elif "s[48:51]" in text:
                    vm.issue(("w", (base + 3 * G + (i % 12) // 4 + 33) % 36))
                elif "buffer_load" in text:
                    vm.issue("e")
            if i == 14 and last == 1:
                out("s_load_dwordx8 s[56:63], s[38:39], 0 glc")
            if i == 15 and last == 1:
                out("s_mov_b32 s6, 0")
            if i == 66:
                out(f"s_mov_b32 s74, {WS_SIZE}")
            if i == 67:
                out(f"s_add_u32 s27, s27, {KB}")
            if i == 68:
                out("s_add_u32 s25, s25, 1")
            if i == 70:
                out(f"s_add_u32 s23, s23, {18 * KB}")

    lp, mid = a.label("ffn_dn"), a.label("ffn_dn_mid")
    vm = Vm()
    down_trip(1, vm, emit=False)
    a(f"s_branch {mid}")
    a(f"{lp}:")
    down_trip(0, vm)
    a(f"{mid}:")
    down_trip(1, vm)
    a("s_cmp_lt_u32 s25, 7")
    a(f"s_cbranch_scc1 {lp}")
    down_trip(0, vm, last=1)
    down_trip(1, vm, last=2)
    assert not early
    mark(a, 15)
    a("s_nop 7")
    prev = None
    for t, _, _ in down_epi(0):
        if "permlane" in t and "cvt" in prev:
            a("s_nop 1")
        a(t)
        prev = t
    publish(a, PH_FFN)
    mark(a, 20)


def k_main(a):
    name = NAME + "_kernel"
    kernel_begin(a, name)
    end, last, loop = "L_main_end", "L_main_last", "L_main_layer"
    Cfg.sv = 254
    entry(a, 256, end, ["s_load_dwordx4 s[16:19], s[0:1], 0", "s_load_dwordx2 s[22:23], s[0:1], 16",
                        "s_load_dwordx8 s[24:31], s[0:1], 32"])
    a(f"s_mov_b32 s7, {EPOCH}")
    a("s_load_dword s76, s[4:5], s7")
    a("s_mov_b64 s[20:21], s[18:19]")
    a("s_mov_b64 s[18:19], s[16:17]")
    srd(a, 48, "s4", "s5", WS_SIZE)
    tile_map(a, "s40", "s41", Cfg.jx)
    a("s_mov_b32 s42, 0")
    a("s_mov_b32 s43, 0")
    a("s_lshl_b32 s44, s41, 10")
    a(f"s_add_u32 s44, s44, {FLAGS + FPH}")
    a("v_lshlrev_b32 v253, 4, v0")
    if Cfg.stamps:
        a("v_mov_b32 v254, 0")
        a("v_mov_b32 v255, 0")
    if Cfg.code_warm:
        a("s_getpc_b64 s[96:97]")
        a("L_main_pc:")
        a(f"s_sub_u32 s96, s96, L_main_pc-{name}")
        a("s_subb_u32 s97, s97, 0")
        a("s_and_b32 s97, s97, 0xffff")
        a(f"s_mov_b32 s98, L_main_code_end-{name}")
        a("s_mov_b32 s99, 0x20000")
        code_warm(a, "v[2:3]")
    mark(a, 31)
    phase_prep(a, end)
    qkv_prefetch(a, 0, 6)
    a(f"{loop}:")
    phase_qkv(a, end)
    phase_wo(a, end)
    phase_ffn(a, end)
    tail = phase_red(a, end, last)
    a("s_mov_b32 s42, 1")
    a(f"s_mov_b32 s43, {LSTR}")
    a(f"s_add_u32 s44, s44, {4 * FPH}")
    a("s_mov_b32 s74, 0")
    a(f"s_branch {loop}")
    a(f"{last}:")
    tail()
    done = a.label("done")
    a("s_or_b32 s7, s40, s41")
    a("s_or_b32 s7, s7, s3")
    a(f"s_cbranch_scc1 {done}")
    a("v_mov_b32 v1, s76")
    a(f"s_mov_b32 s7, {EPOCH}")
    a("s_mov_b64 exec, 1")
    a("buffer_store_dword v1, off, s[8:11], s7 sc1")
    a("s_mov_b64 exec, -1")
    a(f"{done}:")
    if Cfg.stamps:
        a("s_waitcnt vmcnt(0)")
        mark(a, 19)
        dump_marks(a, 1)
    a(f"{end}:")
    a("s_endpgm")
    a("L_main_code_end:")
    return name, 256, 256


def build(stamps=False):
    Cfg.stamps = stamps
    a = Asm()
    a('.amdgcn_target "amdgcn-amd-amdhsa--gfx950"')
    name, nv, na = k_main(a)
    kernel_desc(a, name, nv, na, 102)
    text = HEADER + f"; @launch grid=(256,1,1) block=(256,1,1) lds={160 * KB}\n" + a.text()
    bad = hazards.check(text)
    if bad:
        print("\n".join(bad[:40]), file=sys.stderr)
        raise SystemExit(f"{len(bad)} hazards")
    return text


if __name__ == "__main__":
    out = sys.argv[1] if len(sys.argv) > 1 else os.path.join(os.path.dirname(os.path.abspath(__file__)), "..", NAME + ".s")
    stamps = "--stamps" in sys.argv
    for x in sys.argv[2:]:
        if x.startswith("--set="):
            for kv in x[6:].split(","):
                k, v = kv.split(":")
                setattr(Cfg, k, int(v) if v.isdigit() else [int(y) for y in v.split("/")] if "/" in v else v.replace("+", " "))
    open(out, "w").write(build(stamps))
```

```python
import math
import os
import struct
import sys

sys.path.insert(0, os.path.dirname(os.path.abspath(__file__)))
from asmlib import Asm, kernel_begin, kernel_desc, reg, srd
import hazards

NAME = "interleave_layers__sliding_local_dilated__glu_gated_geglu__prompt"
KB = 1024
GB = 9216
WS_SIZE = 256 << 20
WQ = 0
WO = 0x240000
WF = 0x300000
WSTR = 486 * KB
FLAGS = 0x1240000
FPH = 256 * 128
SL_WQ, SL_WF, SL_WO, SL_EARLY = 9, 10, 11, 12
EPOCH = 0x12C0000
PART = 0x1300000
XN = 0x2500000
OO = 0x2740000
X2 = 0x2980000
XC = 0x2BC0000
MEAN = 0x2E00000
STAT = 0x2E10000
MEAN1 = 0x2E30000
LSTR = 0x940000
OOB = 0x40000000
STAMP_OFF = 255 << 20

HEADER = """; Kernarg layout for this problem (80 bytes, ptrs only, base s[0:1]):
"""


def f32(x):
    return "0x%08x" % struct.unpack("<I", struct.pack("<f", x))[0]


def sdiv(a, dst, src, d, hi):
    m = -(-(1 << 20) // d)
    assert all((x * m) >> 20 == x // d for x in range(hi + 1)) and hi * m < (1 << 32)
    a(f"s_mul_i32 {dst}, {src}, {m}")
    a(f"s_lshr_b32 {dst}, {dst}, 20")


def sdivmod(a, q, r, src, d, hi):
    sdiv(a, q, src, d, hi)
    a(f"s_mul_i32 {r}, {q}, {d}")
    a(f"s_sub_u32 {r}, {src}, {r}")


def csel(a, dst, x, y):
    a(f"s_mov_b32 {dst}, {y}")
    a(f"s_cmov_b32 {dst}, {x}")


class Vm:
    def __init__(self):
        self.ops = []

    def issue(self, tag):
        self.ops.append(tag)

    def count(self, *tags):
        last = max(i for i, t in enumerate(self.ops) if t in tags)
        return len(self.ops) - 1 - last


MARK_NAMES = {21: "pre.x0", 22: "pre.q", 23: "pre.o", 24: "pre.set", 25: "pre.raw"}
MARK_ORDER = [31, 21, 23, 24, 25, 28, 29, 30, 27, 0, 1, 2, 3, 4, 5, 6, 7, 8, 9, 10, 11, 12, 13, 14, 15, 20, 16, 17, 18, 19]


class Cfg:
    stamps = False
    jx = 2
    wflag = "sc1"
    nostore = 0
    nogelu = 0
    noload = 0
    ldpos = 1
    gcap = 2
    pflag = "sc1"
    epi_gap = 6
    wo_per_ks = 4
    w_per_ks = 3
    tripmarks = 0
    oflag = "sc0 sc1"
    pollw = 3
    code_warm = 3
    xflag = "sc1"
    wo_gap = 8
    red_pre = 4
    red_feed = 1
    red_gap = 16
    red_post = 12
    raw_early = 3
    raw_mid = 16
    raw_flag = "nt"
    z_early = 16
    sleep = 0
    pw = 0


def tile_map(a, sj, smt, jx):
    lg = jx.bit_length() - 1
    a(f"s_and_b32 {sj}, s2, {8 // jx - 1}")
    a(f"s_lshl_b32 {sj}, {sj}, {lg}")
    a(f"s_bfe_u32 s7, s2, {3 | (lg << 16)}")
    a(f"s_add_u32 {sj}, {sj}, s7")
    a(f"s_bfe_u32 {smt}, s2, {(3 - lg) | (lg << 16)}")
    a(f"s_lshl_b32 {smt}, {smt}, {5 - lg}")
    a(f"s_lshr_b32 s7, s2, {3 + lg}")
    a(f"s_add_u32 {smt}, {smt}, s7")


def entry(a, nwg, end, extra_loads=()):
    a(f"s_cmp_ge_u32 s2, {nwg}")
    a(f"s_cbranch_scc1 {end}")
    a("s_load_dwordx2 s[4:5], s[0:1], 72")
    for l in extra_loads:
        a(l)
    a("v_lshrrev_b32 v1, 6, v0")
    a("v_and_b32 v0, 63, v0")
    a("v_readfirstlane_b32 s3, v1")
    a("s_waitcnt lgkmcnt(0)")
    srd(a, 8, "s4", "s5", WS_SIZE)


def mark(a, idx):
    if Cfg.stamps:
        a("s_memrealtime s[100:101]")
        a("s_memtime vcc")
        a("s_lshl_b32 m0, s42, 5")
        a(f"s_add_u32 m0, m0, {idx}")
        a("s_waitcnt lgkmcnt(0)")
        a(f"v_writelane_b32 v{Cfg.sv}, s100, m0")
        a(f"v_writelane_b32 v{Cfg.sv + 1}, vcc_lo, m0")


def mark_dyn(a, base, sreg):
    if Cfg.stamps and Cfg.tripmarks:
        a("s_memrealtime s[100:101]")
        a("s_memtime vcc")
        a("s_lshl_b32 m0, s42, 5")
        a(f"s_add_u32 m0, m0, {sreg}")
        a(f"s_add_u32 m0, m0, {base}")
        a("s_waitcnt lgkmcnt(0)")
        a(f"v_writelane_b32 v{Cfg.sv}, s100, m0")
        a(f"v_writelane_b32 v{Cfg.sv + 1}, vcc_lo, m0")


def dump_marks(a, slot):
    if Cfg.stamps:
        a("s_lshl_b32 s7, s2, 2")
        a("s_add_u32 s7, s7, s3")
        a("s_lshl_b32 s7, s7, 9")
        a(f"s_add_u32 s7, s7, {STAMP_OFF + slot * 0x80000}")
        a("v_lshlrev_b32 v1, 2, v0")
        a(f"buffer_store_dword v{Cfg.sv}, v1, s[8:11], s7 offen")
        a(f"buffer_store_dword v{Cfg.sv + 1}, v1, s[8:11], s7 offen offset:256")


def code_warm(a, dst):
    if Cfg.code_warm:
        a("s_lshr_b32 s7, s2, 3")
        a("s_lshl_b32 s7, s7, 2")
        a("s_add_u32 s7, s7, s3")
        a("s_lshl_b32 s7, s7, 9")
        a("v_lshrrev_b32 v1, 1, v253")
        a("v_add_u32 v1, s7, v1")
        a(f"buffer_load_dwordx2 {dst}, v1, s[96:99], 0 offen")


PH_QKV, PH_WO, PH_FFN, PH_RED = range(4)


def publish(a, phase, extra=None):
    skip = a.label("pub")
    a("v_lshlrev_b32 v15, 7, v0")
    a("s_lshl_b32 s6, s40, 2")
    a("s_add_u32 s6, s6, s44")
    if phase > 0:
        a(f"s_add_u32 s6, s6, {phase * FPH}")
    elif phase < 0:
        a(f"s_sub_u32 s6, s6, {-phase * FPH}")
    a("v_mov_b32 v1, s76")
    a("s_mov_b64 vcc, 0xff")
    if phase % 4 == PH_RED:
        a("v_lshrrev_b32 v14, 3, v0")
        a("v_lshl_add_u32 v15, v14, 3, v15")
        a("s_cmp_ge_u32 s40, 6")
        a("s_cselect_b32 s7, s41, 31")
        a("s_cmp_lt_u32 s7, 31")
        a("s_cmov_b64 vcc, 0xffff")
    a("s_waitcnt vmcnt(0)")
    a("s_barrier")
    a(f"s_cmp_lg_u32 s3, {Cfg.pw}")
    a(f"s_cbranch_scc1 {skip}")
    a("s_mov_b64 exec, vcc")
    a("buffer_store_dword v1, v15, s[8:11], s6 offen sc1")
    if extra:
        extra(skip)
    a(f"{skip}:")
    a("s_mov_b64 exec, -1")


def column_flag(a, slot):
    a("v_lshlrev_b32 v15, 10, v0")
    a("s_lshl_b32 s6, s40, 7")
    a("s_lshl_b32 s7, s41, 2")
    a("s_add_u32 s6, s6, s7")
    a(f"s_add_u32 s6, s6, {FLAGS + slot * FPH}")
    a("s_mov_b64 exec, 0xffffffff")
    a("v_lshlrev_b32 v15, 10, v0")
    a("v_mov_b32 v1, s76")
    a("buffer_store_dword v1, v15, s[8:11], s6 offen sc1")


def column_wait(a, slot, abort):
    lp, again, ok = a.label("cpoll"), a.label("cpoll"), a.label("cpolled")
    a("s_lshl_b32 s7, s41, 3")
    a("s_add_u32 s7, s7, s40")
    a("s_lshl_b32 s7, s7, 7")
    a(f"s_add_u32 s7, s7, {FLAGS + slot * FPH}")
    a("s_add_u32 s68, s4, s7")
    a("s_addc_u32 s69, s5, 0")
    a("s_mov_b32 s6, 0")
    a("s_mov_b32 s7, 0")
    a(f"{lp}:")
    a("s_load_dwordx16 s[52:67], s[68:69], s7 glc")
    a("s_add_u32 s6, s6, 1")
    a("s_waitcnt lgkmcnt(0)")
    for r in range(52, 68, 2):
        a(f"s_xor_b64 s[{r}:{r + 1}], s[{r}:{r + 1}], s[76:77]")
    for n in (8, 4, 2):
        for r in range(52, 52 + n, 2):
            a(f"s_or_b64 s[{r}:{r + 1}], s[{r}:{r + 1}], s[{r + n}:{r + n + 1}]")
    a(f"s_cbranch_scc1 {again}")
    a("s_add_u32 s7, s7, 64")
    a("s_cmp_eq_u32 s7, 128")
    a(f"s_cbranch_scc1 {ok}")
    a(f"{again}:")
    a(f"s_cmp_lt_u32 s6, {1 << 20}")
    a(f"s_cbranch_scc1 {lp}")
    a(f"s_branch {abort}")
    a(f"{ok}:")


def wait_flags(a, off, abort, halo=False, extra=None):
    lp, ok, out = a.label("poll"), a.label("polled"), a.label("pollout")
    a(f"s_cmp_lg_u32 s3, {Cfg.pollw}")
    a(f"s_cbranch_scc1 {out}")
    a("s_lshl_b32 s7, s40, 7")
    a("s_add_u32 s7, s7, s44")
    if off > 0:
        a(f"s_add_u32 s7, s7, {off}")
    elif off < 0:
        a(f"s_sub_u32 s7, s7, {-off}")
    a("s_add_u32 s52, s4, s7")
    a("s_addc_u32 s53, s5, 0")
    if halo:
        a("s_cmp_eq_u32 s41, 0")
        a("s_cselect_b32 s7, 0, 32")
    a("s_mov_b32 s6, 0")
    a(f"{lp}:")
    a("s_load_dwordx8 s[56:63], s[52:53], 0 glc")
    if halo:
        a("s_load_dwordx2 s[54:55], s[52:53], s7 glc")
    a("s_add_u32 s6, s6, 1")
    a("s_waitcnt lgkmcnt(0)")
    for r in ([54] if halo else []) + [56, 58, 60, 62]:
        a(f"s_xor_b64 s[{r}:{r + 1}], s[{r}:{r + 1}], s[76:77]")
    a("s_or_b64 s[56:57], s[56:57], s[58:59]")
    a("s_or_b64 s[60:61], s[60:61], s[62:63]")
    if halo:
        a("s_or_b64 s[56:57], s[56:57], s[54:55]")
    a("s_or_b64 s[56:57], s[56:57], s[60:61]")
    a(f"s_cbranch_scc0 {ok}")
    a(f"s_cmp_lt_u32 s6, {1 << 20}")
    a(f"s_cbranch_scc1 {lp}")
    a(f"s_branch {abort}")
    a(f"{ok}:")
    if extra:
        extra(out)
    a(f"{out}:")
    a("s_barrier")


def bfrag_voff(a, dst, tmp):
    a(f"v_bfe_u32 {tmp}, v0, 3, 1")
    a(f"v_mul_u32_u24 {dst}, {GB}, {tmp}")
    a(f"v_lshrrev_b32 {tmp}, 4, v0")
    a(f"v_lshl_add_u32 {dst}, {tmp}, 7, {dst}")
    a(f"v_and_b32 {tmp}, 7, v0")
    a(f"v_lshl_add_u32 {dst}, {tmp}, 4, {dst}")


def dtile_voff(a, dst, tmp, tmp2, gstride):
    a(f"v_bfe_u32 {tmp}, v0, 3, 2")
    a(f"s_mov_b32 s7, {gstride}")
    a(f"v_mul_lo_u32 {dst}, {tmp}, s7")
    a(f"v_lshrrev_b32 {tmp}, 5, v0")
    a(f"v_lshl_add_u32 {dst}, {tmp}, 7, {dst}")
    a(f"v_and_b32 {tmp}, 7, v0")
    a(f"v_lshl_add_u32 {dst}, {tmp}, 4, {dst}")


def rowsum_16_32(a, vals, tmp):
    for swap in ("v_permlane32_swap_b32", "v_permlane16_swap_b32"):
        for i, v in enumerate(vals):
            a(f"v_mov_b32 {tmp[i]}, {v}")
        a("s_nop 1")
        for i, v in enumerate(vals):
            a(f"{swap} {tmp[i]}, {v}")
        for i, v in enumerate(vals):
            a(f"v_add_f32 {v}, {v}, {tmp[i]}")


def ln_coeffs(a, vs, vss, rstd, nb):
    a(f"v_mul_f32 {vs}, {f32(1.0 / 576)}, {vs}")
    a(f"v_mul_f32 {vss}, {f32(1.0 / 576)}, {vss}")
    a(f"v_fma_f32 {vss}, -{vs}, {vs}, {vss}")
    a(f"v_max_f32 {vss}, 0, {vss}")
    a(f"v_add_f32 {vss}, {f32(1e-5)}, {vss}")
    a(f"v_rsq_f32 v{rstd}, {vss}")
    a("s_nop 0")
    a(f"v_mul_f32 v{nb}, {vs}, v{rstd}")
    a(f"v_mov_b32 v{rstd + 1}, v{rstd}")
    a(f"v_sub_f32 v{nb}, 0, v{nb}")
    a(f"v_mov_b32 v{nb + 1}, v{nb}")


def normalize(a, src, dst, n, rstd, nb, tmp):
    for i0 in range(0, n, 4):
        k = min(4, n - i0)
        for i in range(k):
            a(f"v_lshlrev_b32 v{tmp + 2 * i}, 16, v{src + i0 + i}")
            a(f"v_and_b32 v{tmp + 2 * i + 1}, s16, v{src + i0 + i}")
        for i in range(k):
            t = tmp + 2 * i
            a(f"v_pk_fma_f32 v[{t}:{t + 1}], v[{t}:{t + 1}], v[{rstd}:{rstd + 1}], v[{nb}:{nb + 1}]")
        for i in range(k):
            t = tmp + 2 * i
            a(f"v_cvt_pk_bf16_f32 v{dst + i0 + i}, v{t}, v{t + 1}")


VR, VM = 172, 175


def red_offsets(a):
    a("s_mov_b32 s16, 0xffff0000")
    a("s_lshl_b32 s7, s3, 10")
    a(f"v_add_u32 v{VR}, s7, v253")
    a(f"v_add_u32 v{VR + 2}, 5120, v{VR}")
    a("v_and_b32 v178, 7, v0")
    a("v_mul_u32_u24 v178, 1152, v178")
    a("v_lshrrev_b32 v179, 3, v0")
    a("v_lshl_add_u32 v178, v179, 4, v178")
    a("s_lshl_b32 s7, s3, 7")
    a(f"v_add_u32 v{VM}, s7, v178")
    a(f"v_add_u32 v{VM + 2}, 640, v{VM}")
    a("s_cmp_eq_u32 s3, 0")
    csel(a, "s17", 4096, OOB)
    a(f"v_add_u32 v{VR + 1}, s17, v{VR}")
    csel(a, "s17", 512, OOB)
    a(f"v_add_u32 v{VM + 1}, s17, v{VM}")


def red_ln_store(a, XB, sX2, sXN, sMEAN, flag):
    for b in range(3):
        a(f"buffer_store_dwordx4 v[{XB + 4 * b}:{XB + 4 * b + 3}], v{VR + b}, s[8:11], {sX2} offen {flag}")
    a("s_mov_b32 s17, 0x3f803f80")
    for i in range(4):
        a(f"v_mov_b32 v{8 + i}, 0")
    for i in range(12):
        a(f"v_dot2c_f32_bf16 v{8 + 2 * (i & 1)}, s17, v{XB + i}")
        a(f"v_dot2c_f32_bf16 v{9 + 2 * (i & 1)}, v{XB + i}, v{XB + i}")
    a("v_and_b32 v12, 7, v0")
    a("v_lshlrev_b32 v12, 3, v12")
    a("s_lshl_b32 s7, s3, 6")
    a("v_add_u32 v13, s7, v12")
    a("v_pk_add_f32 v[8:9], v[8:9], v[10:11]")
    a("s_nop 1")
    a("v_add_f32_dpp v8, v8, v8 row_ror:8 row_mask:0xf bank_mask:0xf")
    a("v_add_f32_dpp v9, v9, v9 row_ror:8 row_mask:0xf bank_mask:0xf")
    rowsum_16_32(a, ["v8", "v9"], ["v10", "v11"])
    a("ds_write_b64 v13, v[8:9]")
    a("s_waitcnt lgkmcnt(0)")
    a("s_barrier")
    T = 40
    for w in range(4):
        a(f"ds_read_b64 v[{T + 2 * w}:{T + 2 * w + 1}], v12 offset:{64 * w}")
    a("s_waitcnt lgkmcnt(0)")
    a(f"v_pk_add_f32 v[{T}:{T + 1}], v[{T}:{T + 1}], v[{T + 2}:{T + 3}]")
    a(f"v_pk_add_f32 v[{T + 4}:{T + 5}], v[{T + 4}:{T + 5}], v[{T + 6}:{T + 7}]")
    a(f"v_pk_add_f32 v[8:9], v[{T}:{T + 1}], v[{T + 4}:{T + 5}]")
    ln_coeffs(a, "v8", "v9", 10, 12)
    a("s_cmp_eq_u32 s3, 0")
    a("s_cselect_b32 s7, 32, 0")
    a("v_lshlrev_b32 v14, 2, v0")
    a("v_cmp_gt_u32 vcc, s7, v0")
    a(f"v_mov_b32 v9, {OOB}")
    a("s_nop 0")
    a("v_cndmask_b32 v14, v9, v14, vcc")
    a(f"buffer_store_dword v8, v14, s[8:11], {sMEAN} offen {flag}")
    normalize(a, XB, 48, 12, 10, 12, T)
    for b in range(3):
        a(f"buffer_store_dwordx4 v[{48 + 4 * b}:{51 + 4 * b}], v{VR + b}, s[8:11], {sXN} offen {flag}")


def red_setup(a):
    red_offsets(a)
    a("s_lshl_b32 s21, s41, 3")
    a("s_add_u32 s21, s21, s40")
    a(f"s_mul_i32 s18, s21, {GB}")
    a(f"s_mul_i32 s20, s21, {8 * GB}")
    a(f"s_add_u32 s20, s20, {PART}")
    loads = []
    for k in range(7):
        for b in range(2):
            r = slot_reg(18 + 2 * k + b)
            t = f"buffer_load_dwordx4 v[{r}:{r + 3}], v{VR + b}, s[8:11], s19 offen sc1"
            loads.append(red_source("s19", k) + t if b == 0 else t)
    return loads


OWN = 4 * KB


def red_source(dst, k):
    return (f"s_add_u32 s7, s40, {k + 1}\ns_and_b32 s7, s7, 7\ns_mul_i32 s7, s7, {GB}\ns_add_u32 {dst}, s7, s20\n")


def phase_red(a, abort, last):
    ACC, TMP, LD, XR, XB = 16, 40, 60, 92, 120
    a("s_add_u32 s19, s18, s43")
    a(f"s_add_u32 s22, s19, {XC}")
    a("s_lshl_b32 s23, s21, 5")
    a("s_add_u32 s23, s23, s43")
    a(f"s_add_u32 s23, s23, {MEAN1}")
    a("v_and_b32 v12, 7, v0")
    a("v_lshlrev_b32 v12, 2, v12")
    a("buffer_load_dword v10, v12, s[8:11], s23 offen sc1")
    for b in range(3):
        a(f"buffer_load_dwordx4 v[{XR + 4 * b}:{XR + 4 * b + 3}], v{VR + b}, s[8:11], s22 offen sc1")

    def unpack(dst, r):
        for i in range(4):
            a(f"v_lshlrev_b32 v{dst + 2 * i}, 16, v{r + i}")
            a(f"v_and_b32 v{dst + 2 * i + 1}, s16, v{r + i}")

    def add(b, r):
        unpack(TMP, r)
        for i in range(4):
            c = ACC + 8 * b + 2 * i
            a(f"v_pk_add_f32 v[{c}:{c + 1}], v[{c}:{c + 1}], v[{TMP + 2 * i}:{TMP + 2 * i + 1}]")

    pf = Asm()
    qkv_prefetch(pf, 0, QR - 1, "s42")
    queue, chunk = [], ""
    for ln in pf.lines:
        chunk += ln + "\n"
        if "buffer_load" in ln:
            queue.append(chunk)
            chunk = ""
    vm = Vm()

    def feed(n):
        for _ in range(n):
            if queue:
                a(queue.pop(0))
                vm.issue("w")

    OW = [148, 152, 156]
    a(f"v_min_u32 v13, {9 * KB}, v{VR + 1}")
    a(f"ds_read_b128 v[{OW[0]}:{OW[0] + 3}], v{VR} offset:{OWN}")
    a(f"ds_read_b128 v[{OW[1]}:{OW[1] + 3}], v13 offset:{OWN}")
    a(f"ds_read_b128 v[{OW[2]}:{OW[2] + 3}], v{VR + 2} offset:{OWN}")
    setup, first = queue[0].rsplit("buffer_load", 1)
    a(setup)
    queue[0] = "buffer_load" + first

    def gap_feed(n):
        skip = a.label("nopf")
        a("s_cmp_lg_u32 s42, 0")
        a(f"s_cbranch_scc1 {skip}")
        feed(n)
        a(f"{skip}:")

    for b in range(2):
        unpack(ACC + 8 * b, slot_reg(18 + b))
    gap_feed(Cfg.red_gap // 2)
    for j in range(1, Cfg.red_pre):
        for b in range(2):
            add(b, slot_reg(18 + 2 * j + b))
        if j == 1:
            gap_feed(Cfg.red_gap - Cfg.red_gap // 2)
    wait_flags(a, PH_FFN * FPH, abort)
    mark(a, 16)
    for j in range(7):
        a(red_source("s19", j) + f"buffer_load_dwordx4 v[{LD + 4 * j}:{LD + 4 * j + 3}], v{VR + 2}, s[8:11], s19 offen sc1")
        vm.issue(j)
    for j in range(Cfg.red_pre, 7):
        for b in range(2):
            add(b, slot_reg(18 + 2 * j + b))
    a("s_cmp_eq_u32 s3, 0")
    a("s_cselect_b32 s7, 1.0, 0")
    a("s_cselect_b32 s6, -1, 0")
    a("s_waitcnt vmcnt(7) lgkmcnt(0)")
    for i in range(4):
        a(f"v_and_b32 v{OW[1] + i}, s6, v{OW[1] + i}")
    a("v_mul_f32 v11, s7, v10")
    for b in range(2):
        add(b, XR + 4 * b)
    unpack(ACC + 16, XR + 8)
    for b in range(3):
        add(b, OW[b])
    for b in range(3):
        for i in range(4):
            c = ACC + 8 * b + 2 * i
            sel = "op_sel:[0,1] op_sel_hi:[1,1]" if b == 1 else "op_sel_hi:[1,0]"
            a(f"v_pk_add_f32 v[{c}:{c + 1}], v[{c}:{c + 1}], v[10:11] {sel}")
    for j in range(7):
        a(f"s_waitcnt vmcnt({vm.count(j)})")
        feed(Cfg.red_feed)
        add(2, LD + 4 * j)
    feed(len(queue) - Cfg.red_post)
    for b in range(3):
        for i in range(4):
            c = ACC + 8 * b + 2 * i
            a(f"v_cvt_pk_bf16_f32 v{XB + 4 * b + i}, v{c}, v{c + 1}")
    mark(a, 17)
    a("s_cmp_lg_u32 s42, 0")
    a(f"s_cbranch_scc1 {last}")
    a(f"s_add_u32 s19, s18, {X2 + LSTR}")
    a(f"s_add_u32 s20, s18, {XN + LSTR}")
    a("s_lshl_b32 s22, s21, 7")
    a(f"s_add_u32 s22, s22, {MEAN + LSTR}")
    red_ln_store(a, XB, "s19", "s20", "s22", "sc1")
    mark(a, 18)
    publish(a, PH_RED)
    mark(a, 19)
    feed(99)
    a(chunk)

    def tail():
        for b in range(3):
            a(f"buffer_store_dwordx4 v[{XB + 4 * b}:{XB + 4 * b + 3}], v{VM + b}, s[12:15], s18 offen {Cfg.oflag}")
    return tail


ZB = 96 * KB


def o_row(a, dst, vc, vj, t0, t1):
    a(f"v_mul_u32_u24 {t0}, 7282, {vc}")
    a(f"v_lshrrev_b32 {t0}, 16, {t0}")
    a(f"v_mul_u32_u24 {t1}, 9, {t0}")
    a(f"v_sub_u32 {t1}, {vc}, {t1}")
    a(f"v_mul_u32_u24 {t0}, 72, {t0}")
    a(f"v_cmp_eq_u32 vcc, 8, {t1}")
    a(f"v_lshrrev_b32 {dst}, 1, {t1}")
    a(f"v_mad_u32_u24 {dst}, {dst}, 18, {t0}")
    a(f"v_and_b32 {t1}, 1, {t1}")
    a(f"v_lshl_add_u32 {dst}, {t1}, 3, {dst}")
    a(f"v_add_u32 {dst}, {dst}, {vj}")
    a(f"v_lshrrev_b32 {t1}, 1, {vj}")
    a(f"v_mad_u32_u24 {t0}, {t1}, 18, {t0}")
    a(f"v_and_b32 {t1}, 1, {vj}")
    a(f"v_add3_u32 {t0}, {t0}, {t1}, 16")
    a(f"v_cndmask_b32 {dst}, {dst}, {t0}, vcc")


def tr_rows(a, dst, tmp, shift, pitch):
    a(f"v_lshrrev_b32 {dst}, 4, v0")
    a(f"v_lshlrev_b32 {dst}, {shift}, {dst}")
    a(f"v_bfe_u32 {tmp}, v0, 2, 2")
    a(f"v_add_u32 {dst}, {dst}, {tmp}")
    a(f"v_mul_u32_u24 {dst}, {pitch}, {dst}")
    a(f"v_and_b32 {tmp}, 3, v0")
    a(f"v_lshl_add_u32 {dst}, {tmp}, 3, {dst}")


def qfrag(a, t, pending):
    a(f"s_waitcnt lgkmcnt({pending})")
    for i in range(4):
        a(f"v_lshl_or_b32 v{32 + 4 * t + i}, v{137 + 8 * t + 2 * i}, 16, v{136 + 8 * t + 2 * i}")
        if t == 3:
            a(f"v_cndmask_b32 v{32 + 4 * t + i}, 0, v{32 + 4 * t + i}, s[22:23]")
    a(f"buffer_store_dwordx4 v[{32 + 4 * t}:{35 + 4 * t}], v253, s[8:11], s33 offen offset:{t * KB} sc1")


def phase_prep(a, abort):
    srd(a, 12, "s18", "s19", 2048 * 1152)
    srd(a, 64, "s20", "s21", 576 * 3456)
    srd(a, 68, "s22", "s23", 576 * 1152)
    red_offsets(a)
    a("s_lshl_b32 s21, s41, 3")
    a("s_add_u32 s21, s21, s40")
    a(f"s_mul_i32 s18, s21, {GB}")
    for b in range(3):
        a(f"buffer_load_dwordx4 v[{16 + 4 * b}:{19 + 4 * b}], v{VM + b}, s[12:15], s18 offen")
    mark(a, 21)
    srd(a, 12, "s30", "s31", 2048 * 1152)
    a("s_lshl_b32 s79, s3, 14")
    a(f"s_add_u32 s79, s79, {ZB}")
    PS = 8 * KB
    lo, lw, l3 = a.label("prep_o"), a.label("prep_m"), a.label("prep_go")
    nq2, l4, l5 = a.label("prep_o"), a.label("prep_m"), a.label("prep_done")
    a("s_sub_u32 s36, s21, 144")
    a("s_cmp_ge_u32 s41, 18")
    a(f"s_cbranch_scc1 {lo}")
    a(f"s_mul_i32 s35, s41, {32 * 3456}")
    a("s_mul_i32 s7, s40, 144")
    a("s_and_b32 s46, s7, 127")
    a("s_sub_u32 s7, s7, s46")
    a("s_add_u32 s35, s35, s7")
    a(f"s_mul_i32 s7, s3, {4 * 3456}")
    a("s_add_u32 s35, s35, s7")
    a("v_lshrrev_b32 v8, 4, v0")
    a("v_mul_u32_u24 v8, 3456, v8")
    a("v_and_b32 v9, 15, v0")
    a("v_lshl_add_u32 v8, v9, 4, v8")
    a("s_lshl_b32 s34, s3, 10")
    for m in range(6):
        a(f"s_add_u32 m0, s34, {PS + m * 4 * KB}")
        a(f"s_add_u32 s7, s35, {(m & 1) * 16 * 3456 + (m >> 1) * 1152}")
        a("buffer_load_dwordx4 v8, s[64:67], s7 offen lds")
    a(f"s_branch {l3}")
    a(f"{lo}:")
    a("s_cmp_ge_u32 s36, 54")
    a(f"s_cbranch_scc1 {lw}")
    sdivmod(a, "s33", "s34", "s36", 3, 53)
    a("s_lshl_b32 s7, s33, 2")
    a("s_add_u32 s7, s7, s3")
    a("v_mov_b32 v8, s7")
    a("v_lshrrev_b32 v9, 3, v0")
    o_row(a, "v10", "v8", "v9", "v11", "v12")
    a("v_mul_u32_u24 v10, 1152, v10")
    a("v_and_b32 v9, 7, v0")
    a("v_lshl_add_u32 v10, v9, 4, v10")
    a("s_mul_i32 s35, s34, 384")
    a("s_lshl_b32 s6, s3, 10")
    for m in range(3):
        a(f"s_add_u32 m0, s6, {PS + m * 4 * KB}")
        a(f"s_add_u32 s7, s35, {m * 128}")
        a("buffer_load_dwordx4 v10, s[68:71], s7 offen lds")
    a(f"s_branch {l3}")
    a(f"{lw}:")
    a("s_sub_u32 s37, s36, 54")
    a("s_lshl_b32 s7, s3, 6")
    a("s_add_u32 s37, s37, s7")
    a("s_cmp_ge_u32 s37, 36")
    a(f"s_cbranch_scc1 {l3}")
    a("s_lshl_b32 s7, s37, 1")
    a("v_bfe_u32 v8, v0, 3, 1")
    a("v_add_u32 v8, s7, v8")
    a("v_and_b32 v9, 7, v0")
    o_row(a, "v10", "v8", "v9", "v11", "v12")
    a("v_mul_u32_u24 v10, 1152, v10")
    a("v_lshrrev_b32 v9, 4, v0")
    a("v_lshl_add_u32 v10, v9, 4, v10")
    for ks in range(18):
        a(f"buffer_load_dwordx4 v[{64 + 4 * ks}:{67 + 4 * ks}], v10, s[68:71], 0 offen offset:{64 * ks}")
    a(f"{l3}:")
    mark(a, 23)
    a("s_lshl_b32 s7, s41, 2")
    a("s_add_u32 s7, s7, s3")
    sdiv(a, "s93", "s7", 41, 127)
    a("s_min_u32 s93, s93, 2")
    a("s_mul_i32 s6, s93, 41")
    a("s_sub_u32 s7, s7, s6")
    a("s_lshl_b32 s17, s7, 2")
    a("s_cmp_eq_u32 s93, 1")
    a("s_cselect_b32 s72, s26, s24")
    a("s_cselect_b32 s73, s27, s25")
    a("s_cmp_eq_u32 s93, 2")
    a("s_cselect_b32 s72, s28, s72")
    a("s_cselect_b32 s73, s29, s73")
    csel(a, "s92", 8 * 1152, 8 * 9216)
    csel(a, "s47", 18 * 32 * 1152, 1152)
    a("s_and_b32 s73, s73, 0xffff")
    a(f"s_mov_b32 s74, {576 * 9216}")
    a("s_mov_b32 s75, 0x20000")
    a("s_mul_i32 s47, s47, s40")
    for b in range(4):
        a(f"s_add_u32 s7, s17, {b}")
        a("s_min_u32 s7, s7, 161")
        sdivmod(a, f"s{84 + b}", f"s{88 + b}", "s7", 9, 161)
        a(f"s_mul_i32 s7, s{84 + b}, s92")
        a("s_lshl_b32 s7, s7, 2")
        a("s_add_u32 s7, s7, s47")
        a(f"s_lshl_b32 s6, s{88 + b}, 7")
        a(f"s_add_u32 s{80 + b}, s7, s6")
    a("s_lshr_b32 s7, s92, 3")
    a("v_lshrrev_b32 v224, 3, v0")
    a("v_mul_lo_u32 v224, v224, s7")
    a("v_and_b32 v8, 7, v0")
    a("v_lshl_add_u32 v224, v8, 4, v224")
    a("s_waitcnt lgkmcnt(0)")
    a("s_mul_i32 s76, s76, 0x9e3779b1")
    a("s_add_u32 s76, s76, 0x7f4a7c15")
    a("s_mov_b32 s77, s76")
    mark(a, 24)
    for i in range(Cfg.raw_early):
        a(ffn_raw_dma(i))
    mark(a, 25)
    a(f"s_waitcnt vmcnt({Cfg.raw_early})")
    a("s_barrier")
    mark(a, 28)
    a("s_cmp_ge_u32 s41, 18")
    a(f"s_cbranch_scc1 {nq2}")
    a("s_mul_i32 s7, s3, 36")
    a("s_add_u32 s7, s7, s46")
    a("v_lshrrev_b32 v8, 4, v0")
    a("v_lshlrev_b32 v8, 11, v8")
    a("v_add_u32 v8, s7, v8")
    a("v_and_b32 v9, 15, v0")
    a("v_cmp_gt_u32 s[22:23], 6, v9")
    a("v_lshrrev_b32 v10, 1, v9")
    a("v_min_u32 v10, 2, v10")
    a("v_lshl_add_u32 v10, v10, 13, v8")
    a("v_and_b32 v11, 1, v0")
    a("v_lshl_add_u32 v10, v11, 1, v10")
    a("v_lshl_add_u32 v8, v9, 1, v8")
    for t in range(4):
        for j in range(8):
            a(f"ds_read_u16 v{136 + 8 * t + j}, v8 offset:{PS + t * 8192 + j * 256}" if t < 3 else
              f"ds_read_u16 v{136 + 8 * t + j}, v10 offset:{PS + 32 + j * 256}")
        if t == 0:
            a("s_lshl_b32 s33, s40, 2")
            a("s_add_u32 s33, s33, s3")
            a("s_mul_i32 s33, s33, 18")
            a("s_add_u32 s33, s33, s41")
            a("s_lshl_b32 s33, s33, 12")
            if WQ:
                a(f"s_add_u32 s33, s33, {WQ}")
        if t:
            qfrag(a, t - 1, 8)
    qfrag(a, 3, 0)
    a(f"s_branch {l5}")
    a(f"{nq2}:")
    a("s_cmp_ge_u32 s36, 54")
    a(f"s_cbranch_scc1 {l4}")
    tr_rows(a, "v8", "v9", 3, 128)
    a("s_lshl_b32 s7, s3, 5")
    a("v_add_u32 v8, s7, v8")
    for m in range(3):
        a(f"ds_read_b64_tr_b16 v[{32 + 4 * m}:{33 + 4 * m}], v8 offset:{PS + m * 4 * KB}")
        a(f"ds_read_b64_tr_b16 v[{34 + 4 * m}:{35 + 4 * m}], v8 offset:{PS + m * 4 * KB + 512}")
    a("s_mul_i32 s34, s34, 12")
    a("s_add_u32 s34, s34, s3")
    a("s_mul_i32 s34, s34, 18")
    a("s_add_u32 s34, s34, s33")
    a("s_lshl_b32 s34, s34, 10")
    for m in range(3):
        a(f"s_add_u32 s7, s34, {WO + m * 4 * 18 * KB}")
        a(f"s_waitcnt lgkmcnt({4 - 2 * m})")
        a(f"buffer_store_dwordx4 v[{32 + 4 * m}:{35 + 4 * m}], v253, s[8:11], s7 offen sc1")
    a(f"s_branch {l5}")
    a(f"{l4}:")
    a("s_cmp_ge_u32 s37, 36")
    a(f"s_cbranch_scc1 {l5}")
    for i in range(4):
        a(f"v_mov_b32 v{28 + i}, 0x3f803f80")
    a("v_and_b32 v9, 15, v0")
    a("v_cmp_eq_u32 vcc, 0, v9")
    a("v_cmp_eq_u32 s[22:23], 1, v9")
    for ks in range(18):
        a(f"v_mfma_f32_16x16x32_bf16 v[32:35], v[{64 + 4 * ks}:{67 + 4 * ks}], v[28:31], {'0' if ks == 0 else 'v[32:35]'}")
    a("v_lshrrev_b32 v10, 5, v0")
    a("v_lshlrev_b32 v10, 8, v10")
    a("v_lshl_add_u32 v10, v9, 4, v10")
    a("v_bfe_u32 v9, v0, 4, 1")
    a("v_lshl_add_u32 v10, v9, 3, v10")
    a("s_lshl_b32 s7, s37, 9")
    a(f"s_add_u32 s7, s7, {WO + 36 * 18 * KB}")
    a("s_nop 0")
    for r in range(4):
        a(f"v_mul_f32 v{32 + r}, {f32(1.0 / 576)}, v{32 + r}")
    a("v_cvt_pk_bf16_f32 v36, v32, v33")
    a("v_cvt_pk_bf16_f32 v37, v34, v35")
    for h in range(2):
        a(f"v_lshlrev_b32 v38, 16, v{36 + h}")
        a(f"v_and_b32 v39, s16, v{36 + h}")
        a(f"v_sub_f32 v38, v{32 + 2 * h}, v38")
        a(f"v_sub_f32 v39, v{33 + 2 * h}, v39")
        a(f"v_cvt_pk_bf16_f32 v{28 + h}, v38, v39")
        a(f"v_cndmask_b32 v{28 + h}, 0, v{28 + h}, s[22:23]")
        a(f"v_cndmask_b32 v{28 + h}, v{28 + h}, v{36 + h}, vcc")
    a("buffer_store_dwordx2 v[28:29], v10, s[8:11], s7 offen sc1")
    a(f"{l5}:")
    a(f"s_add_u32 s19, s18, {X2}")
    a(f"s_add_u32 s20, s18, {XN}")
    a("s_lshl_b32 s22, s21, 7")
    a(f"s_add_u32 s22, s22, {MEAN}")
    red_ln_store(a, 16, "s19", "s20", "s22", "sc1")
    mark(a, 29)

    def more(skip):
        column_flag(a, SL_WQ)
        a("s_cmp_lt_u32 s41, 18")
        a(f"s_cbranch_scc1 {skip}")
        a("s_lshl_b32 s6, s36, 2")
        a(f"s_add_u32 s6, s6, {FLAGS + SL_WO * FPH}")
        a("s_mov_b64 exec, 1")
        a("buffer_store_dword v1, off, s[8:11], s6 sc1")

    publish(a, PH_RED - 4, more)
    mark(a, 30)
    for i in range(Cfg.raw_early, Cfg.raw_mid):
        a(ffn_raw_dma(i))
    out = a.label("wq_ready")
    a(f"s_cmp_lg_u32 s3, {Cfg.pw}")
    a(f"s_cbranch_scc1 {out}")
    column_wait(a, SL_WQ, abort)
    a(f"{out}:")
    a("s_barrier")
    mark(a, 27)


def ffn_raw_dma(i):
    b, m = divmod(i, 4)
    step = f"s_mov_b32 s71, s{80 + b}" if m == 0 else "s_add_u32 s71, s71, s92"
    return f"s_add_u32 m0, s79, {i * KB}\n{step}\nbuffer_load_dwordx4 v224, s[72:75], s71 offen {Cfg.raw_flag} lds"


ZQ = list(range(76, 100, 4)) + [176, 180] + list(range(196, 224, 4)) + [228]


def ffn_transpose_reads(a):
    a("s_cmp_eq_u32 s93, 2")
    a("s_cselect_b32 s6, 2, 3")
    csel(a, "s7", 2048, 512)
    tr_rows(a, "v14", "v15", "s6", 128)
    a("v_add_u32 v14, s79, v14")
    a("v_add_u32 v15, s7, v14")
    for b in range(4):
        for t in range(4):
            r = ZQ[4 * b + t]
            a(f"ds_read_b64_tr_b16 v[{r}:{r + 1}], v14 offset:{b * 4096 + t * 32}")
            a(f"ds_read_b64_tr_b16 v[{r + 2}:{r + 3}], v15 offset:{b * 4096 + t * 32}")


def ffn_transpose(a):
    ffn_transpose_reads(a)
    dn, dd = a.label("swz_down"), a.label("swz_dest")
    dest = [80, 81, 82, 83, 64, 65, 18, 19, 20, 21, 22, 25, 26, 27, 28, 29]
    a(f"s_mul_i32 s68, s40, {4 * WSTR}")
    a(f"s_add_u32 s68, s68, {WF}")
    a("s_cmp_eq_u32 s93, 2")
    a(f"s_cbranch_scc1 {dn}")
    for b in range(4):
        sdivmod(a, "s6", "s7", f"s{84 + b}", 3, 17)
        a("s_mul_i32 s6, s6, 6")
        a("s_add_u32 s7, s7, s6")
        a(f"s_mul_i32 s6, s{88 + b}, 36")
        a("s_add_u32 s7, s7, s6")
        a("s_mul_i32 s6, s93, 3")
        a("s_add_u32 s7, s7, s6")
        a("s_lshl_b32 s7, s7, 10")
        a("s_add_u32 s7, s7, s68")
        for t in range(4):
            a(f"s_add_u32 s{dest[4 * b + t]}, s7, {t * WSTR}")
    a(f"s_branch {dd}")
    a(f"{dn}:")
    for b in range(4):
        a(f"s_mul_i32 s7, s{88 + b}, 18")
        a(f"s_add_u32 s7, s7, s{84 + b}")
        a("s_add_u32 s7, s7, 324")
        a("s_lshl_b32 s7, s7, 10")
        a("s_add_u32 s7, s7, s68")
        for t in range(4):
            a(f"s_add_u32 s{dest[4 * b + t]}, s7, {t * WSTR}")
    a(f"{dd}:")
    return [f"buffer_store_dwordx4 v[{ZQ[i]}:{ZQ[i] + 3}], v253, s[72:75], s{dest[i]} offen sc1" for i in range(16)]


BIG = -1e30


QR = 10
WO_FREE = [(160 + 4 * i, -1) for i in range(24)] + \
    [(16 * (k % QR) + 4 * t, k) for k in range(18 - QR, 18) for t in range(4)]


def wo_reg(ks, sl):
    return WO_FREE[ks * 3 + sl][0]


def qkv_prefetch(a, k0, k1, skip=None):
    if k0 == 0:
        a("s_lshl_b32 s28, s40, 2")
        a("s_add_u32 s28, s28, s3")
        a(f"s_mul_i32 s28, s28, {72 * KB}")
        if WQ:
            a(f"s_add_u32 s28, s28, {WQ}")
    v = "v253"
    if skip:
        a(f"s_mul_i32 s7, {skip}, {OOB}")
        a("v_add_u32 v3, s7, v253")
        v = "v3"
    for ks in range(k0, k1):
        for l in qkv_wload(ks, v):
            a(l)
        a("s_add_u32 s28, s28, 4096")


def qkv_wload(ks, v="v253"):
    for t in range(4):
        r = 16 * (ks % QR) + 4 * t
        yield f"buffer_load_dwordx4 a[{r}:{r + 3}], {v}, s[8:11], s28 offen offset:{t * KB} {Cfg.wflag}"


def wo_weight_loads(a):
    setup = []
    s = setup.append
    s("s_lshl_b32 s45, s41, 1")
    s("s_lshr_b32 s7, s40, 2")
    s("s_add_u32 s45, s45, s7")
    s(f"s_mul_i32 s30, s45, {4 * GB}")
    s("s_add_u32 s30, s30, s43")
    s("s_and_b32 s31, s40, 3")
    s("s_mul_i32 s31, s31, 9")
    s("s_add_u32 s31, s31, s3")
    s(f"s_mul_i32 s32, s31, {18 * KB}")
    s(f"s_add_u32 s32, s32, {WO}")
    s(f"s_add_u32 s33, s32, {4 * 18 * KB}")
    s(f"s_add_u32 s34, s32, {8 * 18 * KB}")
    s(f"s_mov_b32 s39, {FLAGS + SL_WO * FPH}")
    s("v_min_u32 v228, 44, v0")
    s("v_lshlrev_b32 v228, 3, v228")
    s("s_cmp_eq_u32 s3, 1")
    s(f"s_cmov_b32 s34, {WO + 36 * 18 * KB}")
    s("s_cmp_lt_u32 s3, 2")
    s(f"s_cselect_b32 s35, 0, {OOB}")
    s("v_add_u32 v5, s35, v253")
    s("s_cmp_eq_u32 s3, 0")
    s(f"s_cselect_b32 s35, 0, {OOB}")
    s("v_add_u32 v7, s35, v9")
    s("s_lshl_b32 s7, s31, 8")
    s("s_add_u32 s36, s30, s7")
    s(f"s_add_u32 s37, s36, {X2}")
    s(f"s_add_u32 s46, s36, {XC}")
    s("s_lshl_b32 s36, s45, 7")
    s("s_add_u32 s36, s36, s43")
    s(f"s_add_u32 s36, s36, {MEAN1}")
    s("s_lshl_b32 s47, s45, 9")
    s("s_add_u32 s47, s47, s43")
    s(f"s_add_u32 s47, s47, {MEAN}")
    s("v_bfe_u32 v10, v0, 3, 2")
    s("v_and_b32 v8, 7, v0")
    s("v_lshlrev_b32 v8, 2, v8")
    s("v_lshl_add_u32 v8, v10, 7, v8")
    loads = []
    for ks in range(18):
        for sl in range(3):
            r = wo_reg(ks, sl)
            t = f"buffer_load_dwordx4 a[{r}:{r + 3}], v{5 if sl == 2 else 253}, s[8:11], s{32 + sl} offen offset:{(ks & 3) * KB} {Cfg.wflag}"
            if ks & 3 == 3:
                t += f"\ns_add_u32 s{32 + sl}, s{32 + sl}, 4096"
            loads.append((t, WO_FREE[ks * 3 + sl][1]))
    for sl in range(3):
        loads.append((f"buffer_load_dwordx4 v[{240 + 4 * sl}:{243 + 4 * sl}], v{7 if sl == 2 else 9}, s[8:11], s37 offen offset:{sl * KB} sc1", -1))
    loads.append(("buffer_load_dword v252, v8, s[8:11], s47 offen sc1", -1))
    return setup, loads


def phase_qkv(a, abort):
    BF, ACC, QO, KO, VO, VL, SEL, CI, BP, BC, BP1 = 16, 56, 132, 152, 172, 182, 192, 196, 200, 204, 208
    bfrag_voff(a, "v2", "v3")
    dtile_voff(a, "v9", "v3", None, GB)
    a(f"s_mul_i32 s22, s41, {8 * GB}")
    a("s_add_u32 s22, s22, s43")
    a(f"s_add_u32 s23, s22, {XN}")
    a(f"s_mul_i32 s7, s3, {2 * GB}")
    a("s_add_u32 s24, s23, s7")
    a("s_cmp_eq_u32 s41, 0")
    a(f"s_cselect_b32 s7, 0, {2 * GB}")
    a("s_sub_u32 s23, s23, s7")
    units = [(0, tt) for tt in range(1, 5)] + [(t, tt) for t in range(1, 4) for tt in range(5)]
    acc = {u: ACC + 4 * i for i, u in enumerate(units)}
    a("s_lshl_b32 s25, s3, 10")
    a("s_add_u32 s25, s25, 1024")
    a("s_mul_i32 s26, s3, 5120")
    a("s_lshl_b32 s7, s3, 9")
    a("s_add_u32 s27, s23, s7")
    a("s_and_b32 s7, s3, 1")
    a("s_add_u32 s7, s7, 4")
    a("s_mul_i32 s29, s7, 5120")
    a("s_lshl_b32 s7, s7, 9")
    a("s_add_u32 s23, s23, s7")
    wait_flags(a, (PH_RED - 4) * FPH, abort, halo=True)
    mark(a, 0)
    def xdma(st):
        for kk in range(6):
            ks = 6 * st + kk
            t = f"s_add_u32 m0, s25, {ks * 5120 - (ks % 8) * 512}\n"
            t += "s_add_u32 s24, s24, 4096\n" if ks and ks % 8 == 0 else "s_nop 0\n"
            yield t + f"buffer_load_dwordx4 v2, s[8:11], s24 offen offset:{(ks % 8) * 512} {Cfg.xflag} lds"
        for sm, so in (("s26", "s27"), ("s29", "s23")):
            yield (f"s_add_u32 m0, {sm}, {st * 30720}\ns_add_u32 s7, {so}, {st * 3072}\n"
                   f"buffer_load_dwordx4 v2, s[8:11], s7 offen {Cfg.xflag} lds")

    vm = Vm()
    for t in xdma(0):
        a(t)
        vm.issue(("x", 0))
    for r in [QO, QO + 1, SEL, SEL + 1, SEL + 3] + [QO + 4 * t + 3 for t in range(5)] + [KO + 4 * t + 3 for t in range(5)]:
        a(f"v_mov_b32 v{r}, 0")
    a("v_cmp_eq_u32 vcc, 16, v0")
    a("v_mov_b32 v10, 0x3f80")
    a("v_cmp_eq_u32 s[20:21], 17, v0")
    a(f"v_cndmask_b32 v{SEL + 2}, 0, v10, vcc")
    a("v_and_b32 v11, 3, v0")
    a(f"v_cndmask_b32 v{SEL + 2}, v{SEL + 2}, 1.0, s[20:21]")
    a("v_cmp_eq_u32 vcc, 2, v11")
    a("v_and_b32 v10, 15, v0")
    a("v_lshrrev_b32 v11, 4, v0")
    for r in range(4):
        a(f"v_cndmask_b32 v{CI + r}, 0, 1.0, vcc")
    a("v_lshlrev_b32 v11, 2, v11")
    a("v_sub_u32 v10, v11, v10")
    a(f"v_mov_b32 v12, {f32(BIG)}")
    a("s_cmp_eq_u32 s41, 0")
    a("s_cselect_b64 s[38:39], 0, -1")
    for r in range(4):
        a(f"v_add_u32 v11, {r}, v10")
        a("v_and_b32 v13, 1, v11")
        a("v_cmp_eq_u32 s[20:21], 0, v13")
        a("v_cmp_lt_i32 vcc, 1, v11")
        a("v_cmp_gt_i32 s[18:19], 1, v11")
        a("s_and_b64 vcc, vcc, s[20:21]")
        a("s_and_b64 s[18:19], s[18:19], s[20:21]")
        a("s_and_b64 s[20:21], vcc, s[38:39]")
        a(f"v_cndmask_b32 v{BP + r}, v12, 0, vcc")
        a(f"v_cndmask_b32 v{BC + r}, v12, 0, s[18:19]")
        a(f"v_cndmask_b32 v{BP1 + r}, v12, 0, s[20:21]")
    setup, early = wo_weight_loads(a)
    for t in setup:
        a(t)
    a(f"v_add_u32 v6, {45 * KB}, v253")
    a("s_waitcnt vmcnt(0)")
    a("s_barrier")
    mark(a, 1)

    def xread(ks, tt):
        r = BF + 20 * (ks & 1) + 4 * tt
        f = ks * 5 + tt
        return f"ds_read_b128 v[{r}:{r + 3}], v{253 if f < 45 else 6} offset:{(f % 45) * KB}"

    for tt in range(5):
        a(xread(0, tt))
    stage = {1: list(xdma(1)), 2: list(xdma(2))}
    raw = [ffn_raw_dma(i) for i in range(Cfg.raw_mid, 16)]
    wq = []
    for k in range(QR - 1, 18):
        ls = list(qkv_wload(k))
        ls[3] += "\ns_add_u32 s28, s28, 4096"
        wq += [(l, ("w", k)) for l in ls]
    for ks in range(18):
        cur = BF + 20 * (ks & 1)
        fill = {}
        if ks < 17:
            for tt in range(5):
                fill[tt] = [(xread(ks + 1, tt), None)]
        vq = []
        st = 1 if ks < 4 else 2
        for _ in range(2):
            if stage[st] and ks != 4:
                vq.append((stage[st].pop(0), ("x", st)))
        for _ in range(Cfg.w_per_ks):
            if wq and wq[0][1][1] - QR < ks:
                vq.append(wq.pop(0))
        while ks >= 18 - QR + 1 and len(vq) < Cfg.wo_per_ks and early[0][1] < ks:
            vq.append((early.pop(0)[0], "o"))
        for i, op in enumerate(vq):
            fill[5 + 2 * i] = [op]
        if raw and ks >= 1:
            fill[18] = [(raw.pop(0), "z")]
        if ks == 4:
            fill[5 + 2 * len(vq)] = [("buffer_load_dwordx2 v[226:227], v228, s[8:11], s39 offen sc1", "b")]
        need = ([("w", ks)] if ks >= QR - 1 else []) + ([("x", (ks + 1) // 6)] if ks in (5, 11) else [])
        if ks == 18 - QR + 1:
            need.append("b")
        a(f"s_waitcnt vmcnt({vm.count(*need)}) lgkmcnt(0)" if need else "s_waitcnt lgkmcnt(0)")
        if ks == 18 - QR + 1:
            lp, ok = a.label("wo_poll"), a.label("wo_ready")
            a("s_mov_b32 s6, 0")
            a(f"{lp}:")
            a("v_cmp_eq_u32 vcc, s76, v226")
            a("v_cmp_eq_u32 s[20:21], s76, v227")
            a("s_and_b64 vcc, vcc, s[20:21]")
            a("s_cmp_eq_u64 vcc, exec")
            a(f"s_cbranch_scc1 {ok}")
            a("buffer_load_dwordx2 v[226:227], v228, s[8:11], s39 offen sc1")
            a("s_add_u32 s6, s6, 1")
            a(f"s_cmp_lt_u32 s6, {1 << 20}")
            a("s_waitcnt vmcnt(0)")
            a(f"s_cbranch_scc1 {lp}")
            a(f"s_branch {abort}")
            a(f"{ok}:")
        if ks in (5, 11):
            a("s_barrier")
        for u, (t, tt) in enumerate(units):
            c = acc[(t, tt)]
            wr = 16 * (ks % QR) + 4 * t
            w, x = f"a[{wr}:{wr + 3}]", f"v[{cur + 4 * tt}:{cur + 4 * tt + 3}]"
            if t == 2:
                w, x = x, w
            a(f"v_mfma_f32_16x16x32_bf16 v[{c}:{c + 3}], {w}, {x}, {'0' if ks == 0 else f'v[{c}:{c + 3}]'}")
            for text, tag in fill.get(u, []):
                a(text)
                if tag:
                    vm.issue(tag)
    assert not stage[1] and not stage[2]
    assert not wq
    early = [t for t, _ in early]
    nw = len(early) - 4
    tail_loads = early[nw - Cfg.wo_gap:nw]
    early = early[:nw - Cfg.wo_gap] + early[nw:]
    mark(a, 2)
    body = []
    e = body.append
    cvt = lambda d, s: e(f"v_cvt_pk_bf16_f32 v{d}, v{s}, v{s + 1}")
    mf = lambda d, x, y, c: e(f"v_mfma_f32_16x16x32_bf16 v[{d}:{d + 3}], v[{x}:{x + 3}], v[{y}:{y + 3}], {c}")
    quad = lambda r: f"v[{r}:{r + 3}]"
    for tt in range(1, 5):
        cvt(QO + 4 * tt, acc[(0, tt)]); cvt(QO + 4 * tt + 1, acc[(0, tt)] + 2)
    for tt in range(5):
        cvt(KO + 4 * tt, acc[(1, tt)]); cvt(KO + 4 * tt + 1, acc[(1, tt)] + 2)
    for tt in range(5):
        cvt(QO + 4 * tt + 2, acc[(3, tt)]); cvt(KO + 4 * tt + 2, acc[(3, tt)] + 2)
    for tt in range(5):
        cvt(VO + 2 * tt, acc[(2, tt)]); cvt(VO + 2 * tt + 1, acc[(2, tt)] + 2)
    S, T, P, M = 16, 56, 76, 92
    for tt in range(1, 5):
        s = S + 8 * (tt - 1)
        mf(s, KO + 4 * (tt - 1), QO + 4 * tt, quad(BP1 if tt == 1 else BP))
        mf(s + 4, KO + 4 * tt, QO + 4 * tt, quad(BC))
    for tt in range(5):
        mf(T + 4 * tt, QO + 4 * tt, SEL, quad(CI))
    for i in range(4):
        s = S + 8 * i
        e(f"v_max3_f32 v{M + i}, v{s}, v{s + 1}, v{s + 2}")
        e(f"v_max3_f32 v{M + 4 + i}, v{s + 3}, v{s + 4}, v{s + 5}")
    for i in range(4):
        s = S + 8 * i
        e(f"v_max3_f32 v{M + i}, v{M + i}, v{s + 6}, v{s + 7}")
    for i in range(4):
        e(f"v_max_f32 v{M + i}, v{M + i}, v{M + 4 + i}")
    c = 18 ** -0.5 * math.log2(math.e)
    e(f"s_mov_b32 s18, {f32(c)}")
    tcv = [(VL + 2 * tt + h, T + 4 * tt + 2 * h) for tt in range(5) for h in range(2)]
    pad = lambda n: [cvt(*tcv.pop(0)) for _ in range(n)]
    pad(1)
    e(f"v_permlane32_swap_b32 v{M}, v{M + 1}")
    e(f"v_permlane32_swap_b32 v{M + 2}, v{M + 3}")
    e(f"v_max_f32 v{M}, v{M}, v{M + 1}")
    e(f"v_max_f32 v{M + 2}, v{M + 2}, v{M + 3}")
    pad(2)
    e(f"v_permlane16_swap_b32 v{M}, v{M + 2}")
    e(f"v_max_f32 v{M}, v{M}, v{M + 2}")
    e(f"v_mul_f32 v{M}, {f32(-c)}, v{M}")
    e(f"v_mov_b32 v{M + 2}, v{M}")
    pad(2)
    e(f"v_permlane16_swap_b32 v{M}, v{M + 2}")
    e(f"v_mov_b32 v{M + 1}, v{M}")
    e(f"v_mov_b32 v{M + 3}, v{M + 2}")
    pad(2)
    e(f"v_permlane32_swap_b32 v{M}, v{M + 1}")
    e(f"v_permlane32_swap_b32 v{M + 2}, v{M + 3}")
    pad(3)
    OA, OL, R, OUT, LO = 100, 116, 96, 212, 220
    for i in range(4):
        s = S + 8 * i
        for r in range(8):
            e(f"v_fma_f32 v{s + r}, v{s + r}, s18, v{M + i}")
        for r in range(8):
            e(f"v_exp_f32 v{s + r}, v{s + r}")
        if i:
            mf(OA + 4 * (i - 1), VO + 2 * (i - 1), P + 4 * (i - 1), "0")
            mf(OL + 4 * (i - 1), VL + 2 * (i - 1), P + 4 * (i - 1), "0")
        else:
            e("s_nop 0")
        for r in range(4):
            cvt(P + 4 * i + r, s + 2 * r)
    e(f"v_rcp_f32 v{R}, v{OL + 2}")
    e(f"v_rcp_f32 v{R + 1}, v{OL + 6}")
    mf(OA + 12, VO + 6, P + 12, "0")
    mf(OL + 12, VL + 6, P + 12, "0")

    def scale(i):
        sel = "op_sel:[1,0] op_sel_hi:[1,1]" if i & 1 else "op_sel:[0,0] op_sel_hi:[0,1]"
        rp = R + (i & 2)
        for o in (OA + 4 * i, OA + 4 * i + 2, OL + 4 * i):
            e(f"v_pk_mul_f32 v[{o}:{o + 1}], v[{rp}:{rp + 1}], v[{o}:{o + 1}] {sel}")
        cvt(OUT + 2 * i, OA + 4 * i); cvt(OUT + 2 * i + 1, OA + 4 * i + 2); cvt(LO + i, OL + 4 * i)

    scale(0)
    e(f"v_rcp_f32 v{R + 2}, v{OL + 10}")
    scale(1)
    e(f"v_rcp_f32 v{R + 3}, v{OL + 14}")
    e(f"v_permlane16_swap_b32 v{OUT}, v{OUT + 2}")
    e(f"v_permlane16_swap_b32 v{OUT + 1}, v{OUT + 3}")
    scale(2)
    scale(3)
    LX = 92 * KB
    e("s_lshl_b32 s7, s3, 2")
    e(f"s_add_u32 s7, s7, {LX}")
    e(f"v_permlane16_swap_b32 v{LO}, v{LO + 1}")
    e(f"v_permlane16_swap_b32 v{LO + 2}, v{LO + 3}")
    e("v_add_u32 v11, s7, v253")
    e("v_lshrrev_b32 v10, 3, v0")
    e(f"v_permlane32_swap_b32 v{LO}, v{LO + 2}")
    e(f"v_mul_u32_u24 v10, {GB}, v10")
    e(f"ds_write_b32 v11, v{LO}")
    e(f"v_permlane16_swap_b32 v{OUT + 4}, v{OUT + 6}")
    e(f"v_permlane16_swap_b32 v{OUT + 5}, v{OUT + 7}")
    step = max(1, len(body) // len(early))
    for i, t in enumerate(body):
        a(t)
        if early and i % step == step - 1:
            a(early.pop(0))
    for t in early:
        a(t)
    a("s_mul_i32 s7, s40, 1152")
    a("s_add_u32 s22, s22, s7")
    a(f"s_add_u32 s22, s22, {OO}")
    a("s_lshl_b32 s7, s3, 8")
    a("s_add_u32 s23, s22, s7")
    a(f"s_add_u32 s24, s23, {4 * GB}")
    a(f"buffer_store_dwordx4 v[{OUT}:{OUT + 3}], v9, s[8:11], s23 offen sc1")
    a(f"buffer_store_dwordx4 v[{OUT + 4}:{OUT + 7}], v9, s[8:11], s24 offen sc1")
    a("v_and_b32 v11, 7, v0")
    a("v_lshl_add_u32 v10, v11, 4, v10")
    a("s_cmp_eq_u32 s3, 3")
    a(f"s_cselect_b32 s7, 0, {OOB}")
    a("v_add_u32 v10, s7, v10")
    a(f"v_add_u32 v11, {LX}, v253")
    a("s_waitcnt lgkmcnt(0)")
    a("s_barrier")
    a(f"ds_read_b128 v[{LO}:{LO + 3}], v11")
    a("s_waitcnt lgkmcnt(0)")
    a(f"buffer_store_dwordx4 v[{LO}:{LO + 3}], v10, s[8:11], s22 offen offset:1024 sc1")
    mark(a, 3)
    publish(a, PH_QKV)
    mark(a, 4)
    for t in tail_loads:
        a(t)


def phase_wo(a, abort):
    RES, BF, ACC, T = 240, 160, 100, 124
    z0 = a.label("swz")
    a("s_cmp_lg_u32 s42, 0")
    a(f"s_cbranch_scc1 {z0}")
    zst = ffn_transpose(a)
    a("s_mov_b32 s72, s8")
    a("s_mov_b32 s73, s9")
    a(f"s_mov_b32 s74, {WS_SIZE}")
    a("s_waitcnt lgkmcnt(0)")
    for _ in range(Cfg.z_early):
        a(zst.pop(0))
    if Cfg.code_warm > 2:
        code_warm(a, "v[14:15]")
    a(f"{z0}:")
    a("s_and_b32 s7, s3, 1")
    a(f"s_mul_i32 s7, s7, {2 * GB}")
    a("s_add_u32 s24, s30, s7")
    a("s_lshr_b32 s7, s3, 1")
    a("s_lshl_b32 s7, s7, 9")
    a("s_add_u32 s24, s24, s7")
    a(f"s_add_u32 s24, s24, {OO}")
    a("s_mov_b32 s16, 0xffff0000")
    for sl in range(3):
        for i in range(4):
            a(f"v_lshlrev_b32 v{T + 8 * sl + 2 * i}, 16, v{RES + 4 * sl + i}")
            a(f"v_and_b32 v{T + 8 * sl + 2 * i + 1}, s16, v{RES + 4 * sl + i}")
    MX = 40 * KB
    a("s_cmp_eq_u32 s3, 1")
    a("s_cselect_b32 s7, 16, 0")
    a("v_lshlrev_b32 v12, 2, v0")
    a("v_cmp_gt_u32 vcc, s7, v0")
    a(f"v_add_u32 v10, {MX}, v12")
    a(f"v_add_u32 v11, {MX + 512}, v12")
    a("v_cndmask_b32 v10, v11, v10, vcc")
    a("v_and_b32 v11, 0x7c, v12")
    a("v_cmp_gt_u32 vcc, 32, v0")
    a(f"v_mov_b32 v13, {OOB}")
    a("s_and_b32 s7, s40, 3")
    a("s_lshl_b32 s45, s45, 2")
    a("v_cndmask_b32 v8, v13, v12, vcc")
    a("s_add_u32 s6, s7, s3")
    a("s_cmp_eq_u32 s6, 0")
    a(f"s_cselect_b32 s6, 0, {OOB}")
    a("v_add_u32 v6, s6, v8")
    a("s_add_u32 s45, s45, s7")
    a("s_lshl_b32 s45, s45, 2")
    a("s_add_u32 s45, s45, s3")
    a("s_lshl_b32 s45, s45, 7")
    a("s_add_u32 s45, s45, s43")
    a(f"s_add_u32 s45, s45, {STAT}")
    a("s_cmp_eq_u32 s3, 0")
    a("s_cselect_b32 s35, 1.0, 0")
    ring = ffn_ring_setup(a)
    wait_flags(a, PH_QKV * FPH, abort)
    mark(a, 5)
    a("s_lshl_b32 m0, s3, 10")
    for m in range(9):
        if m:
            a("s_add_u32 m0, m0, 4096")
            a("s_add_u32 s24, s24, 1024")
        else:
            a("s_nop 0")
        a(f"buffer_load_dwordx4 v2, s[8:11], s24 offen {Cfg.xflag} lds")
    z1 = a.label("swz")
    assert not zst
    a("s_waitcnt vmcnt(4)")
    a("s_barrier")
    mark(a, 6)
    for tt in range(2):
        a(f"ds_read_b128 v[{BF + 4 * tt}:{BF + 4 * tt + 3}], v253 offset:{tt * KB}")
    for ks in range(18):
        cur, nxt = BF + 8 * (ks & 1), BF + 8 * ((ks + 1) & 1)
        if ks == 9:
            a("s_waitcnt vmcnt(9) lgkmcnt(0)")
            a("s_barrier")
            a(f"s_xor_b32 s7, s3, {Cfg.pw}")
            a("s_or_b32 s7, s7, s42")
            a(f"s_cbranch_scc1 {z1}")
            column_flag(a, SL_WF)
            a("s_mov_b64 exec, -1")
            a(f"{z1}:")
        else:
            a("s_waitcnt lgkmcnt(0)")
        i = 0
        for sl in range(3):
            for tt in range(2):
                c = ACC + 4 * (2 * sl + tt)
                w = wo_reg(ks, sl)
                src = "0" if ks == 0 else f"v[{c}:{c + 3}]"
                a(f"v_mfma_f32_16x16x32_bf16 v[{c}:{c + 3}], a[{w}:{w + 3}], v[{cur + 4 * tt}:{cur + 4 * tt + 3}], {src}")
                if i < 2 and ks < 17:
                    a(f"ds_read_b128 v[{nxt + 4 * i}:{nxt + 4 * i + 3}], v253 offset:{((ks + 1) * 2 + i) * KB}")
                if i == 3 and ring:
                    a(ring.pop(0))
                i += 1
    mark(a, 7)
    XR = 148
    a("s_nop 3")
    for r in range(4):
        a(f"v_permlane16_swap_b32 v{ACC + r}, v{ACC + 4 + r}")
    a(f"v_add_f32 v12, v{ACC + 16}, v{ACC + 17}")
    a(f"v_add_f32 v13, v{ACC + 20}, v{ACC + 21}")
    a("ds_write_b32 v10, v12")
    a("ds_write_b32 v10, v13 offset:64")
    for sl in (1, 2):
        for r in range(4):
            a(f"v_permlane16_swap_b32 v{ACC + 8 * sl + r}, v{ACC + 8 * sl + 4 + r}")
    a("s_waitcnt lgkmcnt(0)")
    a("s_barrier")
    a(f"ds_read_b32 v12, v11 offset:{MX}")
    for sl in range(3):
        for i in range(4):
            t, c = T + 8 * sl + 2 * i, ACC + 8 * sl + 2 * i
            a(f"v_pk_add_f32 v[{t}:{t + 1}], v[{t}:{t + 1}], v[{c}:{c + 1}]")
    a("v_mov_b32 v14, 0")
    a("v_mov_b32 v15, 0")
    a("s_waitcnt lgkmcnt(0)")
    a("v_add_f32 v12, v12, v252")
    for sl in range(3):
        for i in range(4):
            t, c = T + 8 * sl + 2 * i, ACC + 8 * sl + 2 * i
            a(f"v_pk_add_f32 v[{c}:{c + 1}], v[{t}:{t + 1}], v[12:13] op_sel_hi:[1,0] neg_lo:[0,1] neg_hi:[0,1]")
        for i in range(4):
            c = ACC + 8 * sl + 2 * i
            a(f"v_cvt_pk_bf16_f32 v{XR + 4 * sl + i}, v{c}, v{c + 1}")
        a(f"buffer_store_dwordx4 v[{XR + 4 * sl}:{XR + 4 * sl + 3}], v{7 if sl == 2 else 9}, s[8:11], s46 offen offset:{sl * KB} sc1")
    for i in range(12):
        a(f"v_dot2c_f32_bf16 v{15 if i >= 8 else 14}, v{XR + i}, v{XR + i}")
    a("buffer_store_dword v12, v6, s[8:11], s36 offen sc1")
    a("s_nop 1")
    a("v_fma_f32 v14, v15, s35, v14")
    a("v_mov_b32 v15, v14")
    a("s_nop 1")
    a("v_permlane32_swap_b32 v14, v15")
    a("v_add_f32 v14, v14, v15")
    a("buffer_store_dword v14, v8, s[8:11], s45 offen sc1")
    publish(a, PH_WO)
    mark(a, 8)


FFN_LDS = 144 * KB
HB = 72 * KB


def pack_gaps(n_gaps, pinned, ops, start=0, cap=2):
    gaps = [list(pinned.get(g, [])) for g in range(n_gaps)]
    g = start
    for text, cost, earliest in ops:
        g = max(g, earliest)
        while sum(c for _, c in gaps[g]) + cost > cap:
            g += 1
        gaps[g].append((text, cost))
    return gaps


def check_stage_reads(mf, gaps, base, n):
    stage = {("v", base + i) for i in range(n)}
    wr = {}
    for i, t in enumerate(mf):
        for r in hazards.I(t, 0).w & stage:
            wr[r] = i
    for i, g in enumerate(gaps):
        for t, _ in g:
            for r in hazards.I(t.split("\n")[-1], 0).r & stage:
                assert i < wr[r], (i, t, wr[r])


RING, VB = 16, 184
RING_EXT = [104, 108, 112, 116, 180, 196, 200, 204, 208, 212, 136, 140, 144, 160, 164, 168, 148, 4]


def slot_reg(slot):
    return RING + 4 * slot if slot < 18 else RING_EXT[slot - 18]


def wload(slot, n):
    r = slot_reg(slot)
    return f"buffer_load_dwordx4 v[{r}:{r + 3}], v{VB + n // 4}, s[48:51], s23 offen offset:{(n % 4) * KB} {Cfg.wflag}"


def ffn_ring_setup(a):
    a("s_lshl_b32 s7, s40, 2")
    a("s_add_u32 s7, s7, s3")
    a(f"s_mul_i32 s23, s7, {WSTR}")
    a(f"s_add_u32 s23, s23, {WF}")
    a(f"s_add_u32 s50, s23, {486 * KB}")
    a("s_mul_i32 s50, s50, s42")
    a(f"v_mov_b32 v{VB}, v253")
    for m in range(1, 9):
        a(f"v_add_u32 v{VB + m}, {4096 * m}, v253")
    return [wload(n, n) for n in range(15)]


def phase_ffn(a, abort):
    ACC, STG, TMP = 88, 120, 152
    OA = 216
    xreg = lambda tt, ks: reg(256 + 4 * (tt * 18 + ks), 4) if tt * 18 + ks < 64 else reg(220 + 4 * (tt * 18 + ks - 64), 4)
    a("s_lshl_b32 s7, s41, 2")
    a("s_add_u32 s7, s7, s3")
    a(f"s_mul_i32 s22, s7, {2 * GB}")
    a("s_add_u32 s22, s22, s43")
    a(f"s_add_u32 s22, s22, {XC}")
    a(f"s_mul_i32 s24, s3, {18 * KB}")
    a("s_lshl_b32 s25, s41, 12")
    a("s_add_u32 s25, s25, s43")
    a(f"s_add_u32 s25, s25, {STAT}")
    a("v_lshrrev_b32 v3, 5, v0")
    a("v_and_b32 v10, 31, v0")
    a("v_lshlrev_b32 v10, 2, v10")
    a("v_lshl_add_u32 v3, v3, 11, v10")
    a(f"v_add_u32 v11, {36 * KB}, v{VB}")
    early = red_setup(a)
    dtile_voff(a, "v178", "v1", None, 8 * GB)
    a(f"v_add_u32 v179, {32 * GB}, v178")
    a("v_lshrrev_b32 v1, 5, v0")
    a("v_and_b32 v15, 7, v0")
    a("v_lshlrev_b32 v15, 4, v15")
    a("v_lshl_add_u32 v15, v1, 7, v15")
    a("s_lshl_b32 s7, s3, 8")
    a(f"s_add_u32 s7, s7, {OWN - KB}")
    a("v_add_u32 v15, s7, v15")
    a("v_bfe_u32 v1, v0, 3, 2")
    a(f"v_mov_b32 v182, {OOB}")
    a(f"v_add_u32 v183, {OWN + 10 * KB}, v253")
    for pr in range(2):
        a(f"s_sub_u32 s7, s40, {4 * pr}")
        a("v_cmp_eq_u32 vcc, s7, v1")
        a("s_nop 1")
        a(f"v_cndmask_b32 v{178 + pr}, v{178 + pr}, v182, vcc")
        a(f"v_cndmask_b32 v{OA + pr}, v183, v15, vcc")
        a(f"v_cndmask_b32 v{OA + 2 + pr}, 0, 1, vcc")
        a(f"v_lshlrev_b32 v{OA + 2 + pr}, 10, v{OA + 2 + pr}")
    a(f"s_mul_i32 s26, s41, {64 * GB}")
    a(f"s_mul_i32 s7, s40, {GB}")
    a("s_add_u32 s26, s26, s7")
    a("s_lshl_b32 s7, s3, 8")
    a("s_add_u32 s27, s26, s7")
    a(f"s_add_u32 s27, s27, {PART - KB}")
    a("s_mov_b32 s74, 0")
    a(f"s_mul_i32 s7, s42, {3 * FPH}")
    a("s_sub_u32 s29, s44, s7")
    a(f"s_add_u32 s29, s29, {(SL_EARLY - 1) * FPH}")
    a("s_lshl_b32 s7, s40, 7")
    a("s_add_u32 s7, s7, s29")
    a("s_add_u32 s38, s4, s7")
    a("s_addc_u32 s39, s5, 0")
    a("s_lshl_b32 s7, s40, 2")
    a("s_add_u32 s29, s29, s7")
    a(f"s_add_u32 s50, s23, {486 * KB}")
    late, seen = a.label("ring"), a.label("ring")
    a("s_cmp_lg_u32 s42, 0")
    a(f"s_cbranch_scc1 {late}")
    a(f"s_cmp_lg_u32 s3, {Cfg.pw}")
    a(f"s_cbranch_scc1 {seen}")
    column_wait(a, SL_WF, abort)
    a(f"{seen}:")
    a("s_barrier")
    for n in range(15):
        a(wload(n, n))
    a(f"{late}:")
    wait_flags(a, PH_WO * FPH, abort)
    mark(a, 9)
    C0, C1, VV, SS = [4, 5, 6, 7], [8, 9, 13, 14], [193, 194, 195, 252], 136
    k0 = -2.0 * math.sqrt(2.0 / math.pi) * math.log2(math.e)

    def xdma(ks):
        return (f"s_add_u32 m0, s24, {ks * KB - (ks % 8) * 512}\n"
                + ("s_add_u32 s22, s22, 4096\n" if ks and ks % 8 == 0 else "s_nop 0\n")
                + f"buffer_load_dwordx4 v2, s[8:11], s22 offen offset:{(ks % 8) * 512} {Cfg.xflag} lds")

    def xread(tt, ks):
        f = tt * 18 + ks
        return f"ds_read_b128 {xreg(tt, ks)}, v{VB if f < 36 else 11} offset:{(f % 36) * KB}"

    hread = lambda tt, ks: f"ds_read_b128 {xreg(tt, ks)}, v{10 if tt < 2 else 11} offset:{((tt * 18 + ks) % 36) * KB}"
    vm0 = Vm()
    for n in range(15):
        vm0.issue(("w", n))
    for ks in range(12):
        a(xdma(ks))
        vm0.issue(("x", ks))
    a(f"s_add_u32 s23, s23, {15 * KB}")
    a("s_lshr_b32 s7, s3, 1")
    a("s_lshl_b32 s7, s7, 10")
    a("s_and_b32 s6, s3, 1")
    a("s_lshl_b32 s6, s6, 3")
    a("s_add_u32 s28, s7, s6")
    a(f"s_add_u32 s28, s28, {HB}")
    if Cfg.noload:
        a("s_mov_b32 s50, 0")
    a(f"s_waitcnt vmcnt({vm0.count(('x', 5))})")
    a("s_barrier")
    mark(a, 10)
    for ks in range(3):
        for tt in range(4):
            a(xread(tt, ks))

    def const_ops(e):
        ops = []
        for n in (8, 4, 2, 1):
            ops += [(f"v_add_f32 v{SS + i}, v{SS + i}, v{SS + n + i}", 1, e) for i in range(n)]
        ops += [(f"v_mov_b32 v{SS + 1}, {f32(1e-5)}", 1, e), (f"v_fmac_f32 v{SS + 1}, {f32(1.0 / 576)}, v{SS}", 1, e),
                (f"v_mov_b32 v{VV[0]}, v{SS + 1}", 1, e),
                (f"s_nop 0\nv_permlane16_swap_b32 v{VV[0]}, v{SS + 1}", 2, e),
                (f"v_mov_b32 v{VV[2]}, v{VV[0]}", 1, e), (f"v_mov_b32 v{VV[1]}, v{SS + 1}", 1, e),
                (f"v_mov_b32 v{VV[3]}, v{SS + 1}", 1, e),
                (f"s_nop 0\nv_permlane32_swap_b32 v{VV[0]}, v{VV[2]}", 2, e),
                (f"v_permlane32_swap_b32 v{VV[1]}, v{VV[3]}", 2, e)]
        ops += [(f"v_rsq_f32 v{C0[tt]}, v{VV[tt]}", 2, e) for tt in range(4)]
        ops += [(f"v_mul_f32 v{C1[tt]}, v{C0[tt]}, v{C0[tt]}", 1, e) for tt in range(4)]
        ops += [(f"v_mul_f32 v{C0[tt]}, {f32(k0)}, v{C0[tt]}", 1, e) for tt in range(4)]
        ops += [(f"v_mul_f32 v{C1[tt]}, {f32(0.044715)}, v{C1[tt]}", 1, e) for tt in range(4)]
        ops += [(f"v_mul_f32 v{C1[tt]}, v{C1[tt]}, v{C0[tt]}", 1, e) for tt in range(4)]
        return ops

    def gelu_ops(first_gap):
        ops = []
        for tt in range(4):
            t, p, o = TMP + 10 * (tt & 1), TMP + 10 * (tt & 1) + 4, TMP + 10 * (tt & 1) + 8
            g, u = STG + 4 * tt, STG + 16 + 4 * tt
            e = first_gap(tt)
            for r in range(4):
                ops.append((f"v_mul_f32 v{t + r}, v{g + r}, v{g + r}", 1, e))
            for r in range(4):
                ops.append((f"v_fma_f32 v{t + r}, v{t + r}, v{C1[tt]}, v{C0[tt]}", 1, e))
            for r in range(4):
                ops.append((f"v_mul_f32 v{t + r}, v{g + r}, v{t + r}", 1, e))
            for r in range(4):
                ops.append((f"v_exp_f32 v{t + r}, v{t + r}", 2, e))
            for r in range(4):
                ops.append((f"v_mul_f32 v{p + r}, v{g + r}, v{u + r}", 1, e))
            for r in range(4):
                ops.append((f"v_fma_f32 v{t + r}, v{t + r}, v{VV[tt]}, v{VV[tt]}", 1, e))
            for r in range(4):
                ops.append((f"v_rcp_f32 v{t + r}, v{t + r}", 2, e))
            for r in range(4):
                ops.append((f"v_mul_f32 v{p + r}, v{p + r}, v{t + r}", 1, e))
            ops.append((f"v_cvt_pk_bf16_f32 v{o}, v{p}, v{p + 1}", 1, e))
            ops.append((f"v_cvt_pk_bf16_f32 v{o + 1}, v{p + 2}, v{p + 3}", 1, e))
            ops.append((f"ds_write_b64 v12, v[{o}:{o + 1}] offset:{tt * 18 * KB}", 2, e))
        return ops

    def gu_step(kind):
        mf, pinned = [], {}
        for G in range(12):
            gu, grp = G & 1, G >> 1
            for tt in range(4):
                for kk in range(3):
                    ks = 3 * grp + kk
                    c = ACC + 16 * gu + 4 * tt
                    d = STG + 16 * gu + 4 * tt if ks == 17 else c
                    src = "0" if ks == 0 else f"v[{c}:{c + 3}]"
                    w = RING + 4 * ((3 * G + kk) % 18)
                    mf.append(f"v_mfma_f32_16x16x32_bf16 v[{d}:{d + 3}], v[{w}:{w + 3}], {xreg(tt, ks)}, {src}")
            for kk in range(3):
                n = 3 * G + kk
                pinned[12 * G + 4 * kk + Cfg.ldpos] = [(wload((n + 15) % 18, n), 2)]
        if kind == "first":
            for k in range(6):
                pinned[4 * k + 3] = [(xdma(12 + k), 2)]
            for k in range(16):
                pinned[24 + 12 * (k // 5) + (3, 6, 7, 10, 11)[k % 5]] = \
                    [(f"buffer_load_dword v{SS + k}, v3, s[8:11], s25 offen offset:{128 * k} sc1", 2)]
            ops = [(xread(tt, ks), 1, 24 * (ks // 3 - 1) + (4 * (ks % 3) + tt) * 3 // 2) for ks in range(3, 18) for tt in range(4)]
            gaps = pack_gaps(144, pinned, ops)
            gaps = pack_gaps(144, dict(enumerate(gaps)), const_ops(96))
        else:
            gaps = pack_gaps(144, pinned, [] if Cfg.nogelu else gelu_ops(lambda tt: 2), cap=Cfg.gcap)
        if kind == "last":
            g = 0
            for ks in range(14):
                for tt in range(4):
                    g = max(g + 1, 24 * (ks // 3) + 12 + 3 * tt + ks % 3)
                    while g < 143 and any("buffer_" in t or "ds_" in t for t, _ in gaps[g]):
                        g += 1
                    gaps[min(g, 143)].append((hread(tt, ks), 1))
        check_stage_reads(mf, gaps, STG, 32)
        lg = Vm()
        lg.issue(2)
        for i in range(144):
            G = i // 12
            if i % 12 == 0 and kind == "first":
                need = [("w", 3 * G + 2)] + {2: [("x", 11)], 6: [("x", 17)], 8: ["s"]}.get(G, [])
                a(f"s_waitcnt vmcnt({vm0.count(*need)}) lgkmcnt({min(15, lg.count(3 * (G // 2) + 2))})")
                if G in (2, 6):
                    a("s_barrier")
            elif i % 12 == 0:
                a("s_waitcnt vmcnt(12)")
            a(mf[i])
            for text, _ in gaps[i]:
                a(text)
                if kind == "first":
                    if "s[48:51]" in text:
                        vm0.issue(("w", 3 * G + (i % 12) // 4 + 15))
                    elif " lds" in text:
                        vm0.issue(("x", 12 + i // 4))
                    elif "buffer_load_dword " in text:
                        vm0.issue("s")
                    elif "ds_read" in text:
                        lg.issue(int(text.split("offset:")[1]) // KB % 18)
            if i == 139:
                a("s_lshl_b32 s7, s25, 11" if kind != "first" else "s_mov_b32 s25, 0")
            if i == 140:
                a("s_add_u32 s7, s7, s28" if kind != "first" else "s_mov_b32 s7, s28")
            if i == 142:
                a(f"s_add_u32 s23, s23, {36 * KB}")
        a(f"v_add_u32 v12, s7, v{VB}")
        a("s_add_u32 s25, s25, 1")

    gu_step("first")
    mark(a, 12)
    lp = a.label("ffn_gu")
    a(f"{lp}:")
    gu_step("loop")
    a("s_cmp_lt_u32 s25, 8")
    a(f"s_cbranch_scc1 {lp}")
    a(f"v_add_u32 v10, {HB}, v{VB}")
    a(f"v_add_u32 v11, {HB + 36 * KB}, v{VB}")
    if Cfg.code_warm > 1:
        code_warm(a, "v[2:3]")
    a("s_waitcnt lgkmcnt(0)")
    a("s_barrier")
    gu_step("last")
    mark(a, 13)
    a("s_waitcnt lgkmcnt(0)")
    a("s_barrier")
    reads = [hread(tt, ks) for ks in (14, 15) for tt in range(4)]
    ops = []
    for tt in range(4):
        t, p, o = TMP + 10 * (tt & 1), TMP + 10 * (tt & 1) + 4, TMP + 10 * (tt & 1) + 8
        g, u = STG + 4 * tt, STG + 16 + 4 * tt
        pr = lambda r: f"v[{r}:{r + 1}]"
        bc = lambda r: (pr(r & ~1), r & 1)

        def pkfma(d, x, y, z):
            (ry, sy), (rz, sz) = bc(y), bc(z)
            return f"v_pk_fma_f32 {pr(d)}, {pr(x)}, {ry}, {rz} op_sel:[0,{sy},{sz}] op_sel_hi:[1,{sy},{sz}]"
        ops += [f"v_pk_mul_f32 {pr(t + r)}, {pr(g + r)}, {pr(g + r)}" for r in (0, 2)]
        ops += [pkfma(t + r, t + r, C1[tt], C0[tt]) for r in (0, 2)]
        ops += [f"v_pk_mul_f32 {pr(t + r)}, {pr(g + r)}, {pr(t + r)}" for r in (0, 2)]
        ops += [f"v_exp_f32 v{t + r}, v{t + r}" for r in range(4)]
        ops += [f"v_pk_mul_f32 {pr(p + r)}, {pr(g + r)}, {pr(u + r)}" for r in (0, 2)]
        ops += [pkfma(t + r, t + r, VV[tt], VV[tt]) for r in (0, 2)]
        ops += [f"v_rcp_f32 v{t + r}, v{t + r}" for r in range(4)]
        ops += ["s_nop 0"]
        ops += [f"v_pk_mul_f32 {pr(p + r)}, {pr(p + r)}, {pr(t + r)}" for r in (0, 2)]
        ops += [f"v_cvt_pk_bf16_f32 v{o}, v{p}, v{p + 1}", f"v_cvt_pk_bf16_f32 v{o + 1}, v{p + 2}, v{p + 3}"]
        ops += [f"ds_write_b64 v12, v[{o}:{o + 1}] offset:{tt * 18 * KB}"]
    ahead = [wload(15 + n, n) for n in range(18)]
    for i, t in enumerate(ops):
        a(t)
        if reads and i % 4 != 3:
            a(reads.pop(0))
        if i % 6 == 5 and len(ahead) > 5:
            a(ahead.pop(0))
    for t in reads + ahead:
        a(t)
    a(f"s_add_u32 s23, s23, {18 * KB}")
    a("s_waitcnt lgkmcnt(0)")
    a("s_barrier")
    for ks in (16, 17):
        for tt in range(4):
            a(hread(tt, ks))
    a("s_mov_b32 s25, 0")
    a("s_waitcnt lgkmcnt(0)")
    mark(a, 14)

    def down_epi(e):
        ops = []
        for pr in range(2):
            o = TMP + 4 * pr
            for h in range(2):
                s = STG + 4 * (2 * pr + h)
                ops.append((f"v_cvt_pk_bf16_f32 v{o + 2 * h}, v{s}, v{s + 1}", 1, e))
                ops.append((f"v_cvt_pk_bf16_f32 v{o + 2 * h + 1}, v{s + 2}, v{s + 3}", 1, e))
        for pr in range(2):
            o = TMP + 4 * pr
            ops.append((f"v_permlane16_swap_b32 v{o}, v{o + 2}", 2, e))
            ops.append((f"v_permlane16_swap_b32 v{o + 1}, v{o + 3}", 2, e))
        for pr in range(2):
            o = TMP + 4 * pr
            if not Cfg.nostore:
                ops.append((f"buffer_store_dwordx4 v[{o}:{o + 3}], v{178 + pr}, s[72:75], s27 offen {Cfg.pflag}", 2, e))
        for pr in range(2):
            o = TMP + 4 * pr
            ops.append((f"ds_write_b128 v{OA + pr}, v[{o}:{o + 3}]", 2, e))
            ops.append((f"v_add_u32 v{OA + pr}, v{OA + pr}, v{OA + 2 + pr}", 1, e))
        return ops

    def down_trip(half, vm, last=0, emit=True):
        out = a if emit else Asm()
        mark_dyn(out, 21, "s25")
        base = 0 if half else 18
        mf, pinned = [], {}
        for G in range(6):
            for tt in range(4):
                for kk in range(3):
                    ks = 3 * G + kk
                    c = ACC + 4 * tt
                    d = STG + 4 * tt if ks == 17 else c
                    src = "0" if ks == 0 else f"v[{c}:{c + 3}]"
                    w = slot_reg(base + ks)
                    mf.append(f"v_mfma_f32_16x16x32_bf16 v[{d}:{d + 3}], v[{w}:{w + 3}], {xreg(tt, ks)}, {src}")
            for kk in range(3):
                n = 3 * G + kk
                if not last or (last == 1 and G == 0):
                    pinned[12 * G + 4 * kk + 1] = [(wload((base + n + 33) % 36, n), 2)]
                elif early and (last == 2 or G >= 2):
                    pinned[12 * G + 4 * kk + 1] = [(early.pop(0), 2)]
        gaps = pack_gaps(72, pinned, down_epi(Cfg.epi_gap))
        check_stage_reads(mf, gaps, STG, 16)
        store_groups = [i // 12 for i in range(72) for t, _ in gaps[i] if "store" in t]
        for i in range(72):
            G = i // 12
            if i % 12 == 0 and last:
                out(f"s_waitcnt vmcnt({vm.count(('w', base + 3 * G + 2))})")
            elif i % 12 == 0:
                extra = sum(1 for sg in store_groups if sg < G)
                if not half:
                    extra += sum(1 for sg in store_groups if sg >= G - 4)
                out(f"s_waitcnt vmcnt({30 + extra})")
            if i == 36 and half and not last and emit:
                skip = a.label("early")
                a("s_cmp_lg_u32 s25, 6")
                a(f"s_cbranch_scc1 {skip}")
                a(f"s_waitcnt vmcnt({vm.count(('s', 0))})")
                a("s_barrier")
                a(f"s_cmp_lg_u32 s3, {Cfg.pw}")
                a(f"s_cbranch_scc1 {skip}")
                a("v_lshlrev_b32 v15, 7, v0")
                a("v_mov_b32 v1, s76")
                a("s_mov_b64 exec, 0xff")
                a("buffer_store_dword v1, v15, s[8:11], s29 offen sc1")
                a("s_mov_b64 exec, -1")
                a(f"{skip}:")
            if i == 24 and last == 1:
                lp, ok = a.label("epoll"), a.label("epolled")
                a(f"{lp}:")
                a("s_waitcnt lgkmcnt(0)")
                for r in (56, 58, 60, 62):
                    a(f"s_xor_b64 s[{r}:{r + 1}], s[{r}:{r + 1}], s[76:77]")
                a("s_or_b64 s[56:57], s[56:57], s[58:59]")
                a("s_or_b64 s[60:61], s[60:61], s[62:63]")
                a("s_or_b64 s[56:57], s[56:57], s[60:61]")
                a(f"s_cbranch_scc0 {ok}")
                a("s_load_dwordx8 s[56:63], s[38:39], 0 glc")
                a("s_add_u32 s6, s6, 1")
                a(f"s_cmp_lt_u32 s6, {1 << 20}")
                a(f"s_cbranch_scc1 {lp}")
                a(f"s_branch {abort}")
                a(f"{ok}:")
            out(mf[i])
            for text, _ in gaps[i]:
                out(text)
                if "buffer_store" in text:
                    vm.issue(("s", half))
                elif "s[48:51]" in text:
                    vm.issue(("w", (base + 3 * G + (i % 12) // 4 + 33) % 36))
                elif "buffer_load" in text:
                    vm.issue("e")
            if i == 14 and last == 1:
                out("s_load_dwordx8 s[56:63], s[38:39], 0 glc")
            if i == 15 and last == 1:
                out("s_mov_b32 s6, 0")
            if i == 66:
                out(f"s_mov_b32 s74, {WS_SIZE}")
            if i == 67:
                out(f"s_add_u32 s27, s27, {KB}")
            if i == 68:
                out("s_add_u32 s25, s25, 1")
            if i == 70:
                out(f"s_add_u32 s23, s23, {18 * KB}")

    lp, mid = a.label("ffn_dn"), a.label("ffn_dn_mid")
    vm = Vm()
    down_trip(1, vm, emit=False)
    a(f"s_branch {mid}")
    a(f"{lp}:")
    down_trip(0, vm)
    a(f"{mid}:")
    down_trip(1, vm)
    a("s_cmp_lt_u32 s25, 7")
    a(f"s_cbranch_scc1 {lp}")
    down_trip(0, vm, last=1)
    down_trip(1, vm, last=2)
    assert not early
    mark(a, 15)
    a("s_nop 7")
    prev = None
    for t, _, _ in down_epi(0):
        if "permlane" in t and "cvt" in prev:
            a("s_nop 1")
        a(t)
        prev = t
    a("s_waitcnt lgkmcnt(0)")
    publish(a, PH_FFN)
    mark(a, 20)


def k_main(a):
    name = NAME + "_kernel"
    kernel_begin(a, name)
    end, last, loop = "L_main_end", "L_main_last", "L_main_layer"
    Cfg.sv = 254
    entry(a, 256, end, ["s_load_dwordx4 s[16:19], s[0:1], 0", "s_load_dwordx2 s[22:23], s[0:1], 16",
                        "s_load_dwordx8 s[24:31], s[0:1], 32"])
    a(f"s_mov_b32 s7, {EPOCH}")
    a("s_load_dword s76, s[4:5], s7")
    a("s_mov_b64 s[20:21], s[18:19]")
    a("s_mov_b64 s[18:19], s[16:17]")
    srd(a, 48, "s4", "s5", WS_SIZE)
    tile_map(a, "s40", "s41", Cfg.jx)
    a("s_mov_b32 s42, 0")
    a("s_mov_b32 s43, 0")
    a("s_lshl_b32 s44, s41, 10")
    a(f"s_add_u32 s44, s44, {FLAGS + FPH}")
    a("v_lshlrev_b32 v253, 4, v0")
    if Cfg.stamps:
        a("v_mov_b32 v254, 0")
        a("v_mov_b32 v255, 0")
    if Cfg.code_warm:
        a("s_getpc_b64 s[96:97]")
        a("L_main_pc:")
        a(f"s_sub_u32 s96, s96, L_main_pc-{name}")
        a("s_subb_u32 s97, s97, 0")
        a("s_and_b32 s97, s97, 0xffff")
        a(f"s_mov_b32 s98, L_main_code_end-{name}")
        a("s_mov_b32 s99, 0x20000")
        code_warm(a, "v[2:3]")
    mark(a, 31)
    phase_prep(a, end)
    qkv_prefetch(a, 0, QR - 1)
    a(f"{loop}:")
    phase_qkv(a, end)
    phase_wo(a, end)
    phase_ffn(a, end)
    tail = phase_red(a, end, last)
    a("s_mov_b32 s42, 1")
    a(f"s_mov_b32 s43, {LSTR}")
    a(f"s_add_u32 s44, s44, {4 * FPH}")
    a("s_mov_b32 s74, 0")
    a(f"s_branch {loop}")
    a(f"{last}:")
    tail()
    done = a.label("done")
    a("s_or_b32 s7, s40, s41")
    a("s_or_b32 s7, s7, s3")
    a(f"s_cbranch_scc1 {done}")
    a("v_mov_b32 v1, s76")
    a(f"s_mov_b32 s7, {EPOCH}")
    a("s_mov_b64 exec, 1")
    a("buffer_store_dword v1, off, s[8:11], s7 sc1")
    a("s_mov_b64 exec, -1")
    a(f"{done}:")
    if Cfg.stamps:
        a("s_waitcnt vmcnt(0)")
        mark(a, 19)
        dump_marks(a, 1)
    a(f"{end}:")
    a("s_endpgm")
    a("L_main_code_end:")
    return name, 256, 256


def build(stamps=False):
    Cfg.stamps = stamps
    a = Asm()
    a('.amdgcn_target "amdgcn-amd-amdhsa--gfx950"')
    name, nv, na = k_main(a)
    kernel_desc(a, name, nv, na, 102)
    text = HEADER + f"; @launch grid=(256,1,1) block=(256,1,1) lds={160 * KB}\n" + a.text()
    bad = hazards.check(text)
    if bad:
        print("\n".join(bad[:40]), file=sys.stderr)
        raise SystemExit(f"{len(bad)} hazards")
    return text


if __name__ == "__main__":
    out = sys.argv[1] if len(sys.argv) > 1 else os.path.join(os.path.dirname(os.path.abspath(__file__)), "..", NAME + ".s")
    stamps = "--stamps" in sys.argv
    for x in sys.argv[2:]:
        if x.startswith("--set="):
            for kv in x[6:].split(","):
                k, v = kv.split(":")
                setattr(Cfg, k, int(v) if v.isdigit() else [int(y) for y in v.split("/")] if "/" in v else v.replace("+", " "))
    open(out, "w").write(build(stamps))
```

```python
import math
import os
import re
import struct
import sys

sys.path.insert(0, os.path.dirname(os.path.abspath(__file__)))
from asmlib import Asm, kernel_begin, kernel_desc, reg, srd
import hazards

NAME = "interleave_layers__sliding_local_dilated__glu_gated_geglu__prompt"
KB = 1024
GB = 9216
WS_SIZE = 256 << 20
WQ = 0
WO = 0x240000
WF = 0x300000
WSTR = 486 * KB
FLAGS = 0x1240000
FPH = 256 * 128
SL_WQ, SL_WF, SL_WO, SL_EARLY = 9, 10, 11, 12
EPOCH = 0x12C0000
PART = 0x1300000
XN = 0x2500000
OO = 0x2740000
X2 = 0x2980000
XC = 0x2BC0000
MEAN = 0x2E00000
STAT = 0x2E10000
MEAN1 = 0x2E30000
LSTR = int(os.environ.get("LSTR", "0"), 0)
OOB = 0x40000000
STAMP_OFF = 255 << 20

HEADER = """; Kernarg layout for this problem (80 bytes, ptrs only, base s[0:1]):
"""


def f32(x):
    return "0x%08x" % struct.unpack("<I", struct.pack("<f", x))[0]


def sdiv(a, dst, src, d, hi):
    m = -(-(1 << 20) // d)
    assert all((x * m) >> 20 == x // d for x in range(hi + 1)) and hi * m < (1 << 32)
    a(f"s_mul_i32 {dst}, {src}, {m}")
    a(f"s_lshr_b32 {dst}, {dst}, 20")


def sdivmod(a, q, r, src, d, hi):
    sdiv(a, q, src, d, hi)
    a(f"s_mul_i32 {r}, {q}, {d}")
    a(f"s_sub_u32 {r}, {src}, {r}")


def csel(a, dst, x, y):
    a(f"s_mov_b32 {dst}, {y}")
    a(f"s_cmov_b32 {dst}, {x}")


class Vm:
    def __init__(self):
        self.ops = []

    def issue(self, tag):
        self.ops.append(tag)

    def count(self, *tags):
        last = max(i for i, t in enumerate(self.ops) if t in tags)
        return len(self.ops) - 1 - last


MARK_NAMES = {21: "pre.x0", 22: "pre.q", 23: "pre.o", 24: "pre.set", 25: "pre.raw"}
MARK_ORDER = [31, 21, 23, 24, 25, 28, 29, 30, 27, 0, 1, 2, 3, 4, 5, 6, 7, 8, 9, 10, 11, 12, 13, 14, 15, 20, 16, 17, 18, 19]


class Cfg:
    stamps = False
    jx = 2
    wflag = "sc1"
    nogelu = 0
    noload = 0
    ldpos = 1
    gcap = 2
    pflag = "sc1"
    epi_gap = 6
    epi_gap2 = 40
    wo_per_ks = 4
    w_per_ks = 3
    tripmarks = 0
    oflag = "sc0 sc1"
    pollw = 3
    code_warm = 3
    xflag = "sc1"
    wo_gap = 8
    red_pre = 4
    red_feed = 1
    red_gap = 16
    red_post = 12
    raw_early = 3
    raw_mid = 16
    in_x = "nt"
    in_q = "nt"
    in_o = "nt"
    zflag = "sc1"
    raw_flag = "nt"
    z_early = 16
    sleep = 0
    pw = 0


def tile_map(a, sj, smt, jx):
    lg = jx.bit_length() - 1
    a(f"s_and_b32 {sj}, s2, {8 // jx - 1}")
    a(f"s_lshl_b32 {sj}, {sj}, {lg}")
    a(f"s_bfe_u32 s7, s2, {3 | (lg << 16)}")
    a(f"s_add_u32 {sj}, {sj}, s7")
    a(f"s_bfe_u32 {smt}, s2, {(3 - lg) | (lg << 16)}")
    a(f"s_lshl_b32 {smt}, {smt}, {5 - lg}")
    a(f"s_lshr_b32 s7, s2, {3 + lg}")
    a(f"s_add_u32 {smt}, {smt}, s7")


def entry(a, name, nwg, end, extra_loads=()):
    a(f"s_cmp_ge_u32 s2, {nwg}")
    a(f"s_cbranch_scc1 {end}")
    a("s_load_dwordx2 s[4:5], s[0:1], 72")
    for l in extra_loads:
        a(l)
    a("s_getpc_b64 s[96:97]")
    a("L_main_pc:")
    a(f"s_sub_u32 s96, s96, L_main_pc-{name}")
    a("s_subb_u32 s97, s97, 0")
    a("s_and_b32 s97, s97, 0xffff")
    a(f"s_mov_b32 s98, L_main_code_end-{name}")
    a("s_mov_b32 s99, 0x20000")
    a("s_lshr_b32 s7, s2, 3")
    a("s_lshl_b32 s7, s7, 11")
    a("v_lshl_add_u32 v253, v0, 3, s7")
    if Cfg.code_warm:
        a("buffer_load_dwordx2 v[2:3], v253, s[96:99], 0 offen")
    a("v_lshrrev_b32 v1, 6, v0")
    a("v_and_b32 v0, 63, v0")
    a("v_readfirstlane_b32 s3, v1")
    a("s_waitcnt lgkmcnt(0)")
    srd(a, 8, "s4", "s5", WS_SIZE)


def mark(a, idx):
    if Cfg.stamps:
        a("s_memrealtime s[100:101]")
        a("s_memtime vcc")
        a("s_lshl_b32 m0, s42, 5")
        a(f"s_add_u32 m0, m0, {idx}")
        a("s_waitcnt lgkmcnt(0)")
        a(f"v_writelane_b32 v{Cfg.sv}, s100, m0")
        a(f"v_writelane_b32 v{Cfg.sv + 1}, vcc_lo, m0")


def mark_dyn(a, base, sreg):
    if Cfg.stamps and Cfg.tripmarks:
        a("s_memrealtime s[100:101]")
        a("s_memtime vcc")
        a("s_lshl_b32 m0, s42, 5")
        a(f"s_add_u32 m0, m0, {sreg}")
        a(f"s_add_u32 m0, m0, {base}")
        a("s_waitcnt lgkmcnt(0)")
        a(f"v_writelane_b32 v{Cfg.sv}, s100, m0")
        a(f"v_writelane_b32 v{Cfg.sv + 1}, vcc_lo, m0")


def dump_marks(a, slot):
    if Cfg.stamps:
        a("s_lshl_b32 s7, s2, 2")
        a("s_add_u32 s7, s7, s3")
        a("s_lshl_b32 s7, s7, 9")
        a(f"s_add_u32 s7, s7, {STAMP_OFF + slot * 0x80000}")
        a("v_lshlrev_b32 v1, 2, v0")
        a(f"buffer_store_dword v{Cfg.sv}, v1, s[8:11], s7 offen")
        a(f"buffer_store_dword v{Cfg.sv + 1}, v1, s[8:11], s7 offen offset:256")


def code_warm(a, dst):
    if Cfg.code_warm:
        a("s_lshr_b32 s7, s2, 3")
        a("s_lshl_b32 s7, s7, 2")
        a("s_add_u32 s7, s7, s3")
        a("s_lshl_b32 s7, s7, 9")
        a("v_lshrrev_b32 v1, 1, v253")
        a("v_add_u32 v1, s7, v1")
        a(f"buffer_load_dwordx2 {dst}, v1, s[96:99], 0 offen")


PH_QKV, PH_WO, PH_FFN, PH_RED = range(4)


def publish(a, phase, extra=None):
    skip = a.label("pub")
    a("v_lshlrev_b32 v15, 7, v0")
    a("s_lshl_b32 s6, s40, 2")
    a("s_add_u32 s6, s6, s44")
    if phase > 0:
        a(f"s_add_u32 s6, s6, {phase * FPH}")
    elif phase < 0:
        a(f"s_sub_u32 s6, s6, {-phase * FPH}")
    a("v_mov_b32 v1, s76")
    a("s_mov_b64 vcc, 0xff")
    if phase % 4 == PH_RED:
        a("v_lshrrev_b32 v14, 3, v0")
        a("v_lshl_add_u32 v15, v14, 3, v15")
        a("s_cmp_ge_u32 s40, 6")
        a("s_cselect_b32 s7, s41, 31")
        a("s_cmp_lt_u32 s7, 31")
        a("s_cmov_b64 vcc, 0xffff")
    a("s_waitcnt vmcnt(0)")
    a("s_barrier")
    a(f"s_cmp_lg_u32 s3, {Cfg.pw}")
    a(f"s_cbranch_scc1 {skip}")
    a("s_mov_b64 exec, vcc")
    a("buffer_store_dword v1, v15, s[8:11], s6 offen sc1")
    if extra:
        extra(skip)
    a(f"{skip}:")
    a("s_mov_b64 exec, -1")


def column_flag(a, slot):
    a("v_lshlrev_b32 v15, 10, v0")
    a("s_lshl_b32 s6, s40, 7")
    a("s_lshl_b32 s7, s41, 2")
    a("s_add_u32 s6, s6, s7")
    a(f"s_add_u32 s6, s6, {FLAGS + slot * FPH}")
    a("s_mov_b64 exec, 0xffffffff")
    a("v_lshlrev_b32 v15, 10, v0")
    a("v_mov_b32 v1, s76")
    a("buffer_store_dword v1, v15, s[8:11], s6 offen sc1")


def column_wait(a, slot, abort, n=32):
    lp, again, ok = a.label("cpoll"), a.label("cpoll"), a.label("cpolled")
    a("s_lshl_b32 s7, s41, 3")
    a("s_add_u32 s7, s7, s40")
    a("s_lshl_b32 s7, s7, 7")
    a(f"s_add_u32 s7, s7, {FLAGS + slot * FPH}")
    a("s_add_u32 s68, s4, s7")
    a("s_addc_u32 s69, s5, 0")
    a("s_mov_b32 s6, 0")
    a("s_mov_b32 s7, 0")
    a(f"{lp}:")
    a("s_load_dwordx16 s[52:67], s[68:69], s7 glc")
    a("s_add_u32 s6, s6, 1")
    a("s_waitcnt lgkmcnt(0)")
    for r in range(52, 68, 2):
        a(f"s_xor_b64 s[{r}:{r + 1}], s[{r}:{r + 1}], s[76:77]")
    for d in (8, 4, 2):
        for r in range(52, 52 + d, 2):
            a(f"s_or_b64 s[{r}:{r + 1}], s[{r}:{r + 1}], s[{r + d}:{r + d + 1}]")
    assert 16 < n <= 32
    a(f"s_cbranch_scc1 {again}")
    a(f"s_add_u32 s7, s7, {4 * (n - 16)}")
    a(f"s_cmp_eq_u32 s7, {8 * (n - 16)}")
    a(f"s_cbranch_scc1 {ok}")
    a(f"{again}:")
    a(f"s_cmp_lt_u32 s6, {1 << 20}")
    a(f"s_cbranch_scc1 {lp}")
    a(f"s_branch {abort}")
    a(f"{ok}:")


def wait_flags(a, off, abort, halo=False, extra=None):
    lp, ok, out = a.label("poll"), a.label("polled"), a.label("pollout")
    a(f"s_cmp_lg_u32 s3, {Cfg.pollw}")
    a(f"s_cbranch_scc1 {out}")
    a("s_lshl_b32 s7, s40, 7")
    a("s_add_u32 s7, s7, s44")
    if off > 0:
        a(f"s_add_u32 s7, s7, {off}")
    elif off < 0:
        a(f"s_sub_u32 s7, s7, {-off}")
    a("s_add_u32 s52, s4, s7")
    a("s_addc_u32 s53, s5, 0")
    if halo:
        a("s_cmp_eq_u32 s41, 0")
        a("s_cselect_b32 s7, 0, 32")
    a("s_mov_b32 s6, 0")
    a(f"{lp}:")
    a("s_load_dwordx8 s[56:63], s[52:53], 0 glc")
    if halo:
        a("s_load_dwordx2 s[54:55], s[52:53], s7 glc")
    a("s_add_u32 s6, s6, 1")
    a("s_waitcnt lgkmcnt(0)")
    for r in ([54] if halo else []) + [56, 58, 60, 62]:
        a(f"s_xor_b64 s[{r}:{r + 1}], s[{r}:{r + 1}], s[76:77]")
    a("s_or_b64 s[56:57], s[56:57], s[58:59]")
    a("s_or_b64 s[60:61], s[60:61], s[62:63]")
    if halo:
        a("s_or_b64 s[56:57], s[56:57], s[54:55]")
    a("s_or_b64 s[56:57], s[56:57], s[60:61]")
    a(f"s_cbranch_scc0 {ok}")
    a(f"s_cmp_lt_u32 s6, {1 << 20}")
    a(f"s_cbranch_scc1 {lp}")
    a(f"s_branch {abort}")
    a(f"{ok}:")
    if extra:
        extra(out)
    a(f"{out}:")
    a("s_barrier")


def bfrag_voff(a, dst, tmp):
    a(f"v_bfe_u32 {tmp}, v0, 3, 1")
    a(f"v_mul_u32_u24 {dst}, {GB}, {tmp}")
    a(f"v_lshrrev_b32 {tmp}, 4, v0")
    a(f"v_lshl_add_u32 {dst}, {tmp}, 7, {dst}")
    a(f"v_and_b32 {tmp}, 7, v0")
    a(f"v_lshl_add_u32 {dst}, {tmp}, 4, {dst}")


def dtile_voff(a, dst, tmp, tmp2, gstride):
    a(f"v_bfe_u32 {tmp}, v0, 3, 2")
    a(f"s_mov_b32 s7, {gstride}")
    a(f"v_mul_lo_u32 {dst}, {tmp}, s7")
    a(f"v_lshrrev_b32 {tmp}, 5, v0")
    a(f"v_lshl_add_u32 {dst}, {tmp}, 7, {dst}")
    a(f"v_and_b32 {tmp}, 7, v0")
    a(f"v_lshl_add_u32 {dst}, {tmp}, 4, {dst}")


def rowsum_16_32(a, vals, tmp):
    for swap in ("v_permlane32_swap_b32", "v_permlane16_swap_b32"):
        for i, v in enumerate(vals):
            a(f"v_mov_b32 {tmp[i]}, {v}")
        a("s_nop 1")
        for i, v in enumerate(vals):
            a(f"{swap} {tmp[i]}, {v}")
        for i, v in enumerate(vals):
            a(f"v_add_f32 {v}, {v}, {tmp[i]}")


def ln_coeffs(a, vs, vss, rstd, nb):
    a(f"v_mul_f32 {vs}, {f32(1.0 / 576)}, {vs}")
    a(f"v_mul_f32 {vss}, {f32(1.0 / 576)}, {vss}")
    a(f"v_fma_f32 {vss}, -{vs}, {vs}, {vss}")
    a(f"v_max_f32 {vss}, 0, {vss}")
    a(f"v_add_f32 {vss}, {f32(1e-5)}, {vss}")
    a(f"v_rsq_f32 v{rstd}, {vss}")
    a("s_nop 0")
    a(f"v_mul_f32 v{nb}, {vs}, v{rstd}")
    a(f"v_mov_b32 v{rstd + 1}, v{rstd}")
    a(f"v_sub_f32 v{nb}, 0, v{nb}")
    a(f"v_mov_b32 v{nb + 1}, v{nb}")


def normalize(a, src, dst, n, rstd, nb, tmp):
    for i0 in range(0, n, 4):
        k = min(4, n - i0)
        for i in range(k):
            a(f"v_lshlrev_b32 v{tmp + 2 * i}, 16, v{src + i0 + i}")
            a(f"v_and_b32 v{tmp + 2 * i + 1}, s16, v{src + i0 + i}")
        for i in range(k):
            t = tmp + 2 * i
            a(f"v_pk_fma_f32 v[{t}:{t + 1}], v[{t}:{t + 1}], v[{rstd}:{rstd + 1}], v[{nb}:{nb + 1}]")
        for i in range(k):
            t = tmp + 2 * i
            a(f"v_cvt_pk_bf16_f32 v{dst + i0 + i}, v{t}, v{t + 1}")


VR, VM = 172, 175


def red_offsets(a):
    a("s_mov_b32 s16, 0xffff0000")
    a("s_lshl_b32 s7, s3, 10")
    a(f"v_add_u32 v{VR}, s7, v253")
    a(f"v_add_u32 v{VR + 2}, 5120, v{VR}")
    a("v_and_b32 v178, 7, v0")
    a("v_mul_u32_u24 v178, 1152, v178")
    a("v_lshrrev_b32 v179, 3, v0")
    a("v_lshl_add_u32 v178, v179, 4, v178")
    a("s_lshl_b32 s7, s3, 7")
    a(f"v_add_u32 v{VM}, s7, v178")
    a(f"v_add_u32 v{VM + 2}, 640, v{VM}")
    a("s_cmp_eq_u32 s3, 0")
    csel(a, "s17", 4096, OOB)
    a(f"v_add_u32 v{VR + 1}, s17, v{VR}")
    csel(a, "s17", 512, OOB)
    a(f"v_add_u32 v{VM + 1}, s17, v{VM}")


def red_ln_store(a, XB, sX2, sXN, sMEAN, flag):
    for b in range(3):
        a(f"buffer_store_dwordx4 v[{XB + 4 * b}:{XB + 4 * b + 3}], v{VR + b}, s[8:11], {sX2} offen {flag}")
    a("s_mov_b32 s17, 0x3f803f80")
    for i in range(4):
        a(f"v_mov_b32 v{8 + i}, 0")
    for i in range(12):
        a(f"v_dot2c_f32_bf16 v{8 + 2 * (i & 1)}, s17, v{XB + i}")
        a(f"v_dot2c_f32_bf16 v{9 + 2 * (i & 1)}, v{XB + i}, v{XB + i}")
    a("v_and_b32 v12, 7, v0")
    a("v_lshlrev_b32 v12, 3, v12")
    a("s_lshl_b32 s7, s3, 6")
    a("v_add_u32 v13, s7, v12")
    a("v_pk_add_f32 v[8:9], v[8:9], v[10:11]")
    a("s_nop 1")
    a("v_add_f32_dpp v8, v8, v8 row_ror:8 row_mask:0xf bank_mask:0xf")
    a("v_add_f32_dpp v9, v9, v9 row_ror:8 row_mask:0xf bank_mask:0xf")
    rowsum_16_32(a, ["v8", "v9"], ["v10", "v11"])
    a("ds_write_b64 v13, v[8:9]")
    a("s_waitcnt lgkmcnt(0)")
    a("s_barrier")
    T = 40
    for w in range(4):
        a(f"ds_read_b64 v[{T + 2 * w}:{T + 2 * w + 1}], v12 offset:{64 * w}")
    a("s_waitcnt lgkmcnt(0)")
    a(f"v_pk_add_f32 v[{T}:{T + 1}], v[{T}:{T + 1}], v[{T + 2}:{T + 3}]")
    a(f"v_pk_add_f32 v[{T + 4}:{T + 5}], v[{T + 4}:{T + 5}], v[{T + 6}:{T + 7}]")
    a(f"v_pk_add_f32 v[8:9], v[{T}:{T + 1}], v[{T + 4}:{T + 5}]")
    ln_coeffs(a, "v8", "v9", 10, 12)
    a("s_cmp_eq_u32 s3, 0")
    a("s_cselect_b32 s7, 32, 0")
    a("v_lshlrev_b32 v14, 2, v0")
    a("v_cmp_gt_u32 vcc, s7, v0")
    a(f"v_mov_b32 v9, {OOB}")
    a("s_nop 0")
    a("v_cndmask_b32 v14, v9, v14, vcc")
    a(f"buffer_store_dword v8, v14, s[8:11], {sMEAN} offen {flag}")
    normalize(a, XB, 48, 12, 10, 12, T)
    for b in range(3):
        a(f"buffer_store_dwordx4 v[{48 + 4 * b}:{51 + 4 * b}], v{VR + b}, s[8:11], {sXN} offen {flag}")


def red_setup(a):
    red_offsets(a)
    a("s_lshl_b32 s21, s41, 3")
    a("s_add_u32 s21, s21, s40")
    a(f"s_mul_i32 s18, s21, {GB}")
    a(f"s_mul_i32 s20, s21, {8 * GB}")
    a(f"s_add_u32 s20, s20, {PART}")
    loads = []
    for k in range(7):
        for b in range(2):
            r = slot_reg(18 + 2 * k + b)
            t = f"buffer_load_dwordx4 v[{r}:{r + 3}], v{VR + b}, s[8:11], s19 offen sc1"
            loads.append(red_source("s19", k) + t if b == 0 else t)
    return loads


OWN = 4 * KB


def red_source(dst, k):
    return (f"s_add_u32 s7, s40, {k + 1}\ns_and_b32 s7, s7, 7\ns_mul_i32 s7, s7, {GB}\ns_add_u32 {dst}, s7, s20\n")


def phase_red(a, abort, last):
    ACC, TMP, LD, XR, XB = 16, 40, 60, 92, 120
    a("s_add_u32 s19, s18, s43")
    a(f"s_add_u32 s22, s19, {XC}")
    a("s_lshl_b32 s23, s21, 5")
    a("s_add_u32 s23, s23, s43")
    a(f"s_add_u32 s23, s23, {MEAN1}")
    a("v_and_b32 v12, 7, v0")
    a("v_lshlrev_b32 v12, 2, v12")
    a("buffer_load_dword v10, v12, s[8:11], s23 offen sc1")
    for b in range(3):
        a(f"buffer_load_dwordx4 v[{XR + 4 * b}:{XR + 4 * b + 3}], v{VR + b}, s[8:11], s22 offen sc1")

    def unpack(dst, r):
        for i in range(4):
            a(f"v_lshlrev_b32 v{dst + 2 * i}, 16, v{r + i}")
            a(f"v_and_b32 v{dst + 2 * i + 1}, s16, v{r + i}")

    def add(b, r):
        unpack(TMP, r)
        for i in range(4):
            c = ACC + 8 * b + 2 * i
            a(f"v_pk_add_f32 v[{c}:{c + 1}], v[{c}:{c + 1}], v[{TMP + 2 * i}:{TMP + 2 * i + 1}]")

    pf = Asm()
    qkv_prefetch(pf, 0, QR - 1, "s42")
    queue, chunk = [], ""
    for ln in pf.lines:
        chunk += ln + "\n"
        if "buffer_load" in ln:
            queue.append(chunk)
            chunk = ""
    vm = Vm()

    def feed(n):
        for _ in range(n):
            if queue:
                a(queue.pop(0))
                vm.issue("w")

    OW = [148, 152, 156]
    a(f"v_min_u32 v13, {9 * KB}, v{VR + 1}")
    a(f"ds_read_b128 v[{OW[0]}:{OW[0] + 3}], v{VR} offset:{OWN}")
    a(f"ds_read_b128 v[{OW[1]}:{OW[1] + 3}], v13 offset:{OWN}")
    a(f"ds_read_b128 v[{OW[2]}:{OW[2] + 3}], v{VR + 2} offset:{OWN}")
    setup, first = queue[0].rsplit("buffer_load", 1)
    a(setup)
    queue[0] = "buffer_load" + first

    def gap_feed(n):
        skip = a.label("nopf")
        a("s_cmp_lg_u32 s42, 0")
        a(f"s_cbranch_scc1 {skip}")
        feed(n)
        a(f"{skip}:")

    for b in range(2):
        unpack(ACC + 8 * b, slot_reg(18 + b))
    gap_feed(Cfg.red_gap // 2)
    for j in range(1, Cfg.red_pre):
        for b in range(2):
            add(b, slot_reg(18 + 2 * j + b))
        if j == 1:
            gap_feed(Cfg.red_gap - Cfg.red_gap // 2)
    wait_flags(a, PH_FFN * FPH, abort)
    mark(a, 16)
    for j in range(7):
        a(red_source("s19", j) + f"buffer_load_dwordx4 v[{LD + 4 * j}:{LD + 4 * j + 3}], v{VR + 2}, s[8:11], s19 offen sc1")
        vm.issue(j)
    for j in range(Cfg.red_pre, 7):
        for b in range(2):
            add(b, slot_reg(18 + 2 * j + b))
    a("s_cmp_eq_u32 s3, 0")
    a("s_cselect_b32 s7, 1.0, 0")
    a("s_cselect_b32 s6, -1, 0")
    a("s_waitcnt vmcnt(7) lgkmcnt(0)")
    for i in range(4):
        a(f"v_and_b32 v{OW[1] + i}, s6, v{OW[1] + i}")
    a("v_mul_f32 v11, s7, v10")
    for b in range(2):
        add(b, XR + 4 * b)
    unpack(ACC + 16, XR + 8)
    for b in range(3):
        add(b, OW[b])
    for b in range(3):
        for i in range(4):
            c = ACC + 8 * b + 2 * i
            sel = "op_sel:[0,1] op_sel_hi:[1,1]" if b == 1 else "op_sel_hi:[1,0]"
            a(f"v_pk_add_f32 v[{c}:{c + 1}], v[{c}:{c + 1}], v[10:11] {sel}")
    for j in range(7):
        a(f"s_waitcnt vmcnt({vm.count(j)})")
        feed(Cfg.red_feed)
        add(2, LD + 4 * j)
    feed(len(queue) - Cfg.red_post)
    for b in range(3):
        for i in range(4):
            c = ACC + 8 * b + 2 * i
            a(f"v_cvt_pk_bf16_f32 v{XB + 4 * b + i}, v{c}, v{c + 1}")
    mark(a, 17)
    a("s_cmp_lg_u32 s42, 0")
    a(f"s_cbranch_scc1 {last}")
    a(f"s_add_u32 s19, s18, {X2 + LSTR}")
    a(f"s_add_u32 s20, s18, {XN + LSTR}")
    a("s_lshl_b32 s22, s21, 7")
    a(f"s_add_u32 s22, s22, {MEAN + LSTR}")
    red_ln_store(a, XB, "s19", "s20", "s22", "sc1")
    mark(a, 18)
    publish(a, PH_RED)
    mark(a, 19)
    feed(99)
    a(chunk)

    def tail():
        for b in range(3):
            a(f"buffer_store_dwordx4 v[{XB + 4 * b}:{XB + 4 * b + 3}], v{VM + b}, s[12:15], s18 offen {Cfg.oflag}")
    return tail


ZB = 96 * KB


def o_row(a, dst, vc, vj, t0, t1):
    a(f"v_mul_u32_u24 {t0}, 7282, {vc}")
    a(f"v_lshrrev_b32 {t0}, 16, {t0}")
    a(f"v_mul_u32_u24 {t1}, 9, {t0}")
    a(f"v_sub_u32 {t1}, {vc}, {t1}")
    a(f"v_mul_u32_u24 {t0}, 72, {t0}")
    a(f"v_cmp_eq_u32 vcc, 8, {t1}")
    a(f"v_lshrrev_b32 {dst}, 1, {t1}")
    a(f"v_mad_u32_u24 {dst}, {dst}, 18, {t0}")
    a(f"v_and_b32 {t1}, 1, {t1}")
    a(f"v_lshl_add_u32 {dst}, {t1}, 3, {dst}")
    a(f"v_add_u32 {dst}, {dst}, {vj}")
    a(f"v_lshrrev_b32 {t1}, 1, {vj}")
    a(f"v_mad_u32_u24 {t0}, {t1}, 18, {t0}")
    a(f"v_and_b32 {t1}, 1, {vj}")
    a(f"v_add3_u32 {t0}, {t0}, {t1}, 16")
    a(f"v_cndmask_b32 {dst}, {dst}, {t0}, vcc")


def tr_rows(a, dst, tmp, shift, pitch):
    a(f"v_lshrrev_b32 {dst}, 4, v0")
    a(f"v_lshlrev_b32 {dst}, {shift}, {dst}")
    a(f"v_bfe_u32 {tmp}, v0, 2, 2")
    a(f"v_add_u32 {dst}, {dst}, {tmp}")
    a(f"v_mul_u32_u24 {dst}, {pitch}, {dst}")
    a(f"v_and_b32 {tmp}, 3, v0")
    a(f"v_lshl_add_u32 {dst}, {tmp}, 3, {dst}")


def qfrag(a, t, pending):
    a(f"s_waitcnt lgkmcnt({pending})")
    for i in range(4):
        a(f"v_lshl_or_b32 v{32 + 4 * t + i}, v{137 + 8 * t + 2 * i}, 16, v{136 + 8 * t + 2 * i}")
        if t == 3:
            a(f"v_cndmask_b32 v{32 + 4 * t + i}, 0, v{32 + 4 * t + i}, s[22:23]")
    a(f"buffer_store_dwordx4 v[{32 + 4 * t}:{35 + 4 * t}], v253, s[8:11], s33 offen offset:{t * KB} sc1")


def phase_prep(a, abort):
    srd(a, 12, "s18", "s19", 2048 * 1152)
    srd(a, 64, "s20", "s21", 576 * 3456)
    srd(a, 68, "s22", "s23", 576 * 1152)
    red_offsets(a)
    a("s_lshl_b32 s21, s41, 3")
    a("s_add_u32 s21, s21, s40")
    a(f"s_mul_i32 s18, s21, {GB}")
    for b in range(3):
        a(f"buffer_load_dwordx4 v[{16 + 4 * b}:{19 + 4 * b}], v{VM + b}, s[12:15], s18 offen {Cfg.in_x}")
    mark(a, 21)
    srd(a, 12, "s30", "s31", 2048 * 1152)
    a("s_lshl_b32 s79, s3, 14")
    a(f"s_add_u32 s79, s79, {ZB}")
    PS = 8 * KB
    lo, lw, l3 = a.label("prep_o"), a.label("prep_m"), a.label("prep_go")
    nq2, l4, l5 = a.label("prep_o"), a.label("prep_m"), a.label("prep_done")
    a("s_sub_u32 s36, s21, 144")
    a("s_cmp_ge_u32 s41, 18")
    a(f"s_cbranch_scc1 {lo}")
    a(f"s_mul_i32 s35, s41, {32 * 3456}")
    a("s_mul_i32 s7, s40, 144")
    a("s_and_b32 s46, s7, 127")
    a("s_sub_u32 s7, s7, s46")
    a("s_add_u32 s35, s35, s7")
    a(f"s_mul_i32 s7, s3, {4 * 3456}")
    a("s_add_u32 s35, s35, s7")
    a("v_lshrrev_b32 v8, 4, v0")
    a("v_mul_u32_u24 v8, 3456, v8")
    a("v_and_b32 v9, 15, v0")
    a("v_lshl_add_u32 v8, v9, 4, v8")
    a("s_lshl_b32 s34, s3, 10")
    for m in range(6):
        a(f"s_add_u32 m0, s34, {PS + m * 4 * KB}")
        a(f"s_add_u32 s7, s35, {(m & 1) * 16 * 3456 + (m >> 1) * 1152}")
        a(f"buffer_load_dwordx4 v8, s[64:67], s7 offen {Cfg.in_q} lds")
    a(f"s_branch {l3}")
    a(f"{lo}:")
    a("s_cmp_ge_u32 s36, 54")
    a(f"s_cbranch_scc1 {lw}")
    sdivmod(a, "s33", "s34", "s36", 3, 53)
    a("s_lshl_b32 s7, s33, 2")
    a("s_add_u32 s7, s7, s3")
    a("v_mov_b32 v8, s7")
    a("v_lshrrev_b32 v9, 3, v0")
    o_row(a, "v10", "v8", "v9", "v11", "v12")
    a("v_mul_u32_u24 v10, 1152, v10")
    a("v_and_b32 v9, 7, v0")
    a("v_lshl_add_u32 v10, v9, 4, v10")
    a("s_mul_i32 s35, s34, 384")
    a("s_lshl_b32 s6, s3, 10")
    for m in range(3):
        a(f"s_add_u32 m0, s6, {PS + m * 4 * KB}")
        a(f"s_add_u32 s7, s35, {m * 128}")
        a(f"buffer_load_dwordx4 v10, s[68:71], s7 offen {Cfg.in_o} lds")
    a(f"s_branch {l3}")
    a(f"{lw}:")
    a("s_sub_u32 s37, s36, 54")
    a("s_lshl_b32 s7, s3, 6")
    a("s_add_u32 s37, s37, s7")
    a("s_cmp_ge_u32 s37, 36")
    a(f"s_cbranch_scc1 {l3}")
    a("s_lshl_b32 s7, s37, 1")
    a("v_bfe_u32 v8, v0, 3, 1")
    a("v_add_u32 v8, s7, v8")
    a("v_and_b32 v9, 7, v0")
    o_row(a, "v10", "v8", "v9", "v11", "v12")
    a("v_mul_u32_u24 v10, 1152, v10")
    a("v_lshrrev_b32 v9, 4, v0")
    a("v_lshl_add_u32 v10, v9, 4, v10")
    for ks in range(18):
        a(f"buffer_load_dwordx4 v[{64 + 4 * ks}:{67 + 4 * ks}], v10, s[68:71], 0 offen offset:{64 * ks}")
    a(f"{l3}:")
    mark(a, 23)
    a("s_lshl_b32 s7, s41, 2")
    a("s_add_u32 s7, s7, s3")
    sdiv(a, "s93", "s7", 41, 127)
    a("s_min_u32 s93, s93, 2")
    a("s_mul_i32 s6, s93, 41")
    a("s_sub_u32 s7, s7, s6")
    a("s_lshl_b32 s17, s7, 2")
    a("s_cmp_eq_u32 s93, 1")
    a("s_cselect_b32 s72, s26, s24")
    a("s_cselect_b32 s73, s27, s25")
    a("s_cmp_eq_u32 s93, 2")
    a("s_cselect_b32 s72, s28, s72")
    a("s_cselect_b32 s73, s29, s73")
    csel(a, "s92", 8 * 1152, 8 * 9216)
    csel(a, "s47", 18 * 32 * 1152, 1152)
    a("s_and_b32 s73, s73, 0xffff")
    a(f"s_mov_b32 s74, {576 * 9216}")
    a("s_mov_b32 s75, 0x20000")
    a("s_mul_i32 s47, s47, s40")
    for b in range(4):
        a(f"s_add_u32 s7, s17, {b}")
        a("s_min_u32 s7, s7, 161")
        sdivmod(a, f"s{84 + b}", f"s{88 + b}", "s7", 9, 161)
        a(f"s_mul_i32 s7, s{84 + b}, s92")
        a("s_lshl_b32 s7, s7, 2")
        a("s_add_u32 s7, s7, s47")
        a(f"s_lshl_b32 s6, s{88 + b}, 7")
        a(f"s_add_u32 s{80 + b}, s7, s6")
    a("s_lshr_b32 s7, s92, 3")
    a("v_lshrrev_b32 v224, 3, v0")
    a("v_mul_lo_u32 v224, v224, s7")
    a("v_and_b32 v8, 7, v0")
    a("v_lshl_add_u32 v224, v8, 4, v224")
    a("s_waitcnt lgkmcnt(0)")
    a("s_mul_i32 s76, s76, 0x9e3779b1")
    a("s_add_u32 s76, s76, 0x7f4a7c15")
    a("s_mov_b32 s77, s76")
    mark(a, 24)
    for i in range(Cfg.raw_early):
        a(ffn_raw_dma(i))
    mark(a, 25)
    a(f"s_waitcnt vmcnt({Cfg.raw_early})")
    a("s_barrier")
    mark(a, 28)
    a("s_cmp_ge_u32 s41, 18")
    a(f"s_cbranch_scc1 {nq2}")
    a("s_mul_i32 s7, s3, 36")
    a("s_add_u32 s7, s7, s46")
    a("v_lshrrev_b32 v8, 4, v0")
    a("v_lshlrev_b32 v8, 11, v8")
    a("v_add_u32 v8, s7, v8")
    a("v_and_b32 v9, 15, v0")
    a("v_cmp_gt_u32 s[22:23], 6, v9")
    a("v_lshrrev_b32 v10, 1, v9")
    a("v_min_u32 v10, 2, v10")
    a("v_lshl_add_u32 v10, v10, 13, v8")
    a("v_and_b32 v11, 1, v0")
    a("v_lshl_add_u32 v10, v11, 1, v10")
    a("v_lshl_add_u32 v8, v9, 1, v8")
    for t in range(4):
        for j in range(8):
            a(f"ds_read_u16 v{136 + 8 * t + j}, v8 offset:{PS + t * 8192 + j * 256}" if t < 3 else
              f"ds_read_u16 v{136 + 8 * t + j}, v10 offset:{PS + 32 + j * 256}")
        if t == 0:
            a("s_lshl_b32 s33, s40, 2")
            a("s_add_u32 s33, s33, s3")
            a("s_mul_i32 s33, s33, 18")
            a("s_add_u32 s33, s33, s41")
            a("s_lshl_b32 s33, s33, 12")
            if WQ:
                a(f"s_add_u32 s33, s33, {WQ}")
        if t:
            qfrag(a, t - 1, 8)
    qfrag(a, 3, 0)
    a(f"s_branch {l5}")
    a(f"{nq2}:")
    a("s_cmp_ge_u32 s36, 54")
    a(f"s_cbranch_scc1 {l4}")
    tr_rows(a, "v8", "v9", 3, 128)
    a("s_lshl_b32 s7, s3, 5")
    a("v_add_u32 v8, s7, v8")
    for m in range(3):
        a(f"ds_read_b64_tr_b16 v[{32 + 4 * m}:{33 + 4 * m}], v8 offset:{PS + m * 4 * KB}")
        a(f"ds_read_b64_tr_b16 v[{34 + 4 * m}:{35 + 4 * m}], v8 offset:{PS + m * 4 * KB + 512}")
    a("s_mul_i32 s34, s34, 12")
    a("s_add_u32 s34, s34, s3")
    a("s_mul_i32 s34, s34, 18")
    a("s_add_u32 s34, s34, s33")
    a("s_lshl_b32 s34, s34, 10")
    for m in range(3):
        a(f"s_add_u32 s7, s34, {WO + m * 4 * 18 * KB}")
        a(f"s_waitcnt lgkmcnt({4 - 2 * m})")
        a(f"buffer_store_dwordx4 v[{32 + 4 * m}:{35 + 4 * m}], v253, s[8:11], s7 offen sc1")
    a(f"s_branch {l5}")
    a(f"{l4}:")
    a("s_cmp_ge_u32 s37, 36")
    a(f"s_cbranch_scc1 {l5}")
    for i in range(4):
        a(f"v_mov_b32 v{28 + i}, 0x3f803f80")
    a("v_and_b32 v9, 15, v0")
    a("v_cmp_eq_u32 vcc, 0, v9")
    a("v_cmp_eq_u32 s[22:23], 1, v9")
    for ks in range(18):
        a(f"v_mfma_f32_16x16x32_bf16 v[32:35], v[{64 + 4 * ks}:{67 + 4 * ks}], v[28:31], {'0' if ks == 0 else 'v[32:35]'}")
    a("v_lshrrev_b32 v10, 5, v0")
    a("v_lshlrev_b32 v10, 8, v10")
    a("v_lshl_add_u32 v10, v9, 4, v10")
    a("v_bfe_u32 v9, v0, 4, 1")
    a("v_lshl_add_u32 v10, v9, 3, v10")
    a("s_lshl_b32 s7, s37, 9")
    a(f"s_add_u32 s7, s7, {WO + 36 * 18 * KB}")
    a("s_nop 0")
    for r in range(4):
        a(f"v_mul_f32 v{32 + r}, {f32(1.0 / 576)}, v{32 + r}")
    a("v_cvt_pk_bf16_f32 v36, v32, v33")
    a("v_cvt_pk_bf16_f32 v37, v34, v35")
    for h in range(2):
        a(f"v_lshlrev_b32 v38, 16, v{36 + h}")
        a(f"v_and_b32 v39, s16, v{36 + h}")
        a(f"v_sub_f32 v38, v{32 + 2 * h}, v38")
        a(f"v_sub_f32 v39, v{33 + 2 * h}, v39")
        a(f"v_cvt_pk_bf16_f32 v{28 + h}, v38, v39")
        a(f"v_cndmask_b32 v{28 + h}, 0, v{28 + h}, s[22:23]")
        a(f"v_cndmask_b32 v{28 + h}, v{28 + h}, v{36 + h}, vcc")
    a("buffer_store_dwordx2 v[28:29], v10, s[8:11], s7 offen sc1")
    a(f"{l5}:")
    a(f"s_add_u32 s19, s18, {X2}")
    a(f"s_add_u32 s20, s18, {XN}")
    a("s_lshl_b32 s22, s21, 7")
    a(f"s_add_u32 s22, s22, {MEAN}")
    red_ln_store(a, 16, "s19", "s20", "s22", "sc1")
    mark(a, 29)

    def more(skip):
        column_flag(a, SL_WQ)
        a("s_cmp_lt_u32 s41, 18")
        a(f"s_cbranch_scc1 {skip}")
        a("s_lshl_b32 s6, s36, 2")
        a(f"s_add_u32 s6, s6, {FLAGS + SL_WO * FPH}")
        a("s_mov_b64 exec, 1")
        a("buffer_store_dword v1, off, s[8:11], s6 sc1")

    publish(a, PH_RED - 4, more)
    mark(a, 30)
    for i in range(Cfg.raw_early, Cfg.raw_mid):
        a(ffn_raw_dma(i))
    out = a.label("wq_ready")
    a(f"s_cmp_lg_u32 s3, {Cfg.pw}")
    a(f"s_cbranch_scc1 {out}")
    column_wait(a, SL_WQ, abort, 18)
    a(f"{out}:")
    a("s_barrier")
    mark(a, 27)


def ffn_raw_dma(i):
    b, m = divmod(i, 4)
    step = f"s_mov_b32 s71, s{80 + b}" if m == 0 else "s_add_u32 s71, s71, s92"
    return f"s_add_u32 m0, s79, {i * KB}\n{step}\nbuffer_load_dwordx4 v224, s[72:75], s71 offen {Cfg.raw_flag} lds"


ZQ = list(range(76, 100, 4)) + [176, 180] + list(range(196, 224, 4)) + [228]


def ffn_transpose_reads(a):
    a("s_cmp_eq_u32 s93, 2")
    a("s_cselect_b32 s6, 2, 3")
    csel(a, "s7", 2048, 512)
    tr_rows(a, "v14", "v15", "s6", 128)
    a("v_add_u32 v14, s79, v14")
    a("v_add_u32 v15, s7, v14")
    for b in range(4):
        for t in range(4):
            r = ZQ[4 * b + t]
            a(f"ds_read_b64_tr_b16 v[{r}:{r + 1}], v14 offset:{b * 4096 + t * 32}")
            a(f"ds_read_b64_tr_b16 v[{r + 2}:{r + 3}], v15 offset:{b * 4096 + t * 32}")


def ffn_transpose(a):
    ffn_transpose_reads(a)
    dn, dd = a.label("swz_down"), a.label("swz_dest")
    dest = [80, 81, 82, 83, 64, 65, 18, 19, 20, 21, 22, 25, 26, 27, 28, 29]
    a(f"s_mul_i32 s68, s40, {4 * WSTR}")
    a(f"s_add_u32 s68, s68, {WF}")
    a("s_cmp_eq_u32 s93, 2")
    a(f"s_cbranch_scc1 {dn}")
    for b in range(4):
        sdivmod(a, "s6", "s7", f"s{84 + b}", 3, 17)
        a("s_mul_i32 s6, s6, 6")
        a("s_add_u32 s7, s7, s6")
        a(f"s_mul_i32 s6, s{88 + b}, 36")
        a("s_add_u32 s7, s7, s6")
        a("s_mul_i32 s6, s93, 3")
        a("s_add_u32 s7, s7, s6")
        a("s_lshl_b32 s7, s7, 10")
        a("s_add_u32 s7, s7, s68")
        for t in range(4):
            a(f"s_add_u32 s{dest[4 * b + t]}, s7, {t * WSTR}")
    a(f"s_branch {dd}")
    a(f"{dn}:")
    for b in range(4):
        a(f"s_mul_i32 s7, s{88 + b}, 18")
        a(f"s_add_u32 s7, s7, s{84 + b}")
        a("s_add_u32 s7, s7, 324")
        a("s_lshl_b32 s7, s7, 10")
        a("s_add_u32 s7, s7, s68")
        for t in range(4):
            a(f"s_add_u32 s{dest[4 * b + t]}, s7, {t * WSTR}")
    a(f"{dd}:")
    return [f"buffer_store_dwordx4 v[{ZQ[i]}:{ZQ[i] + 3}], v253, s[72:75], s{dest[i]} offen {Cfg.zflag}" for i in range(16)]


BIG = -1e30


QR = 10
WO_FREE = [(160 + 4 * i, -1) for i in range(24)] + \
    [(16 * (k % QR) + 4 * t, k) for k in range(18 - QR, 18) for t in range(4)]


def wo_reg(ks, sl):
    return WO_FREE[ks * 3 + sl][0]


def qkv_prefetch(a, k0, k1, skip=None):
    if k0 == 0:
        a("s_lshl_b32 s28, s40, 2")
        a("s_add_u32 s28, s28, s3")
        a(f"s_mul_i32 s28, s28, {72 * KB}")
        if WQ:
            a(f"s_add_u32 s28, s28, {WQ}")
    v = "v253"
    if skip:
        a(f"s_mul_i32 s7, {skip}, {OOB}")
        a("v_add_u32 v3, s7, v253")
        v = "v3"
    for ks in range(k0, k1):
        for l in qkv_wload(ks, v):
            a(l)
        a("s_add_u32 s28, s28, 4096")


def qkv_wload(ks, v="v253"):
    for t in range(4):
        r = 16 * (ks % QR) + 4 * t
        yield f"buffer_load_dwordx4 a[{r}:{r + 3}], {v}, s[8:11], s28 offen offset:{t * KB} {Cfg.wflag}"


def wo_weight_loads(a):
    setup = []
    s = setup.append
    s("s_lshl_b32 s45, s41, 1")
    s("s_lshr_b32 s7, s40, 2")
    s("s_add_u32 s45, s45, s7")
    s(f"s_mul_i32 s30, s45, {4 * GB}")
    s("s_add_u32 s30, s30, s43")
    s("s_and_b32 s31, s40, 3")
    s("s_mul_i32 s31, s31, 9")
    s("s_add_u32 s31, s31, s3")
    s(f"s_mul_i32 s32, s31, {18 * KB}")
    s(f"s_add_u32 s32, s32, {WO}")
    s(f"s_add_u32 s33, s32, {4 * 18 * KB}")
    s(f"s_add_u32 s34, s32, {8 * 18 * KB}")
    s(f"s_mov_b32 s39, {FLAGS + SL_WO * FPH}")
    s("v_min_u32 v228, 44, v0")
    s("v_lshlrev_b32 v228, 3, v228")
    s("s_cmp_eq_u32 s3, 1")
    s(f"s_cmov_b32 s34, {WO + 36 * 18 * KB}")
    s("s_cmp_lt_u32 s3, 2")
    s(f"s_cselect_b32 s35, 0, {OOB}")
    s("v_add_u32 v5, s35, v253")
    s("s_cmp_eq_u32 s3, 0")
    s(f"s_cselect_b32 s35, 0, {OOB}")
    s("v_add_u32 v7, s35, v9")
    s("s_lshl_b32 s7, s31, 8")
    s("s_add_u32 s36, s30, s7")
    s(f"s_add_u32 s37, s36, {X2}")
    s(f"s_add_u32 s46, s36, {XC}")
    s("s_lshl_b32 s36, s45, 7")
    s("s_add_u32 s36, s36, s43")
    s(f"s_add_u32 s36, s36, {MEAN1}")
    s("s_lshl_b32 s47, s45, 9")
    s("s_add_u32 s47, s47, s43")
    s(f"s_add_u32 s47, s47, {MEAN}")
    s("v_bfe_u32 v10, v0, 3, 2")
    s("v_and_b32 v8, 7, v0")
    s("v_lshlrev_b32 v8, 2, v8")
    s("v_lshl_add_u32 v8, v10, 7, v8")
    loads = []
    for ks in range(18):
        for sl in range(3):
            r = wo_reg(ks, sl)
            t = f"buffer_load_dwordx4 a[{r}:{r + 3}], v{5 if sl == 2 else 253}, s[8:11], s{32 + sl} offen offset:{(ks & 3) * KB} {Cfg.wflag}"
            if ks & 3 == 3:
                t += f"\ns_add_u32 s{32 + sl}, s{32 + sl}, 4096"
            loads.append((t, WO_FREE[ks * 3 + sl][1]))
    for sl in range(3):
        loads.append((f"buffer_load_dwordx4 v[{240 + 4 * sl}:{243 + 4 * sl}], v{7 if sl == 2 else 9}, s[8:11], s37 offen offset:{sl * KB} sc1", -1))
    loads.append(("buffer_load_dword v252, v8, s[8:11], s47 offen sc1", -1))
    return setup, loads


def phase_qkv(a, abort):
    BF, ACC, QO, KO, VO, VL, SEL, CI, BP, BC, BP1 = 16, 56, 132, 152, 172, 182, 192, 196, 200, 204, 208
    bfrag_voff(a, "v2", "v3")
    dtile_voff(a, "v9", "v3", None, GB)
    a(f"s_mul_i32 s22, s41, {8 * GB}")
    a("s_add_u32 s22, s22, s43")
    a(f"s_add_u32 s23, s22, {XN}")
    a(f"s_mul_i32 s7, s3, {2 * GB}")
    a("s_add_u32 s24, s23, s7")
    a("s_cmp_eq_u32 s41, 0")
    a(f"s_cselect_b32 s7, 0, {2 * GB}")
    a("s_sub_u32 s23, s23, s7")
    units = [(0, tt) for tt in range(1, 5)] + [(t, tt) for t in range(1, 4) for tt in range(5)]
    acc = {u: ACC + 4 * i for i, u in enumerate(units)}
    a("s_lshl_b32 s25, s3, 10")
    a("s_add_u32 s25, s25, 1024")
    a("s_mul_i32 s26, s3, 5120")
    a("s_lshl_b32 s7, s3, 9")
    a("s_add_u32 s27, s23, s7")
    a("s_and_b32 s7, s3, 1")
    a("s_add_u32 s7, s7, 4")
    a("s_mul_i32 s29, s7, 5120")
    a("s_lshl_b32 s7, s7, 9")
    a("s_add_u32 s23, s23, s7")
    wait_flags(a, (PH_RED - 4) * FPH, abort, halo=True)
    mark(a, 0)
    def xdma(st):
        for kk in range(6):
            ks = 6 * st + kk
            t = f"s_add_u32 m0, s25, {ks * 5120 - (ks % 8) * 512}\n"
            t += "s_add_u32 s24, s24, 4096\n" if ks and ks % 8 == 0 else "s_nop 0\n"
            yield t + f"buffer_load_dwordx4 v2, s[8:11], s24 offen offset:{(ks % 8) * 512} {Cfg.xflag} lds"
        for sm, so in (("s26", "s27"), ("s29", "s23")):
            yield (f"s_add_u32 m0, {sm}, {st * 30720}\ns_add_u32 s7, {so}, {st * 3072}\n"
                   f"buffer_load_dwordx4 v2, s[8:11], s7 offen {Cfg.xflag} lds")

    vm = Vm()
    for t in xdma(0):
        a(t)
        vm.issue(("x", 0))
    main, a = a, Asm()
    for r in [QO, QO + 1, SEL, SEL + 1, SEL + 3] + [QO + 4 * t + 3 for t in range(5)] + [KO + 4 * t + 3 for t in range(5)]:
        a(f"v_mov_b32 v{r}, 0")
    a("v_cmp_eq_u32 vcc, 16, v0")
    a("v_mov_b32 v10, 0x3f80")
    a("v_cmp_eq_u32 s[20:21], 17, v0")
    a(f"v_cndmask_b32 v{SEL + 2}, 0, v10, vcc")
    a("v_and_b32 v11, 3, v0")
    a(f"v_cndmask_b32 v{SEL + 2}, v{SEL + 2}, 1.0, s[20:21]")
    a("v_cmp_eq_u32 vcc, 2, v11")
    a("v_and_b32 v10, 15, v0")
    a("v_lshrrev_b32 v11, 4, v0")
    for r in range(4):
        a(f"v_cndmask_b32 v{CI + r}, 0, 1.0, vcc")
    a("v_lshlrev_b32 v11, 2, v11")
    a("v_sub_u32 v10, v11, v10")
    a(f"v_mov_b32 v12, {f32(BIG)}")
    a("s_cmp_eq_u32 s41, 0")
    a("s_cselect_b64 s[38:39], 0, -1")
    for r in range(4):
        a(f"v_add_u32 v11, {r}, v10")
        a("v_and_b32 v13, 1, v11")
        a("v_cmp_eq_u32 s[20:21], 0, v13")
        a("v_cmp_lt_i32 vcc, 1, v11")
        a("v_cmp_gt_i32 s[18:19], 1, v11")
        a("s_and_b64 vcc, vcc, s[20:21]")
        a("s_and_b64 s[18:19], s[18:19], s[20:21]")
        a("s_and_b64 s[20:21], vcc, s[38:39]")
        a(f"v_cndmask_b32 v{BP + r}, v12, 0, vcc")
        a(f"v_cndmask_b32 v{BC + r}, v12, 0, s[18:19]")
        a(f"v_cndmask_b32 v{BP1 + r}, v12, 0, s[20:21]")
    setup, early = wo_weight_loads(a)
    for t in setup:
        a(t)
    side, chunk = [], ""
    for ln in a.lines:
        chunk += ln + "\n"
        if ln.strip().startswith("v_") and not ln.strip().startswith("v_cmp"):
            side.append(chunk)
            chunk = ""
    side.append(chunk)
    a = main
    a(f"v_add_u32 v6, {45 * KB}, v253")
    a("s_waitcnt vmcnt(0)")
    a("s_barrier")
    mark(a, 1)

    def xread(ks, tt):
        r = BF + 20 * (ks & 1) + 4 * tt
        f = ks * 5 + tt
        return f"ds_read_b128 v[{r}:{r + 3}], v{253 if f < 45 else 6} offset:{(f % 45) * KB}"

    for tt in range(5):
        a(xread(0, tt))
    stage = {1: list(xdma(1)), 2: list(xdma(2))}
    raw = [ffn_raw_dma(i) for i in range(Cfg.raw_mid, 16)]
    wq = []
    for k in range(QR - 1, 18):
        ls = list(qkv_wload(k))
        ls[3] += "\ns_add_u32 s28, s28, 4096"
        wq += [(l, ("w", k)) for l in ls]
    for ks in range(18):
        cur = BF + 20 * (ks & 1)
        fill = {}
        if ks < 17:
            for tt in range(5):
                fill[tt] = [(xread(ks + 1, tt), None)]
        vq = []
        st = 1 if ks < 4 else 2
        for _ in range(2):
            if stage[st] and ks != 4:
                vq.append((stage[st].pop(0), ("x", st)))
        for _ in range(Cfg.w_per_ks):
            if wq and wq[0][1][1] - QR < ks:
                vq.append(wq.pop(0))
        while ks >= 18 - QR + 1 and len(vq) < Cfg.wo_per_ks and early[0][1] < ks:
            vq.append((early.pop(0)[0], "o"))
        for i, op in enumerate(vq):
            fill[5 + 2 * i] = [op]
        for u in (6, 8, 10, 12, 14, 15, 16, 17, 18):
            if u not in fill:
                fill[u] = [(side.pop(0), None) for _ in range(min(2, len(side)))]
        if raw and ks >= 1:
            fill[18] = [(raw.pop(0), "z")]
        if ks == 6:
            assert not side
            fill[5 + 2 * len(vq)] = [("buffer_load_dwordx2 v[226:227], v228, s[8:11], s39 offen sc1", "b")]
        need = ([("w", ks)] if ks >= QR - 1 else []) + ([("x", (ks + 1) // 6)] if ks in (5, 11) else [])
        if ks == 18 - QR + 1:
            need.append("b")
        a(f"s_waitcnt vmcnt({vm.count(*need)}) lgkmcnt(0)" if need else "s_waitcnt lgkmcnt(0)")
        if ks == 18 - QR + 1:
            lp, ok = a.label("wo_poll"), a.label("wo_ready")
            a("s_mov_b32 s6, 0")
            a(f"{lp}:")
            a("v_cmp_eq_u32 vcc, s76, v226")
            a("v_cmp_eq_u32 s[20:21], s76, v227")
            a("s_and_b64 vcc, vcc, s[20:21]")
            a("s_cmp_eq_u64 vcc, exec")
            a(f"s_cbranch_scc1 {ok}")
            a("buffer_load_dwordx2 v[226:227], v228, s[8:11], s39 offen sc1")
            a("s_add_u32 s6, s6, 1")
            a(f"s_cmp_lt_u32 s6, {1 << 20}")
            a("s_waitcnt vmcnt(0)")
            a(f"s_cbranch_scc1 {lp}")
            a(f"s_branch {abort}")
            a(f"{ok}:")
        if ks in (5, 11):
            a("s_barrier")
        for u, (t, tt) in enumerate(units):
            c = acc[(t, tt)]
            wr = 16 * (ks % QR) + 4 * t
            w, x = f"a[{wr}:{wr + 3}]", f"v[{cur + 4 * tt}:{cur + 4 * tt + 3}]"
            if t == 2:
                w, x = x, w
            a(f"v_mfma_f32_16x16x32_bf16 v[{c}:{c + 3}], {w}, {x}, {'0' if ks == 0 else f'v[{c}:{c + 3}]'}")
            for text, tag in fill.get(u, []):
                a(text)
                if tag:
                    vm.issue(tag)
    assert not stage[1] and not stage[2]
    assert not wq
    early = [t for t, _ in early]
    nw = len(early) - 4
    tail_loads = early[nw - Cfg.wo_gap:nw]
    early = early[:nw - Cfg.wo_gap] + early[nw:]
    mark(a, 2)
    body = []
    e = body.append
    cvt = lambda d, s: e(f"v_cvt_pk_bf16_f32 v{d}, v{s}, v{s + 1}")
    mf = lambda d, x, y, c: e(f"v_mfma_f32_16x16x32_bf16 v[{d}:{d + 3}], v[{x}:{x + 3}], v[{y}:{y + 3}], {c}")
    quad = lambda r: f"v[{r}:{r + 3}]"
    for tt in range(1, 5):
        cvt(QO + 4 * tt, acc[(0, tt)]); cvt(QO + 4 * tt + 1, acc[(0, tt)] + 2)
    for tt in range(5):
        cvt(KO + 4 * tt, acc[(1, tt)]); cvt(KO + 4 * tt + 1, acc[(1, tt)] + 2)
    for tt in range(5):
        cvt(QO + 4 * tt + 2, acc[(3, tt)]); cvt(KO + 4 * tt + 2, acc[(3, tt)] + 2)
    for tt in range(5):
        cvt(VO + 2 * tt, acc[(2, tt)]); cvt(VO + 2 * tt + 1, acc[(2, tt)] + 2)
    S, T, P, M = 16, 56, 76, 92
    for tt in range(1, 5):
        s = S + 8 * (tt - 1)
        mf(s, KO + 4 * (tt - 1), QO + 4 * tt, quad(BP1 if tt == 1 else BP))
        mf(s + 4, KO + 4 * tt, QO + 4 * tt, quad(BC))
    for tt in range(5):
        mf(T + 4 * tt, QO + 4 * tt, SEL, quad(CI))
    for i in range(4):
        s = S + 8 * i
        e(f"v_max3_f32 v{M + i}, v{s}, v{s + 1}, v{s + 2}")
        e(f"v_max3_f32 v{M + 4 + i}, v{s + 3}, v{s + 4}, v{s + 5}")
    for i in range(4):
        s = S + 8 * i
        e(f"v_max3_f32 v{M + i}, v{M + i}, v{s + 6}, v{s + 7}")
    for i in range(4):
        e(f"v_max_f32 v{M + i}, v{M + i}, v{M + 4 + i}")
    c = 18 ** -0.5 * math.log2(math.e)
    e(f"s_mov_b32 s18, {f32(c)}")
    tcv = [(VL + 2 * tt + h, T + 4 * tt + 2 * h) for tt in range(5) for h in range(2)]
    pad = lambda n: [cvt(*tcv.pop(0)) for _ in range(n)]
    pad(1)
    e(f"v_permlane32_swap_b32 v{M}, v{M + 1}")
    e(f"v_permlane32_swap_b32 v{M + 2}, v{M + 3}")
    e(f"v_max_f32 v{M}, v{M}, v{M + 1}")
    e(f"v_max_f32 v{M + 2}, v{M + 2}, v{M + 3}")
    pad(2)
    e(f"v_permlane16_swap_b32 v{M}, v{M + 2}")
    e(f"v_max_f32 v{M}, v{M}, v{M + 2}")
    e(f"v_mul_f32 v{M}, {f32(-c)}, v{M}")
    e(f"v_mov_b32 v{M + 2}, v{M}")
    pad(2)
    e(f"v_permlane16_swap_b32 v{M}, v{M + 2}")
    e(f"v_mov_b32 v{M + 1}, v{M}")
    e(f"v_mov_b32 v{M + 3}, v{M + 2}")
    pad(2)
    e(f"v_permlane32_swap_b32 v{M}, v{M + 1}")
    e(f"v_permlane32_swap_b32 v{M + 2}, v{M + 3}")
    pad(3)
    OA, OL, R, OUT, LO = 100, 116, 96, 212, 220
    for i in range(4):
        s = S + 8 * i
        for r in range(8):
            e(f"v_fma_f32 v{s + r}, v{s + r}, s18, v{M + i}")
        for r in range(8):
            e(f"v_exp_f32 v{s + r}, v{s + r}")
        if i:
            mf(OA + 4 * (i - 1), VO + 2 * (i - 1), P + 4 * (i - 1), "0")
            mf(OL + 4 * (i - 1), VL + 2 * (i - 1), P + 4 * (i - 1), "0")
        else:
            e("s_nop 0")
        for r in range(4):
            cvt(P + 4 * i + r, s + 2 * r)
    e(f"v_rcp_f32 v{R}, v{OL + 2}")
    e(f"v_rcp_f32 v{R + 1}, v{OL + 6}")
    mf(OA + 12, VO + 6, P + 12, "0")
    mf(OL + 12, VL + 6, P + 12, "0")

    def scale(i):
        sel = "op_sel:[1,0] op_sel_hi:[1,1]" if i & 1 else "op_sel:[0,0] op_sel_hi:[0,1]"
        rp = R + (i & 2)
        for o in (OA + 4 * i, OA + 4 * i + 2, OL + 4 * i):
            e(f"v_pk_mul_f32 v[{o}:{o + 1}], v[{rp}:{rp + 1}], v[{o}:{o + 1}] {sel}")
        cvt(OUT + 2 * i, OA + 4 * i); cvt(OUT + 2 * i + 1, OA + 4 * i + 2); cvt(LO + i, OL + 4 * i)

    scale(0)
    e(f"v_rcp_f32 v{R + 2}, v{OL + 10}")
    scale(1)
    e(f"v_rcp_f32 v{R + 3}, v{OL + 14}")
    e(f"v_permlane16_swap_b32 v{OUT}, v{OUT + 2}")
    e(f"v_permlane16_swap_b32 v{OUT + 1}, v{OUT + 3}")
    scale(2)
    scale(3)
    LX = 92 * KB
    e("s_lshl_b32 s7, s3, 2")
    e(f"s_add_u32 s7, s7, {LX}")
    e(f"v_permlane16_swap_b32 v{LO}, v{LO + 1}")
    e(f"v_permlane16_swap_b32 v{LO + 2}, v{LO + 3}")
    e("v_add_u32 v11, s7, v253")
    e("v_lshrrev_b32 v10, 3, v0")
    e(f"v_permlane32_swap_b32 v{LO}, v{LO + 2}")
    e(f"v_mul_u32_u24 v10, {GB}, v10")
    e(f"ds_write_b32 v11, v{LO}")
    e(f"v_permlane16_swap_b32 v{OUT + 4}, v{OUT + 6}")
    e(f"v_permlane16_swap_b32 v{OUT + 5}, v{OUT + 7}")
    step = max(1, len(body) // len(early))
    for i, t in enumerate(body):
        a(t)
        if early and i % step == step - 1:
            a(early.pop(0))
    for t in early:
        a(t)
    a("s_mul_i32 s7, s40, 1152")
    a("s_add_u32 s22, s22, s7")
    a(f"s_add_u32 s22, s22, {OO}")
    a("s_lshl_b32 s7, s3, 8")
    a("s_add_u32 s23, s22, s7")
    a(f"s_add_u32 s24, s23, {4 * GB}")
    a(f"buffer_store_dwordx4 v[{OUT}:{OUT + 3}], v9, s[8:11], s23 offen sc1")
    a(f"buffer_store_dwordx4 v[{OUT + 4}:{OUT + 7}], v9, s[8:11], s24 offen sc1")
    a("v_and_b32 v11, 7, v0")
    a("v_lshl_add_u32 v10, v11, 4, v10")
    a("s_cmp_eq_u32 s3, 3")
    a(f"s_cselect_b32 s7, 0, {OOB}")
    a("v_add_u32 v10, s7, v10")
    a(f"v_add_u32 v11, {LX}, v253")
    a("s_waitcnt lgkmcnt(0)")
    a("s_barrier")
    a(f"ds_read_b128 v[{LO}:{LO + 3}], v11")
    a("s_waitcnt lgkmcnt(0)")
    a(f"buffer_store_dwordx4 v[{LO}:{LO + 3}], v10, s[8:11], s22 offen offset:1024 sc1")
    mark(a, 3)
    publish(a, PH_QKV)
    mark(a, 4)
    for t in tail_loads:
        a(t)


def phase_wo(a, abort):
    RES, BF, ACC, T = 240, 160, 100, 124
    z0 = a.label("swz")
    a("s_cmp_lg_u32 s42, 0")
    a(f"s_cbranch_scc1 {z0}")
    zst = ffn_transpose(a)
    a("s_mov_b32 s72, s8")
    a("s_mov_b32 s73, s9")
    a(f"s_mov_b32 s74, {WS_SIZE}")
    a("s_waitcnt lgkmcnt(0)")
    for _ in range(Cfg.z_early):
        a(zst.pop(0))
    if Cfg.code_warm > 2:
        code_warm(a, "v[14:15]")
    a(f"{z0}:")
    a("s_and_b32 s7, s3, 1")
    a(f"s_mul_i32 s7, s7, {2 * GB}")
    a("s_add_u32 s24, s30, s7")
    a("s_lshr_b32 s7, s3, 1")
    a("s_lshl_b32 s7, s7, 9")
    a("s_add_u32 s24, s24, s7")
    a(f"s_add_u32 s24, s24, {OO}")
    a("s_mov_b32 s16, 0xffff0000")
    for sl in range(3):
        for i in range(4):
            a(f"v_lshlrev_b32 v{T + 8 * sl + 2 * i}, 16, v{RES + 4 * sl + i}")
            a(f"v_and_b32 v{T + 8 * sl + 2 * i + 1}, s16, v{RES + 4 * sl + i}")
    MX = 40 * KB
    a("s_cmp_eq_u32 s3, 1")
    a("s_cselect_b32 s7, 16, 0")
    a("v_lshlrev_b32 v12, 2, v0")
    a("v_cmp_gt_u32 vcc, s7, v0")
    a(f"v_add_u32 v10, {MX}, v12")
    a(f"v_add_u32 v11, {MX + 512}, v12")
    a("v_cndmask_b32 v10, v11, v10, vcc")
    a("v_and_b32 v11, 0x7c, v12")
    a("v_cmp_gt_u32 vcc, 32, v0")
    a(f"v_mov_b32 v13, {OOB}")
    a("s_and_b32 s7, s40, 3")
    a("s_lshl_b32 s45, s45, 2")
    a("v_cndmask_b32 v8, v13, v12, vcc")
    a("s_add_u32 s6, s7, s3")
    a("s_cmp_eq_u32 s6, 0")
    a(f"s_cselect_b32 s6, 0, {OOB}")
    a("v_add_u32 v6, s6, v8")
    a("s_add_u32 s45, s45, s7")
    a("s_lshl_b32 s45, s45, 2")
    a("s_add_u32 s45, s45, s3")
    a("s_lshl_b32 s45, s45, 7")
    a("s_add_u32 s45, s45, s43")
    a(f"s_add_u32 s45, s45, {STAT}")
    a("s_cmp_eq_u32 s3, 0")
    a("s_cselect_b32 s35, 1.0, 0")
    ring = ffn_ring_setup(a)
    wait_flags(a, PH_QKV * FPH, abort)
    mark(a, 5)
    a("s_lshl_b32 m0, s3, 10")
    for m in range(9):
        if m:
            a("s_add_u32 m0, m0, 4096")
            a("s_add_u32 s24, s24, 1024")
        else:
            a("s_nop 0")
        a(f"buffer_load_dwordx4 v2, s[8:11], s24 offen {Cfg.xflag} lds")
    z1 = a.label("swz")
    assert not zst
    a("s_waitcnt vmcnt(4)")
    a("s_barrier")
    mark(a, 6)
    for tt in range(2):
        a(f"ds_read_b128 v[{BF + 4 * tt}:{BF + 4 * tt + 3}], v253 offset:{tt * KB}")
    for ks in range(18):
        cur, nxt = BF + 8 * (ks & 1), BF + 8 * ((ks + 1) & 1)
        if ks == 9:
            a("s_waitcnt vmcnt(9) lgkmcnt(0)")
            a("s_barrier")
            a(f"s_xor_b32 s7, s3, {Cfg.pw}")
            a("s_or_b32 s7, s7, s42")
            a(f"s_cbranch_scc1 {z1}")
            column_flag(a, SL_WF)
            a("s_mov_b64 exec, -1")
            a(f"{z1}:")
        else:
            a("s_waitcnt lgkmcnt(0)")
        i = 0
        for sl in range(3):
            for tt in range(2):
                c = ACC + 4 * (2 * sl + tt)
                w = wo_reg(ks, sl)
                src = "0" if ks == 0 else f"v[{c}:{c + 3}]"
                a(f"v_mfma_f32_16x16x32_bf16 v[{c}:{c + 3}], a[{w}:{w + 3}], v[{cur + 4 * tt}:{cur + 4 * tt + 3}], {src}")
                if i < 2 and ks < 17:
                    a(f"ds_read_b128 v[{nxt + 4 * i}:{nxt + 4 * i + 3}], v253 offset:{((ks + 1) * 2 + i) * KB}")
                if i == 3 and ring:
                    a(ring.pop(0))
                i += 1
    mark(a, 7)
    XR = 148
    a("s_nop 3")
    for r in range(4):
        a(f"v_permlane16_swap_b32 v{ACC + r}, v{ACC + 4 + r}")
    a(f"v_add_f32 v12, v{ACC + 16}, v{ACC + 17}")
    a(f"v_add_f32 v13, v{ACC + 20}, v{ACC + 21}")
    a("ds_write_b32 v10, v12")
    a("ds_write_b32 v10, v13 offset:64")
    for sl in (1, 2):
        for r in range(4):
            a(f"v_permlane16_swap_b32 v{ACC + 8 * sl + r}, v{ACC + 8 * sl + 4 + r}")
    a("s_waitcnt lgkmcnt(0)")
    a("s_barrier")
    a(f"ds_read_b32 v12, v11 offset:{MX}")
    for sl in range(3):
        for i in range(4):
            t, c = T + 8 * sl + 2 * i, ACC + 8 * sl + 2 * i
            a(f"v_pk_add_f32 v[{t}:{t + 1}], v[{t}:{t + 1}], v[{c}:{c + 1}]")
    a("v_mov_b32 v14, 0")
    a("v_mov_b32 v15, 0")
    a("s_waitcnt lgkmcnt(0)")
    a("v_add_f32 v12, v12, v252")
    for sl in range(3):
        for i in range(4):
            t, c = T + 8 * sl + 2 * i, ACC + 8 * sl + 2 * i
            a(f"v_pk_add_f32 v[{c}:{c + 1}], v[{t}:{t + 1}], v[12:13] op_sel_hi:[1,0] neg_lo:[0,1] neg_hi:[0,1]")
        for i in range(4):
            c = ACC + 8 * sl + 2 * i
            a(f"v_cvt_pk_bf16_f32 v{XR + 4 * sl + i}, v{c}, v{c + 1}")
        a(f"buffer_store_dwordx4 v[{XR + 4 * sl}:{XR + 4 * sl + 3}], v{7 if sl == 2 else 9}, s[8:11], s46 offen offset:{sl * KB} sc1")
    for i in range(12):
        a(f"v_dot2c_f32_bf16 v{15 if i >= 8 else 14}, v{XR + i}, v{XR + i}")
    a("buffer_store_dword v12, v6, s[8:11], s36 offen sc1")
    a("s_nop 1")
    a("v_fma_f32 v14, v15, s35, v14")
    a("v_mov_b32 v15, v14")
    a("s_nop 1")
    a("v_permlane32_swap_b32 v14, v15")
    a("v_add_f32 v14, v14, v15")
    a("buffer_store_dword v14, v8, s[8:11], s45 offen sc1")
    publish(a, PH_WO)
    mark(a, 8)


FFN_LDS = 144 * KB
HB = 72 * KB


def pack_gaps(n_gaps, pinned, ops, start=0, cap=2):
    gaps = [list(pinned.get(g, [])) for g in range(n_gaps)]
    g = start
    for text, cost, earliest in ops:
        g = max(g, earliest)
        while sum(c for _, c in gaps[g]) + cost > cap:
            g += 1
        gaps[g].append((text, cost))
    return gaps


def check_stage_reads(mf, gaps, base, n):
    stage = {("v", base + i) for i in range(n)}
    wr = {}
    for i, t in enumerate(mf):
        for r in hazards.I(t, 0).w & stage:
            wr[r] = i
    for i, g in enumerate(gaps):
        for t, _ in g:
            for r in hazards.I(t.split("\n")[-1], 0).r & stage:
                assert i < wr[r], (i, t, wr[r])


RING, VB = 16, 184
RING_EXT = [104, 108, 112, 116, 180, 196, 200, 204, 208, 212, 136, 140, 144, 160, 164, 168, 148, 4]


def slot_reg(slot):
    return RING + 4 * slot if slot < 18 else RING_EXT[slot - 18]


def wload(slot, n):
    r = slot_reg(slot)
    return f"buffer_load_dwordx4 v[{r}:{r + 3}], v{VB + n // 4}, s[48:51], s23 offen offset:{(n % 4) * KB} {Cfg.wflag}"


def ffn_ring_setup(a):
    a("s_lshl_b32 s7, s40, 2")
    a("s_add_u32 s7, s7, s3")
    a(f"s_mul_i32 s23, s7, {WSTR}")
    a(f"s_add_u32 s23, s23, {WF}")
    a(f"s_add_u32 s50, s23, {486 * KB}")
    a("s_mul_i32 s50, s50, s42")
    a(f"v_mov_b32 v{VB}, v253")
    for m in range(1, 9):
        a(f"v_add_u32 v{VB + m}, {4096 * m}, v253")
    return [wload(n, n) for n in range(15)]


def phase_ffn(a, abort):
    ACC, STG, TMP = 88, 120, 152
    OA = 216
    xreg = lambda tt, ks: reg(256 + 4 * (tt * 18 + ks), 4) if tt * 18 + ks < 64 else reg(220 + 4 * (tt * 18 + ks - 64), 4)
    a("s_lshl_b32 s7, s41, 2")
    a("s_add_u32 s7, s7, s3")
    a(f"s_mul_i32 s22, s7, {2 * GB}")
    a("s_add_u32 s22, s22, s43")
    a(f"s_add_u32 s22, s22, {XC}")
    a(f"s_mul_i32 s24, s3, {18 * KB}")
    a("s_lshl_b32 s25, s41, 12")
    a("s_add_u32 s25, s25, s43")
    a(f"s_add_u32 s25, s25, {STAT}")
    a("v_lshrrev_b32 v3, 5, v0")
    a("v_and_b32 v10, 31, v0")
    a("v_lshlrev_b32 v10, 2, v10")
    a("v_lshl_add_u32 v3, v3, 11, v10")
    a(f"v_add_u32 v11, {36 * KB}, v{VB}")
    early = red_setup(a)
    dtile_voff(a, "v178", "v1", None, 8 * GB)
    a(f"v_add_u32 v179, {32 * GB}, v178")
    a("v_lshrrev_b32 v1, 5, v0")
    a("v_and_b32 v15, 7, v0")
    a("v_lshlrev_b32 v15, 4, v15")
    a("v_lshl_add_u32 v15, v1, 7, v15")
    a("s_lshl_b32 s7, s3, 8")
    a(f"s_add_u32 s7, s7, {OWN - KB}")
    a("v_add_u32 v15, s7, v15")
    a("v_bfe_u32 v1, v0, 3, 2")
    a(f"v_mov_b32 v182, {OOB}")
    a(f"v_add_u32 v183, {OWN + 10 * KB}, v253")
    for pr in range(2):
        a(f"s_sub_u32 s7, s40, {4 * pr}")
        a("v_cmp_eq_u32 vcc, s7, v1")
        a("s_nop 1")
        a(f"v_cndmask_b32 v{178 + pr}, v{178 + pr}, v182, vcc")
        a(f"v_cndmask_b32 v{OA + pr}, v183, v15, vcc")
        a(f"v_cndmask_b32 v{OA + 2 + pr}, 0, 1, vcc")
        a(f"v_lshlrev_b32 v{OA + 2 + pr}, 10, v{OA + 2 + pr}")
    a(f"s_mul_i32 s26, s41, {64 * GB}")
    a(f"s_mul_i32 s7, s40, {GB}")
    a("s_add_u32 s26, s26, s7")
    a("s_lshl_b32 s7, s3, 8")
    a("s_add_u32 s27, s26, s7")
    a(f"s_add_u32 s27, s27, {PART - KB}")
    a("s_mov_b32 s74, 0")
    a(f"s_mul_i32 s7, s42, {3 * FPH}")
    a("s_sub_u32 s29, s44, s7")
    a(f"s_add_u32 s29, s29, {(SL_EARLY - 1) * FPH}")
    a("s_lshl_b32 s7, s40, 7")
    a("s_add_u32 s7, s7, s29")
    a("s_add_u32 s38, s4, s7")
    a("s_addc_u32 s39, s5, 0")
    a("s_lshl_b32 s7, s40, 2")
    a("s_add_u32 s29, s29, s7")
    a(f"s_add_u32 s50, s23, {486 * KB}")
    late, seen = a.label("ring"), a.label("ring")
    a("s_cmp_lg_u32 s42, 0")
    a(f"s_cbranch_scc1 {late}")
    a(f"s_cmp_lg_u32 s3, {Cfg.pw}")
    a(f"s_cbranch_scc1 {seen}")
    column_wait(a, SL_WF, abort)
    a(f"{seen}:")
    a("s_barrier")
    for n in range(15):
        a(wload(n, n))
    a(f"{late}:")
    wait_flags(a, PH_WO * FPH, abort)
    mark(a, 9)
    C0, C1, VV, SS = [4, 5, 6, 7], [8, 9, 13, 14], [193, 194, 195, 252], 136
    k0 = -2.0 * math.sqrt(2.0 / math.pi) * math.log2(math.e)

    def xdma(ks):
        return (f"s_add_u32 m0, s24, {ks * KB - (ks % 8) * 512}\n"
                + ("s_add_u32 s22, s22, 4096\n" if ks and ks % 8 == 0 else "s_nop 0\n")
                + f"buffer_load_dwordx4 v2, s[8:11], s22 offen offset:{(ks % 8) * 512} {Cfg.xflag} lds")

    def xread(tt, ks):
        f = tt * 18 + ks
        return f"ds_read_b128 {xreg(tt, ks)}, v{VB if f < 36 else 11} offset:{(f % 36) * KB}"

    hread = lambda tt, ks: f"ds_read_b128 {xreg(tt, ks)}, v{10 if tt < 2 else 11} offset:{((tt * 18 + ks) % 36) * KB}"
    vm0 = Vm()
    for n in range(15):
        vm0.issue(("w", n))
    for ks in range(12):
        a(xdma(ks))
        vm0.issue(("x", ks))
    a(f"s_add_u32 s23, s23, {15 * KB}")
    a("s_lshr_b32 s7, s3, 1")
    a("s_lshl_b32 s7, s7, 10")
    a("s_and_b32 s6, s3, 1")
    a("s_lshl_b32 s6, s6, 3")
    a("s_add_u32 s28, s7, s6")
    a(f"s_add_u32 s28, s28, {HB}")
    if Cfg.noload:
        a("s_mov_b32 s50, 0")
    a(f"s_waitcnt vmcnt({vm0.count(('x', 5))})")
    a("s_barrier")
    mark(a, 10)
    for ks in range(3):
        for tt in range(4):
            a(xread(tt, ks))

    def const_ops(e):
        ops = []
        for n in (8, 4, 2, 1):
            ops += [(f"v_add_f32 v{SS + i}, v{SS + i}, v{SS + n + i}", 1, e) for i in range(n)]
        ops += [(f"v_mov_b32 v{SS + 1}, {f32(1e-5)}", 1, e), (f"v_fmac_f32 v{SS + 1}, {f32(1.0 / 576)}, v{SS}", 1, e),
                (f"v_mov_b32 v{VV[0]}, v{SS + 1}", 1, e),
                (f"s_nop 0\nv_permlane16_swap_b32 v{VV[0]}, v{SS + 1}", 2, e),
                (f"v_mov_b32 v{VV[2]}, v{VV[0]}", 1, e), (f"v_mov_b32 v{VV[1]}, v{SS + 1}", 1, e),
                (f"v_mov_b32 v{VV[3]}, v{SS + 1}", 1, e),
                (f"s_nop 0\nv_permlane32_swap_b32 v{VV[0]}, v{VV[2]}", 2, e),
                (f"v_permlane32_swap_b32 v{VV[1]}, v{VV[3]}", 2, e)]
        ops += [(f"v_rsq_f32 v{C0[tt]}, v{VV[tt]}", 2, e) for tt in range(4)]
        ops += [(f"v_mul_f32 v{C1[tt]}, v{C0[tt]}, v{C0[tt]}", 1, e) for tt in range(4)]
        ops += [(f"v_mul_f32 v{C0[tt]}, {f32(k0)}, v{C0[tt]}", 1, e) for tt in range(4)]
        ops += [(f"v_mul_f32 v{C1[tt]}, {f32(0.044715)}, v{C1[tt]}", 1, e) for tt in range(4)]
        ops += [(f"v_mul_f32 v{C1[tt]}, v{C1[tt]}, v{C0[tt]}", 1, e) for tt in range(4)]
        return ops

    def gelu_ops(first_gap):
        ops = []
        for tt in range(4):
            t, p, o = TMP + 10 * (tt & 1), TMP + 10 * (tt & 1) + 4, TMP + 10 * (tt & 1) + 8
            g, u = STG + 4 * tt, STG + 16 + 4 * tt
            e = first_gap(tt)
            for r in range(4):
                ops.append((f"v_mul_f32 v{t + r}, v{g + r}, v{g + r}", 1, e))
            for r in range(4):
                ops.append((f"v_fma_f32 v{t + r}, v{t + r}, v{C1[tt]}, v{C0[tt]}", 1, e))
            for r in range(4):
                ops.append((f"v_mul_f32 v{t + r}, v{g + r}, v{t + r}", 1, e))
            for r in range(4):
                ops.append((f"v_exp_f32 v{t + r}, v{t + r}", 2, e))
            for r in range(4):
                ops.append((f"v_mul_f32 v{p + r}, v{g + r}, v{u + r}", 1, e))
            for r in range(4):
                ops.append((f"v_fma_f32 v{t + r}, v{t + r}, v{VV[tt]}, v{VV[tt]}", 1, e))
            for r in range(4):
                ops.append((f"v_rcp_f32 v{t + r}, v{t + r}", 2, e))
            for r in range(4):
                ops.append((f"v_mul_f32 v{p + r}, v{p + r}, v{t + r}", 1, e))
            ops.append((f"v_cvt_pk_bf16_f32 v{o}, v{p}, v{p + 1}", 1, e))
            ops.append((f"v_cvt_pk_bf16_f32 v{o + 1}, v{p + 2}, v{p + 3}", 1, e))
            ops.append((f"ds_write_b64 v12, v[{o}:{o + 1}] offset:{tt * 18 * KB}", 2, e))
        return ops

    def gu_step(kind):
        mf, pinned = [], {}
        for G in range(12):
            gu, grp = G & 1, G >> 1
            for tt in range(4):
                for kk in range(3):
                    ks = 3 * grp + kk
                    c = ACC + 16 * gu + 4 * tt
                    d = STG + 16 * gu + 4 * tt if ks == 17 else c
                    src = "0" if ks == 0 else f"v[{c}:{c + 3}]"
                    w = RING + 4 * ((3 * G + kk) % 18)
                    mf.append(f"v_mfma_f32_16x16x32_bf16 v[{d}:{d + 3}], v[{w}:{w + 3}], {xreg(tt, ks)}, {src}")
            for kk in range(3):
                n = 3 * G + kk
                pinned[12 * G + 4 * kk + Cfg.ldpos] = [(wload((n + 15) % 18, n), 2)]
        if kind == "first":
            for k in range(6):
                pinned[4 * k + 3] = [(xdma(12 + k), 2)]
            for k in range(16):
                pinned[24 + 12 * (k // 5) + (3, 6, 7, 10, 11)[k % 5]] = \
                    [(f"buffer_load_dword v{SS + k}, v3, s[8:11], s25 offen offset:{128 * k} sc1", 2)]
            ops = [(xread(tt, ks), 1, 24 * (ks // 3 - 1) + (4 * (ks % 3) + tt) * 3 // 2) for ks in range(3, 18) for tt in range(4)]
            gaps = pack_gaps(144, pinned, ops)
            gaps = pack_gaps(144, dict(enumerate(gaps)), const_ops(96))
        else:
            gaps = pack_gaps(144, pinned, [] if Cfg.nogelu else gelu_ops(lambda tt: 2), cap=Cfg.gcap)
        if kind == "last":
            g = 0
            for ks in range(14):
                for tt in range(4):
                    g = max(g + 1, 24 * (ks // 3) + 12 + 3 * tt + ks % 3)
                    while g < 143 and any("buffer_" in t or "ds_" in t for t, _ in gaps[g]):
                        g += 1
                    gaps[min(g, 143)].append((hread(tt, ks), 1))
        check_stage_reads(mf, gaps, STG, 32)
        lg = Vm()
        lg.issue(2)
        for i in range(144):
            G = i // 12
            if i % 12 == 0 and kind == "first":
                need = [("w", 3 * G + 2)] + {2: [("x", 11)], 6: [("x", 17)], 8: ["s"]}.get(G, [])
                a(f"s_waitcnt vmcnt({vm0.count(*need)}) lgkmcnt({min(15, lg.count(3 * (G // 2) + 2))})")
                if G in (2, 6):
                    a("s_barrier")
            elif i % 12 == 0:
                a("s_waitcnt vmcnt(12)")
            a(mf[i])
            for text, _ in gaps[i]:
                a(text)
                if kind == "first":
                    if "s[48:51]" in text:
                        vm0.issue(("w", 3 * G + (i % 12) // 4 + 15))
                    elif " lds" in text:
                        vm0.issue(("x", 12 + i // 4))
                    elif "buffer_load_dword " in text:
                        vm0.issue("s")
                    elif "ds_read" in text:
                        lg.issue(int(text.split("offset:")[1]) // KB % 18)
            if i == 139:
                a("s_lshl_b32 s7, s25, 11" if kind != "first" else "s_mov_b32 s25, 0")
            if i == 140:
                a("s_add_u32 s7, s7, s28" if kind != "first" else "s_mov_b32 s7, s28")
            if i == 142:
                a(f"s_add_u32 s23, s23, {36 * KB}")
        a(f"v_add_u32 v12, s7, v{VB}")
        a("s_add_u32 s25, s25, 1")

    gu_step("first")
    mark(a, 12)
    lp = a.label("ffn_gu")
    a(f"{lp}:")
    gu_step("loop")
    a("s_cmp_lt_u32 s25, 8")
    a(f"s_cbranch_scc1 {lp}")
    a(f"v_add_u32 v10, {HB}, v{VB}")
    a(f"v_add_u32 v11, {HB + 36 * KB}, v{VB}")
    if Cfg.code_warm > 1:
        code_warm(a, "v[2:3]")
    a("s_waitcnt lgkmcnt(0)")
    a("s_barrier")
    gu_step("last")
    mark(a, 13)
    a("s_waitcnt lgkmcnt(0)")
    a("s_barrier")
    reads = [hread(tt, ks) for ks in (14, 15) for tt in range(4)]
    ops = []
    for tt in range(4):
        t, p, o = TMP + 10 * (tt & 1), TMP + 10 * (tt & 1) + 4, TMP + 10 * (tt & 1) + 8
        g, u = STG + 4 * tt, STG + 16 + 4 * tt
        pr = lambda r: f"v[{r}:{r + 1}]"
        bc = lambda r: (pr(r & ~1), r & 1)

        def pkfma(d, x, y, z):
            (ry, sy), (rz, sz) = bc(y), bc(z)
            return f"v_pk_fma_f32 {pr(d)}, {pr(x)}, {ry}, {rz} op_sel:[0,{sy},{sz}] op_sel_hi:[1,{sy},{sz}]"
        ops += [f"v_pk_mul_f32 {pr(t + r)}, {pr(g + r)}, {pr(g + r)}" for r in (0, 2)]
        ops += [pkfma(t + r, t + r, C1[tt], C0[tt]) for r in (0, 2)]
        ops += [f"v_pk_mul_f32 {pr(t + r)}, {pr(g + r)}, {pr(t + r)}" for r in (0, 2)]
        ops += [f"v_exp_f32 v{t + r}, v{t + r}" for r in range(4)]
        ops += [f"v_pk_mul_f32 {pr(p + r)}, {pr(g + r)}, {pr(u + r)}" for r in (0, 2)]
        ops += [pkfma(t + r, t + r, VV[tt], VV[tt]) for r in (0, 2)]
        ops += [f"v_rcp_f32 v{t + r}, v{t + r}" for r in range(4)]
        ops += ["s_nop 0"]
        ops += [f"v_pk_mul_f32 {pr(p + r)}, {pr(p + r)}, {pr(t + r)}" for r in (0, 2)]
        ops += [f"v_cvt_pk_bf16_f32 v{o}, v{p}, v{p + 1}", f"v_cvt_pk_bf16_f32 v{o + 1}, v{p + 2}, v{p + 3}"]
        ops += [f"ds_write_b64 v12, v[{o}:{o + 1}] offset:{tt * 18 * KB}"]
    ahead = [wload(15 + n, n) for n in range(18)]
    for i, t in enumerate(ops):
        a(t)
        if reads and i % 4 != 3:
            a(reads.pop(0))
        if i % 6 == 5 and len(ahead) > 5:
            a(ahead.pop(0))
    for t in reads + ahead:
        a(t)
    a(f"s_add_u32 s23, s23, {18 * KB}")
    a("s_waitcnt lgkmcnt(0)")
    a("s_barrier")
    for ks in (16, 17):
        for tt in range(4):
            a(hread(tt, ks))
    a("s_mov_b32 s25, 0")
    a("s_waitcnt lgkmcnt(0)")
    mark(a, 14)

    def down_epi(e0, e1):
        ops = []
        for pr, e in enumerate((e0, e1)):
            o = TMP + 4 * pr
            for h in range(2):
                s = STG + 4 * (2 * pr + h)
                ops.append((f"v_cvt_pk_bf16_f32 v{o + 2 * h}, v{s}, v{s + 1}", 1, e))
                ops.append((f"v_cvt_pk_bf16_f32 v{o + 2 * h + 1}, v{s + 2}, v{s + 3}", 1, e))
            ops.append((f"s_nop 0\nv_permlane16_swap_b32 v{o}, v{o + 2}", 2, e))
            ops.append((f"v_permlane16_swap_b32 v{o + 1}, v{o + 3}", 2, e))
            ops.append((f"buffer_store_dwordx4 v[{o}:{o + 3}], v{178 + pr}, s[72:75], s27 offen {Cfg.pflag}", 2, e))
            ops.append((f"ds_write_b128 v{OA + pr}, v[{o}:{o + 3}]", 2, e))
            ops.append((f"v_add_u32 v{OA + pr}, v{OA + pr}, v{OA + 2 + pr}", 1, e))
        return ops

    def down_trip(half, vm, last=0, emit=True):
        out = a if emit else Asm()
        mark_dyn(out, 21, "s25")
        base = 0 if half else 18
        mf, pinned = [], {}
        for G in range(6):
            for tt in range(4):
                for kk in range(3):
                    ks = 3 * G + kk
                    c = ACC + 4 * tt
                    d = STG + 4 * tt if ks == 17 else c
                    src = "0" if ks == 0 else f"v[{c}:{c + 3}]"
                    w = slot_reg(base + ks)
                    mf.append(f"v_mfma_f32_16x16x32_bf16 v[{d}:{d + 3}], v[{w}:{w + 3}], {xreg(tt, ks)}, {src}")
            for kk in range(3):
                n = 3 * G + kk
                if not last or (last == 1 and G == 0):
                    pinned[12 * G + 4 * kk + 1] = [(wload((base + n + 33) % 36, n), 2)]
                elif early and (last == 2 or G >= 2):
                    pinned[12 * G + 4 * kk + 1] = [(early.pop(0), 2)]
        gaps = pack_gaps(72, pinned, down_epi(Cfg.epi_gap, Cfg.epi_gap2 if not last else Cfg.epi_gap))
        check_stage_reads(mf, gaps, STG, 16)
        store_groups = [i // 12 for i in range(72) for t, _ in gaps[i] if "store" in t]
        for i in range(72):
            G = i // 12
            if i % 12 == 0 and last:
                out(f"s_waitcnt vmcnt({vm.count(('w', base + 3 * G + 2))})")
            elif i % 12 == 0:
                extra = sum(1 for sg in store_groups if sg < G)
                if not half:
                    extra += len(store_groups)
                out(f"s_waitcnt vmcnt({30 + extra})")
            if i == 36 and half and not last and emit:
                skip = a.label("early")
                a("s_cmp_lg_u32 s25, 6")
                a(f"s_cbranch_scc1 {skip}")
                a(f"s_waitcnt vmcnt({vm.count(('s', 0))})")
                a("s_barrier")
                a(f"s_cmp_lg_u32 s3, {Cfg.pw}")
                a(f"s_cbranch_scc1 {skip}")
                a("v_lshlrev_b32 v15, 7, v0")
                a("v_mov_b32 v1, s76")
                a("s_mov_b64 exec, 0xff")
                a("buffer_store_dword v1, v15, s[8:11], s29 offen sc1")
                a("s_mov_b64 exec, -1")
                a(f"{skip}:")
            if i == 24 and last == 1:
                lp, ok = a.label("epoll"), a.label("epolled")
                a(f"{lp}:")
                a("s_waitcnt lgkmcnt(0)")
                for r in (56, 58, 60, 62):
                    a(f"s_xor_b64 s[{r}:{r + 1}], s[{r}:{r + 1}], s[76:77]")
                a("s_or_b64 s[56:57], s[56:57], s[58:59]")
                a("s_or_b64 s[60:61], s[60:61], s[62:63]")
                a("s_or_b64 s[56:57], s[56:57], s[60:61]")
                a(f"s_cbranch_scc0 {ok}")
                a("s_load_dwordx8 s[56:63], s[38:39], 0 glc")
                a("s_add_u32 s6, s6, 1")
                a(f"s_cmp_lt_u32 s6, {1 << 20}")
                a(f"s_cbranch_scc1 {lp}")
                a(f"s_branch {abort}")
                a(f"{ok}:")
            out(mf[i])
            for text, _ in gaps[i]:
                out(text)
                if "buffer_store" in text:
                    vm.issue(("s", half))
                elif "s[48:51]" in text:
                    vm.issue(("w", (base + 3 * G + (i % 12) // 4 + 33) % 36))
                elif "buffer_load" in text:
                    vm.issue("e")
            if i == 14 and last == 1:
                out("s_load_dwordx8 s[56:63], s[38:39], 0 glc")
            if i == 15 and last == 1:
                out("s_mov_b32 s6, 0")
            if i == 66:
                out(f"s_mov_b32 s74, {WS_SIZE}")
            if i == 67:
                out(f"s_add_u32 s27, s27, {KB}")
            if i == 68:
                out("s_add_u32 s25, s25, 1")
            if i == 70:
                out(f"s_add_u32 s23, s23, {18 * KB}")

    lp, mid = a.label("ffn_dn"), a.label("ffn_dn_mid")
    vm = Vm()
    down_trip(1, vm, emit=False)
    a(f"s_branch {mid}")
    a(f"{lp}:")
    down_trip(0, vm)
    a(f"{mid}:")
    down_trip(1, vm)
    a("s_cmp_lt_u32 s25, 7")
    a(f"s_cbranch_scc1 {lp}")
    down_trip(0, vm, last=1)
    down_trip(1, vm, last=2)
    assert not early
    mark(a, 15)
    a("s_nop 7")
    fin = [t for t, _, _ in down_epi(0, 0)]
    for t in fin[:4] + fin[9:13] + fin[4:7] + fin[13:16] + fin[7:8] + fin[16:17]:
        a(t)
    a("s_waitcnt lgkmcnt(0)")
    publish(a, PH_FFN)
    mark(a, 20)


def k_main(a):
    name = NAME + "_kernel"
    kernel_begin(a, name)
    end, last, loop = "L_main_end", "L_main_last", "L_main_layer"
    Cfg.sv = 254
    entry(a, name, 256, end, ["s_load_dwordx4 s[16:19], s[0:1], 0", "s_load_dwordx2 s[22:23], s[0:1], 16",
                        "s_load_dwordx8 s[24:31], s[0:1], 32"])
    a(f"s_mov_b32 s7, {EPOCH}")
    a("s_load_dword s76, s[4:5], s7")
    a("s_mov_b64 s[20:21], s[18:19]")
    a("s_mov_b64 s[18:19], s[16:17]")
    srd(a, 48, "s4", "s5", WS_SIZE)
    tile_map(a, "s40", "s41", Cfg.jx)
    a("s_mov_b32 s42, 0")
    a("s_mov_b32 s43, 0")
    a("s_lshl_b32 s44, s41, 10")
    a(f"s_add_u32 s44, s44, {FLAGS + FPH}")
    a("v_lshlrev_b32 v253, 4, v0")
    if Cfg.stamps:
        a("v_mov_b32 v254, 0")
        a("v_mov_b32 v255, 0")
    mark(a, 31)
    phase_prep(a, end)
    qkv_prefetch(a, 0, QR - 1)
    a(f"{loop}:")
    phase_qkv(a, end)
    phase_wo(a, end)
    phase_ffn(a, end)
    tail = phase_red(a, end, last)
    a("s_mov_b32 s42, 1")
    a(f"s_mov_b32 s43, {LSTR}")
    a(f"s_add_u32 s44, s44, {4 * FPH}")
    a("s_mov_b32 s74, 0")
    a(f"s_branch {loop}")
    a(f"{last}:")
    tail()
    done = a.label("done")
    a("s_or_b32 s7, s40, s41")
    a("s_or_b32 s7, s7, s3")
    a(f"s_cbranch_scc1 {done}")
    a("v_mov_b32 v1, s76")
    a(f"s_mov_b32 s7, {EPOCH}")
    a("s_mov_b64 exec, 1")
    a("buffer_store_dword v1, off, s[8:11], s7 sc1")
    a("s_mov_b64 exec, -1")
    a(f"{done}:")
    if Cfg.stamps:
        a("s_waitcnt vmcnt(0)")
        mark(a, 19)
        dump_marks(a, 1)
    a(f"{end}:")
    a("s_endpgm")
    a("L_main_code_end:")
    return name, 256, 256


def build(stamps=False):
    Cfg.stamps = stamps
    a = Asm()
    a('.amdgcn_target "amdgcn-amd-amdhsa--gfx950"')
    name, nv, na = k_main(a)
    kernel_desc(a, name, nv, na, 102)
    text = HEADER + f"; @launch grid=(256,1,1) block=(256,1,1) lds={160 * KB}\n" + a.text()
    assert not re.search(r"s_(add|sub)_u32 [^,]+, [^,]+, -\d", text), "negative literal in unsigned address arithmetic"
    bad = hazards.check(text)
    if bad:
        print("\n".join(bad[:40]), file=sys.stderr)
        raise SystemExit(f"{len(bad)} hazards")
    return text


if __name__ == "__main__":
    out = sys.argv[1] if len(sys.argv) > 1 else os.path.join(os.path.dirname(os.path.abspath(__file__)), "..", NAME + ".s")
    stamps = "--stamps" in sys.argv
    for x in sys.argv[2:]:
        if x.startswith("--set="):
            for kv in x[6:].split(","):
                k, v = kv.split(":")
                setattr(Cfg, k, int(v) if v.isdigit() else [int(y) for y in v.split("/")] if "/" in v else v.replace("+", " "))
    open(out, "w").write(build(stamps))
```

```python
import math
import os
import re
import struct
import sys

sys.path.insert(0, os.path.dirname(os.path.abspath(__file__)))
from asmlib import Asm, kernel_begin, kernel_desc, reg, srd
import hazards

NAME = "interleave_layers__sliding_local_dilated__glu_gated_geglu__prompt"
KB = 1024
GB = 9216
WS_SIZE = 256 << 20
WQ = 0
WO = 0x240000
WF = 0x300000
WSTR = 486 * KB
FLAGS = 0x1240000
FPH = 256 * 128
SL_WQ, SL_WF, SL_WO, SL_EARLY = 9, 10, 11, 12
EPOCH = 0x12C0000
PART = 0x1300000
XN = 0x2500000
OO = 0x2740000
X2 = 0x2980000
XC = 0x2BC0000
MEAN = 0x2E00000
STAT = 0x2E10000
MEAN1 = 0x2E30000
LSTR = int(os.environ.get("LSTR", "0"), 0)
OOB = 0x40000000
STAMP_OFF = 255 << 20

HEADER = """; Kernarg layout for this problem (80 bytes, ptrs only, base s[0:1]):
"""


def f32(x):
    return "0x%08x" % struct.unpack("<I", struct.pack("<f", x))[0]


def sdiv(a, dst, src, d, hi):
    m = -(-(1 << 20) // d)
    assert all((x * m) >> 20 == x // d for x in range(hi + 1)) and hi * m < (1 << 32)
    a(f"s_mul_i32 {dst}, {src}, {m}")
    a(f"s_lshr_b32 {dst}, {dst}, 20")


def sdivmod(a, q, r, src, d, hi):
    sdiv(a, q, src, d, hi)
    a(f"s_mul_i32 {r}, {q}, {d}")
    a(f"s_sub_u32 {r}, {src}, {r}")


def csel(a, dst, x, y):
    a(f"s_mov_b32 {dst}, {y}")
    a(f"s_cmov_b32 {dst}, {x}")


class Vm:
    def __init__(self):
        self.ops = []

    def issue(self, tag):
        self.ops.append(tag)

    def count(self, *tags):
        last = max(i for i, t in enumerate(self.ops) if t in tags)
        return len(self.ops) - 1 - last


MARK_NAMES = {21: "pre.x0", 22: "pre.q", 23: "pre.o", 24: "pre.set", 25: "pre.raw"}
MARK_ORDER = [31, 21, 23, 24, 25, 28, 29, 30, 27, 0, 1, 2, 3, 4, 5, 6, 7, 8, 9, 10, 11, 12, 13, 14, 15, 20, 16, 17, 18, 19]


class Cfg:
    stamps = False
    jx = 2
    wflag = "sc1"
    nogelu = 0
    noload = 0
    ldpos = 1
    gcap = 2
    pflag = "sc1"
    epi_gap = 6
    epi_gap2 = 40
    wo_per_ks = 4
    w_per_ks = 3
    lmask = 1
    tripmarks = 0
    oflag = "sc0 sc1"
    pollw = 3
    code_warm = 3
    xflag = "sc1"
    wo_gap = 8
    red_pre = 4
    red_feed = 1
    red_gap = 16
    red_post = 12
    raw_early = 3
    raw_mid = 16
    in_x = "nt"
    in_q = "nt"
    in_o = "nt"
    zflag = "sc1"
    raw_flag = "nt"
    z_early = 16
    sleep = 0
    pw = 0


def tile_map(a, sj, smt, jx):
    lg = jx.bit_length() - 1
    a(f"s_and_b32 {sj}, s2, {8 // jx - 1}")
    a(f"s_lshl_b32 {sj}, {sj}, {lg}")
    a(f"s_bfe_u32 s7, s2, {3 | (lg << 16)}")
    a(f"s_add_u32 {sj}, {sj}, s7")
    a(f"s_bfe_u32 {smt}, s2, {(3 - lg) | (lg << 16)}")
    a(f"s_lshl_b32 {smt}, {smt}, {5 - lg}")
    a(f"s_lshr_b32 s7, s2, {3 + lg}")
    a(f"s_add_u32 {smt}, {smt}, s7")


def entry(a, name, nwg, end, extra_loads=()):
    a(f"s_cmp_ge_u32 s2, {nwg}")
    a(f"s_cbranch_scc1 {end}")
    a("s_load_dwordx2 s[4:5], s[0:1], 72")
    for l in extra_loads:
        a(l)
    a("s_getpc_b64 s[96:97]")
    a("L_main_pc:")
    a(f"s_sub_u32 s96, s96, L_main_pc-{name}")
    a("s_subb_u32 s97, s97, 0")
    a("s_and_b32 s97, s97, 0xffff")
    a(f"s_mov_b32 s98, L_main_code_end-{name}")
    a("s_mov_b32 s99, 0x20000")
    a("s_lshr_b32 s7, s2, 3")
    a("s_lshl_b32 s7, s7, 11")
    a("v_lshl_add_u32 v253, v0, 3, s7")
    if Cfg.code_warm:
        a("buffer_load_dwordx2 v[2:3], v253, s[96:99], 0 offen")
    a("v_lshrrev_b32 v1, 6, v0")
    a("v_and_b32 v0, 63, v0")
    a("v_readfirstlane_b32 s3, v1")
    a("s_waitcnt lgkmcnt(0)")
    srd(a, 8, "s4", "s5", WS_SIZE)


def mark(a, idx):
    if Cfg.stamps:
        a("s_memrealtime s[100:101]")
        a("s_memtime vcc")
        a("s_lshl_b32 m0, s42, 5")
        a(f"s_add_u32 m0, m0, {idx}")
        a("s_waitcnt lgkmcnt(0)")
        a(f"v_writelane_b32 v{Cfg.sv}, s100, m0")
        a(f"v_writelane_b32 v{Cfg.sv + 1}, vcc_lo, m0")


def mark_dyn(a, base, sreg):
    if Cfg.stamps and Cfg.tripmarks:
        a("s_memrealtime s[100:101]")
        a("s_memtime vcc")
        a("s_lshl_b32 m0, s42, 5")
        a(f"s_add_u32 m0, m0, {sreg}")
        a(f"s_add_u32 m0, m0, {base}")
        a("s_waitcnt lgkmcnt(0)")
        a(f"v_writelane_b32 v{Cfg.sv}, s100, m0")
        a(f"v_writelane_b32 v{Cfg.sv + 1}, vcc_lo, m0")


def dump_marks(a, slot):
    if Cfg.stamps:
        a("s_lshl_b32 s7, s2, 2")
        a("s_add_u32 s7, s7, s3")
        a("s_lshl_b32 s7, s7, 9")
        a(f"s_add_u32 s7, s7, {STAMP_OFF + slot * 0x80000}")
        a("v_lshlrev_b32 v1, 2, v0")
        a(f"buffer_store_dword v{Cfg.sv}, v1, s[8:11], s7 offen")
        a(f"buffer_store_dword v{Cfg.sv + 1}, v1, s[8:11], s7 offen offset:256")


def code_warm(a, dst):
    if Cfg.code_warm:
        a("s_lshr_b32 s7, s2, 3")
        a("s_lshl_b32 s7, s7, 2")
        a("s_add_u32 s7, s7, s3")
        a("s_lshl_b32 s7, s7, 9")
        a("v_lshrrev_b32 v1, 1, v253")
        a("v_add_u32 v1, s7, v1")
        a(f"buffer_load_dwordx2 {dst}, v1, s[96:99], 0 offen")


PH_QKV, PH_WO, PH_FFN, PH_RED = range(4)


def publish(a, phase, extra=None):
    skip = a.label("pub")
    a("v_lshlrev_b32 v15, 7, v0")
    a("s_lshl_b32 s6, s40, 2")
    a("s_add_u32 s6, s6, s44")
    if phase > 0:
        a(f"s_add_u32 s6, s6, {phase * FPH}")
    elif phase < 0:
        a(f"s_sub_u32 s6, s6, {-phase * FPH}")
    a("v_mov_b32 v1, s76")
    a("s_mov_b64 vcc, 0xff")
    if phase % 4 == PH_RED:
        a("v_lshrrev_b32 v14, 3, v0")
        a("v_lshl_add_u32 v15, v14, 3, v15")
        a("s_cmp_ge_u32 s40, 6")
        a("s_cselect_b32 s7, s41, 31")
        a("s_cmp_lt_u32 s7, 31")
        a("s_cmov_b64 vcc, 0xffff")
    a("s_waitcnt vmcnt(0)")
    a("s_barrier")
    a(f"s_cmp_lg_u32 s3, {Cfg.pw}")
    a(f"s_cbranch_scc1 {skip}")
    a("s_mov_b64 exec, vcc")
    a("buffer_store_dword v1, v15, s[8:11], s6 offen sc1")
    if extra:
        extra(skip)
    a(f"{skip}:")
    a("s_mov_b64 exec, -1")


def column_flag(a, slot, word="s41"):
    a("s_lshl_b32 s6, s40, 7")
    a(f"s_lshl_b32 s7, {word}, 2")
    a("s_add_u32 s6, s6, s7")
    a(f"s_add_u32 s6, s6, {FLAGS + slot * FPH}")
    a("s_mov_b64 exec, 0xffffffff")
    a("v_lshlrev_b32 v15, 10, v0")
    a("v_mov_b32 v1, s76")
    a("buffer_store_dword v1, v15, s[8:11], s6 offen sc1")


def column_wait(a, slot, abort, n=32):
    lp, again, ok = a.label("cpoll"), a.label("cpoll"), a.label("cpolled")
    a("s_lshl_b32 s7, s41, 3")
    a("s_add_u32 s7, s7, s40")
    a("s_lshl_b32 s7, s7, 7")
    a(f"s_add_u32 s7, s7, {FLAGS + slot * FPH}")
    a("s_add_u32 s68, s4, s7")
    a("s_addc_u32 s69, s5, 0")
    a("s_mov_b32 s6, 0")
    a("s_mov_b32 s7, 0")
    a(f"{lp}:")
    a("s_load_dwordx16 s[52:67], s[68:69], s7 glc")
    a("s_add_u32 s6, s6, 1")
    a("s_waitcnt lgkmcnt(0)")
    for r in range(52, 68, 2):
        a(f"s_xor_b64 s[{r}:{r + 1}], s[{r}:{r + 1}], s[76:77]")
    for d in (8, 4, 2):
        for r in range(52, 52 + d, 2):
            a(f"s_or_b64 s[{r}:{r + 1}], s[{r}:{r + 1}], s[{r + d}:{r + d + 1}]")
    assert 16 < n <= 32
    a(f"s_cbranch_scc1 {again}")
    a(f"s_add_u32 s7, s7, {4 * (n - 16)}")
    a(f"s_cmp_eq_u32 s7, {8 * (n - 16)}")
    a(f"s_cbranch_scc1 {ok}")
    a(f"{again}:")
    a(f"s_cmp_lt_u32 s6, {1 << 20}")
    a(f"s_cbranch_scc1 {lp}")
    a(f"s_branch {abort}")
    a(f"{ok}:")


def wait_flags(a, off, abort, halo=False, extra=None):
    lp, ok, out = a.label("poll"), a.label("polled"), a.label("pollout")
    a(f"s_cmp_lg_u32 s3, {Cfg.pollw}")
    a(f"s_cbranch_scc1 {out}")
    a("s_lshl_b32 s7, s40, 7")
    a("s_add_u32 s7, s7, s44")
    if off > 0:
        a(f"s_add_u32 s7, s7, {off}")
    elif off < 0:
        a(f"s_sub_u32 s7, s7, {-off}")
    a("s_add_u32 s52, s4, s7")
    a("s_addc_u32 s53, s5, 0")
    if halo:
        a("s_cmp_eq_u32 s41, 0")
        a("s_cselect_b32 s7, 0, 32")
    a("s_mov_b32 s6, 0")
    a(f"{lp}:")
    a("s_load_dwordx8 s[56:63], s[52:53], 0 glc")
    if halo:
        a("s_load_dwordx2 s[54:55], s[52:53], s7 glc")
    a("s_add_u32 s6, s6, 1")
    a("s_waitcnt lgkmcnt(0)")
    for r in ([54] if halo else []) + [56, 58, 60, 62]:
        a(f"s_xor_b64 s[{r}:{r + 1}], s[{r}:{r + 1}], s[76:77]")
    a("s_or_b64 s[56:57], s[56:57], s[58:59]")
    a("s_or_b64 s[60:61], s[60:61], s[62:63]")
    if halo:
        a("s_or_b64 s[56:57], s[56:57], s[54:55]")
    a("s_or_b64 s[56:57], s[56:57], s[60:61]")
    a(f"s_cbranch_scc0 {ok}")
    a(f"s_cmp_lt_u32 s6, {1 << 20}")
    a(f"s_cbranch_scc1 {lp}")
    a(f"s_branch {abort}")
    a(f"{ok}:")
    if extra:
        extra(out)
    a(f"{out}:")
    a("s_barrier")


def bfrag_voff(a, dst, tmp):
    a(f"v_bfe_u32 {tmp}, v0, 3, 1")
    a(f"v_mul_u32_u24 {dst}, {GB}, {tmp}")
    a(f"v_lshrrev_b32 {tmp}, 4, v0")
    a(f"v_lshl_add_u32 {dst}, {tmp}, 7, {dst}")
    a(f"v_and_b32 {tmp}, 7, v0")
    a(f"v_lshl_add_u32 {dst}, {tmp}, 4, {dst}")


def dtile_voff(a, dst, tmp, tmp2, gstride):
    a(f"v_bfe_u32 {tmp}, v0, 3, 2")
    a(f"s_mov_b32 s7, {gstride}")
    a(f"v_mul_lo_u32 {dst}, {tmp}, s7")
    a(f"v_lshrrev_b32 {tmp}, 5, v0")
    a(f"v_lshl_add_u32 {dst}, {tmp}, 7, {dst}")
    a(f"v_and_b32 {tmp}, 7, v0")
    a(f"v_lshl_add_u32 {dst}, {tmp}, 4, {dst}")


def rowsum_16_32(a, vals, tmp):
    for swap in ("v_permlane32_swap_b32", "v_permlane16_swap_b32"):
        for i, v in enumerate(vals):
            a(f"v_mov_b32 {tmp[i]}, {v}")
        a("s_nop 1")
        for i, v in enumerate(vals):
            a(f"{swap} {tmp[i]}, {v}")
        for i, v in enumerate(vals):
            a(f"v_add_f32 {v}, {v}, {tmp[i]}")


def ln_coeffs(a, vs, vss, rstd, nb):
    a(f"v_mul_f32 {vs}, {f32(1.0 / 576)}, {vs}")
    a(f"v_mul_f32 {vss}, {f32(1.0 / 576)}, {vss}")
    a(f"v_fma_f32 {vss}, -{vs}, {vs}, {vss}")
    a(f"v_max_f32 {vss}, 0, {vss}")
    a(f"v_add_f32 {vss}, {f32(1e-5)}, {vss}")
    a(f"v_rsq_f32 v{rstd}, {vss}")
    a("s_nop 0")
    a(f"v_mul_f32 v{nb}, {vs}, v{rstd}")
    a(f"v_mov_b32 v{rstd + 1}, v{rstd}")
    a(f"v_sub_f32 v{nb}, 0, v{nb}")
    a(f"v_mov_b32 v{nb + 1}, v{nb}")


def normalize(a, src, dst, n, rstd, nb, tmp):
    for i0 in range(0, n, 4):
        k = min(4, n - i0)
        for i in range(k):
            a(f"v_lshlrev_b32 v{tmp + 2 * i}, 16, v{src + i0 + i}")
            a(f"v_and_b32 v{tmp + 2 * i + 1}, s16, v{src + i0 + i}")
        for i in range(k):
            t = tmp + 2 * i
            a(f"v_pk_fma_f32 v[{t}:{t + 1}], v[{t}:{t + 1}], v[{rstd}:{rstd + 1}], v[{nb}:{nb + 1}]")
        for i in range(k):
            t = tmp + 2 * i
            a(f"v_cvt_pk_bf16_f32 v{dst + i0 + i}, v{t}, v{t + 1}")


VR, VM = 172, 175


def red_offsets(a):
    a("s_mov_b32 s16, 0xffff0000")
    a("s_lshl_b32 s7, s3, 10")
    a(f"v_add_u32 v{VR}, s7, v253")
    a(f"v_add_u32 v{VR + 2}, 5120, v{VR}")
    a("v_and_b32 v178, 7, v0")
    a("v_mul_u32_u24 v178, 1152, v178")
    a("v_lshrrev_b32 v179, 3, v0")
    a("v_lshl_add_u32 v178, v179, 4, v178")
    a("s_lshl_b32 s7, s3, 7")
    a(f"v_add_u32 v{VM}, s7, v178")
    a(f"v_add_u32 v{VM + 2}, 640, v{VM}")
    a("s_cmp_eq_u32 s3, 0")
    csel(a, "s17", 4096, OOB)
    a(f"v_add_u32 v{VR + 1}, s17, v{VR}")
    csel(a, "s17", 512, OOB)
    a(f"v_add_u32 v{VM + 1}, s17, v{VM}")


def red_ln_store(a, XB, sX2, sXN, sMEAN, flag):
    for b in range(3):
        a(f"buffer_store_dwordx4 v[{XB + 4 * b}:{XB + 4 * b + 3}], v{VR + b}, s[8:11], {sX2} offen {flag}")
    a("s_mov_b32 s17, 0x3f803f80")
    for i in range(4):
        a(f"v_mov_b32 v{8 + i}, 0")
    for i in range(12):
        a(f"v_dot2c_f32_bf16 v{8 + 2 * (i & 1)}, s17, v{XB + i}")
        a(f"v_dot2c_f32_bf16 v{9 + 2 * (i & 1)}, v{XB + i}, v{XB + i}")
    a("v_and_b32 v12, 7, v0")
    a("v_lshlrev_b32 v12, 3, v12")
    a("s_lshl_b32 s7, s3, 6")
    a("v_add_u32 v13, s7, v12")
    a("v_pk_add_f32 v[8:9], v[8:9], v[10:11]")
    a("s_nop 1")
    a("v_add_f32_dpp v8, v8, v8 row_ror:8 row_mask:0xf bank_mask:0xf")
    a("v_add_f32_dpp v9, v9, v9 row_ror:8 row_mask:0xf bank_mask:0xf")
    rowsum_16_32(a, ["v8", "v9"], ["v10", "v11"])
    a("ds_write_b64 v13, v[8:9]")
    a("s_waitcnt lgkmcnt(0)")
    a("s_barrier")
    T = 40
    for w in range(4):
        a(f"ds_read_b64 v[{T + 2 * w}:{T + 2 * w + 1}], v12 offset:{64 * w}")
    a("s_waitcnt lgkmcnt(0)")
    a(f"v_pk_add_f32 v[{T}:{T + 1}], v[{T}:{T + 1}], v[{T + 2}:{T + 3}]")
    a(f"v_pk_add_f32 v[{T + 4}:{T + 5}], v[{T + 4}:{T + 5}], v[{T + 6}:{T + 7}]")
    a(f"v_pk_add_f32 v[8:9], v[{T}:{T + 1}], v[{T + 4}:{T + 5}]")
    ln_coeffs(a, "v8", "v9", 10, 12)
    a("s_cmp_eq_u32 s3, 0")
    a("s_cselect_b32 s7, 32, 0")
    a("v_lshlrev_b32 v14, 2, v0")
    a("v_cmp_gt_u32 vcc, s7, v0")
    a(f"v_mov_b32 v9, {OOB}")
    a("s_nop 0")
    a("v_cndmask_b32 v14, v9, v14, vcc")
    a(f"buffer_store_dword v8, v14, s[8:11], {sMEAN} offen {flag}")
    normalize(a, XB, 48, 12, 10, 12, T)
    for b in range(3):
        a(f"buffer_store_dwordx4 v[{48 + 4 * b}:{51 + 4 * b}], v{VR + b}, s[8:11], {sXN} offen {flag}")


def red_setup(a):
    red_offsets(a)
    a("s_lshl_b32 s21, s41, 3")
    a("s_add_u32 s21, s21, s40")
    a(f"s_mul_i32 s18, s21, {GB}")
    a(f"s_mul_i32 s20, s21, {8 * GB}")
    a(f"s_add_u32 s20, s20, {PART}")
    loads = []
    for k in range(7):
        for b in range(2):
            r = slot_reg(18 + 2 * k + b)
            t = f"buffer_load_dwordx4 v[{r}:{r + 3}], v{VR + b}, s[8:11], s19 offen sc1"
            loads.append(red_source("s19", k) + t if b == 0 else t)
    return loads


OWN = 4 * KB


def red_source(dst, k):
    return (f"s_add_u32 s7, s40, {k + 1}\ns_and_b32 s7, s7, 7\ns_mul_i32 s7, s7, {GB}\ns_add_u32 {dst}, s7, s20\n")


def phase_red(a, abort, last):
    ACC, TMP, LD, XR, XB = 16, 40, 60, 92, 120
    a("s_add_u32 s19, s18, s43")
    a(f"s_add_u32 s22, s19, {XC}")
    a("s_lshl_b32 s23, s21, 5")
    a("s_add_u32 s23, s23, s43")
    a(f"s_add_u32 s23, s23, {MEAN1}")
    a("v_and_b32 v12, 7, v0")
    a("v_lshlrev_b32 v12, 2, v12")
    a("buffer_load_dword v10, v12, s[8:11], s23 offen sc1")
    for b in range(3):
        a(f"buffer_load_dwordx4 v[{XR + 4 * b}:{XR + 4 * b + 3}], v{VR + b}, s[8:11], s22 offen sc1")

    def unpack(dst, r):
        for i in range(4):
            a(f"v_lshlrev_b32 v{dst + 2 * i}, 16, v{r + i}")
            a(f"v_and_b32 v{dst + 2 * i + 1}, s16, v{r + i}")

    def add(b, r):
        unpack(TMP, r)
        for i in range(4):
            c = ACC + 8 * b + 2 * i
            a(f"v_pk_add_f32 v[{c}:{c + 1}], v[{c}:{c + 1}], v[{TMP + 2 * i}:{TMP + 2 * i + 1}]")

    pf = Asm()
    qkv_prefetch(pf, 0, QR - 1, "s42")
    queue, chunk = [], ""
    for ln in pf.lines:
        chunk += ln + "\n"
        if "buffer_load" in ln:
            queue.append(chunk)
            chunk = ""
    vm = Vm()

    def feed(n):
        for _ in range(n):
            if queue:
                a(queue.pop(0))
                vm.issue("w")

    OW = [148, 152, 156]
    a(f"v_min_u32 v13, {9 * KB}, v{VR + 1}")
    a(f"ds_read_b128 v[{OW[0]}:{OW[0] + 3}], v{VR} offset:{OWN}")
    a(f"ds_read_b128 v[{OW[1]}:{OW[1] + 3}], v13 offset:{OWN}")
    a(f"ds_read_b128 v[{OW[2]}:{OW[2] + 3}], v{VR + 2} offset:{OWN}")
    setup, first = queue[0].rsplit("buffer_load", 1)
    a(setup)
    queue[0] = "buffer_load" + first

    def gap_feed(n):
        skip = a.label("nopf")
        a("s_cmp_lg_u32 s42, 0")
        a(f"s_cbranch_scc1 {skip}")
        feed(n)
        a(f"{skip}:")

    for b in range(2):
        unpack(ACC + 8 * b, slot_reg(18 + b))
    gap_feed(Cfg.red_gap // 2)
    for j in range(1, Cfg.red_pre):
        for b in range(2):
            add(b, slot_reg(18 + 2 * j + b))
        if j == 1:
            gap_feed(Cfg.red_gap - Cfg.red_gap // 2)
    wait_flags(a, PH_FFN * FPH, abort)
    mark(a, 16)
    for j in range(7):
        a(red_source("s19", j) + f"buffer_load_dwordx4 v[{LD + 4 * j}:{LD + 4 * j + 3}], v{VR + 2}, s[8:11], s19 offen sc1")
        vm.issue(j)
    for j in range(Cfg.red_pre, 7):
        for b in range(2):
            add(b, slot_reg(18 + 2 * j + b))
    a("s_cmp_eq_u32 s3, 0")
    a("s_cselect_b32 s7, 1.0, 0")
    a("s_cselect_b32 s6, -1, 0")
    a("s_waitcnt vmcnt(7) lgkmcnt(0)")
    for i in range(4):
        a(f"v_and_b32 v{OW[1] + i}, s6, v{OW[1] + i}")
    a("v_mul_f32 v11, s7, v10")
    for b in range(2):
        add(b, XR + 4 * b)
    unpack(ACC + 16, XR + 8)
    for b in range(3):
        add(b, OW[b])
    for b in range(3):
        for i in range(4):
            c = ACC + 8 * b + 2 * i
            sel = "op_sel:[0,1] op_sel_hi:[1,1]" if b == 1 else "op_sel_hi:[1,0]"
            a(f"v_pk_add_f32 v[{c}:{c + 1}], v[{c}:{c + 1}], v[10:11] {sel}")
    for j in range(7):
        a(f"s_waitcnt vmcnt({vm.count(j)})")
        feed(Cfg.red_feed)
        add(2, LD + 4 * j)
    feed(len(queue) - Cfg.red_post)
    for b in range(3):
        for i in range(4):
            c = ACC + 8 * b + 2 * i
            a(f"v_cvt_pk_bf16_f32 v{XB + 4 * b + i}, v{c}, v{c + 1}")
    mark(a, 17)
    a("s_cmp_lg_u32 s42, 0")
    a(f"s_cbranch_scc1 {last}")
    a(f"s_add_u32 s19, s18, {X2 + LSTR}")
    a(f"s_add_u32 s20, s18, {XN + LSTR}")
    a("s_lshl_b32 s22, s21, 7")
    a(f"s_add_u32 s22, s22, {MEAN + LSTR}")
    red_ln_store(a, XB, "s19", "s20", "s22", "sc1")
    mark(a, 18)
    publish(a, PH_RED)
    mark(a, 19)
    feed(99)
    a(chunk)

    def tail():
        for b in range(3):
            a(f"buffer_store_dwordx4 v[{XB + 4 * b}:{XB + 4 * b + 3}], v{VM + b}, s[12:15], s18 offen {Cfg.oflag}")
    return tail


ZB = 96 * KB


def o_row(a, dst, vc, vj, t0, t1):
    a(f"v_mul_u32_u24 {t0}, 7282, {vc}")
    a(f"v_lshrrev_b32 {t0}, 16, {t0}")
    a(f"v_mul_u32_u24 {t1}, 9, {t0}")
    a(f"v_sub_u32 {t1}, {vc}, {t1}")
    a(f"v_mul_u32_u24 {t0}, 72, {t0}")
    a(f"v_cmp_eq_u32 vcc, 8, {t1}")
    a(f"v_lshrrev_b32 {dst}, 1, {t1}")
    a(f"v_mad_u32_u24 {dst}, {dst}, 18, {t0}")
    a(f"v_and_b32 {t1}, 1, {t1}")
    a(f"v_lshl_add_u32 {dst}, {t1}, 3, {dst}")
    a(f"v_add_u32 {dst}, {dst}, {vj}")
    a(f"v_lshrrev_b32 {t1}, 1, {vj}")
    a(f"v_mad_u32_u24 {t0}, {t1}, 18, {t0}")
    a(f"v_and_b32 {t1}, 1, {vj}")
    a(f"v_add3_u32 {t0}, {t0}, {t1}, 16")
    a(f"v_cndmask_b32 {dst}, {dst}, {t0}, vcc")


def tr_rows(a, dst, tmp, shift, pitch):
    a(f"v_lshrrev_b32 {dst}, 4, v0")
    a(f"v_lshlrev_b32 {dst}, {shift}, {dst}")
    a(f"v_bfe_u32 {tmp}, v0, 2, 2")
    a(f"v_add_u32 {dst}, {dst}, {tmp}")
    a(f"v_mul_u32_u24 {dst}, {pitch}, {dst}")
    a(f"v_and_b32 {tmp}, 3, v0")
    a(f"v_lshl_add_u32 {dst}, {tmp}, 3, {dst}")


def qfrag(a, t, pending):
    a(f"s_waitcnt lgkmcnt({pending})")
    for i in range(4):
        a(f"v_lshl_or_b32 v{32 + 4 * t + i}, v{137 + 8 * t + 2 * i}, 16, v{136 + 8 * t + 2 * i}")
        if t == 3:
            a(f"v_cndmask_b32 v{32 + 4 * t + i}, 0, v{32 + 4 * t + i}, s[22:23]")
    a(f"buffer_store_dwordx4 v[{32 + 4 * t}:{35 + 4 * t}], v253, s[8:11], s33 offen offset:{t * KB} sc1")


def phase_prep(a, abort):
    srd(a, 12, "s18", "s19", 2048 * 1152)
    srd(a, 64, "s20", "s21", 576 * 3456)
    srd(a, 68, "s22", "s23", 576 * 1152)
    red_offsets(a)
    a("s_lshl_b32 s21, s41, 3")
    a("s_add_u32 s21, s21, s40")
    a(f"s_mul_i32 s18, s21, {GB}")
    for b in range(3):
        a(f"buffer_load_dwordx4 v[{16 + 4 * b}:{19 + 4 * b}], v{VM + b}, s[12:15], s18 offen {Cfg.in_x}")
    mark(a, 21)
    srd(a, 12, "s30", "s31", 2048 * 1152)
    a("s_lshl_b32 s79, s3, 14")
    a(f"s_add_u32 s79, s79, {ZB}")
    PS = 8 * KB
    lo, lw, l3 = a.label("prep_o"), a.label("prep_m"), a.label("prep_go")
    nq2, l4, l5 = a.label("prep_o"), a.label("prep_m"), a.label("prep_done")
    a("s_and_b32 s32, s41, 15")
    a("s_lshl_b32 s32, s32, 1")
    a("s_lshr_b32 s7, s41, 4")
    a("s_add_u32 s32, s32, s7")
    a("s_lshl_b32 s36, s32, 3")
    a("s_add_u32 s36, s36, s40")
    a("s_sub_u32 s36, s36, 144")
    a("s_cmp_ge_u32 s32, 18")
    a(f"s_cbranch_scc1 {lo}")
    a(f"s_mul_i32 s35, s32, {32 * 3456}")
    a("s_mul_i32 s7, s40, 144")
    a("s_and_b32 s46, s7, 127")
    a("s_sub_u32 s7, s7, s46")
    a("s_add_u32 s35, s35, s7")
    a(f"s_mul_i32 s7, s3, {4 * 3456}")
    a("s_add_u32 s35, s35, s7")
    a("v_lshrrev_b32 v8, 4, v0")
    a("v_mul_u32_u24 v8, 3456, v8")
    a("v_and_b32 v9, 15, v0")
    a("v_lshl_add_u32 v8, v9, 4, v8")
    a("s_lshl_b32 s34, s3, 10")
    for m in range(6):
        a(f"s_add_u32 m0, s34, {PS + m * 4 * KB}")
        a(f"s_add_u32 s7, s35, {(m & 1) * 16 * 3456 + (m >> 1) * 1152}")
        a(f"buffer_load_dwordx4 v8, s[64:67], s7 offen {Cfg.in_q} lds")
    a(f"s_branch {l3}")
    a(f"{lo}:")
    a("s_cmp_ge_u32 s36, 54")
    a(f"s_cbranch_scc1 {lw}")
    sdivmod(a, "s33", "s34", "s36", 3, 53)
    a("s_lshl_b32 s7, s33, 2")
    a("s_add_u32 s7, s7, s3")
    a("v_mov_b32 v8, s7")
    a("v_lshrrev_b32 v9, 3, v0")
    o_row(a, "v10", "v8", "v9", "v11", "v12")
    a("v_mul_u32_u24 v10, 1152, v10")
    a("v_and_b32 v9, 7, v0")
    a("v_lshl_add_u32 v10, v9, 4, v10")
    a("s_mul_i32 s35, s34, 384")
    a("s_lshl_b32 s6, s3, 10")
    for m in range(3):
        a(f"s_add_u32 m0, s6, {PS + m * 4 * KB}")
        a(f"s_add_u32 s7, s35, {m * 128}")
        a(f"buffer_load_dwordx4 v10, s[68:71], s7 offen {Cfg.in_o} lds")
    a(f"s_branch {l3}")
    a(f"{lw}:")
    a("s_sub_u32 s37, s36, 54")
    a("s_lshl_b32 s7, s3, 6")
    a("s_add_u32 s37, s37, s7")
    a("s_cmp_ge_u32 s37, 36")
    a(f"s_cbranch_scc1 {l3}")
    a("s_lshl_b32 s7, s37, 1")
    a("v_bfe_u32 v8, v0, 3, 1")
    a("v_add_u32 v8, s7, v8")
    a("v_and_b32 v9, 7, v0")
    o_row(a, "v10", "v8", "v9", "v11", "v12")
    a("v_mul_u32_u24 v10, 1152, v10")
    a("v_lshrrev_b32 v9, 4, v0")
    a("v_lshl_add_u32 v10, v9, 4, v10")
    for ks in range(18):
        a(f"buffer_load_dwordx4 v[{64 + 4 * ks}:{67 + 4 * ks}], v10, s[68:71], 0 offen offset:{64 * ks}")
    a(f"{l3}:")
    mark(a, 23)
    a("s_lshl_b32 s7, s41, 2")
    a("s_add_u32 s7, s7, s3")
    sdiv(a, "s93", "s7", 41, 127)
    a("s_min_u32 s93, s93, 2")
    a("s_mul_i32 s6, s93, 41")
    a("s_sub_u32 s7, s7, s6")
    a("s_lshl_b32 s17, s7, 2")
    a("s_cmp_eq_u32 s93, 1")
    a("s_cselect_b32 s72, s26, s24")
    a("s_cselect_b32 s73, s27, s25")
    a("s_cmp_eq_u32 s93, 2")
    a("s_cselect_b32 s72, s28, s72")
    a("s_cselect_b32 s73, s29, s73")
    csel(a, "s92", 8 * 1152, 8 * 9216)
    csel(a, "s47", 18 * 32 * 1152, 1152)
    a("s_and_b32 s73, s73, 0xffff")
    a(f"s_mov_b32 s74, {576 * 9216}")
    a("s_mov_b32 s75, 0x20000")
    a("s_mul_i32 s47, s47, s40")
    for b in range(4):
        a(f"s_add_u32 s7, s17, {b}")
        a("s_min_u32 s7, s7, 161")
        sdivmod(a, f"s{84 + b}", f"s{88 + b}", "s7", 9, 161)
        a(f"s_mul_i32 s7, s{84 + b}, s92")
        a("s_lshl_b32 s7, s7, 2")
        a("s_add_u32 s7, s7, s47")
        a(f"s_lshl_b32 s6, s{88 + b}, 7")
        a(f"s_add_u32 s{80 + b}, s7, s6")
    a("s_lshr_b32 s7, s92, 3")
    a("v_lshrrev_b32 v224, 3, v0")
    a("v_mul_lo_u32 v224, v224, s7")
    a("v_and_b32 v8, 7, v0")
    a("v_lshl_add_u32 v224, v8, 4, v224")
    a("s_waitcnt lgkmcnt(0)")
    a("s_mul_i32 s76, s76, 0x9e3779b1")
    a("s_add_u32 s76, s76, 0x7f4a7c15")
    a("s_mov_b32 s77, s76")
    mark(a, 24)
    for i in range(Cfg.raw_early):
        a(ffn_raw_dma(i))
    mark(a, 25)
    a(f"s_waitcnt vmcnt({Cfg.raw_early})")
    a("s_barrier")
    mark(a, 28)
    a("s_cmp_ge_u32 s32, 18")
    a(f"s_cbranch_scc1 {nq2}")
    a("s_mul_i32 s7, s3, 36")
    a("s_add_u32 s7, s7, s46")
    a("v_lshrrev_b32 v8, 4, v0")
    a("v_lshlrev_b32 v8, 11, v8")
    a("v_add_u32 v8, s7, v8")
    a("v_and_b32 v9, 15, v0")
    a("v_cmp_gt_u32 s[22:23], 6, v9")
    a("v_lshrrev_b32 v10, 1, v9")
    a("v_min_u32 v10, 2, v10")
    a("v_lshl_add_u32 v10, v10, 13, v8")
    a("v_and_b32 v11, 1, v0")
    a("v_lshl_add_u32 v10, v11, 1, v10")
    a("v_lshl_add_u32 v8, v9, 1, v8")
    for t in range(4):
        for j in range(8):
            a(f"ds_read_u16 v{136 + 8 * t + j}, v8 offset:{PS + t * 8192 + j * 256}" if t < 3 else
              f"ds_read_u16 v{136 + 8 * t + j}, v10 offset:{PS + 32 + j * 256}")
        if t == 0:
            a("s_lshl_b32 s33, s40, 2")
            a("s_add_u32 s33, s33, s3")
            a("s_mul_i32 s33, s33, 18")
            a("s_add_u32 s33, s33, s32")
            a("s_lshl_b32 s33, s33, 12")
            if WQ:
                a(f"s_add_u32 s33, s33, {WQ}")
        if t:
            qfrag(a, t - 1, 8)
    qfrag(a, 3, 0)
    a(f"s_branch {l5}")
    a(f"{nq2}:")
    a("s_cmp_ge_u32 s36, 54")
    a(f"s_cbranch_scc1 {l4}")
    tr_rows(a, "v8", "v9", 3, 128)
    a("s_lshl_b32 s7, s3, 5")
    a("v_add_u32 v8, s7, v8")
    for m in range(3):
        a(f"ds_read_b64_tr_b16 v[{32 + 4 * m}:{33 + 4 * m}], v8 offset:{PS + m * 4 * KB}")
        a(f"ds_read_b64_tr_b16 v[{34 + 4 * m}:{35 + 4 * m}], v8 offset:{PS + m * 4 * KB + 512}")
    a("s_mul_i32 s34, s34, 12")
    a("s_add_u32 s34, s34, s3")
    a("s_mul_i32 s34, s34, 18")
    a("s_add_u32 s34, s34, s33")
    a("s_lshl_b32 s34, s34, 10")
    for m in range(3):
        a(f"s_add_u32 s7, s34, {WO + m * 4 * 18 * KB}")
        a(f"s_waitcnt lgkmcnt({4 - 2 * m})")
        a(f"buffer_store_dwordx4 v[{32 + 4 * m}:{35 + 4 * m}], v253, s[8:11], s7 offen sc1")
    a(f"s_branch {l5}")
    a(f"{l4}:")
    a("s_cmp_ge_u32 s37, 36")
    a(f"s_cbranch_scc1 {l5}")
    for i in range(4):
        a(f"v_mov_b32 v{28 + i}, 0x3f803f80")
    a("v_and_b32 v9, 15, v0")
    a("v_cmp_eq_u32 vcc, 0, v9")
    a("v_cmp_eq_u32 s[22:23], 1, v9")
    for ks in range(18):
        a(f"v_mfma_f32_16x16x32_bf16 v[32:35], v[{64 + 4 * ks}:{67 + 4 * ks}], v[28:31], {'0' if ks == 0 else 'v[32:35]'}")
    a("v_lshrrev_b32 v10, 5, v0")
    a("v_lshlrev_b32 v10, 8, v10")
    a("v_lshl_add_u32 v10, v9, 4, v10")
    a("v_bfe_u32 v9, v0, 4, 1")
    a("v_lshl_add_u32 v10, v9, 3, v10")
    a("s_lshl_b32 s7, s37, 9")
    a(f"s_add_u32 s7, s7, {WO + 36 * 18 * KB}")
    a("s_nop 0")
    for r in range(4):
        a(f"v_mul_f32 v{32 + r}, {f32(1.0 / 576)}, v{32 + r}")
    a("v_cvt_pk_bf16_f32 v36, v32, v33")
    a("v_cvt_pk_bf16_f32 v37, v34, v35")
    for h in range(2):
        a(f"v_lshlrev_b32 v38, 16, v{36 + h}")
        a(f"v_and_b32 v39, s16, v{36 + h}")
        a(f"v_sub_f32 v38, v{32 + 2 * h}, v38")
        a(f"v_sub_f32 v39, v{33 + 2 * h}, v39")
        a(f"v_cvt_pk_bf16_f32 v{28 + h}, v38, v39")
        a(f"v_cndmask_b32 v{28 + h}, 0, v{28 + h}, s[22:23]")
        a(f"v_cndmask_b32 v{28 + h}, v{28 + h}, v{36 + h}, vcc")
    a("buffer_store_dwordx2 v[28:29], v10, s[8:11], s7 offen sc1")
    a(f"{l5}:")
    a(f"s_add_u32 s19, s18, {X2}")
    a(f"s_add_u32 s20, s18, {XN}")
    a("s_lshl_b32 s22, s21, 7")
    a(f"s_add_u32 s22, s22, {MEAN}")
    red_ln_store(a, 16, "s19", "s20", "s22", "sc1")
    mark(a, 29)

    def more(skip):
        column_flag(a, SL_WQ, "s32")
        a("s_cmp_lt_u32 s32, 18")
        a(f"s_cbranch_scc1 {skip}")
        a("s_lshl_b32 s6, s36, 2")
        a(f"s_add_u32 s6, s6, {FLAGS + SL_WO * FPH}")
        a("s_mov_b64 exec, 1")
        a("buffer_store_dword v1, off, s[8:11], s6 sc1")

    publish(a, PH_RED - 4, more)
    mark(a, 30)
    for i in range(Cfg.raw_early, Cfg.raw_mid):
        a(ffn_raw_dma(i))
    out = a.label("wq_ready")
    a(f"s_cmp_lg_u32 s3, {Cfg.pw}")
    a(f"s_cbranch_scc1 {out}")
    column_wait(a, SL_WQ, abort, 18)
    a(f"{out}:")
    a("s_barrier")
    mark(a, 27)


def ffn_raw_dma(i):
    b, m = divmod(i, 4)
    step = f"s_mov_b32 s71, s{80 + b}" if m == 0 else "s_add_u32 s71, s71, s92"
    return f"s_add_u32 m0, s79, {i * KB}\n{step}\nbuffer_load_dwordx4 v224, s[72:75], s71 offen {Cfg.raw_flag} lds"


ZQ = list(range(76, 100, 4)) + [176, 180] + list(range(196, 224, 4)) + [228]


def ffn_transpose_reads(a):
    a("s_cmp_eq_u32 s93, 2")
    a("s_cselect_b32 s6, 2, 3")
    csel(a, "s7", 2048, 512)
    tr_rows(a, "v14", "v15", "s6", 128)
    a("v_add_u32 v14, s79, v14")
    a("v_add_u32 v15, s7, v14")
    for b in range(4):
        for t in range(4):
            r = ZQ[4 * b + t]
            a(f"ds_read_b64_tr_b16 v[{r}:{r + 1}], v14 offset:{b * 4096 + t * 32}")
            a(f"ds_read_b64_tr_b16 v[{r + 2}:{r + 3}], v15 offset:{b * 4096 + t * 32}")


def ffn_transpose(a):
    ffn_transpose_reads(a)
    dn, dd = a.label("swz_down"), a.label("swz_dest")
    dest = [80, 81, 82, 83, 64, 65, 18, 19, 20, 21, 22, 25, 26, 27, 28, 29]
    a(f"s_mul_i32 s68, s40, {4 * WSTR}")
    a(f"s_add_u32 s68, s68, {WF}")
    a("s_cmp_eq_u32 s93, 2")
    a(f"s_cbranch_scc1 {dn}")
    for b in range(4):
        sdivmod(a, "s6", "s7", f"s{84 + b}", 3, 17)
        a("s_mul_i32 s6, s6, 6")
        a("s_add_u32 s7, s7, s6")
        a(f"s_mul_i32 s6, s{88 + b}, 36")
        a("s_add_u32 s7, s7, s6")
        a("s_mul_i32 s6, s93, 3")
        a("s_add_u32 s7, s7, s6")
        a("s_lshl_b32 s7, s7, 10")
        a("s_add_u32 s7, s7, s68")
        for t in range(4):
            a(f"s_add_u32 s{dest[4 * b + t]}, s7, {t * WSTR}")
    a(f"s_branch {dd}")
    a(f"{dn}:")
    for b in range(4):
        a(f"s_mul_i32 s7, s{88 + b}, 18")
        a(f"s_add_u32 s7, s7, s{84 + b}")
        a("s_add_u32 s7, s7, 324")
        a("s_lshl_b32 s7, s7, 10")
        a("s_add_u32 s7, s7, s68")
        for t in range(4):
            a(f"s_add_u32 s{dest[4 * b + t]}, s7, {t * WSTR}")
    a(f"{dd}:")
    return [f"buffer_store_dwordx4 v[{ZQ[i]}:{ZQ[i] + 3}], v253, s[72:75], s{dest[i]} offen {Cfg.zflag}" for i in range(16)]


BIG = -1e30


QR = 10
WO_FREE = [(160 + 4 * i, -1) for i in range(24)] + \
    [(16 * (k % QR) + 4 * t, k) for k in range(18 - QR, 18) for t in range(4)]


def wo_reg(ks, sl):
    return WO_FREE[ks * 3 + sl][0]


def qkv_prefetch(a, k0, k1, skip=None):
    if k0 == 0:
        a("s_lshl_b32 s28, s40, 2")
        a("s_add_u32 s28, s28, s3")
        a(f"s_mul_i32 s28, s28, {72 * KB}")
        if WQ:
            a(f"s_add_u32 s28, s28, {WQ}")
    v = "v253"
    a("v_and_b32 v229, 8, v0")
    a("v_lshl_add_u32 v229, v229, 27, v253")
    if skip:
        a(f"s_mul_i32 s7, {skip}, {OOB}")
        a("v_add_u32 v3, s7, v253")
        a("v_or_b32 v229, s7, v229")
        v = "v3"
    for ks in range(k0, k1):
        for l in qkv_wload(ks, v):
            a(l)
        a("s_add_u32 s28, s28, 4096")


def qkv_wload(ks, v="v253", vl="v229"):
    for t in range(4):
        r = 16 * (ks % QR) + 4 * t
        if t == 3 and Cfg.lmask:
            v = vl
        yield f"buffer_load_dwordx4 a[{r}:{r + 3}], {v}, s[8:11], s28 offen offset:{t * KB} {Cfg.wflag}"


def wo_weight_loads(a):
    setup = []
    s = setup.append
    s("s_lshl_b32 s45, s41, 1")
    s("s_lshr_b32 s7, s40, 2")
    s("s_add_u32 s45, s45, s7")
    s(f"s_mul_i32 s30, s45, {4 * GB}")
    s("s_add_u32 s30, s30, s43")
    s("s_and_b32 s31, s40, 3")
    s("s_mul_i32 s31, s31, 9")
    s("s_add_u32 s31, s31, s3")
    s(f"s_mul_i32 s32, s31, {18 * KB}")
    s(f"s_add_u32 s32, s32, {WO}")
    s(f"s_add_u32 s33, s32, {4 * 18 * KB}")
    s(f"s_add_u32 s34, s32, {8 * 18 * KB}")
    s(f"s_mov_b32 s39, {FLAGS + SL_WO * FPH}")
    s("v_min_u32 v228, 44, v0")
    s("v_lshlrev_b32 v228, 3, v228")
    s("s_cmp_eq_u32 s3, 1")
    s(f"s_cmov_b32 s34, {WO + 36 * 18 * KB}")
    s("s_cmp_lt_u32 s3, 2")
    s(f"s_cselect_b32 s35, 0, {OOB}")
    s("v_add_u32 v5, s35, v253")
    if Cfg.lmask:
        s("s_cmp_eq_u32 s3, 1")
        s("s_cselect_b32 s7, 8, 0")
        s("v_and_b32 v10, s7, v0")
        s("v_lshl_add_u32 v5, v10, 27, v5")
    s("s_cmp_eq_u32 s3, 0")
    s(f"s_cselect_b32 s35, 0, {OOB}")
    s("v_add_u32 v7, s35, v9")
    s("s_lshl_b32 s7, s31, 8")
    s("s_add_u32 s36, s30, s7")
    s(f"s_add_u32 s37, s36, {X2}")
    s(f"s_add_u32 s46, s36, {XC}")
    s("s_lshl_b32 s36, s45, 7")
    s("s_add_u32 s36, s36, s43")
    s(f"s_add_u32 s36, s36, {MEAN1}")
    s("s_lshl_b32 s47, s45, 9")
    s("s_add_u32 s47, s47, s43")
    s(f"s_add_u32 s47, s47, {MEAN}")
    s("v_bfe_u32 v10, v0, 3, 2")
    s("v_and_b32 v8, 7, v0")
    s("v_lshlrev_b32 v8, 2, v8")
    s("v_lshl_add_u32 v8, v10, 7, v8")
    loads = []
    for ks in range(18):
        for sl in range(3):
            r = wo_reg(ks, sl)
            t = f"buffer_load_dwordx4 a[{r}:{r + 3}], v{5 if sl == 2 else 253}, s[8:11], s{32 + sl} offen offset:{(ks & 3) * KB} {Cfg.wflag}"
            if ks & 3 == 3:
                t += f"\ns_add_u32 s{32 + sl}, s{32 + sl}, 4096"
            loads.append((t, WO_FREE[ks * 3 + sl][1]))
    for sl in range(3):
        loads.append((f"buffer_load_dwordx4 v[{240 + 4 * sl}:{243 + 4 * sl}], v{7 if sl == 2 else 9}, s[8:11], s37 offen offset:{sl * KB} sc1", -1))
    loads.append(("buffer_load_dword v252, v8, s[8:11], s47 offen sc1", -1))
    return setup, loads


def phase_qkv(a, abort):
    BF, ACC, QO, KO, VO, VL, SEL, CI, BP, BC, BP1 = 16, 56, 132, 152, 172, 182, 192, 196, 200, 204, 208
    bfrag_voff(a, "v2", "v3")
    dtile_voff(a, "v9", "v3", None, GB)
    a(f"s_mul_i32 s22, s41, {8 * GB}")
    a("s_add_u32 s22, s22, s43")
    a(f"s_add_u32 s23, s22, {XN}")
    a(f"s_mul_i32 s7, s3, {2 * GB}")
    a("s_add_u32 s24, s23, s7")
    a("s_cmp_eq_u32 s41, 0")
    a(f"s_cselect_b32 s7, 0, {2 * GB}")
    a("s_sub_u32 s23, s23, s7")
    units = [(0, tt) for tt in range(1, 5)] + [(t, tt) for t in range(1, 4) for tt in range(5)]
    acc = {u: ACC + 4 * i for i, u in enumerate(units)}
    a("s_lshl_b32 s25, s3, 10")
    a("s_add_u32 s25, s25, 1024")
    a("s_mul_i32 s26, s3, 5120")
    a("s_lshl_b32 s7, s3, 9")
    a("s_add_u32 s27, s23, s7")
    a("s_and_b32 s7, s3, 1")
    a("s_add_u32 s7, s7, 4")
    a("s_mul_i32 s29, s7, 5120")
    a("s_lshl_b32 s7, s7, 9")
    a("s_add_u32 s23, s23, s7")
    wait_flags(a, (PH_RED - 4) * FPH, abort, halo=True)
    mark(a, 0)
    def xdma(st):
        for kk in range(6):
            ks = 6 * st + kk
            t = f"s_add_u32 m0, s25, {ks * 5120 - (ks % 8) * 512}\n"
            t += "s_add_u32 s24, s24, 4096\n" if ks and ks % 8 == 0 else "s_nop 0\n"
            yield t + f"buffer_load_dwordx4 v2, s[8:11], s24 offen offset:{(ks % 8) * 512} {Cfg.xflag} lds"
        for sm, so in (("s26", "s27"), ("s29", "s23")):
            yield (f"s_add_u32 m0, {sm}, {st * 30720}\ns_add_u32 s7, {so}, {st * 3072}\n"
                   f"buffer_load_dwordx4 v2, s[8:11], s7 offen {Cfg.xflag} lds")

    vm = Vm()
    for t in xdma(0):
        a(t)
        vm.issue(("x", 0))
    main, a = a, Asm()
    for r in [QO, QO + 1, SEL, SEL + 1, SEL + 3] + [QO + 4 * t + 3 for t in range(5)] + [KO + 4 * t + 3 for t in range(5)]:
        a(f"v_mov_b32 v{r}, 0")
    a("v_cmp_eq_u32 vcc, 16, v0")
    a("v_mov_b32 v10, 0x3f80")
    a("v_cmp_eq_u32 s[20:21], 17, v0")
    a(f"v_cndmask_b32 v{SEL + 2}, 0, v10, vcc")
    a("v_and_b32 v11, 3, v0")
    a(f"v_cndmask_b32 v{SEL + 2}, v{SEL + 2}, 1.0, s[20:21]")
    a("v_cmp_eq_u32 vcc, 2, v11")
    a("v_and_b32 v10, 15, v0")
    a("v_lshrrev_b32 v11, 4, v0")
    for r in range(4):
        a(f"v_cndmask_b32 v{CI + r}, 0, 1.0, vcc")
    a("v_lshlrev_b32 v11, 2, v11")
    a("v_sub_u32 v10, v11, v10")
    a(f"v_mov_b32 v12, {f32(BIG)}")
    a("s_cmp_eq_u32 s41, 0")
    a("s_cselect_b64 s[38:39], 0, -1")
    for r in range(4):
        a(f"v_add_u32 v11, {r}, v10")
        a("v_and_b32 v13, 1, v11")
        a("v_cmp_eq_u32 s[20:21], 0, v13")
        a("v_cmp_lt_i32 vcc, 1, v11")
        a("v_cmp_gt_i32 s[18:19], 1, v11")
        a("s_and_b64 vcc, vcc, s[20:21]")
        a("s_and_b64 s[18:19], s[18:19], s[20:21]")
        a("s_and_b64 s[20:21], vcc, s[38:39]")
        a(f"v_cndmask_b32 v{BP + r}, v12, 0, vcc")
        a(f"v_cndmask_b32 v{BC + r}, v12, 0, s[18:19]")
        a(f"v_cndmask_b32 v{BP1 + r}, v12, 0, s[20:21]")
    setup, early = wo_weight_loads(a)
    for t in setup:
        a(t)
    side, chunk = [], ""
    for ln in a.lines:
        chunk += ln + "\n"
        if ln.strip().startswith("v_") and not ln.strip().startswith("v_cmp"):
            side.append(chunk)
            chunk = ""
    side.append(chunk)
    a = main
    a(f"v_add_u32 v6, {45 * KB}, v253")
    a("s_waitcnt vmcnt(0)")
    a("s_barrier")
    mark(a, 1)

    def xread(ks, tt):
        r = BF + 20 * (ks & 1) + 4 * tt
        f = ks * 5 + tt
        return f"ds_read_b128 v[{r}:{r + 3}], v{253 if f < 45 else 6} offset:{(f % 45) * KB}"

    for tt in range(5):
        a(xread(0, tt))
    stage = {1: list(xdma(1)), 2: list(xdma(2))}
    raw = [ffn_raw_dma(i) for i in range(Cfg.raw_mid, 16)]
    wq = []
    for k in range(QR - 1, 18):
        ls = list(qkv_wload(k))
        ls[3] += "\ns_add_u32 s28, s28, 4096"
        wq += [(l, ("w", k)) for l in ls]
    for ks in range(18):
        cur = BF + 20 * (ks & 1)
        fill = {}
        if ks < 17:
            for tt in range(5):
                fill[tt] = [(xread(ks + 1, tt), None)]
        vq = []
        st = 1 if ks < 4 else 2
        for _ in range(2):
            if stage[st] and ks != 4:
                vq.append((stage[st].pop(0), ("x", st)))
        for _ in range(Cfg.w_per_ks):
            if wq and wq[0][1][1] - QR < ks:
                vq.append(wq.pop(0))
        while ks >= 18 - QR + 1 and len(vq) < Cfg.wo_per_ks and early[0][1] < ks:
            vq.append((early.pop(0)[0], "o"))
        for i, op in enumerate(vq):
            fill[5 + 2 * i] = [op]
        for u in (6, 8, 10, 12, 14, 15, 16, 17, 18):
            if u not in fill:
                fill[u] = [(side.pop(0), None) for _ in range(min(2, len(side)))]
        if raw and ks >= 1:
            fill[18] = [(raw.pop(0), "z")]
        if ks == 6:
            assert not side
            fill[5 + 2 * len(vq)] = [("buffer_load_dwordx2 v[226:227], v228, s[8:11], s39 offen sc1", "b")]
        need = ([("w", ks)] if ks >= QR - 1 else []) + ([("x", (ks + 1) // 6)] if ks in (5, 11) else [])
        if ks == 18 - QR + 1:
            need.append("b")
        a(f"s_waitcnt vmcnt({vm.count(*need)}) lgkmcnt(0)" if need else "s_waitcnt lgkmcnt(0)")
        if ks == 18 - QR + 1:
            lp, ok = a.label("wo_poll"), a.label("wo_ready")
            a("s_mov_b32 s6, 0")
            a(f"{lp}:")
            a("v_cmp_eq_u32 vcc, s76, v226")
            a("v_cmp_eq_u32 s[20:21], s76, v227")
            a("s_and_b64 vcc, vcc, s[20:21]")
            a("s_cmp_eq_u64 vcc, exec")
            a(f"s_cbranch_scc1 {ok}")
            a("buffer_load_dwordx2 v[226:227], v228, s[8:11], s39 offen sc1")
            a("s_add_u32 s6, s6, 1")
            a(f"s_cmp_lt_u32 s6, {1 << 20}")
            a("s_waitcnt vmcnt(0)")
            a(f"s_cbranch_scc1 {lp}")
            a(f"s_branch {abort}")
            a(f"{ok}:")
        if ks in (5, 11):
            a("s_barrier")
        for u, (t, tt) in enumerate(units):
            c = acc[(t, tt)]
            wr = 16 * (ks % QR) + 4 * t
            w, x = f"a[{wr}:{wr + 3}]", f"v[{cur + 4 * tt}:{cur + 4 * tt + 3}]"
            if t == 2:
                w, x = x, w
            a(f"v_mfma_f32_16x16x32_bf16 v[{c}:{c + 3}], {w}, {x}, {'0' if ks == 0 else f'v[{c}:{c + 3}]'}")
            for text, tag in fill.get(u, []):
                a(text)
                if tag:
                    vm.issue(tag)
    assert not stage[1] and not stage[2]
    assert not wq
    early = [t for t, _ in early]
    nw = len(early) - 4
    tail_loads = early[nw - Cfg.wo_gap:nw]
    early = early[:nw - Cfg.wo_gap] + early[nw:]
    mark(a, 2)
    body = []
    e = body.append
    cvt = lambda d, s: e(f"v_cvt_pk_bf16_f32 v{d}, v{s}, v{s + 1}")
    mf = lambda d, x, y, c: e(f"v_mfma_f32_16x16x32_bf16 v[{d}:{d + 3}], v[{x}:{x + 3}], v[{y}:{y + 3}], {c}")
    quad = lambda r: f"v[{r}:{r + 3}]"
    for tt in range(1, 5):
        cvt(QO + 4 * tt, acc[(0, tt)]); cvt(QO + 4 * tt + 1, acc[(0, tt)] + 2)
    for tt in range(5):
        cvt(KO + 4 * tt, acc[(1, tt)]); cvt(KO + 4 * tt + 1, acc[(1, tt)] + 2)
    for tt in range(5):
        cvt(QO + 4 * tt + 2, acc[(3, tt)]); cvt(KO + 4 * tt + 2, acc[(3, tt)] + 2)
    for tt in range(5):
        cvt(VO + 2 * tt, acc[(2, tt)]); cvt(VO + 2 * tt + 1, acc[(2, tt)] + 2)
    S, T, P, M = 16, 56, 76, 92
    for tt in range(1, 5):
        s = S + 8 * (tt - 1)
        mf(s, KO + 4 * (tt - 1), QO + 4 * tt, quad(BP1 if tt == 1 else BP))
        mf(s + 4, KO + 4 * tt, QO + 4 * tt, quad(BC))
    for tt in range(5):
        mf(T + 4 * tt, QO + 4 * tt, SEL, quad(CI))
    for i in range(4):
        s = S + 8 * i
        e(f"v_max3_f32 v{M + i}, v{s}, v{s + 1}, v{s + 2}")
        e(f"v_max3_f32 v{M + 4 + i}, v{s + 3}, v{s + 4}, v{s + 5}")
    for i in range(4):
        s = S + 8 * i
        e(f"v_max3_f32 v{M + i}, v{M + i}, v{s + 6}, v{s + 7}")
    for i in range(4):
        e(f"v_max_f32 v{M + i}, v{M + i}, v{M + 4 + i}")
    c = 18 ** -0.5 * math.log2(math.e)
    e(f"s_mov_b32 s18, {f32(c)}")
    tcv = [(VL + 2 * tt + h, T + 4 * tt + 2 * h) for tt in range(5) for h in range(2)]
    pad = lambda n: [cvt(*tcv.pop(0)) for _ in range(n)]
    pad(1)
    e(f"v_permlane32_swap_b32 v{M}, v{M + 1}")
    e(f"v_permlane32_swap_b32 v{M + 2}, v{M + 3}")
    e(f"v_max_f32 v{M}, v{M}, v{M + 1}")
    e(f"v_max_f32 v{M + 2}, v{M + 2}, v{M + 3}")
    pad(2)
    e(f"v_permlane16_swap_b32 v{M}, v{M + 2}")
    e(f"v_max_f32 v{M}, v{M}, v{M + 2}")
    e(f"v_mul_f32 v{M}, {f32(-c)}, v{M}")
    e(f"v_mov_b32 v{M + 2}, v{M}")
    pad(2)
    e(f"v_permlane16_swap_b32 v{M}, v{M + 2}")
    e(f"v_mov_b32 v{M + 1}, v{M}")
    e(f"v_mov_b32 v{M + 3}, v{M + 2}")
    pad(2)
    e(f"v_permlane32_swap_b32 v{M}, v{M + 1}")
    e(f"v_permlane32_swap_b32 v{M + 2}, v{M + 3}")
    pad(3)
    OA, OL, R, OUT, LO = 100, 116, 96, 212, 220
    for i in range(4):
        s = S + 8 * i
        for r in range(8):
            e(f"v_fma_f32 v{s + r}, v{s + r}, s18, v{M + i}")
        for r in range(8):
            e(f"v_exp_f32 v{s + r}, v{s + r}")
        if i:
            mf(OA + 4 * (i - 1), VO + 2 * (i - 1), P + 4 * (i - 1), "0")
            mf(OL + 4 * (i - 1), VL + 2 * (i - 1), P + 4 * (i - 1), "0")
        else:
            e("s_nop 0")
        for r in range(4):
            cvt(P + 4 * i + r, s + 2 * r)
    e(f"v_rcp_f32 v{R}, v{OL + 2}")
    e(f"v_rcp_f32 v{R + 1}, v{OL + 6}")
    mf(OA + 12, VO + 6, P + 12, "0")
    mf(OL + 12, VL + 6, P + 12, "0")

    def scale(i):
        sel = "op_sel:[1,0] op_sel_hi:[1,1]" if i & 1 else "op_sel:[0,0] op_sel_hi:[0,1]"
        rp = R + (i & 2)
        for o in (OA + 4 * i, OA + 4 * i + 2, OL + 4 * i):
            e(f"v_pk_mul_f32 v[{o}:{o + 1}], v[{rp}:{rp + 1}], v[{o}:{o + 1}] {sel}")
        cvt(OUT + 2 * i, OA + 4 * i); cvt(OUT + 2 * i + 1, OA + 4 * i + 2); cvt(LO + i, OL + 4 * i)

    scale(0)
    e(f"v_rcp_f32 v{R + 2}, v{OL + 10}")
    scale(1)
    e(f"v_rcp_f32 v{R + 3}, v{OL + 14}")
    e(f"v_permlane16_swap_b32 v{OUT}, v{OUT + 2}")
    e(f"v_permlane16_swap_b32 v{OUT + 1}, v{OUT + 3}")
    scale(2)
    scale(3)
    LX = 92 * KB
    e("s_lshl_b32 s7, s3, 2")
    e(f"s_add_u32 s7, s7, {LX}")
    e(f"v_permlane16_swap_b32 v{LO}, v{LO + 1}")
    e(f"v_permlane16_swap_b32 v{LO + 2}, v{LO + 3}")
    e("v_add_u32 v11, s7, v253")
    e("v_lshrrev_b32 v10, 3, v0")
    e(f"v_permlane32_swap_b32 v{LO}, v{LO + 2}")
    e(f"v_mul_u32_u24 v10, {GB}, v10")
    e(f"ds_write_b32 v11, v{LO}")
    e(f"v_permlane16_swap_b32 v{OUT + 4}, v{OUT + 6}")
    e(f"v_permlane16_swap_b32 v{OUT + 5}, v{OUT + 7}")
    step = max(1, len(body) // len(early))
    for i, t in enumerate(body):
        a(t)
        if early and i % step == step - 1:
            a(early.pop(0))
    for t in early:
        a(t)
    a("s_mul_i32 s7, s40, 1152")
    a("s_add_u32 s22, s22, s7")
    a(f"s_add_u32 s22, s22, {OO}")
    a("s_lshl_b32 s7, s3, 8")
    a("s_add_u32 s23, s22, s7")
    a(f"s_add_u32 s24, s23, {4 * GB}")
    a(f"buffer_store_dwordx4 v[{OUT}:{OUT + 3}], v9, s[8:11], s23 offen sc1")
    a(f"buffer_store_dwordx4 v[{OUT + 4}:{OUT + 7}], v9, s[8:11], s24 offen sc1")
    a("v_and_b32 v11, 7, v0")
    a("v_lshl_add_u32 v10, v11, 4, v10")
    a("s_cmp_eq_u32 s3, 3")
    a(f"s_cselect_b32 s7, 0, {OOB}")
    a("v_add_u32 v10, s7, v10")
    a(f"v_add_u32 v11, {LX}, v253")
    a("s_waitcnt lgkmcnt(0)")
    a("s_barrier")
    a(f"ds_read_b128 v[{LO}:{LO + 3}], v11")
    a("s_waitcnt lgkmcnt(0)")
    a(f"buffer_store_dwordx4 v[{LO}:{LO + 3}], v10, s[8:11], s22 offen offset:1024 sc1")
    mark(a, 3)
    publish(a, PH_QKV)
    mark(a, 4)
    for t in tail_loads:
        a(t)


def phase_wo(a, abort):
    RES, BF, ACC, T = 240, 160, 100, 124
    z0 = a.label("swz")
    a("s_cmp_lg_u32 s42, 0")
    a(f"s_cbranch_scc1 {z0}")
    zst = ffn_transpose(a)
    a("s_mov_b32 s72, s8")
    a("s_mov_b32 s73, s9")
    a(f"s_mov_b32 s74, {WS_SIZE}")
    a("s_waitcnt lgkmcnt(0)")
    for _ in range(Cfg.z_early):
        a(zst.pop(0))
    if Cfg.code_warm > 2:
        code_warm(a, "v[14:15]")
    a(f"{z0}:")
    a("s_and_b32 s7, s3, 1")
    a(f"s_mul_i32 s7, s7, {2 * GB}")
    a("s_add_u32 s24, s30, s7")
    a("s_lshr_b32 s7, s3, 1")
    a("s_lshl_b32 s7, s7, 9")
    a("s_add_u32 s24, s24, s7")
    a(f"s_add_u32 s24, s24, {OO}")
    a("s_mov_b32 s16, 0xffff0000")
    for sl in range(3):
        for i in range(4):
            a(f"v_lshlrev_b32 v{T + 8 * sl + 2 * i}, 16, v{RES + 4 * sl + i}")
            a(f"v_and_b32 v{T + 8 * sl + 2 * i + 1}, s16, v{RES + 4 * sl + i}")
    MX = 40 * KB
    a("s_cmp_eq_u32 s3, 1")
    a("s_cselect_b32 s7, 16, 0")
    a("v_lshlrev_b32 v12, 2, v0")
    a("v_cmp_gt_u32 vcc, s7, v0")
    a(f"v_add_u32 v10, {MX}, v12")
    a(f"v_add_u32 v11, {MX + 512}, v12")
    a("v_cndmask_b32 v10, v11, v10, vcc")
    a("v_and_b32 v11, 0x7c, v12")
    a("v_cmp_gt_u32 vcc, 32, v0")
    a(f"v_mov_b32 v13, {OOB}")
    a("s_and_b32 s7, s40, 3")
    a("s_lshl_b32 s45, s45, 2")
    a("v_cndmask_b32 v8, v13, v12, vcc")
    a("s_add_u32 s6, s7, s3")
    a("s_cmp_eq_u32 s6, 0")
    a(f"s_cselect_b32 s6, 0, {OOB}")
    a("v_add_u32 v6, s6, v8")
    a("s_add_u32 s45, s45, s7")
    a("s_lshl_b32 s45, s45, 2")
    a("s_add_u32 s45, s45, s3")
    a("s_lshl_b32 s45, s45, 7")
    a("s_add_u32 s45, s45, s43")
    a(f"s_add_u32 s45, s45, {STAT}")
    a("s_cmp_eq_u32 s3, 0")
    a("s_cselect_b32 s35, 1.0, 0")
    ring = ffn_ring_setup(a)
    wait_flags(a, PH_QKV * FPH, abort)
    mark(a, 5)
    a("s_lshl_b32 m0, s3, 10")
    for m in range(9):
        if m:
            a("s_add_u32 m0, m0, 4096")
            a("s_add_u32 s24, s24, 1024")
        else:
            a("s_nop 0")
        a(f"buffer_load_dwordx4 v2, s[8:11], s24 offen {Cfg.xflag} lds")
    z1 = a.label("swz")
    assert not zst
    a("s_waitcnt vmcnt(4)")
    a("s_barrier")
    mark(a, 6)
    for tt in range(2):
        a(f"ds_read_b128 v[{BF + 4 * tt}:{BF + 4 * tt + 3}], v253 offset:{tt * KB}")
    for ks in range(18):
        cur, nxt = BF + 8 * (ks & 1), BF + 8 * ((ks + 1) & 1)
        if ks == 9:
            a("s_waitcnt vmcnt(9) lgkmcnt(0)")
            a("s_barrier")
            a(f"s_xor_b32 s7, s3, {Cfg.pw}")
            a("s_or_b32 s7, s7, s42")
            a(f"s_cbranch_scc1 {z1}")
            column_flag(a, SL_WF)
            a("s_mov_b64 exec, -1")
            a(f"{z1}:")
        else:
            a("s_waitcnt lgkmcnt(0)")
        i = 0
        for sl in range(3):
            for tt in range(2):
                c = ACC + 4 * (2 * sl + tt)
                w = wo_reg(ks, sl)
                src = "0" if ks == 0 else f"v[{c}:{c + 3}]"
                a(f"v_mfma_f32_16x16x32_bf16 v[{c}:{c + 3}], a[{w}:{w + 3}], v[{cur + 4 * tt}:{cur + 4 * tt + 3}], {src}")
                if i < 2 and ks < 17:
                    a(f"ds_read_b128 v[{nxt + 4 * i}:{nxt + 4 * i + 3}], v253 offset:{((ks + 1) * 2 + i) * KB}")
                if i == 3 and ring:
                    a(ring.pop(0))
                i += 1
    mark(a, 7)
    XR = 148
    a("s_nop 3")
    for r in range(4):
        a(f"v_permlane16_swap_b32 v{ACC + r}, v{ACC + 4 + r}")
    a(f"v_add_f32 v12, v{ACC + 16}, v{ACC + 17}")
    a(f"v_add_f32 v13, v{ACC + 20}, v{ACC + 21}")
    a("ds_write_b32 v10, v12")
    a("ds_write_b32 v10, v13 offset:64")
    for sl in (1, 2):
        for r in range(4):
            a(f"v_permlane16_swap_b32 v{ACC + 8 * sl + r}, v{ACC + 8 * sl + 4 + r}")
    a("s_waitcnt lgkmcnt(0)")
    a("s_barrier")
    a(f"ds_read_b32 v12, v11 offset:{MX}")
    for sl in range(3):
        for i in range(4):
            t, c = T + 8 * sl + 2 * i, ACC + 8 * sl + 2 * i
            a(f"v_pk_add_f32 v[{t}:{t + 1}], v[{t}:{t + 1}], v[{c}:{c + 1}]")
    a("v_mov_b32 v14, 0")
    a("v_mov_b32 v15, 0")
    a("s_waitcnt lgkmcnt(0)")
    a("v_add_f32 v12, v12, v252")
    for sl in range(3):
        for i in range(4):
            t, c = T + 8 * sl + 2 * i, ACC + 8 * sl + 2 * i
            a(f"v_pk_add_f32 v[{c}:{c + 1}], v[{t}:{t + 1}], v[12:13] op_sel_hi:[1,0] neg_lo:[0,1] neg_hi:[0,1]")
        for i in range(4):
            c = ACC + 8 * sl + 2 * i
            a(f"v_cvt_pk_bf16_f32 v{XR + 4 * sl + i}, v{c}, v{c + 1}")
        a(f"buffer_store_dwordx4 v[{XR + 4 * sl}:{XR + 4 * sl + 3}], v{7 if sl == 2 else 9}, s[8:11], s46 offen offset:{sl * KB} sc1")
    for i in range(12):
        a(f"v_dot2c_f32_bf16 v{15 if i >= 8 else 14}, v{XR + i}, v{XR + i}")
    a("buffer_store_dword v12, v6, s[8:11], s36 offen sc1")
    a("s_nop 1")
    a("v_fma_f32 v14, v15, s35, v14")
    a("v_mov_b32 v15, v14")
    a("s_nop 1")
    a("v_permlane32_swap_b32 v14, v15")
    a("v_add_f32 v14, v14, v15")
    a("buffer_store_dword v14, v8, s[8:11], s45 offen sc1")
    publish(a, PH_WO)
    mark(a, 8)


FFN_LDS = 144 * KB
HB = 72 * KB


def pack_gaps(n_gaps, pinned, ops, start=0, cap=2):
    gaps = [list(pinned.get(g, [])) for g in range(n_gaps)]
    g = start
    for text, cost, earliest in ops:
        g = max(g, earliest)
        while sum(c for _, c in gaps[g]) + cost > cap:
            g += 1
        gaps[g].append((text, cost))
    return gaps


def check_stage_reads(mf, gaps, base, n):
    stage = {("v", base + i) for i in range(n)}
    wr = {}
    for i, t in enumerate(mf):
        for r in hazards.I(t, 0).w & stage:
            wr[r] = i
    for i, g in enumerate(gaps):
        for t, _ in g:
            for r in hazards.I(t.split("\n")[-1], 0).r & stage:
                assert i < wr[r], (i, t, wr[r])


RING, VB = 16, 184
RING_EXT = [104, 108, 112, 116, 180, 196, 200, 204, 208, 212, 136, 140, 144, 160, 164, 168, 148, 4]


def slot_reg(slot):
    return RING + 4 * slot if slot < 18 else RING_EXT[slot - 18]


def wload(slot, n):
    r = slot_reg(slot)
    return f"buffer_load_dwordx4 v[{r}:{r + 3}], v{VB + n // 4}, s[48:51], s23 offen offset:{(n % 4) * KB} {Cfg.wflag}"


def ffn_ring_setup(a):
    a("s_lshl_b32 s7, s40, 2")
    a("s_add_u32 s7, s7, s3")
    a(f"s_mul_i32 s23, s7, {WSTR}")
    a(f"s_add_u32 s23, s23, {WF}")
    a(f"s_add_u32 s50, s23, {486 * KB}")
    a("s_mul_i32 s50, s50, s42")
    a(f"v_mov_b32 v{VB}, v253")
    for m in range(1, 9):
        a(f"v_add_u32 v{VB + m}, {4096 * m}, v253")
    return [wload(n, n) for n in range(15)]


def phase_ffn(a, abort):
    ACC, STG, TMP = 88, 120, 152
    OA = 216
    xreg = lambda tt, ks: reg(256 + 4 * (tt * 18 + ks), 4) if tt * 18 + ks < 64 else reg(220 + 4 * (tt * 18 + ks - 64), 4)
    a("s_lshl_b32 s7, s41, 2")
    a("s_add_u32 s7, s7, s3")
    a(f"s_mul_i32 s22, s7, {2 * GB}")
    a("s_add_u32 s22, s22, s43")
    a(f"s_add_u32 s22, s22, {XC}")
    a(f"s_mul_i32 s24, s3, {18 * KB}")
    a("s_lshl_b32 s25, s41, 12")
    a("s_add_u32 s25, s25, s43")
    a(f"s_add_u32 s25, s25, {STAT}")
    a("v_lshrrev_b32 v3, 5, v0")
    a("v_and_b32 v10, 31, v0")
    a("v_lshlrev_b32 v10, 2, v10")
    a("v_lshl_add_u32 v3, v3, 11, v10")
    a(f"v_add_u32 v11, {36 * KB}, v{VB}")
    early = red_setup(a)
    dtile_voff(a, "v178", "v1", None, 8 * GB)
    a(f"v_add_u32 v179, {32 * GB}, v178")
    a("v_lshrrev_b32 v1, 5, v0")
    a("v_and_b32 v15, 7, v0")
    a("v_lshlrev_b32 v15, 4, v15")
    a("v_lshl_add_u32 v15, v1, 7, v15")
    a("s_lshl_b32 s7, s3, 8")
    a(f"s_add_u32 s7, s7, {OWN - KB}")
    a("v_add_u32 v15, s7, v15")
    a("v_bfe_u32 v1, v0, 3, 2")
    a(f"v_mov_b32 v182, {OOB}")
    a(f"v_add_u32 v183, {OWN + 10 * KB}, v253")
    for pr in range(2):
        a(f"s_sub_u32 s7, s40, {4 * pr}")
        a("v_cmp_eq_u32 vcc, s7, v1")
        a("s_nop 1")
        a(f"v_cndmask_b32 v{178 + pr}, v{178 + pr}, v182, vcc")
        a(f"v_cndmask_b32 v{OA + pr}, v183, v15, vcc")
        a(f"v_cndmask_b32 v{OA + 2 + pr}, 0, 1, vcc")
        a(f"v_lshlrev_b32 v{OA + 2 + pr}, 10, v{OA + 2 + pr}")
    a(f"s_mul_i32 s26, s41, {64 * GB}")
    a(f"s_mul_i32 s7, s40, {GB}")
    a("s_add_u32 s26, s26, s7")
    a("s_lshl_b32 s7, s3, 8")
    a("s_add_u32 s27, s26, s7")
    a(f"s_add_u32 s27, s27, {PART - KB}")
    a("s_mov_b32 s74, 0")
    a(f"s_mul_i32 s7, s42, {3 * FPH}")
    a("s_sub_u32 s29, s44, s7")
    a(f"s_add_u32 s29, s29, {(SL_EARLY - 1) * FPH}")
    a("s_lshl_b32 s7, s40, 7")
    a("s_add_u32 s7, s7, s29")
    a("s_add_u32 s38, s4, s7")
    a("s_addc_u32 s39, s5, 0")
    a("s_lshl_b32 s7, s40, 2")
    a("s_add_u32 s29, s29, s7")
    a(f"s_add_u32 s50, s23, {486 * KB}")
    late, seen = a.label("ring"), a.label("ring")
    a("s_cmp_lg_u32 s42, 0")
    a(f"s_cbranch_scc1 {late}")
    a(f"s_cmp_lg_u32 s3, {Cfg.pw}")
    a(f"s_cbranch_scc1 {seen}")
    column_wait(a, SL_WF, abort)
    a(f"{seen}:")
    a("s_barrier")
    for n in range(15):
        a(wload(n, n))
    a(f"{late}:")
    wait_flags(a, PH_WO * FPH, abort)
    mark(a, 9)
    C0, C1, VV, SS = [4, 5, 6, 7], [8, 9, 13, 14], [193, 194, 195, 252], 136
    k0 = -2.0 * math.sqrt(2.0 / math.pi) * math.log2(math.e)

    def xdma(ks):
        return (f"s_add_u32 m0, s24, {ks * KB - (ks % 8) * 512}\n"
                + ("s_add_u32 s22, s22, 4096\n" if ks and ks % 8 == 0 else "s_nop 0\n")
                + f"buffer_load_dwordx4 v2, s[8:11], s22 offen offset:{(ks % 8) * 512} {Cfg.xflag} lds")

    def xread(tt, ks):
        f = tt * 18 + ks
        return f"ds_read_b128 {xreg(tt, ks)}, v{VB if f < 36 else 11} offset:{(f % 36) * KB}"

    hread = lambda tt, ks: f"ds_read_b128 {xreg(tt, ks)}, v{10 if tt < 2 else 11} offset:{((tt * 18 + ks) % 36) * KB}"
    vm0 = Vm()
    for n in range(15):
        vm0.issue(("w", n))
    for ks in range(12):
        a(xdma(ks))
        vm0.issue(("x", ks))
    a(f"s_add_u32 s23, s23, {15 * KB}")
    a("s_lshr_b32 s7, s3, 1")
    a("s_lshl_b32 s7, s7, 10")
    a("s_and_b32 s6, s3, 1")
    a("s_lshl_b32 s6, s6, 3")
    a("s_add_u32 s28, s7, s6")
    a(f"s_add_u32 s28, s28, {HB}")
    if Cfg.noload:
        a("s_mov_b32 s50, 0")
    a(f"s_waitcnt vmcnt({vm0.count(('x', 5))})")
    a("s_barrier")
    mark(a, 10)
    for ks in range(3):
        for tt in range(4):
            a(xread(tt, ks))

    def const_ops(e):
        ops = []
        for n in (8, 4, 2, 1):
            ops += [(f"v_add_f32 v{SS + i}, v{SS + i}, v{SS + n + i}", 1, e) for i in range(n)]
        ops += [(f"v_mov_b32 v{SS + 1}, {f32(1e-5)}", 1, e), (f"v_fmac_f32 v{SS + 1}, {f32(1.0 / 576)}, v{SS}", 1, e),
                (f"v_mov_b32 v{VV[0]}, v{SS + 1}", 1, e),
                (f"s_nop 0\nv_permlane16_swap_b32 v{VV[0]}, v{SS + 1}", 2, e),
                (f"v_mov_b32 v{VV[2]}, v{VV[0]}", 1, e), (f"v_mov_b32 v{VV[1]}, v{SS + 1}", 1, e),
                (f"v_mov_b32 v{VV[3]}, v{SS + 1}", 1, e),
                (f"s_nop 0\nv_permlane32_swap_b32 v{VV[0]}, v{VV[2]}", 2, e),
                (f"v_permlane32_swap_b32 v{VV[1]}, v{VV[3]}", 2, e)]
        ops += [(f"v_rsq_f32 v{C0[tt]}, v{VV[tt]}", 2, e) for tt in range(4)]
        ops += [(f"v_mul_f32 v{C1[tt]}, v{C0[tt]}, v{C0[tt]}", 1, e) for tt in range(4)]
        ops += [(f"v_mul_f32 v{C0[tt]}, {f32(k0)}, v{C0[tt]}", 1, e) for tt in range(4)]
        ops += [(f"v_mul_f32 v{C1[tt]}, {f32(0.044715)}, v{C1[tt]}", 1, e) for tt in range(4)]
        ops += [(f"v_mul_f32 v{C1[tt]}, v{C1[tt]}, v{C0[tt]}", 1, e) for tt in range(4)]
        return ops

    def gelu_ops(first_gap):
        ops = []
        for tt in range(4):
            t, p, o = TMP + 10 * (tt & 1), TMP + 10 * (tt & 1) + 4, TMP + 10 * (tt & 1) + 8
            g, u = STG + 4 * tt, STG + 16 + 4 * tt
            e = first_gap(tt)
            for r in range(4):
                ops.append((f"v_mul_f32 v{t + r}, v{g + r}, v{g + r}", 1, e))
            for r in range(4):
                ops.append((f"v_fma_f32 v{t + r}, v{t + r}, v{C1[tt]}, v{C0[tt]}", 1, e))
            for r in range(4):
                ops.append((f"v_mul_f32 v{t + r}, v{g + r}, v{t + r}", 1, e))
            for r in range(4):
                ops.append((f"v_exp_f32 v{t + r}, v{t + r}", 2, e))
            for r in range(4):
                ops.append((f"v_mul_f32 v{p + r}, v{g + r}, v{u + r}", 1, e))
            for r in range(4):
                ops.append((f"v_fma_f32 v{t + r}, v{t + r}, v{VV[tt]}, v{VV[tt]}", 1, e))
            for r in range(4):
                ops.append((f"v_rcp_f32 v{t + r}, v{t + r}", 2, e))
            for r in range(4):
                ops.append((f"v_mul_f32 v{p + r}, v{p + r}, v{t + r}", 1, e))
            ops.append((f"v_cvt_pk_bf16_f32 v{o}, v{p}, v{p + 1}", 1, e))
            ops.append((f"v_cvt_pk_bf16_f32 v{o + 1}, v{p + 2}, v{p + 3}", 1, e))
            ops.append((f"ds_write_b64 v12, v[{o}:{o + 1}] offset:{tt * 18 * KB}", 2, e))
        return ops

    def gu_step(kind):
        mf, pinned = [], {}
        for G in range(12):
            gu, grp = G & 1, G >> 1
            for tt in range(4):
                for kk in range(3):
                    ks = 3 * grp + kk
                    c = ACC + 16 * gu + 4 * tt
                    d = STG + 16 * gu + 4 * tt if ks == 17 else c
                    src = "0" if ks == 0 else f"v[{c}:{c + 3}]"
                    w = RING + 4 * ((3 * G + kk) % 18)
                    mf.append(f"v_mfma_f32_16x16x32_bf16 v[{d}:{d + 3}], v[{w}:{w + 3}], {xreg(tt, ks)}, {src}")
            for kk in range(3):
                n = 3 * G + kk
                pinned[12 * G + 4 * kk + Cfg.ldpos] = [(wload((n + 15) % 18, n), 2)]
        if kind == "first":
            for k in range(6):
                pinned[4 * k + 3] = [(xdma(12 + k), 2)]
            for k in range(16):
                pinned[24 + 12 * (k // 5) + (3, 6, 7, 10, 11)[k % 5]] = \
                    [(f"buffer_load_dword v{SS + k}, v3, s[8:11], s25 offen offset:{128 * k} sc1", 2)]
            ops = [(xread(tt, ks), 1, 24 * (ks // 3 - 1) + (4 * (ks % 3) + tt) * 3 // 2) for ks in range(3, 18) for tt in range(4)]
            gaps = pack_gaps(144, pinned, ops)
            gaps = pack_gaps(144, dict(enumerate(gaps)), const_ops(96))
        else:
            gaps = pack_gaps(144, pinned, [] if Cfg.nogelu else gelu_ops(lambda tt: 2), cap=Cfg.gcap)
        if kind == "last":
            g = 0
            for ks in range(14):
                for tt in range(4):
                    g = max(g + 1, 24 * (ks // 3) + 12 + 3 * tt + ks % 3)
                    while g < 143 and any("buffer_" in t or "ds_" in t for t, _ in gaps[g]):
                        g += 1
                    gaps[min(g, 143)].append((hread(tt, ks), 1))
        check_stage_reads(mf, gaps, STG, 32)
        lg = Vm()
        lg.issue(2)
        for i in range(144):
            G = i // 12
            if i % 12 == 0 and kind == "first":
                need = [("w", 3 * G + 2)] + {2: [("x", 11)], 6: [("x", 17)], 8: ["s"]}.get(G, [])
                a(f"s_waitcnt vmcnt({vm0.count(*need)}) lgkmcnt({min(15, lg.count(3 * (G // 2) + 2))})")
                if G in (2, 6):
                    a("s_barrier")
            elif i % 12 == 0:
                a("s_waitcnt vmcnt(12)")
            a(mf[i])
            for text, _ in gaps[i]:
                a(text)
                if kind == "first":
                    if "s[48:51]" in text:
                        vm0.issue(("w", 3 * G + (i % 12) // 4 + 15))
                    elif " lds" in text:
                        vm0.issue(("x", 12 + i // 4))
                    elif "buffer_load_dword " in text:
                        vm0.issue("s")
                    elif "ds_read" in text:
                        lg.issue(int(text.split("offset:")[1]) // KB % 18)
            if i == 139:
                a("s_lshl_b32 s7, s25, 11" if kind != "first" else "s_mov_b32 s25, 0")
            if i == 140:
                a("s_add_u32 s7, s7, s28" if kind != "first" else "s_mov_b32 s7, s28")
            if i == 142:
                a(f"s_add_u32 s23, s23, {36 * KB}")
        a(f"v_add_u32 v12, s7, v{VB}")
        a("s_add_u32 s25, s25, 1")

    gu_step("first")
    mark(a, 12)
    lp = a.label("ffn_gu")
    a(f"{lp}:")
    gu_step("loop")
    a("s_cmp_lt_u32 s25, 8")
    a(f"s_cbranch_scc1 {lp}")
    a(f"v_add_u32 v10, {HB}, v{VB}")
    a(f"v_add_u32 v11, {HB + 36 * KB}, v{VB}")
    if Cfg.code_warm > 1:
        code_warm(a, "v[2:3]")
    a("s_waitcnt lgkmcnt(0)")
    a("s_barrier")
    gu_step("last")
    mark(a, 13)
    a("s_waitcnt lgkmcnt(0)")
    a("s_barrier")
    reads = [hread(tt, ks) for ks in (14, 15) for tt in range(4)]
    ops = []
    for tt in range(4):
        t, p, o = TMP + 10 * (tt & 1), TMP + 10 * (tt & 1) + 4, TMP + 10 * (tt & 1) + 8
        g, u = STG + 4 * tt, STG + 16 + 4 * tt
        pr = lambda r: f"v[{r}:{r + 1}]"
        bc = lambda r: (pr(r & ~1), r & 1)

        def pkfma(d, x, y, z):
            (ry, sy), (rz, sz) = bc(y), bc(z)
            return f"v_pk_fma_f32 {pr(d)}, {pr(x)}, {ry}, {rz} op_sel:[0,{sy},{sz}] op_sel_hi:[1,{sy},{sz}]"
        ops += [f"v_pk_mul_f32 {pr(t + r)}, {pr(g + r)}, {pr(g + r)}" for r in (0, 2)]
        ops += [pkfma(t + r, t + r, C1[tt], C0[tt]) for r in (0, 2)]
        ops += [f"v_pk_mul_f32 {pr(t + r)}, {pr(g + r)}, {pr(t + r)}" for r in (0, 2)]
        ops += [f"v_exp_f32 v{t + r}, v{t + r}" for r in range(4)]
        ops += [f"v_pk_mul_f32 {pr(p + r)}, {pr(g + r)}, {pr(u + r)}" for r in (0, 2)]
        ops += [pkfma(t + r, t + r, VV[tt], VV[tt]) for r in (0, 2)]
        ops += [f"v_rcp_f32 v{t + r}, v{t + r}" for r in range(4)]
        ops += ["s_nop 0"]
        ops += [f"v_pk_mul_f32 {pr(p + r)}, {pr(p + r)}, {pr(t + r)}" for r in (0, 2)]
        ops += [f"v_cvt_pk_bf16_f32 v{o}, v{p}, v{p + 1}", f"v_cvt_pk_bf16_f32 v{o + 1}, v{p + 2}, v{p + 3}"]
        ops += [f"ds_write_b64 v12, v[{o}:{o + 1}] offset:{tt * 18 * KB}"]
    ahead = [wload(15 + n, n) for n in range(18)]
    for i, t in enumerate(ops):
        a(t)
        if reads and i % 4 != 3:
            a(reads.pop(0))
        if i % 6 == 5 and len(ahead) > 5:
            a(ahead.pop(0))
    for t in reads + ahead:
        a(t)
    a(f"s_add_u32 s23, s23, {18 * KB}")
    a("s_waitcnt lgkmcnt(0)")
    a("s_barrier")
    for ks in (16, 17):
        for tt in range(4):
            a(hread(tt, ks))
    a("s_mov_b32 s25, 0")
    a("s_waitcnt lgkmcnt(0)")
    mark(a, 14)

    def down_epi(e0, e1):
        ops = []
        for pr, e in enumerate((e0, e1)):
            o = TMP + 4 * pr
            for h in range(2):
                s = STG + 4 * (2 * pr + h)
                ops.append((f"v_cvt_pk_bf16_f32 v{o + 2 * h}, v{s}, v{s + 1}", 1, e))
                ops.append((f"v_cvt_pk_bf16_f32 v{o + 2 * h + 1}, v{s + 2}, v{s + 3}", 1, e))
            ops.append((f"s_nop 0\nv_permlane16_swap_b32 v{o}, v{o + 2}", 2, e))
            ops.append((f"v_permlane16_swap_b32 v{o + 1}, v{o + 3}", 2, e))
            ops.append((f"buffer_store_dwordx4 v[{o}:{o + 3}], v{178 + pr}, s[72:75], s27 offen {Cfg.pflag}", 2, e))
            ops.append((f"ds_write_b128 v{OA + pr}, v[{o}:{o + 3}]", 2, e))
            ops.append((f"v_add_u32 v{OA + pr}, v{OA + pr}, v{OA + 2 + pr}", 1, e))
        return ops

    def down_trip(half, vm, last=0, emit=True):
        out = a if emit else Asm()
        mark_dyn(out, 21, "s25")
        base = 0 if half else 18
        mf, pinned = [], {}
        for G in range(6):
            for tt in range(4):
                for kk in range(3):
                    ks = 3 * G + kk
                    c = ACC + 4 * tt
                    d = STG + 4 * tt if ks == 17 else c
                    src = "0" if ks == 0 else f"v[{c}:{c + 3}]"
                    w = slot_reg(base + ks)
                    mf.append(f"v_mfma_f32_16x16x32_bf16 v[{d}:{d + 3}], v[{w}:{w + 3}], {xreg(tt, ks)}, {src}")
            for kk in range(3):
                n = 3 * G + kk
                if not last or (last == 1 and G == 0):
                    pinned[12 * G + 4 * kk + 1] = [(wload((base + n + 33) % 36, n), 2)]
                elif early and (last == 2 or G >= 2):
                    pinned[12 * G + 4 * kk + 1] = [(early.pop(0), 2)]
        gaps = pack_gaps(72, pinned, down_epi(Cfg.epi_gap, Cfg.epi_gap2 if not last else Cfg.epi_gap))
        check_stage_reads(mf, gaps, STG, 16)
        store_groups = [i // 12 for i in range(72) for t, _ in gaps[i] if "store" in t]
        for i in range(72):
            G = i // 12
            if i % 12 == 0 and last:
                out(f"s_waitcnt vmcnt({vm.count(('w', base + 3 * G + 2))})")
            elif i % 12 == 0:
                extra = sum(1 for sg in store_groups if sg < G)
                if not half:
                    extra += len(store_groups)
                out(f"s_waitcnt vmcnt({30 + extra})")
            if i == 36 and half and not last and emit:
                skip = a.label("early")
                a("s_cmp_lg_u32 s25, 6")
                a(f"s_cbranch_scc1 {skip}")
                a(f"s_waitcnt vmcnt({vm.count(('s', 0))})")
                a("s_barrier")
                a(f"s_cmp_lg_u32 s3, {Cfg.pw}")
                a(f"s_cbranch_scc1 {skip}")
                a("v_lshlrev_b32 v15, 7, v0")
                a("v_mov_b32 v1, s76")
                a("s_mov_b64 exec, 0xff")
                a("buffer_store_dword v1, v15, s[8:11], s29 offen sc1")
                a("s_mov_b64 exec, -1")
                a(f"{skip}:")
            if i == 24 and last == 1:
                lp, ok = a.label("epoll"), a.label("epolled")
                a(f"{lp}:")
                a("s_waitcnt lgkmcnt(0)")
                for r in (56, 58, 60, 62):
                    a(f"s_xor_b64 s[{r}:{r + 1}], s[{r}:{r + 1}], s[76:77]")
                a("s_or_b64 s[56:57], s[56:57], s[58:59]")
                a("s_or_b64 s[60:61], s[60:61], s[62:63]")
                a("s_or_b64 s[56:57], s[56:57], s[60:61]")
                a(f"s_cbranch_scc0 {ok}")
                a("s_load_dwordx8 s[56:63], s[38:39], 0 glc")
                a("s_add_u32 s6, s6, 1")
                a(f"s_cmp_lt_u32 s6, {1 << 20}")
                a(f"s_cbranch_scc1 {lp}")
                a(f"s_branch {abort}")
                a(f"{ok}:")
            out(mf[i])
            for text, _ in gaps[i]:
                out(text)
                if "buffer_store" in text:
                    vm.issue(("s", half))
                elif "s[48:51]" in text:
                    vm.issue(("w", (base + 3 * G + (i % 12) // 4 + 33) % 36))
                elif "buffer_load" in text:
                    vm.issue("e")
            if i == 14 and last == 1:
                out("s_load_dwordx8 s[56:63], s[38:39], 0 glc")
            if i == 15 and last == 1:
                out("s_mov_b32 s6, 0")
            if i == 66:
                out(f"s_mov_b32 s74, {WS_SIZE}")
            if i == 67:
                out(f"s_add_u32 s27, s27, {KB}")
            if i == 68:
                out("s_add_u32 s25, s25, 1")
            if i == 70:
                out(f"s_add_u32 s23, s23, {18 * KB}")

    lp, mid = a.label("ffn_dn"), a.label("ffn_dn_mid")
    vm = Vm()
    down_trip(1, vm, emit=False)
    a(f"s_branch {mid}")
    a(f"{lp}:")
    down_trip(0, vm)
    a(f"{mid}:")
    down_trip(1, vm)
    a("s_cmp_lt_u32 s25, 7")
    a(f"s_cbranch_scc1 {lp}")
    down_trip(0, vm, last=1)
    down_trip(1, vm, last=2)
    assert not early
    mark(a, 15)
    a("s_nop 7")
    fin = [t for t, _, _ in down_epi(0, 0)]
    for t in fin[:4] + fin[9:13] + fin[4:7] + fin[13:16] + fin[7:8] + fin[16:17]:
        a(t)
    a("s_waitcnt lgkmcnt(0)")
    publish(a, PH_FFN)
    mark(a, 20)


def k_main(a):
    name = NAME + "_kernel"
    kernel_begin(a, name)
    end, last, loop = "L_main_end", "L_main_last", "L_main_layer"
    Cfg.sv = 254
    entry(a, name, 256, end, ["s_load_dwordx4 s[16:19], s[0:1], 0", "s_load_dwordx2 s[22:23], s[0:1], 16",
                        "s_load_dwordx8 s[24:31], s[0:1], 32"])
    a(f"s_mov_b32 s7, {EPOCH}")
    a("s_load_dword s76, s[4:5], s7")
    a("s_mov_b64 s[20:21], s[18:19]")
    a("s_mov_b64 s[18:19], s[16:17]")
    srd(a, 48, "s4", "s5", WS_SIZE)
    tile_map(a, "s40", "s41", Cfg.jx)
    a("s_mov_b32 s42, 0")
    a("s_mov_b32 s43, 0")
    a("s_lshl_b32 s44, s41, 10")
    a(f"s_add_u32 s44, s44, {FLAGS + FPH}")
    a("v_lshlrev_b32 v253, 4, v0")
    if Cfg.stamps:
        a("v_mov_b32 v254, 0")
        a("v_mov_b32 v255, 0")
    mark(a, 31)
    phase_prep(a, end)
    qkv_prefetch(a, 0, QR - 1)
    a(f"{loop}:")
    phase_qkv(a, end)
    phase_wo(a, end)
    phase_ffn(a, end)
    tail = phase_red(a, end, last)
    a("s_mov_b32 s42, 1")
    a(f"s_mov_b32 s43, {LSTR}")
    a(f"s_add_u32 s44, s44, {4 * FPH}")
    a("s_mov_b32 s74, 0")
    a(f"s_branch {loop}")
    a(f"{last}:")
    tail()
    done = a.label("done")
    a("s_or_b32 s7, s40, s41")
    a("s_or_b32 s7, s7, s3")
    a(f"s_cbranch_scc1 {done}")
    a("v_mov_b32 v1, s76")
    a(f"s_mov_b32 s7, {EPOCH}")
    a("s_mov_b64 exec, 1")
    a("buffer_store_dword v1, off, s[8:11], s7 sc1")
    a("s_mov_b64 exec, -1")
    a(f"{done}:")
    if Cfg.stamps:
        a("s_waitcnt vmcnt(0)")
        mark(a, 19)
        dump_marks(a, 1)
    a(f"{end}:")
    a("s_endpgm")
    a("L_main_code_end:")
    return name, 256, 256


def build(stamps=False):
    Cfg.stamps = stamps
    a = Asm()
    a('.amdgcn_target "amdgcn-amd-amdhsa--gfx950"')
    name, nv, na = k_main(a)
    kernel_desc(a, name, nv, na, 102)
    text = HEADER + f"; @launch grid=(256,1,1) block=(256,1,1) lds={160 * KB}\n" + a.text()
    assert not re.search(r"s_(add|sub)_u32 [^,]+, [^,]+, -\d", text), "negative literal in unsigned address arithmetic"
    bad = hazards.check(text)
    if bad:
        print("\n".join(bad[:40]), file=sys.stderr)
        raise SystemExit(f"{len(bad)} hazards")
    return text


if __name__ == "__main__":
    out = sys.argv[1] if len(sys.argv) > 1 else os.path.join(os.path.dirname(os.path.abspath(__file__)), "..", NAME + ".s")
    stamps = "--stamps" in sys.argv
    for x in sys.argv[2:]:
        if x.startswith("--set="):
            for kv in x[6:].split(","):
                k, v = kv.split(":")
                setattr(Cfg, k, int(v) if v.isdigit() else [int(y) for y in v.split("/")] if "/" in v else v.replace("+", " "))
    open(out, "w").write(build(stamps))
```

```python
import math
import os
import re
import struct
import sys

sys.path.insert(0, os.path.dirname(os.path.abspath(__file__)))
from asmlib import Asm, kernel_begin, kernel_desc, reg, srd
import hazards

NAME = "interleave_layers__sliding_local_dilated__glu_gated_geglu__prompt"
KB = 1024
GB = 9216
WS_SIZE = 256 << 20
WQ = 0
WO = 0x240000
WF = 0x300000
WSTR = 486 * KB
FLAGS = 0x1240000
FPH = 256 * 128
SL_WQ, SL_WF, SL_WO, SL_EARLY = 9, 10, 11, 12
EPOCH = 0x12C0000
PART = 0x1300000
XN = 0x2500000
OO = 0x2740000
X2 = 0x2980000
XC = 0x2BC0000
MEAN = 0x2E00000
STAT = 0x2E10000
MEAN1 = 0x2E30000
LSTR = 0x940000
OOB = 0x40000000
STAMP_OFF = 255 << 20

HEADER = """; Kernarg layout for this problem (80 bytes, ptrs only, base s[0:1]):
;
;   wo   : x1 = x + o @ wo for 32 tokens x 144 columns, stored as x1 - mean(x1) plus mean and sums of squares
; Hand-offs between workgroups: write-through (sc1) stores, drained by every wave, then one flag word per consumer;
"""


def f32(x):
    return "0x%08x" % struct.unpack("<I", struct.pack("<f", x))[0]


def sdiv(a, dst, src, d, hi):
    m = -(-(1 << 20) // d)
    assert all((x * m) >> 20 == x // d for x in range(hi + 1)) and hi * m < (1 << 32)
    a(f"s_mul_i32 {dst}, {src}, {m}")
    a(f"s_lshr_b32 {dst}, {dst}, 20")


def sdivmod(a, q, r, src, d, hi):
    sdiv(a, q, src, d, hi)
    a(f"s_mul_i32 {r}, {q}, {d}")
    a(f"s_sub_u32 {r}, {src}, {r}")


def csel(a, dst, x, y):
    a(f"s_mov_b32 {dst}, {y}")
    a(f"s_cmov_b32 {dst}, {x}")


class Vm:
    def __init__(self):
        self.ops = []

    def issue(self, tag):
        self.ops.append(tag)

    def count(self, *tags):
        last = max(i for i, t in enumerate(self.ops) if t in tags)
        return len(self.ops) - 1 - last


MARK_NAMES = {21: "pre.x0", 22: "pre.q", 23: "pre.o", 24: "pre.set", 25: "pre.raw"}
MARK_ORDER = [31, 21, 23, 24, 25, 28, 29, 30, 27, 0, 1, 2, 3, 4, 5, 6, 7, 8, 9, 10, 11, 12, 13, 14, 15, 20, 16, 17, 18, 19]


class Cfg:
    stamps = False
    tripmarks = 0
    jx = 2
    pw = 0
    pollw = 3
    code_warm = 3
    w_per_ks = 3
    wo_per_ks = 4
    wo_gap = 8
    red_pre = 7
    red_gap = 16
    red_feed = 1
    red_post = 12
    epi_gap = 6
    epi_gap2 = 40
    early2_at = 2


def tile_map(a, sj, smt, jx):
    lg = jx.bit_length() - 1
    a(f"s_and_b32 {sj}, s2, {8 // jx - 1}")
    a(f"s_lshl_b32 {sj}, {sj}, {lg}")
    a(f"s_bfe_u32 s7, s2, {3 | (lg << 16)}")
    a(f"s_add_u32 {sj}, {sj}, s7")
    a(f"s_bfe_u32 {smt}, s2, {(3 - lg) | (lg << 16)}")
    a(f"s_lshl_b32 {smt}, {smt}, {5 - lg}")
    a(f"s_lshr_b32 s7, s2, {3 + lg}")
    a(f"s_add_u32 {smt}, {smt}, s7")


def entry(a, name, nwg, end, extra_loads=()):
    a(f"s_cmp_ge_u32 s2, {nwg}")
    a(f"s_cbranch_scc1 {end}")
    a("s_load_dwordx2 s[4:5], s[0:1], 72")
    for l in extra_loads:
        a(l)
    a("s_getpc_b64 s[96:97]")
    a("L_main_pc:")
    a(f"s_sub_u32 s96, s96, L_main_pc-{name}")
    a("s_subb_u32 s97, s97, 0")
    a("s_and_b32 s97, s97, 0xffff")
    a(f"s_mov_b32 s98, L_main_code_end-{name}")
    a("s_mov_b32 s99, 0x20000")
    a("s_lshr_b32 s7, s2, 3")
    a("s_lshl_b32 s7, s7, 11")
    a("v_lshl_add_u32 v253, v0, 3, s7")
    if Cfg.code_warm:
        a("buffer_load_dwordx2 v[2:3], v253, s[96:99], 0 offen")
    a("v_lshrrev_b32 v1, 6, v0")
    a("v_and_b32 v0, 63, v0")
    a("v_readfirstlane_b32 s3, v1")
    a("s_waitcnt lgkmcnt(0)")
    srd(a, 8, "s4", "s5", WS_SIZE)


def mark(a, idx):
    if Cfg.stamps:
        a("s_memrealtime s[100:101]")
        a("s_memtime vcc")
        a("s_lshl_b32 m0, s42, 5")
        a(f"s_add_u32 m0, m0, {idx}")
        a("s_waitcnt lgkmcnt(0)")
        a(f"v_writelane_b32 v{Cfg.sv}, s100, m0")
        a(f"v_writelane_b32 v{Cfg.sv + 1}, vcc_lo, m0")


def mark_dyn(a, base, sreg):
    if Cfg.stamps and Cfg.tripmarks:
        a("s_memrealtime s[100:101]")
        a("s_memtime vcc")
        a("s_lshl_b32 m0, s42, 5")
        a(f"s_add_u32 m0, m0, {sreg}")
        a(f"s_add_u32 m0, m0, {base}")
        a("s_waitcnt lgkmcnt(0)")
        a(f"v_writelane_b32 v{Cfg.sv}, s100, m0")
        a(f"v_writelane_b32 v{Cfg.sv + 1}, vcc_lo, m0")


def dump_marks(a, slot):
    if Cfg.stamps:
        a("s_lshl_b32 s7, s2, 2")
        a("s_add_u32 s7, s7, s3")
        a("s_lshl_b32 s7, s7, 9")
        a(f"s_add_u32 s7, s7, {STAMP_OFF + slot * 0x80000}")
        a("v_lshlrev_b32 v1, 2, v0")
        a(f"buffer_store_dword v{Cfg.sv}, v1, s[8:11], s7 offen")
        a(f"buffer_store_dword v{Cfg.sv + 1}, v1, s[8:11], s7 offen offset:256")


def code_warm(a, dst):
    if Cfg.code_warm:
        a("s_lshr_b32 s7, s2, 3")
        a("s_lshl_b32 s7, s7, 2")
        a("s_add_u32 s7, s7, s3")
        a("s_lshl_b32 s7, s7, 9")
        a("v_lshrrev_b32 v1, 1, v253")
        a("v_add_u32 v1, s7, v1")
        a(f"buffer_load_dwordx2 {dst}, v1, s[96:99], 0 offen")


PH_QKV, PH_WO, PH_FFN, PH_RED = range(4)


def publish(a, phase, extra=None):
    skip = a.label("pub")
    a("v_lshlrev_b32 v15, 7, v0")
    a("s_lshl_b32 s6, s40, 2")
    a("s_add_u32 s6, s6, s44")
    if phase > 0:
        a(f"s_add_u32 s6, s6, {phase * FPH}")
    elif phase < 0:
        a(f"s_sub_u32 s6, s6, {-phase * FPH}")
    a("v_mov_b32 v1, s76")
    a("s_mov_b64 vcc, 0xff")
    if phase % 4 == PH_RED:
        a("v_lshrrev_b32 v14, 3, v0")
        a("v_lshl_add_u32 v15, v14, 3, v15")
        a("s_cmp_ge_u32 s40, 6")
        a("s_cselect_b32 s7, s41, 31")
        a("s_cmp_lt_u32 s7, 31")
        a("s_cmov_b64 vcc, 0xffff")
    a("s_waitcnt vmcnt(0)")
    a("s_barrier")
    a(f"s_cmp_lg_u32 s3, {Cfg.pw}")
    a(f"s_cbranch_scc1 {skip}")
    a("s_mov_b64 exec, vcc")
    a("buffer_store_dword v1, v15, s[8:11], s6 offen sc1")
    if extra:
        extra(skip)
    a(f"{skip}:")
    a("s_mov_b64 exec, -1")


def column_flag(a, slot, word="s41"):
    a("s_lshl_b32 s6, s40, 7")
    a(f"s_lshl_b32 s7, {word}, 2")
    a("s_add_u32 s6, s6, s7")
    a(f"s_add_u32 s6, s6, {FLAGS + slot * FPH}")
    a("s_mov_b64 exec, 0xffffffff")
    a("v_lshlrev_b32 v15, 10, v0")
    a("v_mov_b32 v1, s76")
    a("buffer_store_dword v1, v15, s[8:11], s6 offen sc1")


def column_wait(a, slot, abort, n=32):
    lp, again, ok = a.label("cpoll"), a.label("cpoll"), a.label("cpolled")
    a("s_lshl_b32 s7, s41, 3")
    a("s_add_u32 s7, s7, s40")
    a("s_lshl_b32 s7, s7, 7")
    a(f"s_add_u32 s7, s7, {FLAGS + slot * FPH}")
    a("s_add_u32 s68, s4, s7")
    a("s_addc_u32 s69, s5, 0")
    a("s_mov_b32 s6, 0")
    a("s_mov_b32 s7, 0")
    a(f"{lp}:")
    a("s_load_dwordx16 s[52:67], s[68:69], s7 glc")
    a("s_add_u32 s6, s6, 1")
    a("s_waitcnt lgkmcnt(0)")
    for r in range(52, 68, 2):
        a(f"s_xor_b64 s[{r}:{r + 1}], s[{r}:{r + 1}], s[76:77]")
    for d in (8, 4, 2):
        for r in range(52, 52 + d, 2):
            a(f"s_or_b64 s[{r}:{r + 1}], s[{r}:{r + 1}], s[{r + d}:{r + d + 1}]")
    assert 16 < n <= 32
    a(f"s_cbranch_scc1 {again}")
    a(f"s_add_u32 s7, s7, {4 * (n - 16)}")
    a(f"s_cmp_eq_u32 s7, {8 * (n - 16)}")
    a(f"s_cbranch_scc1 {ok}")
    a(f"{again}:")
    a(f"s_cmp_lt_u32 s6, {1 << 20}")
    a(f"s_cbranch_scc1 {lp}")
    a(f"s_branch {abort}")
    a(f"{ok}:")


def wait_flags(a, off, abort, halo=False, extra=None):
    lp, ok, out = a.label("poll"), a.label("polled"), a.label("pollout")
    a(f"s_cmp_lg_u32 s3, {Cfg.pollw}")
    a(f"s_cbranch_scc1 {out}")
    a("s_lshl_b32 s7, s40, 7")
    a("s_add_u32 s7, s7, s44")
    if off > 0:
        a(f"s_add_u32 s7, s7, {off}")
    elif off < 0:
        a(f"s_sub_u32 s7, s7, {-off}")
    a("s_add_u32 s52, s4, s7")
    a("s_addc_u32 s53, s5, 0")
    if halo:
        a("s_cmp_eq_u32 s41, 0")
        a("s_cselect_b32 s7, 0, 32")
    a("s_mov_b32 s6, 0")
    a(f"{lp}:")
    a("s_load_dwordx8 s[56:63], s[52:53], 0 glc")
    if halo:
        a("s_load_dwordx2 s[54:55], s[52:53], s7 glc")
    a("s_add_u32 s6, s6, 1")
    a("s_waitcnt lgkmcnt(0)")
    for r in ([54] if halo else []) + [56, 58, 60, 62]:
        a(f"s_xor_b64 s[{r}:{r + 1}], s[{r}:{r + 1}], s[76:77]")
    a("s_or_b64 s[56:57], s[56:57], s[58:59]")
    a("s_or_b64 s[60:61], s[60:61], s[62:63]")
    if halo:
        a("s_or_b64 s[56:57], s[56:57], s[54:55]")
    a("s_or_b64 s[56:57], s[56:57], s[60:61]")
    a(f"s_cbranch_scc0 {ok}")
    a(f"s_cmp_lt_u32 s6, {1 << 20}")
    a(f"s_cbranch_scc1 {lp}")
    a(f"s_branch {abort}")
    a(f"{ok}:")
    if extra:
        extra(out)
    a(f"{out}:")
    a("s_barrier")


def check_early(a, off, abort):
    lp, ok = a.label("epoll"), a.label("epolled")
    a("s_mov_b32 s6, 0")
    a(f"{lp}:")
    a("s_waitcnt lgkmcnt(0)")
    for r in (56, 58, 60, 62):
        a(f"s_xor_b64 s[{r}:{r + 1}], s[{r}:{r + 1}], s[76:77]")
    a("s_or_b64 s[56:57], s[56:57], s[58:59]")
    a("s_or_b64 s[60:61], s[60:61], s[62:63]")
    a("s_or_b64 s[56:57], s[56:57], s[60:61]")
    a(f"s_cbranch_scc0 {ok}")
    a(f"s_load_dwordx8 s[56:63], s[38:39], {off} glc")
    a("s_add_u32 s6, s6, 1")
    a(f"s_cmp_lt_u32 s6, {1 << 20}")
    a(f"s_cbranch_scc1 {lp}")
    a(f"s_branch {abort}")
    a(f"{ok}:")


def bfrag_voff(a, dst, tmp):
    a(f"v_bfe_u32 {tmp}, v0, 3, 1")
    a(f"v_mul_u32_u24 {dst}, {GB}, {tmp}")
    a(f"v_lshrrev_b32 {tmp}, 4, v0")
    a(f"v_lshl_add_u32 {dst}, {tmp}, 7, {dst}")
    a(f"v_and_b32 {tmp}, 7, v0")
    a(f"v_lshl_add_u32 {dst}, {tmp}, 4, {dst}")


def dtile_voff(a, dst, tmp, tmp2, gstride):
    a(f"v_bfe_u32 {tmp}, v0, 3, 2")
    a(f"s_mov_b32 s7, {gstride}")
    a(f"v_mul_lo_u32 {dst}, {tmp}, s7")
    a(f"v_lshrrev_b32 {tmp}, 5, v0")
    a(f"v_lshl_add_u32 {dst}, {tmp}, 7, {dst}")
    a(f"v_and_b32 {tmp}, 7, v0")
    a(f"v_lshl_add_u32 {dst}, {tmp}, 4, {dst}")


def rowsum_16_32(a, vals, tmp):
    for swap in ("v_permlane32_swap_b32", "v_permlane16_swap_b32"):
        for i, v in enumerate(vals):
            a(f"v_mov_b32 {tmp[i]}, {v}")
        a("s_nop 1")
        for i, v in enumerate(vals):
            a(f"{swap} {tmp[i]}, {v}")
        for i, v in enumerate(vals):
            a(f"v_add_f32 {v}, {v}, {tmp[i]}")


def ln_coeffs(a, vs, vss, rstd, nb):
    a(f"v_mul_f32 {vs}, {f32(1.0 / 576)}, {vs}")
    a(f"v_mul_f32 {vss}, {f32(1.0 / 576)}, {vss}")
    a(f"v_fma_f32 {vss}, -{vs}, {vs}, {vss}")
    a(f"v_max_f32 {vss}, 0, {vss}")
    a(f"v_add_f32 {vss}, {f32(1e-5)}, {vss}")
    a(f"v_rsq_f32 v{rstd}, {vss}")
    a("s_nop 0")
    a(f"v_mul_f32 v{nb}, {vs}, v{rstd}")
    a(f"v_mov_b32 v{rstd + 1}, v{rstd}")
    a(f"v_sub_f32 v{nb}, 0, v{nb}")
    a(f"v_mov_b32 v{nb + 1}, v{nb}")


def normalize(a, src, dst, n, rstd, nb, tmp):
    for i0 in range(0, n, 4):
        k = min(4, n - i0)
        for i in range(k):
            a(f"v_lshlrev_b32 v{tmp + 2 * i}, 16, v{src + i0 + i}")
            a(f"v_and_b32 v{tmp + 2 * i + 1}, s16, v{src + i0 + i}")
        for i in range(k):
            t = tmp + 2 * i
            a(f"v_pk_fma_f32 v[{t}:{t + 1}], v[{t}:{t + 1}], v[{rstd}:{rstd + 1}], v[{nb}:{nb + 1}]")
        for i in range(k):
            t = tmp + 2 * i
            a(f"v_cvt_pk_bf16_f32 v{dst + i0 + i}, v{t}, v{t + 1}")


VR, VM = 172, 175


def red_offsets(a):
    a("s_mov_b32 s16, 0xffff0000")
    a("s_lshl_b32 s7, s3, 10")
    a(f"v_add_u32 v{VR}, s7, v253")
    a(f"v_add_u32 v{VR + 2}, 5120, v{VR}")
    a("v_and_b32 v178, 7, v0")
    a("v_mul_u32_u24 v178, 1152, v178")
    a("v_lshrrev_b32 v179, 3, v0")
    a("v_lshl_add_u32 v178, v179, 4, v178")
    a("s_lshl_b32 s7, s3, 7")
    a(f"v_add_u32 v{VM}, s7, v178")
    a(f"v_add_u32 v{VM + 2}, 640, v{VM}")
    a("s_cmp_eq_u32 s3, 0")
    csel(a, "s17", 4096, OOB)
    a(f"v_add_u32 v{VR + 1}, s17, v{VR}")
    csel(a, "s17", 512, OOB)
    a(f"v_add_u32 v{VM + 1}, s17, v{VM}")


def red_ln_store(a, XB, sX2, sXN, sMEAN, flag):
    for b in range(3):
        a(f"buffer_store_dwordx4 v[{XB + 4 * b}:{XB + 4 * b + 3}], v{VR + b}, s[8:11], {sX2} offen {flag}")
    a("s_mov_b32 s17, 0x3f803f80")
    for i in range(4):
        a(f"v_mov_b32 v{8 + i}, 0")
    for i in range(12):
        a(f"v_dot2c_f32_bf16 v{8 + 2 * (i & 1)}, s17, v{XB + i}")
        a(f"v_dot2c_f32_bf16 v{9 + 2 * (i & 1)}, v{XB + i}, v{XB + i}")
    a("v_and_b32 v12, 7, v0")
    a("v_lshlrev_b32 v12, 3, v12")
    a("s_lshl_b32 s7, s3, 6")
    a("v_add_u32 v13, s7, v12")
    a("v_pk_add_f32 v[8:9], v[8:9], v[10:11]")
    a("s_nop 1")
    a("v_add_f32_dpp v8, v8, v8 row_ror:8 row_mask:0xf bank_mask:0xf")
    a("v_add_f32_dpp v9, v9, v9 row_ror:8 row_mask:0xf bank_mask:0xf")
    rowsum_16_32(a, ["v8", "v9"], ["v10", "v11"])
    a("ds_write_b64 v13, v[8:9]")
    a("s_waitcnt lgkmcnt(0)")
    a("s_barrier")
    T = 40
    for w in range(4):
        a(f"ds_read_b64 v[{T + 2 * w}:{T + 2 * w + 1}], v12 offset:{64 * w}")
    a("s_waitcnt lgkmcnt(0)")
    a(f"v_pk_add_f32 v[{T}:{T + 1}], v[{T}:{T + 1}], v[{T + 2}:{T + 3}]")
    a(f"v_pk_add_f32 v[{T + 4}:{T + 5}], v[{T + 4}:{T + 5}], v[{T + 6}:{T + 7}]")
    a(f"v_pk_add_f32 v[8:9], v[{T}:{T + 1}], v[{T + 4}:{T + 5}]")
    ln_coeffs(a, "v8", "v9", 10, 12)
    a("s_cmp_eq_u32 s3, 0")
    a("s_cselect_b32 s7, 32, 0")
    a("v_lshlrev_b32 v14, 2, v0")
    a("v_cmp_gt_u32 vcc, s7, v0")
    a(f"v_mov_b32 v9, {OOB}")
    a("s_nop 0")
    a("v_cndmask_b32 v14, v9, v14, vcc")
    a(f"buffer_store_dword v8, v14, s[8:11], {sMEAN} offen {flag}")
    normalize(a, XB, 48, 12, 10, 12, T)
    for b in range(3):
        a(f"buffer_store_dwordx4 v[{48 + 4 * b}:{51 + 4 * b}], v{VR + b}, s[8:11], {sXN} offen {flag}")


def red_setup(a):
    red_offsets(a)
    a("s_lshl_b32 s21, s41, 3")
    a("s_add_u32 s21, s21, s40")
    a(f"s_mul_i32 s18, s21, {GB}")
    a(f"s_mul_i32 s20, s21, {8 * GB}")
    a(f"s_add_u32 s20, s20, {PART}")
    loads = []
    for k in range(7):
        for b in range(2):
            r = slot_reg(18 + 2 * k + b)
            t = f"buffer_load_dwordx4 v[{r}:{r + 3}], v{VR + b}, s[8:11], s19 offen sc1"
            loads.append(red_source("s19", k) + t if b == 0 else t)
    return loads


OWN = 4 * KB


def red_source(dst, k):
    return (f"s_add_u32 s7, s40, {k + 1}\ns_and_b32 s7, s7, 7\ns_mul_i32 s7, s7, {GB}\ns_add_u32 {dst}, s7, s20\n")


def phase_red(a, abort, last):
    ACC, TMP, LD, XR, XB = 16, 40, 60, 92, 120
    a("s_add_u32 s19, s18, s43")
    a(f"s_add_u32 s22, s19, {XC}")
    a("s_lshl_b32 s23, s21, 5")
    a("s_add_u32 s23, s23, s43")
    a(f"s_add_u32 s23, s23, {MEAN1}")
    other = a.label("late")
    assert Cfg.pollw >= 2
    a("s_cmp_ge_u32 s3, 2")
    a(f"s_cbranch_scc1 {other}")
    a("s_load_dwordx8 s[56:63], s[38:39], 32 glc")
    a(f"{other}:")
    a("v_and_b32 v12, 7, v0")
    a("v_lshlrev_b32 v12, 2, v12")
    a("buffer_load_dword v10, v12, s[8:11], s23 offen sc1")
    for b in range(3):
        a(f"buffer_load_dwordx4 v[{XR + 4 * b}:{XR + 4 * b + 3}], v{VR + b}, s[8:11], s22 offen sc1")

    def unpack(dst, r):
        for i in range(4):
            a(f"v_lshlrev_b32 v{dst + 2 * i}, 16, v{r + i}")
            a(f"v_and_b32 v{dst + 2 * i + 1}, s16, v{r + i}")

    def add(b, r):
        unpack(TMP, r)
        for i in range(4):
            c = ACC + 8 * b + 2 * i
            a(f"v_pk_add_f32 v[{c}:{c + 1}], v[{c}:{c + 1}], v[{TMP + 2 * i}:{TMP + 2 * i + 1}]")

    pf = Asm()
    qkv_prefetch(pf, 0, QR - 1, "s42")
    queue, chunk = [], ""
    for ln in pf.lines:
        chunk += ln + "\n"
        if "buffer_load" in ln:
            queue.append(chunk)
            chunk = ""
    vm = Vm()

    def feed(n):
        for _ in range(n):
            if queue:
                a(queue.pop(0))
                vm.issue("w")

    OW = [148, 152, 156]
    a(f"v_min_u32 v13, {9 * KB}, v{VR + 1}")
    a(f"ds_read_b128 v[{OW[0]}:{OW[0] + 3}], v{VR} offset:{OWN}")
    a(f"ds_read_b128 v[{OW[1]}:{OW[1] + 3}], v13 offset:{OWN}")
    a(f"ds_read_b128 v[{OW[2]}:{OW[2] + 3}], v{VR + 2} offset:{OWN}")
    setup, first = queue[0].rsplit("buffer_load", 1)
    a(setup)
    queue[0] = "buffer_load" + first

    def gap_feed(n):
        skip = a.label("nopf")
        a("s_cmp_lg_u32 s42, 0")
        a(f"s_cbranch_scc1 {skip}")
        feed(n)
        a(f"{skip}:")

    def late_loads():
        for j in range(7):
            a(red_source("s19", j) + f"buffer_load_dwordx4 v[{LD + 4 * j}:{LD + 4 * j + 3}], v{VR + 2}, s[8:11], s19 offen sc1")

    for b in range(2):
        unpack(ACC + 8 * b, slot_reg(18 + b))
    later, done = a.label("late"), a.label("late")
    a("s_cmp_ge_u32 s3, 2")
    a(f"s_cbranch_scc1 {later}")
    check_early(a, 32, abort)
    late_loads()
    a(f"{later}:")
    gap_feed(Cfg.red_gap // 2)
    for j in range(1, Cfg.red_pre):
        for b in range(2):
            add(b, slot_reg(18 + 2 * j + b))
        if j == 1:
            gap_feed(Cfg.red_gap - Cfg.red_gap // 2)
    wait_flags(a, PH_FFN * FPH, abort)
    mark(a, 16)
    a("s_cmp_lt_u32 s3, 2")
    a(f"s_cbranch_scc1 {done}")
    late_loads()
    a(f"{done}:")
    for j in range(7):
        vm.issue(j)
    for j in range(Cfg.red_pre, 7):
        for b in range(2):
            add(b, slot_reg(18 + 2 * j + b))
    a("s_cmp_eq_u32 s3, 0")
    a("s_cselect_b32 s7, 1.0, 0")
    a("s_cselect_b32 s6, -1, 0")
    a("s_waitcnt vmcnt(7) lgkmcnt(0)")
    for i in range(4):
        a(f"v_and_b32 v{OW[1] + i}, s6, v{OW[1] + i}")
    a("v_mul_f32 v11, s7, v10")
    for b in range(2):
        add(b, XR + 4 * b)
    unpack(ACC + 16, XR + 8)
    for b in range(3):
        add(b, OW[b])
    for b in range(3):
        for i in range(4):
            c = ACC + 8 * b + 2 * i
            sel = "op_sel:[0,1] op_sel_hi:[1,1]" if b == 1 else "op_sel_hi:[1,0]"
            a(f"v_pk_add_f32 v[{c}:{c + 1}], v[{c}:{c + 1}], v[10:11] {sel}")
    for j in range(7):
        a(f"s_waitcnt vmcnt({vm.count(j)})")
        feed(Cfg.red_feed)
        add(2, LD + 4 * j)
    feed(len(queue) - Cfg.red_post)
    for b in range(3):
        for i in range(4):
            c = ACC + 8 * b + 2 * i
            a(f"v_cvt_pk_bf16_f32 v{XB + 4 * b + i}, v{c}, v{c + 1}")
    mark(a, 17)
    a("s_cmp_lg_u32 s42, 0")
    a(f"s_cbranch_scc1 {last}")
    a(f"s_add_u32 s19, s18, {X2 + LSTR}")
    a(f"s_add_u32 s20, s18, {XN + LSTR}")
    a("s_lshl_b32 s22, s21, 7")
    a(f"s_add_u32 s22, s22, {MEAN + LSTR}")
    red_ln_store(a, XB, "s19", "s20", "s22", "sc1")
    mark(a, 18)
    publish(a, PH_RED)
    mark(a, 19)
    feed(99)
    a(chunk)

    def tail():
        for b in range(3):
            a(f"buffer_store_dwordx4 v[{XB + 4 * b}:{XB + 4 * b + 3}], v{VM + b}, s[12:15], s18 offen sc0 sc1")
    return tail


ZB = 96 * KB


def o_row(a, dst, vc, vj, t0, t1):
    a(f"v_mul_u32_u24 {t0}, 7282, {vc}")
    a(f"v_lshrrev_b32 {t0}, 16, {t0}")
    a(f"v_mul_u32_u24 {t1}, 9, {t0}")
    a(f"v_sub_u32 {t1}, {vc}, {t1}")
    a(f"v_mul_u32_u24 {t0}, 72, {t0}")
    a(f"v_cmp_eq_u32 vcc, 8, {t1}")
    a(f"v_lshrrev_b32 {dst}, 1, {t1}")
    a(f"v_mad_u32_u24 {dst}, {dst}, 18, {t0}")
    a(f"v_and_b32 {t1}, 1, {t1}")
    a(f"v_lshl_add_u32 {dst}, {t1}, 3, {dst}")
    a(f"v_add_u32 {dst}, {dst}, {vj}")
    a(f"v_lshrrev_b32 {t1}, 1, {vj}")
    a(f"v_mad_u32_u24 {t0}, {t1}, 18, {t0}")
    a(f"v_and_b32 {t1}, 1, {vj}")
    a(f"v_add3_u32 {t0}, {t0}, {t1}, 16")
    a(f"v_cndmask_b32 {dst}, {dst}, {t0}, vcc")


def tr_rows(a, dst, tmp, shift, pitch):
    a(f"v_lshrrev_b32 {dst}, 4, v0")
    a(f"v_lshlrev_b32 {dst}, {shift}, {dst}")
    a(f"v_bfe_u32 {tmp}, v0, 2, 2")
    a(f"v_add_u32 {dst}, {dst}, {tmp}")
    a(f"v_mul_u32_u24 {dst}, {pitch}, {dst}")
    a(f"v_and_b32 {tmp}, 3, v0")
    a(f"v_lshl_add_u32 {dst}, {tmp}, 3, {dst}")


def qfrag(a, t, pending):
    a(f"s_waitcnt lgkmcnt({pending})")
    for i in range(4):
        a(f"v_lshl_or_b32 v{32 + 4 * t + i}, v{137 + 8 * t + 2 * i}, 16, v{136 + 8 * t + 2 * i}")
        if t == 3:
            a(f"v_cndmask_b32 v{32 + 4 * t + i}, 0, v{32 + 4 * t + i}, s[22:23]")
    a(f"buffer_store_dwordx4 v[{32 + 4 * t}:{35 + 4 * t}], v253, s[8:11], s33 offen offset:{t * KB} sc1")


def phase_prep(a, abort):
    srd(a, 12, "s18", "s19", 2048 * 1152)
    srd(a, 64, "s20", "s21", 576 * 3456)
    srd(a, 68, "s22", "s23", 576 * 1152)
    red_offsets(a)
    a("s_lshl_b32 s21, s41, 3")
    a("s_add_u32 s21, s21, s40")
    a(f"s_mul_i32 s18, s21, {GB}")
    for b in range(3):
        a(f"buffer_load_dwordx4 v[{16 + 4 * b}:{19 + 4 * b}], v{VM + b}, s[12:15], s18 offen nt")
    mark(a, 21)
    srd(a, 12, "s30", "s31", 2048 * 1152)
    a("s_lshl_b32 s79, s3, 14")
    a(f"s_add_u32 s79, s79, {ZB}")
    PS = 8 * KB
    lo, lw, l3 = a.label("prep_o"), a.label("prep_m"), a.label("prep_go")
    nq2, l4, l5 = a.label("prep_o"), a.label("prep_m"), a.label("prep_done")
    a("s_and_b32 s32, s41, 15")
    a("s_lshl_b32 s32, s32, 1")
    a("s_lshr_b32 s7, s41, 4")
    a("s_add_u32 s32, s32, s7")
    a("s_lshl_b32 s36, s32, 3")
    a("s_add_u32 s36, s36, s40")
    a("s_sub_u32 s36, s36, 144")
    a("s_cmp_ge_u32 s32, 18")
    a(f"s_cbranch_scc1 {lo}")
    a(f"s_mul_i32 s35, s32, {32 * 3456}")
    a("s_mul_i32 s7, s40, 144")
    a("s_and_b32 s46, s7, 127")
    a("s_sub_u32 s7, s7, s46")
    a("s_add_u32 s35, s35, s7")
    a(f"s_mul_i32 s7, s3, {4 * 3456}")
    a("s_add_u32 s35, s35, s7")
    a("v_lshrrev_b32 v8, 4, v0")
    a("v_mul_u32_u24 v8, 3456, v8")
    a("v_and_b32 v9, 15, v0")
    a("v_lshl_add_u32 v8, v9, 4, v8")
    a("s_lshl_b32 s34, s3, 10")
    for m in range(6):
        a(f"s_add_u32 m0, s34, {PS + m * 4 * KB}")
        a(f"s_add_u32 s7, s35, {(m & 1) * 16 * 3456 + (m >> 1) * 1152}")
        a("buffer_load_dwordx4 v8, s[64:67], s7 offen nt lds")
    a(f"s_branch {l3}")
    a(f"{lo}:")
    a("s_cmp_ge_u32 s36, 54")
    a(f"s_cbranch_scc1 {lw}")
    sdivmod(a, "s33", "s34", "s36", 3, 53)
    a("s_lshl_b32 s7, s33, 2")
    a("s_add_u32 s7, s7, s3")
    a("v_mov_b32 v8, s7")
    a("v_lshrrev_b32 v9, 3, v0")
    o_row(a, "v10", "v8", "v9", "v11", "v12")
    a("v_mul_u32_u24 v10, 1152, v10")
    a("v_and_b32 v9, 7, v0")
    a("v_lshl_add_u32 v10, v9, 4, v10")
    a("s_mul_i32 s35, s34, 384")
    a("s_lshl_b32 s6, s3, 10")
    for m in range(3):
        a(f"s_add_u32 m0, s6, {PS + m * 4 * KB}")
        a(f"s_add_u32 s7, s35, {m * 128}")
        a("buffer_load_dwordx4 v10, s[68:71], s7 offen nt lds")
    a(f"s_branch {l3}")
    a(f"{lw}:")
    a("s_sub_u32 s37, s36, 54")
    a("s_lshl_b32 s7, s3, 6")
    a("s_add_u32 s37, s37, s7")
    a("s_cmp_ge_u32 s37, 36")
    a(f"s_cbranch_scc1 {l3}")
    a("s_lshl_b32 s7, s37, 1")
    a("v_bfe_u32 v8, v0, 3, 1")
    a("v_add_u32 v8, s7, v8")
    a("v_and_b32 v9, 7, v0")
    o_row(a, "v10", "v8", "v9", "v11", "v12")
    a("v_mul_u32_u24 v10, 1152, v10")
    a("v_lshrrev_b32 v9, 4, v0")
    a("v_lshl_add_u32 v10, v9, 4, v10")
    for ks in range(18):
        a(f"buffer_load_dwordx4 v[{64 + 4 * ks}:{67 + 4 * ks}], v10, s[68:71], 0 offen offset:{64 * ks}")
    a(f"{l3}:")
    mark(a, 23)
    a("s_lshl_b32 s7, s32, 2")
    a("s_add_u32 s7, s7, s3")
    light, dec = a.label("blocks"), a.label("blocks")
    a("s_cmp_ge_u32 s7, 72")
    a(f"s_cbranch_scc1 {light}")
    a("s_cmp_ge_u32 s7, 54")
    a("s_cselect_b32 s93, 1, 0")
    a("s_cselect_b32 s6, 54, 0")
    a("s_sub_u32 s7, s7, s6")
    a("s_mul_i32 s17, s7, 3")
    a("s_mov_b32 s45, 1")
    a(f"s_branch {dec}")
    a(f"{light}:")
    a("s_sub_u32 s7, s7, 72")
    a("s_cmp_ge_u32 s7, 22")
    a("s_cselect_b32 s93, 2, 1")
    a("s_cselect_b32 s6, 22, 0")
    a("s_cselect_b32 s17, 0, 54")
    a("s_sub_u32 s7, s7, s6")
    a("s_mul_i32 s7, s7, 5")
    a("s_add_u32 s17, s17, s7")
    a("s_mov_b32 s45, 3")
    a(f"{dec}:")
    a("s_cmp_eq_u32 s93, 1")
    a("s_cselect_b32 s72, s26, s24")
    a("s_cselect_b32 s73, s27, s25")
    a("s_cmp_eq_u32 s93, 2")
    a("s_cselect_b32 s72, s28, s72")
    a("s_cselect_b32 s73, s29, s73")
    csel(a, "s92", 8 * 1152, 8 * 9216)
    csel(a, "s47", 18 * 32 * 1152, 1152)
    a("s_and_b32 s73, s73, 0xffff")
    a(f"s_mov_b32 s74, {576 * 9216}")
    a("s_mov_b32 s75, 0x20000")
    a("s_mul_i32 s47, s47, s40")
    for b in range(5):
        a(f"s_add_u32 s7, s17, {b if b < 3 else b - 3}")
        if b >= 3:
            a("s_add_u32 s7, s7, s45")
        a("s_min_u32 s7, s7, 161")
        sdivmod(a, f"s{ZK[b]}", f"s{ZK[b] + 1}", "s7", 9, 161)
        a(f"s_mul_i32 s7, s{ZK[b]}, s92")
        a("s_lshl_b32 s7, s7, 2")
        a("s_add_u32 s7, s7, s47")
        a(f"s_lshl_b32 s6, s{ZK[b] + 1}, 7")
        a(f"s_add_u32 s{ZS[b]}, s7, s6")
    a("s_lshr_b32 s7, s92, 3")
    a("v_lshrrev_b32 v224, 3, v0")
    a("v_mul_lo_u32 v224, v224, s7")
    a("v_and_b32 v8, 7, v0")
    a("v_lshl_add_u32 v224, v8, 4, v224")
    a("s_waitcnt lgkmcnt(0)")
    a("s_mul_i32 s76, s76, 0x9e3779b1")
    a("s_add_u32 s76, s76, 0x7f4a7c15")
    a("s_mov_b32 s77, s76")
    mark(a, 24)
    few, many = a.label("raw"), a.label("raw")
    for i in range(4):
        a(ffn_raw_dma(0, i))
    a("s_cmp_lt_u32 s32, 18")
    a(f"s_cbranch_scc1 {few}")
    for i in range(8):
        a(ffn_raw_dma(1 + i // 4, i % 4))
    ffn_transpose_dest(a)
    a("s_waitcnt vmcnt(12)")
    a(f"s_branch {many}")
    a(f"{few}:")
    ffn_transpose_dest(a)
    a("s_waitcnt vmcnt(4)")
    a(f"{many}:")
    mark(a, 25)
    a("s_barrier")
    mark(a, 28)
    a("s_cmp_ge_u32 s32, 18")
    a(f"s_cbranch_scc1 {nq2}")
    a("s_mul_i32 s7, s3, 36")
    a("s_add_u32 s7, s7, s46")
    a("v_lshrrev_b32 v8, 4, v0")
    a("v_lshlrev_b32 v8, 11, v8")
    a("v_add_u32 v8, s7, v8")
    a("v_and_b32 v9, 15, v0")
    a("v_cmp_gt_u32 s[22:23], 6, v9")
    a("v_lshrrev_b32 v10, 1, v9")
    a("v_min_u32 v10, 2, v10")
    a("v_lshl_add_u32 v10, v10, 13, v8")
    a("v_and_b32 v11, 1, v0")
    a("v_lshl_add_u32 v10, v11, 1, v10")
    a("v_lshl_add_u32 v8, v9, 1, v8")
    for t in range(4):
        for j in range(8):
            a(f"ds_read_u16 v{136 + 8 * t + j}, v8 offset:{PS + t * 8192 + j * 256}" if t < 3 else
              f"ds_read_u16 v{136 + 8 * t + j}, v10 offset:{PS + 32 + j * 256}")
        if t == 0:
            a("s_lshl_b32 s33, s40, 2")
            a("s_add_u32 s33, s33, s3")
            a("s_mul_i32 s33, s33, 18")
            a("s_add_u32 s33, s33, s32")
            a("s_lshl_b32 s33, s33, 12")
            if WQ:
                a(f"s_add_u32 s33, s33, {WQ}")
        if t:
            qfrag(a, t - 1, 8)
    qfrag(a, 3, 0)
    a(f"s_branch {l5}")
    a(f"{nq2}:")
    a("s_cmp_ge_u32 s36, 54")
    a(f"s_cbranch_scc1 {l4}")
    tr_rows(a, "v8", "v9", 3, 128)
    a("s_lshl_b32 s7, s3, 5")
    a("v_add_u32 v8, s7, v8")
    for m in range(3):
        a(f"ds_read_b64_tr_b16 v[{32 + 4 * m}:{33 + 4 * m}], v8 offset:{PS + m * 4 * KB}")
        a(f"ds_read_b64_tr_b16 v[{34 + 4 * m}:{35 + 4 * m}], v8 offset:{PS + m * 4 * KB + 512}")
    a("s_mul_i32 s34, s34, 12")
    a("s_add_u32 s34, s34, s3")
    a("s_mul_i32 s34, s34, 18")
    a("s_add_u32 s34, s34, s33")
    a("s_lshl_b32 s34, s34, 10")
    for m in range(3):
        a(f"s_add_u32 s7, s34, {WO + m * 4 * 18 * KB}")
        a(f"s_waitcnt lgkmcnt({4 - 2 * m})")
        a(f"buffer_store_dwordx4 v[{32 + 4 * m}:{35 + 4 * m}], v253, s[8:11], s7 offen sc1")
    a(f"s_branch {l5}")
    a(f"{l4}:")
    a("s_cmp_ge_u32 s37, 36")
    a(f"s_cbranch_scc1 {l5}")
    for i in range(4):
        a(f"v_mov_b32 v{28 + i}, 0x3f803f80")
    a("v_and_b32 v9, 15, v0")
    a("v_cmp_eq_u32 vcc, 0, v9")
    a("v_cmp_eq_u32 s[22:23], 1, v9")
    for ks in range(18):
        a(f"v_mfma_f32_16x16x32_bf16 v[32:35], v[{64 + 4 * ks}:{67 + 4 * ks}], v[28:31], {'0' if ks == 0 else 'v[32:35]'}")
    a("v_lshrrev_b32 v10, 5, v0")
    a("v_lshlrev_b32 v10, 8, v10")
    a("v_lshl_add_u32 v10, v9, 4, v10")
    a("v_bfe_u32 v9, v0, 4, 1")
    a("v_lshl_add_u32 v10, v9, 3, v10")
    a("s_lshl_b32 s7, s37, 9")
    a(f"s_add_u32 s7, s7, {WO + 36 * 18 * KB}")
    a("s_nop 0")
    for r in range(4):
        a(f"v_mul_f32 v{32 + r}, {f32(1.0 / 576)}, v{32 + r}")
    a("v_cvt_pk_bf16_f32 v36, v32, v33")
    a("v_cvt_pk_bf16_f32 v37, v34, v35")
    for h in range(2):
        a(f"v_lshlrev_b32 v38, 16, v{36 + h}")
        a(f"v_and_b32 v39, s16, v{36 + h}")
        a(f"v_sub_f32 v38, v{32 + 2 * h}, v38")
        a(f"v_sub_f32 v39, v{33 + 2 * h}, v39")
        a(f"v_cvt_pk_bf16_f32 v{28 + h}, v38, v39")
        a(f"v_cndmask_b32 v{28 + h}, 0, v{28 + h}, s[22:23]")
        a(f"v_cndmask_b32 v{28 + h}, v{28 + h}, v{36 + h}, vcc")
    a("buffer_store_dwordx2 v[28:29], v10, s[8:11], s7 offen sc1")
    a(f"{l5}:")
    a(f"s_add_u32 s19, s18, {X2}")
    a(f"s_add_u32 s20, s18, {XN}")
    a("s_lshl_b32 s22, s21, 7")
    a(f"s_add_u32 s22, s22, {MEAN}")
    red_ln_store(a, 16, "s19", "s20", "s22", "sc1")
    mark(a, 29)

    def more(skip):
        column_flag(a, SL_WQ, "s32")
        a("s_cmp_lt_u32 s32, 18")
        a(f"s_cbranch_scc1 {skip}")
        a("s_lshl_b32 s6, s36, 2")
        a(f"s_add_u32 s6, s6, {FLAGS + SL_WO * FPH}")
        a("s_mov_b64 exec, 1")
        a("buffer_store_dword v1, off, s[8:11], s6 sc1")

    publish(a, PH_RED - 4, more)
    mark(a, 30)
    few, many = a.label("raw"), a.label("raw")
    late = [ffn_raw_dma(b, i) for b in (3, 4) for i in range(4)]
    a("s_cmp_lt_u32 s32, 18")
    a(f"s_cbranch_scc1 {few}")
    for n, label in ((3, None), (1, few)):
        if label:
            a(f"s_branch {many}")
            a(f"{label}:")
        zst = ffn_transpose(a, range(n), list(range(64, 128, 4)))
        a("s_waitcnt lgkmcnt(0)")
        for t in late + zst:
            a(t)
    a(f"{many}:")
    out = a.label("wq_ready")
    a(f"s_cmp_lg_u32 s3, {Cfg.pw}")
    a(f"s_cbranch_scc1 {out}")
    column_wait(a, SL_WQ, abort, 18)
    a(f"{out}:")
    a("s_barrier")
    mark(a, 27)


ZS = [80, 81, 82, 83, 84]
ZK = [52, 54, 56, 58, 60]
ZD = [94, 95, 85, 78, 70]
ZL = [0, 1, 2, 2, 3]
ZQ = list(range(76, 100, 4)) + [176, 180]


def ffn_raw_dma(b, m):
    step = f"s_mov_b32 s71, s{ZS[b]}" if m == 0 else "s_add_u32 s71, s71, s92"
    return f"s_add_u32 m0, s79, {(4 * ZL[b] + m) * KB}\n{step}\nbuffer_load_dwordx4 v224, s[72:75], s71 offen nt lds"


def ffn_transpose_dest(a):
    a(f"s_mul_i32 s68, s40, {4 * WSTR}")
    a(f"s_add_u32 s68, s68, {WF}")
    for b in range(5):
        q, r = f"s{ZK[b]}", f"s{ZK[b] + 1}"
        sdivmod(a, "s6", "s7", q, 3, 17)
        a("s_mul_i32 s6, s6, 6")
        a("s_add_u32 s7, s7, s6")
        a(f"s_mul_i32 s6, {r}, 36")
        a("s_add_u32 s7, s7, s6")
        a("s_mul_i32 s6, s93, 3")
        a("s_add_u32 s7, s7, s6")
        a(f"s_mul_i32 s6, {r}, 18")
        a(f"s_add_u32 s6, s6, {q}")
        a("s_add_u32 s6, s6, 324")
        a("s_cmp_eq_u32 s93, 2")
        a("s_cselect_b32 s7, s6, s7")
        a("s_lshl_b32 s7, s7, 10")
        a(f"s_add_u32 s{ZD[b]}, s7, s68")


def ffn_transpose(a, blocks, regs):
    a("s_cmp_eq_u32 s93, 2")
    a("s_cselect_b32 s6, 2, 3")
    csel(a, "s7", 2048, 512)
    tr_rows(a, "v14", "v15", "s6", 128)
    a("v_add_u32 v14, s79, v14")
    a("v_add_u32 v15, s7, v14")
    stores = []
    for i, b in enumerate(blocks):
        for t in range(4):
            r = regs[4 * i + t]
            a(f"ds_read_b64_tr_b16 v[{r}:{r + 1}], v14 offset:{ZL[b] * 4096 + t * 32}")
            a(f"ds_read_b64_tr_b16 v[{r + 2}:{r + 3}], v15 offset:{ZL[b] * 4096 + t * 32}")
            stores.append(f"s_add_u32 s7, s{ZD[b]}, {t * WSTR}\n"
                          f"buffer_store_dwordx4 v[{r}:{r + 3}], v253, s[8:11], s7 offen sc1")
    return stores


BIG = -1e30


QR = 10
WO_FREE = [(160 + 4 * i, -1) for i in range(24)] + \
    [(16 * (k % QR) + 4 * t, k) for k in range(18 - QR, 18) for t in range(4)]


def wo_reg(ks, sl):
    return WO_FREE[ks * 3 + sl][0]


def qkv_prefetch(a, k0, k1, skip=None):
    if k0 == 0:
        a("s_lshl_b32 s28, s40, 2")
        a("s_add_u32 s28, s28, s3")
        a(f"s_mul_i32 s28, s28, {72 * KB}")
        if WQ:
            a(f"s_add_u32 s28, s28, {WQ}")
    v = "v253"
    a("v_and_b32 v229, 8, v0")
    a("v_lshl_add_u32 v229, v229, 27, v253")
    if skip:
        a(f"s_mul_i32 s7, {skip}, {OOB}")
        a("v_add_u32 v3, s7, v253")
        a("v_or_b32 v229, s7, v229")
        v = "v3"
    for ks in range(k0, k1):
        for l in qkv_wload(ks, v):
            a(l)
        a("s_add_u32 s28, s28, 4096")


def qkv_wload(ks, v="v253", vl="v229"):
    for t in range(4):
        r = 16 * (ks % QR) + 4 * t
        if t == 3:
            v = vl
        yield f"buffer_load_dwordx4 a[{r}:{r + 3}], {v}, s[8:11], s28 offen offset:{t * KB} sc1"


def wo_weight_loads(a):
    setup = []
    s = setup.append
    s("s_lshl_b32 s45, s41, 1")
    s("s_lshr_b32 s7, s40, 2")
    s("s_add_u32 s45, s45, s7")
    s(f"s_mul_i32 s30, s45, {4 * GB}")
    s("s_add_u32 s30, s30, s43")
    s("s_and_b32 s31, s40, 3")
    s("s_mul_i32 s31, s31, 9")
    s("s_add_u32 s31, s31, s3")
    s(f"s_mul_i32 s32, s31, {18 * KB}")
    s(f"s_add_u32 s32, s32, {WO}")
    s(f"s_add_u32 s33, s32, {4 * 18 * KB}")
    s(f"s_add_u32 s34, s32, {8 * 18 * KB}")
    s(f"s_mov_b32 s39, {FLAGS + SL_WO * FPH}")
    s("v_min_u32 v228, 44, v0")
    s("v_lshlrev_b32 v228, 3, v228")
    s("s_cmp_eq_u32 s3, 1")
    s(f"s_cmov_b32 s34, {WO + 36 * 18 * KB}")
    s("s_cmp_lt_u32 s3, 2")
    s(f"s_cselect_b32 s35, 0, {OOB}")
    s("v_add_u32 v5, s35, v253")
    s("s_cmp_eq_u32 s3, 1")
    s("s_cselect_b32 s7, 8, 0")
    s("v_and_b32 v10, s7, v0")
    s("v_lshl_add_u32 v5, v10, 27, v5")
    s("s_cmp_eq_u32 s3, 0")
    s(f"s_cselect_b32 s35, 0, {OOB}")
    s("v_add_u32 v7, s35, v9")
    s("s_lshl_b32 s7, s31, 8")
    s("s_add_u32 s36, s30, s7")
    s(f"s_add_u32 s37, s36, {X2}")
    s(f"s_add_u32 s46, s36, {XC}")
    s("s_lshl_b32 s36, s45, 7")
    s("s_add_u32 s36, s36, s43")
    s(f"s_add_u32 s36, s36, {MEAN1}")
    s("s_lshl_b32 s47, s45, 9")
    s("s_add_u32 s47, s47, s43")
    s(f"s_add_u32 s47, s47, {MEAN}")
    s("v_bfe_u32 v10, v0, 3, 2")
    s("v_and_b32 v8, 7, v0")
    s("v_lshlrev_b32 v8, 2, v8")
    s("v_lshl_add_u32 v8, v10, 7, v8")
    loads = []
    for ks in range(18):
        for sl in range(3):
            r = wo_reg(ks, sl)
            t = f"buffer_load_dwordx4 a[{r}:{r + 3}], v{5 if sl == 2 else 253}, s[8:11], s{32 + sl} offen offset:{(ks & 3) * KB} sc1"
            if ks & 3 == 3:
                t += f"\ns_add_u32 s{32 + sl}, s{32 + sl}, 4096"
            loads.append((t, WO_FREE[ks * 3 + sl][1]))
    for sl in range(3):
        loads.append((f"buffer_load_dwordx4 v[{240 + 4 * sl}:{243 + 4 * sl}], v{7 if sl == 2 else 9}, s[8:11], s37 offen offset:{sl * KB} sc1", -1))
    loads.append(("buffer_load_dword v252, v8, s[8:11], s47 offen sc1", -1))
    return setup, loads


def phase_qkv(a, abort):
    BF, ACC, QO, KO, VO, VL, SEL, CI, BP, BC, BP1 = 16, 56, 132, 152, 172, 182, 192, 196, 200, 204, 208
    bfrag_voff(a, "v2", "v3")
    dtile_voff(a, "v9", "v3", None, GB)
    a(f"s_mul_i32 s22, s41, {8 * GB}")
    a("s_add_u32 s22, s22, s43")
    a(f"s_add_u32 s23, s22, {XN}")
    a(f"s_mul_i32 s7, s3, {2 * GB}")
    a("s_add_u32 s24, s23, s7")
    a("s_cmp_eq_u32 s41, 0")
    a(f"s_cselect_b32 s7, 0, {2 * GB}")
    a("s_sub_u32 s23, s23, s7")
    units = [(0, tt) for tt in range(1, 5)] + [(t, tt) for t in range(1, 4) for tt in range(5)]
    acc = {u: ACC + 4 * i for i, u in enumerate(units)}
    a("s_lshl_b32 s25, s3, 10")
    a("s_add_u32 s25, s25, 1024")
    a("s_mul_i32 s26, s3, 5120")
    a("s_lshl_b32 s7, s3, 9")
    a("s_add_u32 s27, s23, s7")
    a("s_and_b32 s7, s3, 1")
    a("s_add_u32 s7, s7, 4")
    a("s_mul_i32 s29, s7, 5120")
    a("s_lshl_b32 s7, s7, 9")
    a("s_add_u32 s23, s23, s7")
    wait_flags(a, (PH_RED - 4) * FPH, abort, halo=True)
    mark(a, 0)
    def xdma(st):
        for kk in range(6):
            ks = 6 * st + kk
            t = f"s_add_u32 m0, s25, {ks * 5120 - (ks % 8) * 512}\n"
            t += "s_add_u32 s24, s24, 4096\n" if ks and ks % 8 == 0 else "s_nop 0\n"
            yield t + f"buffer_load_dwordx4 v2, s[8:11], s24 offen offset:{(ks % 8) * 512} sc1 lds"
        for sm, so in (("s26", "s27"), ("s29", "s23")):
            yield (f"s_add_u32 m0, {sm}, {st * 30720}\ns_add_u32 s7, {so}, {st * 3072}\n"
                   "buffer_load_dwordx4 v2, s[8:11], s7 offen sc1 lds")

    vm = Vm()
    for t in xdma(0):
        a(t)
        vm.issue(("x", 0))
    main, a = a, Asm()
    for r in [QO, QO + 1, SEL, SEL + 1, SEL + 3] + [QO + 4 * t + 3 for t in range(5)] + [KO + 4 * t + 3 for t in range(5)]:
        a(f"v_mov_b32 v{r}, 0")
    a("v_cmp_eq_u32 vcc, 16, v0")
    a("v_mov_b32 v10, 0x3f80")
    a("v_cmp_eq_u32 s[20:21], 17, v0")
    a(f"v_cndmask_b32 v{SEL + 2}, 0, v10, vcc")
    a("v_and_b32 v11, 3, v0")
    a(f"v_cndmask_b32 v{SEL + 2}, v{SEL + 2}, 1.0, s[20:21]")
    a("v_cmp_eq_u32 vcc, 2, v11")
    a("v_and_b32 v10, 15, v0")
    a("v_lshrrev_b32 v11, 4, v0")
    for r in range(4):
        a(f"v_cndmask_b32 v{CI + r}, 0, 1.0, vcc")
    a("v_lshlrev_b32 v11, 2, v11")
    a("v_sub_u32 v10, v11, v10")
    a(f"v_mov_b32 v12, {f32(BIG)}")
    a("s_cmp_eq_u32 s41, 0")
    a("s_cselect_b64 s[38:39], 0, -1")
    for r in range(4):
        a(f"v_add_u32 v11, {r}, v10")
        a("v_and_b32 v13, 1, v11")
        a("v_cmp_eq_u32 s[20:21], 0, v13")
        a("v_cmp_lt_i32 vcc, 1, v11")
        a("v_cmp_gt_i32 s[18:19], 1, v11")
        a("s_and_b64 vcc, vcc, s[20:21]")
        a("s_and_b64 s[18:19], s[18:19], s[20:21]")
        a("s_and_b64 s[20:21], vcc, s[38:39]")
        a(f"v_cndmask_b32 v{BP + r}, v12, 0, vcc")
        a(f"v_cndmask_b32 v{BC + r}, v12, 0, s[18:19]")
        a(f"v_cndmask_b32 v{BP1 + r}, v12, 0, s[20:21]")
    setup, early = wo_weight_loads(a)
    for t in setup:
        a(t)
    side, chunk = [], ""
    for ln in a.lines:
        chunk += ln + "\n"
        if ln.strip().startswith("v_") and not ln.strip().startswith("v_cmp"):
            side.append(chunk)
            chunk = ""
    side.append(chunk)
    a = main
    a(f"v_add_u32 v6, {45 * KB}, v253")
    a("s_waitcnt vmcnt(0)")
    a("s_barrier")
    mark(a, 1)

    def xread(ks, tt):
        r = BF + 20 * (ks & 1) + 4 * tt
        f = ks * 5 + tt
        return f"ds_read_b128 v[{r}:{r + 3}], v{253 if f < 45 else 6} offset:{(f % 45) * KB}"

    for tt in range(5):
        a(xread(0, tt))
    stage = {1: list(xdma(1)), 2: list(xdma(2))}
    wq = []
    for k in range(QR - 1, 18):
        ls = list(qkv_wload(k))
        ls[3] += "\ns_add_u32 s28, s28, 4096"
        wq += [(l, ("w", k)) for l in ls]
    for ks in range(18):
        cur = BF + 20 * (ks & 1)
        fill = {}
        if ks < 17:
            for tt in range(5):
                fill[tt] = [(xread(ks + 1, tt), None)]
        vq = []
        st = 1 if ks < 4 else 2
        for _ in range(2):
            if stage[st] and ks != 4:
                vq.append((stage[st].pop(0), ("x", st)))
        for _ in range(Cfg.w_per_ks):
            if wq and wq[0][1][1] - QR < ks:
                vq.append(wq.pop(0))
        while ks >= 18 - QR + 1 and len(vq) < Cfg.wo_per_ks and early[0][1] < ks:
            vq.append((early.pop(0)[0], "o"))
        for i, op in enumerate(vq):
            fill[5 + 2 * i] = [op]
        for u in (6, 8, 10, 12, 14, 15, 16, 17, 18):
            if u not in fill:
                fill[u] = [(side.pop(0), None) for _ in range(min(2, len(side)))]
        if ks == 6:
            assert not side
            fill[5 + 2 * len(vq)] = [("buffer_load_dwordx2 v[226:227], v228, s[8:11], s39 offen sc1", "b")]
        need = ([("w", ks)] if ks >= QR - 1 else []) + ([("x", (ks + 1) // 6)] if ks in (5, 11) else [])
        if ks == 18 - QR + 1:
            need.append("b")
        a(f"s_waitcnt vmcnt({vm.count(*need)}) lgkmcnt(0)" if need else "s_waitcnt lgkmcnt(0)")
        if ks == 18 - QR + 1:
            lp, ok = a.label("wo_poll"), a.label("wo_ready")
            a("s_mov_b32 s6, 0")
            a(f"{lp}:")
            a("v_cmp_eq_u32 vcc, s76, v226")
            a("v_cmp_eq_u32 s[20:21], s76, v227")
            a("s_and_b64 vcc, vcc, s[20:21]")
            a("s_cmp_eq_u64 vcc, exec")
            a(f"s_cbranch_scc1 {ok}")
            a("buffer_load_dwordx2 v[226:227], v228, s[8:11], s39 offen sc1")
            a("s_add_u32 s6, s6, 1")
            a(f"s_cmp_lt_u32 s6, {1 << 20}")
            a("s_waitcnt vmcnt(0)")
            a(f"s_cbranch_scc1 {lp}")
            a(f"s_branch {abort}")
            a(f"{ok}:")
        if ks in (5, 11):
            a("s_barrier")
        for u, (t, tt) in enumerate(units):
            c = acc[(t, tt)]
            wr = 16 * (ks % QR) + 4 * t
            w, x = f"a[{wr}:{wr + 3}]", f"v[{cur + 4 * tt}:{cur + 4 * tt + 3}]"
            if t == 2:
                w, x = x, w
            a(f"v_mfma_f32_16x16x32_bf16 v[{c}:{c + 3}], {w}, {x}, {'0' if ks == 0 else f'v[{c}:{c + 3}]'}")
            for text, tag in fill.get(u, []):
                a(text)
                if tag:
                    vm.issue(tag)
    assert not stage[1] and not stage[2]
    assert not wq
    early = [t for t, _ in early]
    nw = len(early) - 4
    tail_loads = early[nw - Cfg.wo_gap:nw]
    early = early[:nw - Cfg.wo_gap] + early[nw:]
    mark(a, 2)
    body = []
    e = body.append
    cvt = lambda d, s: e(f"v_cvt_pk_bf16_f32 v{d}, v{s}, v{s + 1}")
    mf = lambda d, x, y, c: e(f"v_mfma_f32_16x16x32_bf16 v[{d}:{d + 3}], v[{x}:{x + 3}], v[{y}:{y + 3}], {c}")
    quad = lambda r: f"v[{r}:{r + 3}]"
    for tt in range(1, 5):
        cvt(QO + 4 * tt, acc[(0, tt)]); cvt(QO + 4 * tt + 1, acc[(0, tt)] + 2)
    for tt in range(5):
        cvt(KO + 4 * tt, acc[(1, tt)]); cvt(KO + 4 * tt + 1, acc[(1, tt)] + 2)
    for tt in range(5):
        cvt(QO + 4 * tt + 2, acc[(3, tt)]); cvt(KO + 4 * tt + 2, acc[(3, tt)] + 2)
    for tt in range(5):
        cvt(VO + 2 * tt, acc[(2, tt)]); cvt(VO + 2 * tt + 1, acc[(2, tt)] + 2)
    S, T, P, M = 16, 56, 76, 92
    for tt in range(1, 5):
        s = S + 8 * (tt - 1)
        mf(s, KO + 4 * (tt - 1), QO + 4 * tt, quad(BP1 if tt == 1 else BP))
        mf(s + 4, KO + 4 * tt, QO + 4 * tt, quad(BC))
    for tt in range(5):
        mf(T + 4 * tt, QO + 4 * tt, SEL, quad(CI))
    for i in range(4):
        s = S + 8 * i
        e(f"v_max3_f32 v{M + i}, v{s}, v{s + 1}, v{s + 2}")
        e(f"v_max3_f32 v{M + 4 + i}, v{s + 3}, v{s + 4}, v{s + 5}")
    for i in range(4):
        s = S + 8 * i
        e(f"v_max3_f32 v{M + i}, v{M + i}, v{s + 6}, v{s + 7}")
    for i in range(4):
        e(f"v_max_f32 v{M + i}, v{M + i}, v{M + 4 + i}")
    c = 18 ** -0.5 * math.log2(math.e)
    e(f"s_mov_b32 s18, {f32(c)}")
    tcv = [(VL + 2 * tt + h, T + 4 * tt + 2 * h) for tt in range(5) for h in range(2)]
    pad = lambda n: [cvt(*tcv.pop(0)) for _ in range(n)]
    pad(1)
    e(f"v_permlane32_swap_b32 v{M}, v{M + 1}")
    e(f"v_permlane32_swap_b32 v{M + 2}, v{M + 3}")
    e(f"v_max_f32 v{M}, v{M}, v{M + 1}")
    e(f"v_max_f32 v{M + 2}, v{M + 2}, v{M + 3}")
    pad(2)
    e(f"v_permlane16_swap_b32 v{M}, v{M + 2}")
    e(f"v_max_f32 v{M}, v{M}, v{M + 2}")
    e(f"v_mul_f32 v{M}, {f32(-c)}, v{M}")
    e(f"v_mov_b32 v{M + 2}, v{M}")
    pad(2)
    e(f"v_permlane16_swap_b32 v{M}, v{M + 2}")
    e(f"v_mov_b32 v{M + 1}, v{M}")
    e(f"v_mov_b32 v{M + 3}, v{M + 2}")
    pad(2)
    e(f"v_permlane32_swap_b32 v{M}, v{M + 1}")
    e(f"v_permlane32_swap_b32 v{M + 2}, v{M + 3}")
    pad(3)
    OA, OL, R, OUT, LO = 100, 116, 96, 212, 220
    for i in range(4):
        s = S + 8 * i
        for r in range(8):
            e(f"v_fma_f32 v{s + r}, v{s + r}, s18, v{M + i}")
        for r in range(8):
            e(f"v_exp_f32 v{s + r}, v{s + r}")
        if i:
            mf(OA + 4 * (i - 1), VO + 2 * (i - 1), P + 4 * (i - 1), "0")
            mf(OL + 4 * (i - 1), VL + 2 * (i - 1), P + 4 * (i - 1), "0")
        else:
            e("s_nop 0")
        for r in range(4):
            cvt(P + 4 * i + r, s + 2 * r)
    e(f"v_rcp_f32 v{R}, v{OL + 2}")
    e(f"v_rcp_f32 v{R + 1}, v{OL + 6}")
    mf(OA + 12, VO + 6, P + 12, "0")
    mf(OL + 12, VL + 6, P + 12, "0")

    def scale(i):
        sel = "op_sel:[1,0] op_sel_hi:[1,1]" if i & 1 else "op_sel:[0,0] op_sel_hi:[0,1]"
        rp = R + (i & 2)
        for o in (OA + 4 * i, OA + 4 * i + 2, OL + 4 * i):
            e(f"v_pk_mul_f32 v[{o}:{o + 1}], v[{rp}:{rp + 1}], v[{o}:{o + 1}] {sel}")
        cvt(OUT + 2 * i, OA + 4 * i); cvt(OUT + 2 * i + 1, OA + 4 * i + 2); cvt(LO + i, OL + 4 * i)

    scale(0)
    e(f"v_rcp_f32 v{R + 2}, v{OL + 10}")
    scale(1)
    e(f"v_rcp_f32 v{R + 3}, v{OL + 14}")
    e(f"v_permlane16_swap_b32 v{OUT}, v{OUT + 2}")
    e(f"v_permlane16_swap_b32 v{OUT + 1}, v{OUT + 3}")
    scale(2)
    scale(3)
    LX = 92 * KB
    e("s_lshl_b32 s7, s3, 2")
    e(f"s_add_u32 s7, s7, {LX}")
    e(f"v_permlane16_swap_b32 v{LO}, v{LO + 1}")
    e(f"v_permlane16_swap_b32 v{LO + 2}, v{LO + 3}")
    e("v_add_u32 v11, s7, v253")
    e("v_lshrrev_b32 v10, 3, v0")
    e(f"v_permlane32_swap_b32 v{LO}, v{LO + 2}")
    e(f"v_mul_u32_u24 v10, {GB}, v10")
    e(f"ds_write_b32 v11, v{LO}")
    e(f"v_permlane16_swap_b32 v{OUT + 4}, v{OUT + 6}")
    e(f"v_permlane16_swap_b32 v{OUT + 5}, v{OUT + 7}")
    step = max(1, len(body) // len(early))
    for i, t in enumerate(body):
        a(t)
        if early and i % step == step - 1:
            a(early.pop(0))
    for t in early:
        a(t)
    a("s_mul_i32 s7, s40, 1152")
    a("s_add_u32 s22, s22, s7")
    a(f"s_add_u32 s22, s22, {OO}")
    a("s_lshl_b32 s7, s3, 8")
    a("s_add_u32 s23, s22, s7")
    a(f"s_add_u32 s24, s23, {4 * GB}")
    a(f"buffer_store_dwordx4 v[{OUT}:{OUT + 3}], v9, s[8:11], s23 offen sc1")
    a(f"buffer_store_dwordx4 v[{OUT + 4}:{OUT + 7}], v9, s[8:11], s24 offen sc1")
    a("v_and_b32 v11, 7, v0")
    a("v_lshl_add_u32 v10, v11, 4, v10")
    a("s_cmp_eq_u32 s3, 3")
    a(f"s_cselect_b32 s7, 0, {OOB}")
    a("v_add_u32 v10, s7, v10")
    a(f"v_add_u32 v11, {LX}, v253")
    a("s_waitcnt lgkmcnt(0)")
    a("s_barrier")
    a(f"ds_read_b128 v[{LO}:{LO + 3}], v11")
    a("s_waitcnt lgkmcnt(0)")
    a(f"buffer_store_dwordx4 v[{LO}:{LO + 3}], v10, s[8:11], s22 offen offset:1024 sc1")
    mark(a, 3)
    publish(a, PH_QKV)
    mark(a, 4)
    for t in tail_loads:
        a(t)


def phase_wo(a, abort):
    RES, BF, ACC, T = 240, 160, 100, 124
    z0 = a.label("swz")
    a("s_cmp_lg_u32 s42, 0")
    a(f"s_cbranch_scc1 {z0}")
    zst = ffn_transpose(a, (3, 4), ZQ)
    a("s_waitcnt lgkmcnt(0)")
    for t in zst:
        a(t)
    if Cfg.code_warm > 2:
        code_warm(a, "v[14:15]")
    a(f"{z0}:")
    a("s_and_b32 s7, s3, 1")
    a(f"s_mul_i32 s7, s7, {2 * GB}")
    a("s_add_u32 s24, s30, s7")
    a("s_lshr_b32 s7, s3, 1")
    a("s_lshl_b32 s7, s7, 9")
    a("s_add_u32 s24, s24, s7")
    a(f"s_add_u32 s24, s24, {OO}")
    a("s_mov_b32 s16, 0xffff0000")
    for sl in range(3):
        for i in range(4):
            a(f"v_lshlrev_b32 v{T + 8 * sl + 2 * i}, 16, v{RES + 4 * sl + i}")
            a(f"v_and_b32 v{T + 8 * sl + 2 * i + 1}, s16, v{RES + 4 * sl + i}")
    MX = 40 * KB
    a("s_cmp_eq_u32 s3, 1")
    a("s_cselect_b32 s7, 16, 0")
    a("v_lshlrev_b32 v12, 2, v0")
    a("v_cmp_gt_u32 vcc, s7, v0")
    a(f"v_add_u32 v10, {MX}, v12")
    a(f"v_add_u32 v11, {MX + 512}, v12")
    a("v_cndmask_b32 v10, v11, v10, vcc")
    a("v_and_b32 v11, 0x7c, v12")
    a("v_cmp_gt_u32 vcc, 32, v0")
    a(f"v_mov_b32 v13, {OOB}")
    a("s_and_b32 s7, s40, 3")
    a("s_lshl_b32 s45, s45, 2")
    a("v_cndmask_b32 v8, v13, v12, vcc")
    a("s_add_u32 s6, s7, s3")
    a("s_cmp_eq_u32 s6, 0")
    a(f"s_cselect_b32 s6, 0, {OOB}")
    a("v_add_u32 v6, s6, v8")
    a("s_add_u32 s45, s45, s7")
    a("s_lshl_b32 s45, s45, 2")
    a("s_add_u32 s45, s45, s3")
    a("s_lshl_b32 s45, s45, 7")
    a("s_add_u32 s45, s45, s43")
    a(f"s_add_u32 s45, s45, {STAT}")
    a("s_cmp_eq_u32 s3, 0")
    a("s_cselect_b32 s35, 1.0, 0")
    ring = ffn_ring_setup(a)
    wait_flags(a, PH_QKV * FPH, abort)
    mark(a, 5)
    a("s_lshl_b32 m0, s3, 10")
    for m in range(9):
        if m:
            a("s_add_u32 m0, m0, 4096")
            a("s_add_u32 s24, s24, 1024")
        else:
            a("s_nop 0")
        a("buffer_load_dwordx4 v2, s[8:11], s24 offen sc1 lds")
    z1 = a.label("swz")
    a("s_waitcnt vmcnt(4)")
    a("s_barrier")
    mark(a, 6)
    for tt in range(2):
        a(f"ds_read_b128 v[{BF + 4 * tt}:{BF + 4 * tt + 3}], v253 offset:{tt * KB}")
    for ks in range(18):
        cur, nxt = BF + 8 * (ks & 1), BF + 8 * ((ks + 1) & 1)
        if ks == 9:
            a("s_waitcnt vmcnt(9) lgkmcnt(0)")
            a("s_barrier")
            a(f"s_xor_b32 s7, s3, {Cfg.pw}")
            a("s_or_b32 s7, s7, s42")
            a(f"s_cbranch_scc1 {z1}")
            column_flag(a, SL_WF)
            a("s_mov_b64 exec, -1")
            a(f"{z1}:")
        else:
            a("s_waitcnt lgkmcnt(0)")
        i = 0
        for sl in range(3):
            for tt in range(2):
                c = ACC + 4 * (2 * sl + tt)
                w = wo_reg(ks, sl)
                src = "0" if ks == 0 else f"v[{c}:{c + 3}]"
                a(f"v_mfma_f32_16x16x32_bf16 v[{c}:{c + 3}], a[{w}:{w + 3}], v[{cur + 4 * tt}:{cur + 4 * tt + 3}], {src}")
                if i < 2 and ks < 17:
                    a(f"ds_read_b128 v[{nxt + 4 * i}:{nxt + 4 * i + 3}], v253 offset:{((ks + 1) * 2 + i) * KB}")
                if i == 3 and ring:
                    a(ring.pop(0))
                i += 1
    mark(a, 7)
    XR = 148
    a("s_nop 3")
    for r in range(4):
        a(f"v_permlane16_swap_b32 v{ACC + r}, v{ACC + 4 + r}")
    a(f"v_add_f32 v12, v{ACC + 16}, v{ACC + 17}")
    a(f"v_add_f32 v13, v{ACC + 20}, v{ACC + 21}")
    a("ds_write_b32 v10, v12")
    a("ds_write_b32 v10, v13 offset:64")
    for sl in (1, 2):
        for r in range(4):
            a(f"v_permlane16_swap_b32 v{ACC + 8 * sl + r}, v{ACC + 8 * sl + 4 + r}")
    a("s_waitcnt lgkmcnt(0)")
    a("s_barrier")
    a(f"ds_read_b32 v12, v11 offset:{MX}")
    for sl in range(3):
        for i in range(4):
            t, c = T + 8 * sl + 2 * i, ACC + 8 * sl + 2 * i
            a(f"v_pk_add_f32 v[{t}:{t + 1}], v[{t}:{t + 1}], v[{c}:{c + 1}]")
    a("v_mov_b32 v14, 0")
    a("v_mov_b32 v15, 0")
    a("s_waitcnt lgkmcnt(0)")
    a("v_add_f32 v12, v12, v252")
    for sl in range(3):
        for i in range(4):
            t, c = T + 8 * sl + 2 * i, ACC + 8 * sl + 2 * i
            a(f"v_pk_add_f32 v[{c}:{c + 1}], v[{t}:{t + 1}], v[12:13] op_sel_hi:[1,0] neg_lo:[0,1] neg_hi:[0,1]")
        for i in range(4):
            c = ACC + 8 * sl + 2 * i
            a(f"v_cvt_pk_bf16_f32 v{XR + 4 * sl + i}, v{c}, v{c + 1}")
        a(f"buffer_store_dwordx4 v[{XR + 4 * sl}:{XR + 4 * sl + 3}], v{7 if sl == 2 else 9}, s[8:11], s46 offen offset:{sl * KB} sc1")
    for i in range(12):
        a(f"v_dot2c_f32_bf16 v{15 if i >= 8 else 14}, v{XR + i}, v{XR + i}")
    a("buffer_store_dword v12, v6, s[8:11], s36 offen sc1")
    a("s_nop 1")
    a("v_fma_f32 v14, v15, s35, v14")
    a("v_mov_b32 v15, v14")
    a("s_nop 1")
    a("v_permlane32_swap_b32 v14, v15")
    a("v_add_f32 v14, v14, v15")
    a("buffer_store_dword v14, v8, s[8:11], s45 offen sc1")
    publish(a, PH_WO)
    mark(a, 8)


FFN_LDS = 144 * KB
HB = 72 * KB


def pack_gaps(n_gaps, pinned, ops, start=0, cap=2):
    gaps = [list(pinned.get(g, [])) for g in range(n_gaps)]
    g = start
    for text, cost, earliest in ops:
        g = max(g, earliest)
        while sum(c for _, c in gaps[g]) + cost > cap:
            g += 1
        gaps[g].append((text, cost))
    return gaps


def check_stage_reads(mf, gaps, base, n):
    stage = {("v", base + i) for i in range(n)}
    wr = {}
    for i, t in enumerate(mf):
        for r in hazards.I(t, 0).w & stage:
            wr[r] = i
    for i, g in enumerate(gaps):
        for t, _ in g:
            for r in hazards.I(t.split("\n")[-1], 0).r & stage:
                assert i < wr[r], (i, t, wr[r])


RING, VB = 16, 184
RING_EXT = [104, 108, 112, 116, 180, 196, 200, 204, 208, 212, 136, 140, 144, 160, 164, 168, 148, 4]


def slot_reg(slot):
    return RING + 4 * slot if slot < 18 else RING_EXT[slot - 18]


def wload(slot, n):
    r = slot_reg(slot)
    return f"buffer_load_dwordx4 v[{r}:{r + 3}], v{VB + n // 4}, s[48:51], s23 offen offset:{(n % 4) * KB} sc1"


def ffn_ring_setup(a):
    a("s_lshl_b32 s7, s40, 2")
    a("s_add_u32 s7, s7, s3")
    a(f"s_mul_i32 s23, s7, {WSTR}")
    a(f"s_add_u32 s23, s23, {WF}")
    a(f"s_add_u32 s50, s23, {486 * KB}")
    a("s_mul_i32 s50, s50, s42")
    a(f"v_mov_b32 v{VB}, v253")
    for m in range(1, 9):
        a(f"v_add_u32 v{VB + m}, {4096 * m}, v253")
    return [wload(n, n) for n in range(15)]


def phase_ffn(a, abort):
    ACC, STG, TMP = 88, 120, 152
    OA = 216
    xreg = lambda tt, ks: reg(256 + 4 * (tt * 18 + ks), 4) if tt * 18 + ks < 64 else reg(220 + 4 * (tt * 18 + ks - 64), 4)
    a("s_lshl_b32 s7, s41, 2")
    a("s_add_u32 s7, s7, s3")
    a(f"s_mul_i32 s22, s7, {2 * GB}")
    a("s_add_u32 s22, s22, s43")
    a(f"s_add_u32 s22, s22, {XC}")
    a(f"s_mul_i32 s24, s3, {18 * KB}")
    a("s_lshl_b32 s25, s41, 12")
    a("s_add_u32 s25, s25, s43")
    a(f"s_add_u32 s25, s25, {STAT}")
    a("v_lshrrev_b32 v3, 5, v0")
    a("v_and_b32 v10, 31, v0")
    a("v_lshlrev_b32 v10, 2, v10")
    a("v_lshl_add_u32 v3, v3, 11, v10")
    a(f"v_add_u32 v11, {36 * KB}, v{VB}")
    early = red_setup(a)
    dtile_voff(a, "v178", "v1", None, 8 * GB)
    a(f"v_add_u32 v179, {32 * GB}, v178")
    a("v_lshrrev_b32 v1, 5, v0")
    a("v_and_b32 v15, 7, v0")
    a("v_lshlrev_b32 v15, 4, v15")
    a("v_lshl_add_u32 v15, v1, 7, v15")
    a("s_lshl_b32 s7, s3, 8")
    a(f"s_add_u32 s7, s7, {OWN - KB}")
    a("v_add_u32 v15, s7, v15")
    a("v_bfe_u32 v1, v0, 3, 2")
    a(f"v_mov_b32 v182, {OOB}")
    a(f"v_add_u32 v183, {OWN + 10 * KB}, v253")
    for pr in range(2):
        a(f"s_sub_u32 s7, s40, {4 * pr}")
        a("v_cmp_eq_u32 vcc, s7, v1")
        a("s_nop 1")
        a(f"v_cndmask_b32 v{178 + pr}, v{178 + pr}, v182, vcc")
        a(f"v_cndmask_b32 v{OA + pr}, v183, v15, vcc")
        a(f"v_cndmask_b32 v{OA + 2 + pr}, 0, 1, vcc")
        a(f"v_lshlrev_b32 v{OA + 2 + pr}, 10, v{OA + 2 + pr}")
    a(f"s_mul_i32 s26, s41, {64 * GB}")
    a(f"s_mul_i32 s7, s40, {GB}")
    a("s_add_u32 s26, s26, s7")
    a("s_lshl_b32 s7, s3, 8")
    a("s_add_u32 s27, s26, s7")
    a(f"s_add_u32 s27, s27, {PART - KB}")
    a("s_mov_b32 s72, s8")
    a("s_mov_b32 s73, s9")
    a("s_mov_b32 s74, 0")
    a(f"s_mul_i32 s7, s42, {3 * FPH}")
    a("s_sub_u32 s29, s44, s7")
    a(f"s_add_u32 s29, s29, {(SL_EARLY - 1) * FPH}")
    a("s_lshl_b32 s7, s40, 7")
    a("s_add_u32 s7, s7, s29")
    a("s_add_u32 s38, s4, s7")
    a("s_addc_u32 s39, s5, 0")
    a("s_lshl_b32 s7, s40, 2")
    a("s_add_u32 s29, s29, s7")
    a(f"s_add_u32 s50, s23, {486 * KB}")
    late, seen = a.label("ring"), a.label("ring")
    a("s_cmp_lg_u32 s42, 0")
    a(f"s_cbranch_scc1 {late}")
    a(f"s_cmp_lg_u32 s3, {Cfg.pw}")
    a(f"s_cbranch_scc1 {seen}")
    column_wait(a, SL_WF, abort)
    a(f"{seen}:")
    a("s_barrier")
    for n in range(15):
        a(wload(n, n))
    a(f"{late}:")
    wait_flags(a, PH_WO * FPH, abort)
    mark(a, 9)
    C0, C1, VV, SS = [4, 5, 6, 7], [8, 9, 13, 14], [193, 194, 195, 252], 136
    k0 = -2.0 * math.sqrt(2.0 / math.pi) * math.log2(math.e)

    def xdma(ks):
        return (f"s_add_u32 m0, s24, {ks * KB - (ks % 8) * 512}\n"
                + ("s_add_u32 s22, s22, 4096\n" if ks and ks % 8 == 0 else "s_nop 0\n")
                + f"buffer_load_dwordx4 v2, s[8:11], s22 offen offset:{(ks % 8) * 512} sc1 lds")

    def xread(tt, ks):
        f = tt * 18 + ks
        return f"ds_read_b128 {xreg(tt, ks)}, v{VB if f < 36 else 11} offset:{(f % 36) * KB}"

    hread = lambda tt, ks: f"ds_read_b128 {xreg(tt, ks)}, v{10 if tt < 2 else 11} offset:{((tt * 18 + ks) % 36) * KB}"
    vm0 = Vm()
    for n in range(15):
        vm0.issue(("w", n))
    for ks in range(12):
        a(xdma(ks))
        vm0.issue(("x", ks))
    a(f"s_add_u32 s23, s23, {15 * KB}")
    a("s_lshr_b32 s7, s3, 1")
    a("s_lshl_b32 s7, s7, 10")
    a("s_and_b32 s6, s3, 1")
    a("s_lshl_b32 s6, s6, 3")
    a("s_add_u32 s28, s7, s6")
    a(f"s_add_u32 s28, s28, {HB}")
    a(f"s_waitcnt vmcnt({vm0.count(('x', 5))})")
    a("s_barrier")
    mark(a, 10)
    for ks in range(3):
        for tt in range(4):
            a(xread(tt, ks))

    def const_ops(e):
        ops = []
        for n in (8, 4, 2, 1):
            ops += [(f"v_add_f32 v{SS + i}, v{SS + i}, v{SS + n + i}", 1, e) for i in range(n)]
        ops += [(f"v_mov_b32 v{SS + 1}, {f32(1e-5)}", 1, e), (f"v_fmac_f32 v{SS + 1}, {f32(1.0 / 576)}, v{SS}", 1, e),
                (f"v_mov_b32 v{VV[0]}, v{SS + 1}", 1, e),
                (f"s_nop 0\nv_permlane16_swap_b32 v{VV[0]}, v{SS + 1}", 2, e),
                (f"v_mov_b32 v{VV[2]}, v{VV[0]}", 1, e), (f"v_mov_b32 v{VV[1]}, v{SS + 1}", 1, e),
                (f"v_mov_b32 v{VV[3]}, v{SS + 1}", 1, e),
                (f"s_nop 0\nv_permlane32_swap_b32 v{VV[0]}, v{VV[2]}", 2, e),
                (f"v_permlane32_swap_b32 v{VV[1]}, v{VV[3]}", 2, e)]
        ops += [(f"v_rsq_f32 v{C0[tt]}, v{VV[tt]}", 2, e) for tt in range(4)]
        ops += [(f"v_mul_f32 v{C1[tt]}, v{C0[tt]}, v{C0[tt]}", 1, e) for tt in range(4)]
        ops += [(f"v_mul_f32 v{C0[tt]}, {f32(k0)}, v{C0[tt]}", 1, e) for tt in range(4)]
        ops += [(f"v_mul_f32 v{C1[tt]}, {f32(0.044715)}, v{C1[tt]}", 1, e) for tt in range(4)]
        ops += [(f"v_mul_f32 v{C1[tt]}, v{C1[tt]}, v{C0[tt]}", 1, e) for tt in range(4)]
        return ops

    def gelu_ops(first_gap):
        ops = []
        for tt in range(4):
            t, p, o = TMP + 10 * (tt & 1), TMP + 10 * (tt & 1) + 4, TMP + 10 * (tt & 1) + 8
            g, u = STG + 4 * tt, STG + 16 + 4 * tt
            e = first_gap(tt)
            for r in range(4):
                ops.append((f"v_mul_f32 v{t + r}, v{g + r}, v{g + r}", 1, e))
            for r in range(4):
                ops.append((f"v_fma_f32 v{t + r}, v{t + r}, v{C1[tt]}, v{C0[tt]}", 1, e))
            for r in range(4):
                ops.append((f"v_mul_f32 v{t + r}, v{g + r}, v{t + r}", 1, e))
            for r in range(4):
                ops.append((f"v_exp_f32 v{t + r}, v{t + r}", 2, e))
            for r in range(4):
                ops.append((f"v_mul_f32 v{p + r}, v{g + r}, v{u + r}", 1, e))
            for r in range(4):
                ops.append((f"v_fma_f32 v{t + r}, v{t + r}, v{VV[tt]}, v{VV[tt]}", 1, e))
            for r in range(4):
                ops.append((f"v_rcp_f32 v{t + r}, v{t + r}", 2, e))
            for r in range(4):
                ops.append((f"v_mul_f32 v{p + r}, v{p + r}, v{t + r}", 1, e))
            ops.append((f"v_cvt_pk_bf16_f32 v{o}, v{p}, v{p + 1}", 1, e))
            ops.append((f"v_cvt_pk_bf16_f32 v{o + 1}, v{p + 2}, v{p + 3}", 1, e))
            ops.append((f"ds_write_b64 v12, v[{o}:{o + 1}] offset:{tt * 18 * KB}", 2, e))
        return ops

    def gu_step(kind):
        mf, pinned = [], {}
        for G in range(12):
            gu, grp = G & 1, G >> 1
            for tt in range(4):
                for kk in range(3):
                    ks = 3 * grp + kk
                    c = ACC + 16 * gu + 4 * tt
                    d = STG + 16 * gu + 4 * tt if ks == 17 else c
                    src = "0" if ks == 0 else f"v[{c}:{c + 3}]"
                    w = RING + 4 * ((3 * G + kk) % 18)
                    mf.append(f"v_mfma_f32_16x16x32_bf16 v[{d}:{d + 3}], v[{w}:{w + 3}], {xreg(tt, ks)}, {src}")
            for kk in range(3):
                n = 3 * G + kk
                pinned[12 * G + 4 * kk + 1] = [(wload((n + 15) % 18, n), 2)]
        if kind == "first":
            for k in range(6):
                pinned[4 * k + 3] = [(xdma(12 + k), 2)]
            for k in range(16):
                pinned[24 + 12 * (k // 5) + (3, 6, 7, 10, 11)[k % 5]] = \
                    [(f"buffer_load_dword v{SS + k}, v3, s[8:11], s25 offen offset:{128 * k} sc1", 2)]
            ops = [(xread(tt, ks), 1, 24 * (ks // 3 - 1) + (4 * (ks % 3) + tt) * 3 // 2) for ks in range(3, 18) for tt in range(4)]
            gaps = pack_gaps(144, pinned, ops)
            gaps = pack_gaps(144, dict(enumerate(gaps)), const_ops(96))
        else:
            gaps = pack_gaps(144, pinned, gelu_ops(lambda tt: 2))
        if kind == "last":
            g = 0
            for ks in range(14):
                for tt in range(4):
                    g = max(g + 1, 24 * (ks // 3) + 12 + 3 * tt + ks % 3)
                    while g < 143 and any("buffer_" in t or "ds_" in t for t, _ in gaps[g]):
                        g += 1
                    gaps[min(g, 143)].append((hread(tt, ks), 1))
        check_stage_reads(mf, gaps, STG, 32)
        lg = Vm()
        lg.issue(2)
        for i in range(144):
            G = i // 12
            if i % 12 == 0 and kind == "first":
                need = [("w", 3 * G + 2)] + {2: [("x", 11)], 6: [("x", 17)], 8: ["s"]}.get(G, [])
                a(f"s_waitcnt vmcnt({vm0.count(*need)}) lgkmcnt({min(15, lg.count(3 * (G // 2) + 2))})")
                if G in (2, 6):
                    a("s_barrier")
            elif i % 12 == 0:
                a("s_waitcnt vmcnt(12)")
            a(mf[i])
            for text, _ in gaps[i]:
                a(text)
                if kind == "first":
                    if "s[48:51]" in text:
                        vm0.issue(("w", 3 * G + (i % 12) // 4 + 15))
                    elif " lds" in text:
                        vm0.issue(("x", 12 + i // 4))
                    elif "buffer_load_dword " in text:
                        vm0.issue("s")
                    elif "ds_read" in text:
                        lg.issue(int(text.split("offset:")[1]) // KB % 18)
            if i == 139:
                a("s_lshl_b32 s7, s25, 11" if kind != "first" else "s_mov_b32 s25, 0")
            if i == 140:
                a("s_add_u32 s7, s7, s28" if kind != "first" else "s_mov_b32 s7, s28")
            if i == 142:
                a(f"s_add_u32 s23, s23, {36 * KB}")
        a(f"v_add_u32 v12, s7, v{VB}")
        a("s_add_u32 s25, s25, 1")

    gu_step("first")
    mark(a, 12)
    lp = a.label("ffn_gu")
    a(f"{lp}:")
    gu_step("loop")
    a("s_cmp_lt_u32 s25, 8")
    a(f"s_cbranch_scc1 {lp}")
    a(f"v_add_u32 v10, {HB}, v{VB}")
    a(f"v_add_u32 v11, {HB + 36 * KB}, v{VB}")
    if Cfg.code_warm > 1:
        code_warm(a, "v[2:3]")
    a("s_waitcnt lgkmcnt(0)")
    a("s_barrier")
    gu_step("last")
    mark(a, 13)
    a("s_waitcnt lgkmcnt(0)")
    a("s_barrier")
    reads = [hread(tt, ks) for ks in (14, 15) for tt in range(4)]
    ops = []
    for tt in range(4):
        t, p, o = TMP + 10 * (tt & 1), TMP + 10 * (tt & 1) + 4, TMP + 10 * (tt & 1) + 8
        g, u = STG + 4 * tt, STG + 16 + 4 * tt
        pr = lambda r: f"v[{r}:{r + 1}]"
        bc = lambda r: (pr(r & ~1), r & 1)

        def pkfma(d, x, y, z):
            (ry, sy), (rz, sz) = bc(y), bc(z)
            return f"v_pk_fma_f32 {pr(d)}, {pr(x)}, {ry}, {rz} op_sel:[0,{sy},{sz}] op_sel_hi:[1,{sy},{sz}]"
        ops += [f"v_pk_mul_f32 {pr(t + r)}, {pr(g + r)}, {pr(g + r)}" for r in (0, 2)]
        ops += [pkfma(t + r, t + r, C1[tt], C0[tt]) for r in (0, 2)]
        ops += [f"v_pk_mul_f32 {pr(t + r)}, {pr(g + r)}, {pr(t + r)}" for r in (0, 2)]
        ops += [f"v_exp_f32 v{t + r}, v{t + r}" for r in range(4)]
        ops += [f"v_pk_mul_f32 {pr(p + r)}, {pr(g + r)}, {pr(u + r)}" for r in (0, 2)]
        ops += [pkfma(t + r, t + r, VV[tt], VV[tt]) for r in (0, 2)]
        ops += [f"v_rcp_f32 v{t + r}, v{t + r}" for r in range(4)]
        ops += ["s_nop 0"]
        ops += [f"v_pk_mul_f32 {pr(p + r)}, {pr(p + r)}, {pr(t + r)}" for r in (0, 2)]
        ops += [f"v_cvt_pk_bf16_f32 v{o}, v{p}, v{p + 1}", f"v_cvt_pk_bf16_f32 v{o + 1}, v{p + 2}, v{p + 3}"]
        ops += [f"ds_write_b64 v12, v[{o}:{o + 1}] offset:{tt * 18 * KB}"]
    ahead = [wload(15 + n, n) for n in range(18)]
    for i, t in enumerate(ops):
        a(t)
        if reads and i % 4 != 3:
            a(reads.pop(0))
        if i % 6 == 5 and len(ahead) > 5:
            a(ahead.pop(0))
    for t in reads + ahead:
        a(t)
    a(f"s_add_u32 s23, s23, {18 * KB}")
    a("s_waitcnt lgkmcnt(0)")
    a("s_barrier")
    for ks in (16, 17):
        for tt in range(4):
            a(hread(tt, ks))
    a("s_mov_b32 s25, 0")
    a("s_waitcnt lgkmcnt(0)")
    mark(a, 14)

    def down_epi(e0, e1):
        ops = []
        for pr, e in enumerate((e0, e1)):
            o = TMP + 4 * pr
            for h in range(2):
                s = STG + 4 * (2 * pr + h)
                ops.append((f"v_cvt_pk_bf16_f32 v{o + 2 * h}, v{s}, v{s + 1}", 1, e))
                ops.append((f"v_cvt_pk_bf16_f32 v{o + 2 * h + 1}, v{s + 2}, v{s + 3}", 1, e))
            ops.append((f"s_nop 0\nv_permlane16_swap_b32 v{o}, v{o + 2}", 2, e))
            ops.append((f"v_permlane16_swap_b32 v{o + 1}, v{o + 3}", 2, e))
            ops.append((f"buffer_store_dwordx4 v[{o}:{o + 3}], v{178 + pr}, s[72:75], s27 offen sc1", 2, e))
            ops.append((f"ds_write_b128 v{OA + pr}, v[{o}:{o + 3}]", 2, e))
            ops.append((f"v_add_u32 v{OA + pr}, v{OA + pr}, v{OA + 2 + pr}", 1, e))
        return ops

    def down_trip(half, vm, last=0, emit=True):
        out = a if emit else Asm()
        mark_dyn(out, 21, "s25")
        base = 0 if half else 18
        mf, pinned = [], {}
        for G in range(6):
            for tt in range(4):
                for kk in range(3):
                    ks = 3 * G + kk
                    c = ACC + 4 * tt
                    d = STG + 4 * tt if ks == 17 else c
                    src = "0" if ks == 0 else f"v[{c}:{c + 3}]"
                    w = slot_reg(base + ks)
                    mf.append(f"v_mfma_f32_16x16x32_bf16 v[{d}:{d + 3}], v[{w}:{w + 3}], {xreg(tt, ks)}, {src}")
            for kk in range(3):
                n = 3 * G + kk
                if not last or (last == 1 and G == 0):
                    pinned[12 * G + 4 * kk + 1] = [(wload((base + n + 33) % 36, n), 2)]
                elif early and (last == 2 or G >= 2):
                    pinned[12 * G + 4 * kk + 1] = [(early.pop(0), 2)]
        gaps = pack_gaps(72, pinned, down_epi(Cfg.epi_gap, Cfg.epi_gap2 if not last else Cfg.epi_gap))
        check_stage_reads(mf, gaps, STG, 16)
        store_groups = [i // 12 for i in range(72) for t, _ in gaps[i] if "store" in t]
        for i in range(72):
            G = i // 12
            if i % 12 == 0 and last:
                out(f"s_waitcnt vmcnt({vm.count(('w', base + 3 * G + 2))})")
            elif i % 12 == 0:
                extra = sum(1 for sg in store_groups if sg < G)
                if not half:
                    extra += len(store_groups)
                out(f"s_waitcnt vmcnt({30 + extra})")
            if i == 36 and half and not last and emit:
                skip = a.label("early")
                a("s_cmp_lg_u32 s25, 6")
                a(f"s_cbranch_scc1 {skip}")
                a(f"s_waitcnt vmcnt({vm.count(('s', 0))})")
                a("s_barrier")
                a(f"s_cmp_lg_u32 s3, {Cfg.pw}")
                a(f"s_cbranch_scc1 {skip}")
                a("v_lshlrev_b32 v15, 7, v0")
                a("v_mov_b32 v1, s76")
                a("s_mov_b64 exec, 0xff")
                a("buffer_store_dword v1, v15, s[8:11], s29 offen sc1")
                a("s_mov_b64 exec, -1")
                a(f"{skip}:")
            if i == 12 * Cfg.early2_at and last == 2:
                skip = a.label("early")
                a(f"s_waitcnt vmcnt({vm.count(('s', 0))})")
                a("s_barrier")
                a(f"s_cmp_lg_u32 s3, {Cfg.pw}")
                a(f"s_cbranch_scc1 {skip}")
                a("s_mov_b64 exec, 0xff")
                a("buffer_store_dword v1, v15, s[8:11], s29 offen offset:32 sc1")
                a("s_mov_b64 exec, -1")
                a(f"{skip}:")
            if i == 24 and last == 1:
                check_early(a, 0, abort)
            out(mf[i])
            for text, _ in gaps[i]:
                out(text)
                if "buffer_store" in text:
                    vm.issue(("s", half))
                elif "s[48:51]" in text:
                    vm.issue(("w", (base + 3 * G + (i % 12) // 4 + 33) % 36))
                elif "buffer_load" in text:
                    vm.issue("e")
            if i == 14 and last == 1:
                out("s_load_dwordx8 s[56:63], s[38:39], 0 glc")
            if i == 66:
                out(f"s_mov_b32 s74, {WS_SIZE}")
            if i == 67:
                out(f"s_add_u32 s27, s27, {KB}")
            if i == 68:
                out("s_add_u32 s25, s25, 1")
            if i == 70:
                out(f"s_add_u32 s23, s23, {18 * KB}")

    lp, mid = a.label("ffn_dn"), a.label("ffn_dn_mid")
    vm = Vm()
    down_trip(1, vm, emit=False)
    a(f"s_branch {mid}")
    a(f"{lp}:")
    down_trip(0, vm)
    a(f"{mid}:")
    down_trip(1, vm)
    a("s_cmp_lt_u32 s25, 7")
    a(f"s_cbranch_scc1 {lp}")
    down_trip(0, vm, last=1)
    down_trip(1, vm, last=2)
    assert not early
    mark(a, 15)
    a("s_nop 7")
    fin = [t for t, _, _ in down_epi(0, 0)]
    for t in fin[:4] + fin[9:13] + fin[4:7] + fin[13:16] + fin[7:8] + fin[16:17]:
        a(t)
    a("s_waitcnt lgkmcnt(0)")
    publish(a, PH_FFN)
    mark(a, 20)


def k_main(a):
    name = NAME + "_kernel"
    kernel_begin(a, name)
    end, last, loop = "L_main_end", "L_main_last", "L_main_layer"
    Cfg.sv = 254
    entry(a, name, 256, end, ["s_load_dwordx4 s[16:19], s[0:1], 0", "s_load_dwordx2 s[22:23], s[0:1], 16",
                        "s_load_dwordx8 s[24:31], s[0:1], 32"])
    a(f"s_mov_b32 s7, {EPOCH}")
    a("s_load_dword s76, s[4:5], s7")
    a("s_mov_b64 s[20:21], s[18:19]")
    a("s_mov_b64 s[18:19], s[16:17]")
    srd(a, 48, "s4", "s5", WS_SIZE)
    tile_map(a, "s40", "s41", Cfg.jx)
    a("s_mov_b32 s42, 0")
    a("s_mov_b32 s43, 0")
    a("s_lshl_b32 s44, s41, 10")
    a(f"s_add_u32 s44, s44, {FLAGS + FPH}")
    a("v_lshlrev_b32 v253, 4, v0")
    if Cfg.stamps:
        a("v_mov_b32 v254, 0")
        a("v_mov_b32 v255, 0")
    mark(a, 31)
    a("; ---- prep")
    phase_prep(a, end)
    qkv_prefetch(a, 0, QR - 1)
    a(f"{loop}:")
    a("; ---- qkv")
    phase_qkv(a, end)
    a("; ---- wo")
    phase_wo(a, end)
    a("; ---- ffn")
    phase_ffn(a, end)
    a("; ---- red")
    tail = phase_red(a, end, last)
    a("s_mov_b32 s42, 1")
    a(f"s_mov_b32 s43, {LSTR}")
    a(f"s_add_u32 s44, s44, {4 * FPH}")
    a(f"s_branch {loop}")
    a(f"{last}:")
    tail()
    done = a.label("done")
    a("s_or_b32 s7, s40, s41")
    a("s_or_b32 s7, s7, s3")
    a(f"s_cbranch_scc1 {done}")
    a("v_mov_b32 v1, s76")
    a(f"s_mov_b32 s7, {EPOCH}")
    a("s_mov_b64 exec, 1")
    a("buffer_store_dword v1, off, s[8:11], s7 sc1")
    a("s_mov_b64 exec, -1")
    a(f"{done}:")
    if Cfg.stamps:
        a("s_waitcnt vmcnt(0)")
        mark(a, 19)
        dump_marks(a, 1)
    a(f"{end}:")
    a("s_endpgm")
    a("L_main_code_end:")
    return name, 256, 256


def build(stamps=False):
    Cfg.stamps = stamps
    a = Asm()
    a('.amdgcn_target "amdgcn-amd-amdhsa--gfx950"')
    name, nv, na = k_main(a)
    kernel_desc(a, name, nv, na, 102)
    text = HEADER + f"; @launch grid=(256,1,1) block=(256,1,1) lds={160 * KB}\n" + a.text()
    assert not re.search(r"s_(add|sub)_u32 [^,]+, [^,]+, -\d", text), "negative literal in unsigned address arithmetic"
    bad = hazards.check(text)
    if bad:
        print("\n".join(bad[:40]), file=sys.stderr)
        raise SystemExit(f"{len(bad)} hazards")
    return text


if __name__ == "__main__":
    out = sys.argv[1] if len(sys.argv) > 1 else os.path.join(os.path.dirname(os.path.abspath(__file__)), "..", NAME + ".s")
    stamps = "--stamps" in sys.argv
    for x in sys.argv[2:]:
        if x.startswith("--set="):
            for kv in x[6:].split(","):
                k, v = kv.split(":")
                setattr(Cfg, k, int(v))
    open(out, "w").write(build(stamps))
```

```python
import math
import os
import re
import struct
import sys

sys.path.insert(0, os.path.dirname(os.path.abspath(__file__)))
from asmlib import Asm, kernel_begin, kernel_desc, reg, srd
import hazards

NAME = "interleave_layers__sliding_local_dilated__glu_gated_geglu__prompt"
KB = 1024
GB = 9216
WS_SIZE = 256 << 20
WQ = 0
WO = 0x240000
WF = 0x300000
WSTR = 486 * KB
FLAGS = 0x1240000
FPH = 256 * 128
SL_WQ, SL_WF, SL_WO, SL_EARLY = 9, 10, 11, 12
EPOCH = 0x12C0000
PART = 0x1300000
XN = 0x2500000
OO = 0x2740000
X2 = 0x2980000
XC = 0x2BC0000
MEAN = 0x2E00000
STAT = 0x2E10000
MEAN1 = 0x2E30000
LSTR = 0x940000
OOB = 0x40000000
STAMP_OFF = 255 << 20

HEADER = """; Kernarg layout for this problem (80 bytes, ptrs only, base s[0:1]):
;
;   wo   : x1 = x + o @ wo for 32 tokens x 144 columns, stored as x1 - mean(x1) plus mean and sums of squares
; Hand-offs between workgroups: write-through (sc1) stores, drained by every wave, then one flag word per consumer;
"""


def f32(x):
    return "0x%08x" % struct.unpack("<I", struct.pack("<f", x))[0]


def sdiv(a, dst, src, d, hi):
    m = -(-(1 << 20) // d)
    assert all((x * m) >> 20 == x // d for x in range(hi + 1)) and hi * m < (1 << 32)
    a(f"s_mul_i32 {dst}, {src}, {m}")
    a(f"s_lshr_b32 {dst}, {dst}, 20")


def sdivmod(a, q, r, src, d, hi):
    sdiv(a, q, src, d, hi)
    a(f"s_mul_i32 {r}, {q}, {d}")
    a(f"s_sub_u32 {r}, {src}, {r}")


def csel(a, dst, x, y):
    a(f"s_mov_b32 {dst}, {y}")
    a(f"s_cmov_b32 {dst}, {x}")


class Vm:
    def __init__(self):
        self.ops = []

    def issue(self, tag):
        self.ops.append(tag)

    def count(self, *tags):
        last = max(i for i, t in enumerate(self.ops) if t in tags)
        return len(self.ops) - 1 - last


MARK_NAMES = {21: "pre.x0", 22: "pre.q", 23: "pre.o", 24: "pre.set", 25: "pre.raw"}
MARK_ORDER = [31, 21, 23, 24, 25, 28, 29, 30, 27, 0, 1, 2, 3, 4, 5, 6, 7, 8, 9, 10, 11, 12, 13, 14, 15, 20, 16, 17, 18, 19]


class Cfg:
    stamps = False
    tripmarks = 0
    jx = 2
    pw = 0
    pollw = 3
    code_warm = 3
    w_per_ks = 3
    wo_per_ks = 4
    wo_gap = 8
    red_pre = 7
    red_gap = 16
    red_feed = 1
    red_post = 12
    epi_gap = 6
    epi_gap2 = 40
    early2_at = 2


def tile_map(a, sj, smt, jx):
    lg = jx.bit_length() - 1
    a(f"s_and_b32 {sj}, s2, {8 // jx - 1}")
    a(f"s_lshl_b32 {sj}, {sj}, {lg}")
    a(f"s_bfe_u32 s7, s2, {3 | (lg << 16)}")
    a(f"s_add_u32 {sj}, {sj}, s7")
    a(f"s_bfe_u32 {smt}, s2, {(3 - lg) | (lg << 16)}")
    a(f"s_lshl_b32 {smt}, {smt}, {5 - lg}")
    a(f"s_lshr_b32 s7, s2, {3 + lg}")
    a(f"s_add_u32 {smt}, {smt}, s7")


def entry(a, name, nwg, end, extra_loads=()):
    a(f"s_cmp_ge_u32 s2, {nwg}")
    a(f"s_cbranch_scc1 {end}")
    a("s_load_dwordx2 s[4:5], s[0:1], 72")
    for l in extra_loads:
        a(l)
    a("s_getpc_b64 s[96:97]")
    a("L_main_pc:")
    a(f"s_sub_u32 s96, s96, L_main_pc-{name}")
    a("s_subb_u32 s97, s97, 0")
    a("s_and_b32 s97, s97, 0xffff")
    a(f"s_mov_b32 s98, L_main_code_end-{name}")
    a("s_mov_b32 s99, 0x20000")
    a("s_lshr_b32 s7, s2, 3")
    a("s_lshl_b32 s7, s7, 11")
    a("v_lshl_add_u32 v253, v0, 3, s7")
    if Cfg.code_warm:
        a("buffer_load_dwordx2 v[2:3], v253, s[96:99], 0 offen")
    a("v_lshrrev_b32 v1, 6, v0")
    a("v_and_b32 v0, 63, v0")
    a("v_readfirstlane_b32 s3, v1")
    a("s_waitcnt lgkmcnt(0)")
    srd(a, 8, "s4", "s5", WS_SIZE)


def mark(a, idx):
    if Cfg.stamps:
        a("s_memrealtime s[100:101]")
        a("s_memtime vcc")
        a("s_lshl_b32 m0, s42, 5")
        a(f"s_add_u32 m0, m0, {idx}")
        a("s_waitcnt lgkmcnt(0)")
        a(f"v_writelane_b32 v{Cfg.sv}, s100, m0")
        a(f"v_writelane_b32 v{Cfg.sv + 1}, vcc_lo, m0")


def mark_dyn(a, base, sreg):
    if Cfg.stamps and Cfg.tripmarks:
        a("s_memrealtime s[100:101]")
        a("s_memtime vcc")
        a("s_lshl_b32 m0, s42, 5")
        a(f"s_add_u32 m0, m0, {sreg}")
        a(f"s_add_u32 m0, m0, {base}")
        a("s_waitcnt lgkmcnt(0)")
        a(f"v_writelane_b32 v{Cfg.sv}, s100, m0")
        a(f"v_writelane_b32 v{Cfg.sv + 1}, vcc_lo, m0")


def dump_marks(a, slot):
    if Cfg.stamps:
        a("s_lshl_b32 s7, s2, 2")
        a("s_add_u32 s7, s7, s3")
        a("s_lshl_b32 s7, s7, 9")
        a(f"s_add_u32 s7, s7, {STAMP_OFF + slot * 0x80000}")
        a("v_lshlrev_b32 v1, 2, v0")
        a(f"buffer_store_dword v{Cfg.sv}, v1, s[8:11], s7 offen")
        a(f"buffer_store_dword v{Cfg.sv + 1}, v1, s[8:11], s7 offen offset:256")


def code_warm(a, dst):
    if Cfg.code_warm:
        a("s_lshr_b32 s7, s2, 3")
        a("s_lshl_b32 s7, s7, 2")
        a("s_add_u32 s7, s7, s3")
        a("s_lshl_b32 s7, s7, 9")
        a("v_lshrrev_b32 v1, 1, v253")
        a("v_add_u32 v1, s7, v1")
        a(f"buffer_load_dwordx2 {dst}, v1, s[96:99], 0 offen")


PH_QKV, PH_WO, PH_FFN, PH_RED = range(4)


def publish(a, phase, extra=None):
    skip = a.label("pub")
    a("v_lshlrev_b32 v15, 7, v0")
    a("s_lshl_b32 s6, s40, 2")
    a("s_add_u32 s6, s6, s44")
    if phase > 0:
        a(f"s_add_u32 s6, s6, {phase * FPH}")
    elif phase < 0:
        a(f"s_sub_u32 s6, s6, {-phase * FPH}")
    a("v_mov_b32 v1, s76")
    a("s_mov_b64 vcc, 0xff")
    if phase % 4 == PH_RED:
        a("v_lshrrev_b32 v14, 3, v0")
        a("v_lshl_add_u32 v15, v14, 3, v15")
        a("s_cmp_ge_u32 s40, 6")
        a("s_cselect_b32 s7, s41, 31")
        a("s_cmp_lt_u32 s7, 31")
        a("s_cmov_b64 vcc, 0xffff")
    a("s_waitcnt vmcnt(0)")
    a("s_barrier")
    a(f"s_cmp_lg_u32 s3, {Cfg.pw}")
    a(f"s_cbranch_scc1 {skip}")
    a("s_mov_b64 exec, vcc")
    a("buffer_store_dword v1, v15, s[8:11], s6 offen sc1")
    if extra:
        extra(skip)
    a(f"{skip}:")
    a("s_mov_b64 exec, -1")


def column_flag(a, slot, word="s41"):
    a("s_lshl_b32 s6, s40, 7")
    a(f"s_lshl_b32 s7, {word}, 2")
    a("s_add_u32 s6, s6, s7")
    a(f"s_add_u32 s6, s6, {FLAGS + slot * FPH}")
    a("s_mov_b64 exec, 0xffffffff")
    a("v_lshlrev_b32 v15, 10, v0")
    a("v_mov_b32 v1, s76")
    a("buffer_store_dword v1, v15, s[8:11], s6 offen sc1")


def column_wait(a, slot, abort, n=32):
    lp, again, ok = a.label("cpoll"), a.label("cpoll"), a.label("cpolled")
    a("s_lshl_b32 s7, s41, 3")
    a("s_add_u32 s7, s7, s40")
    a("s_lshl_b32 s7, s7, 7")
    a(f"s_add_u32 s7, s7, {FLAGS + slot * FPH}")
    a("s_add_u32 s68, s4, s7")
    a("s_addc_u32 s69, s5, 0")
    a("s_mov_b32 s6, 0")
    a("s_mov_b32 s7, 0")
    a(f"{lp}:")
    a("s_load_dwordx16 s[52:67], s[68:69], s7 glc")
    a("s_add_u32 s6, s6, 1")
    a("s_waitcnt lgkmcnt(0)")
    for r in range(52, 68, 2):
        a(f"s_xor_b64 s[{r}:{r + 1}], s[{r}:{r + 1}], s[76:77]")
    for d in (8, 4, 2):
        for r in range(52, 52 + d, 2):
            a(f"s_or_b64 s[{r}:{r + 1}], s[{r}:{r + 1}], s[{r + d}:{r + d + 1}]")
    assert 16 < n <= 32
    a(f"s_cbranch_scc1 {again}")
    a(f"s_add_u32 s7, s7, {4 * (n - 16)}")
    a(f"s_cmp_eq_u32 s7, {8 * (n - 16)}")
    a(f"s_cbranch_scc1 {ok}")
    a(f"{again}:")
    a(f"s_cmp_lt_u32 s6, {1 << 20}")
    a(f"s_cbranch_scc1 {lp}")
    a(f"s_branch {abort}")
    a(f"{ok}:")


def wait_flags(a, off, abort, halo=False, extra=None):
    lp, ok, out = a.label("poll"), a.label("polled"), a.label("pollout")
    a(f"s_cmp_lg_u32 s3, {Cfg.pollw}")
    a(f"s_cbranch_scc1 {out}")
    a("s_lshl_b32 s7, s40, 7")
    a("s_add_u32 s7, s7, s44")
    if off > 0:
        a(f"s_add_u32 s7, s7, {off}")
    elif off < 0:
        a(f"s_sub_u32 s7, s7, {-off}")
    a("s_add_u32 s52, s4, s7")
    a("s_addc_u32 s53, s5, 0")
    if halo:
        a("s_cmp_eq_u32 s41, 0")
        a("s_cselect_b32 s7, 0, 32")
    a("s_mov_b32 s6, 0")
    a(f"{lp}:")
    a("s_load_dwordx8 s[56:63], s[52:53], 0 glc")
    if halo:
        a("s_load_dwordx2 s[54:55], s[52:53], s7 glc")
    a("s_add_u32 s6, s6, 1")
    a("s_waitcnt lgkmcnt(0)")
    for r in ([54] if halo else []) + [56, 58, 60, 62]:
        a(f"s_xor_b64 s[{r}:{r + 1}], s[{r}:{r + 1}], s[76:77]")
    a("s_or_b64 s[56:57], s[56:57], s[58:59]")
    a("s_or_b64 s[60:61], s[60:61], s[62:63]")
    if halo:
        a("s_or_b64 s[56:57], s[56:57], s[54:55]")
    a("s_or_b64 s[56:57], s[56:57], s[60:61]")
    a(f"s_cbranch_scc0 {ok}")
    a(f"s_cmp_lt_u32 s6, {1 << 20}")
    a(f"s_cbranch_scc1 {lp}")
    a(f"s_branch {abort}")
    a(f"{ok}:")
    if extra:
        extra(out)
    a(f"{out}:")
    a("s_barrier")


def check_early(a, off, abort):
    lp, ok = a.label("epoll"), a.label("epolled")
    a("s_mov_b32 s6, 0")
    a(f"{lp}:")
    a("s_waitcnt lgkmcnt(0)")
    for r in (56, 58, 60, 62):
        a(f"s_xor_b64 s[{r}:{r + 1}], s[{r}:{r + 1}], s[76:77]")
    a("s_or_b64 s[56:57], s[56:57], s[58:59]")
    a("s_or_b64 s[60:61], s[60:61], s[62:63]")
    a("s_or_b64 s[56:57], s[56:57], s[60:61]")
    a(f"s_cbranch_scc0 {ok}")
    a(f"s_load_dwordx8 s[56:63], s[38:39], {off} glc")
    a("s_add_u32 s6, s6, 1")
    a(f"s_cmp_lt_u32 s6, {1 << 20}")
    a(f"s_cbranch_scc1 {lp}")
    a(f"s_branch {abort}")
    a(f"{ok}:")


def bfrag_voff(a, dst, tmp):
    a(f"v_bfe_u32 {tmp}, v0, 3, 1")
    a(f"v_mul_u32_u24 {dst}, {GB}, {tmp}")
    a(f"v_lshrrev_b32 {tmp}, 4, v0")
    a(f"v_lshl_add_u32 {dst}, {tmp}, 7, {dst}")
    a(f"v_and_b32 {tmp}, 7, v0")
    a(f"v_lshl_add_u32 {dst}, {tmp}, 4, {dst}")


def dtile_voff(a, dst, tmp, tmp2, gstride):
    a(f"v_bfe_u32 {tmp}, v0, 3, 2")
    a(f"s_mov_b32 s7, {gstride}")
    a(f"v_mul_lo_u32 {dst}, {tmp}, s7")
    a(f"v_lshrrev_b32 {tmp}, 5, v0")
    a(f"v_lshl_add_u32 {dst}, {tmp}, 7, {dst}")
    a(f"v_and_b32 {tmp}, 7, v0")
    a(f"v_lshl_add_u32 {dst}, {tmp}, 4, {dst}")


def rowsum_16_32(a, vals, tmp):
    for swap in ("v_permlane32_swap_b32", "v_permlane16_swap_b32"):
        for i, v in enumerate(vals):
            a(f"v_mov_b32 {tmp[i]}, {v}")
        a("s_nop 1")
        for i, v in enumerate(vals):
            a(f"{swap} {tmp[i]}, {v}")
        for i, v in enumerate(vals):
            a(f"v_add_f32 {v}, {v}, {tmp[i]}")


def ln_coeffs(a, vs, vss, rstd, nb):
    a(f"v_mul_f32 {vs}, {f32(1.0 / 576)}, {vs}")
    a(f"v_mul_f32 {vss}, {f32(1.0 / 576)}, {vss}")
    a(f"v_fma_f32 {vss}, -{vs}, {vs}, {vss}")
    a(f"v_max_f32 {vss}, 0, {vss}")
    a(f"v_add_f32 {vss}, {f32(1e-5)}, {vss}")
    a(f"v_rsq_f32 v{rstd}, {vss}")
    a("s_nop 0")
    a(f"v_mul_f32 v{nb}, {vs}, v{rstd}")
    a(f"v_mov_b32 v{rstd + 1}, v{rstd}")
    a(f"v_sub_f32 v{nb}, 0, v{nb}")
    a(f"v_mov_b32 v{nb + 1}, v{nb}")


def normalize(a, src, dst, n, rstd, nb, tmp):
    for i0 in range(0, n, 4):
        k = min(4, n - i0)
        for i in range(k):
            a(f"v_lshlrev_b32 v{tmp + 2 * i}, 16, v{src + i0 + i}")
            a(f"v_and_b32 v{tmp + 2 * i + 1}, s16, v{src + i0 + i}")
        for i in range(k):
            t = tmp + 2 * i
            a(f"v_pk_fma_f32 v[{t}:{t + 1}], v[{t}:{t + 1}], v[{rstd}:{rstd + 1}], v[{nb}:{nb + 1}]")
        for i in range(k):
            t = tmp + 2 * i
            a(f"v_cvt_pk_bf16_f32 v{dst + i0 + i}, v{t}, v{t + 1}")


VR, VM = 172, 175


def red_offsets(a):
    a("s_mov_b32 s16, 0xffff0000")
    a("s_lshl_b32 s7, s3, 10")
    a(f"v_add_u32 v{VR}, s7, v253")
    a(f"v_add_u32 v{VR + 2}, 5120, v{VR}")
    a("v_and_b32 v178, 7, v0")
    a("v_mul_u32_u24 v178, 1152, v178")
    a("v_lshrrev_b32 v179, 3, v0")
    a("v_lshl_add_u32 v178, v179, 4, v178")
    a("s_lshl_b32 s7, s3, 7")
    a(f"v_add_u32 v{VM}, s7, v178")
    a(f"v_add_u32 v{VM + 2}, 640, v{VM}")
    a("s_cmp_eq_u32 s3, 0")
    csel(a, "s17", 4096, OOB)
    a(f"v_add_u32 v{VR + 1}, s17, v{VR}")
    csel(a, "s17", 512, OOB)
    a(f"v_add_u32 v{VM + 1}, s17, v{VM}")


def red_ln_store(a, XB, sX2, sXN, sMEAN, flag):
    for b in range(3):
        a(f"buffer_store_dwordx4 v[{XB + 4 * b}:{XB + 4 * b + 3}], v{VR + b}, s[8:11], {sX2} offen {flag}")
    a("s_mov_b32 s17, 0x3f803f80")
    for i in range(4):
        a(f"v_mov_b32 v{8 + i}, 0")
    for i in range(12):
        a(f"v_dot2c_f32_bf16 v{8 + 2 * (i & 1)}, s17, v{XB + i}")
        a(f"v_dot2c_f32_bf16 v{9 + 2 * (i & 1)}, v{XB + i}, v{XB + i}")
    a("v_and_b32 v12, 7, v0")
    a("v_lshlrev_b32 v12, 3, v12")
    a("s_lshl_b32 s7, s3, 6")
    a("v_add_u32 v13, s7, v12")
    a("v_pk_add_f32 v[8:9], v[8:9], v[10:11]")
    a("s_nop 1")
    a("v_add_f32_dpp v8, v8, v8 row_ror:8 row_mask:0xf bank_mask:0xf")
    a("v_add_f32_dpp v9, v9, v9 row_ror:8 row_mask:0xf bank_mask:0xf")
    rowsum_16_32(a, ["v8", "v9"], ["v10", "v11"])
    a("ds_write_b64 v13, v[8:9]")
    a("s_waitcnt lgkmcnt(0)")
    a("s_barrier")
    T = 40
    for w in range(4):
        a(f"ds_read_b64 v[{T + 2 * w}:{T + 2 * w + 1}], v12 offset:{64 * w}")
    a("s_waitcnt lgkmcnt(0)")
    a(f"v_pk_add_f32 v[{T}:{T + 1}], v[{T}:{T + 1}], v[{T + 2}:{T + 3}]")
    a(f"v_pk_add_f32 v[{T + 4}:{T + 5}], v[{T + 4}:{T + 5}], v[{T + 6}:{T + 7}]")
    a(f"v_pk_add_f32 v[8:9], v[{T}:{T + 1}], v[{T + 4}:{T + 5}]")
    ln_coeffs(a, "v8", "v9", 10, 12)
    a("s_cmp_eq_u32 s3, 0")
    a("s_cselect_b32 s7, 32, 0")
    a("v_lshlrev_b32 v14, 2, v0")
    a("v_cmp_gt_u32 vcc, s7, v0")
    a(f"v_mov_b32 v9, {OOB}")
    a("s_nop 0")
    a("v_cndmask_b32 v14, v9, v14, vcc")
    a(f"buffer_store_dword v8, v14, s[8:11], {sMEAN} offen {flag}")
    normalize(a, XB, 48, 12, 10, 12, T)
    for b in range(3):
        a(f"buffer_store_dwordx4 v[{48 + 4 * b}:{51 + 4 * b}], v{VR + b}, s[8:11], {sXN} offen {flag}")


def red_setup(a):
    red_offsets(a)
    a("s_lshl_b32 s21, s41, 3")
    a("s_add_u32 s21, s21, s40")
    a(f"s_mul_i32 s18, s21, {GB}")
    a(f"s_mul_i32 s20, s21, {8 * GB}")
    a(f"s_add_u32 s20, s20, {PART}")
    loads = []
    for k in range(7):
        for b in range(2):
            r = slot_reg(18 + 2 * k + b)
            t = f"buffer_load_dwordx4 v[{r}:{r + 3}], v{VR + b}, s[8:11], s19 offen sc1"
            loads.append(red_source("s19", k) + t if b == 0 else t)
    return loads


OWN = 4 * KB


def red_source(dst, k):
    return (f"s_add_u32 s7, s40, {k + 1}\ns_and_b32 s7, s7, 7\ns_mul_i32 s7, s7, {GB}\ns_add_u32 {dst}, s7, s20\n")


def phase_red(a, abort, last):
    ACC, TMP, LD, XR, XB = 16, 40, 60, 92, 120
    a("s_add_u32 s19, s18, s43")
    a(f"s_add_u32 s22, s19, {XC}")
    a("s_lshl_b32 s23, s21, 5")
    a("s_add_u32 s23, s23, s43")
    a(f"s_add_u32 s23, s23, {MEAN1}")
    other = a.label("late")
    assert Cfg.pollw >= 2
    a("s_cmp_ge_u32 s3, 2")
    a(f"s_cbranch_scc1 {other}")
    a("s_load_dwordx8 s[56:63], s[38:39], 32 glc")
    a(f"{other}:")
    a("v_and_b32 v12, 7, v0")
    a("v_lshlrev_b32 v12, 2, v12")
    a("buffer_load_dword v10, v12, s[8:11], s23 offen sc1")
    for b in range(3):
        a(f"buffer_load_dwordx4 v[{XR + 4 * b}:{XR + 4 * b + 3}], v{VR + b}, s[8:11], s22 offen sc1")

    def unpack(dst, r):
        for i in range(4):
            a(f"v_lshlrev_b32 v{dst + 2 * i}, 16, v{r + i}")
            a(f"v_and_b32 v{dst + 2 * i + 1}, s16, v{r + i}")

    def add(b, r):
        unpack(TMP, r)
        for i in range(4):
            c = ACC + 8 * b + 2 * i
            a(f"v_pk_add_f32 v[{c}:{c + 1}], v[{c}:{c + 1}], v[{TMP + 2 * i}:{TMP + 2 * i + 1}]")

    pf = Asm()
    qkv_prefetch(pf, 0, QR - 1, "s42")
    queue, chunk = [], ""
    for ln in pf.lines:
        chunk += ln + "\n"
        if "buffer_load" in ln:
            queue.append(chunk)
            chunk = ""
    vm = Vm()

    def feed(n):
        for _ in range(n):
            if queue:
                a(queue.pop(0))
                vm.issue("w")

    OW = [148, 152, 156]
    a(f"v_min_u32 v13, {9 * KB}, v{VR + 1}")
    a(f"ds_read_b128 v[{OW[0]}:{OW[0] + 3}], v{VR} offset:{OWN}")
    a(f"ds_read_b128 v[{OW[1]}:{OW[1] + 3}], v13 offset:{OWN}")
    a(f"ds_read_b128 v[{OW[2]}:{OW[2] + 3}], v{VR + 2} offset:{OWN}")
    setup, first = queue[0].rsplit("buffer_load", 1)
    a(setup)
    queue[0] = "buffer_load" + first

    def gap_feed(n):
        skip = a.label("nopf")
        a("s_cmp_lg_u32 s42, 0")
        a(f"s_cbranch_scc1 {skip}")
        feed(n)
        a(f"{skip}:")

    def late_loads():
        for j in range(7):
            a(red_source("s19", j) + f"buffer_load_dwordx4 v[{LD + 4 * j}:{LD + 4 * j + 3}], v{VR + 2}, s[8:11], s19 offen sc1")

    for b in range(2):
        unpack(ACC + 8 * b, slot_reg(18 + b))
    later, done = a.label("late"), a.label("late")
    a("s_cmp_ge_u32 s3, 2")
    a(f"s_cbranch_scc1 {later}")
    check_early(a, 32, abort)
    late_loads()
    a(f"{later}:")
    gap_feed(Cfg.red_gap // 2)
    for j in range(1, Cfg.red_pre):
        for b in range(2):
            add(b, slot_reg(18 + 2 * j + b))
        if j == 1:
            gap_feed(Cfg.red_gap - Cfg.red_gap // 2)
    wait_flags(a, PH_FFN * FPH, abort)
    mark(a, 16)
    a("s_cmp_lt_u32 s3, 2")
    a(f"s_cbranch_scc1 {done}")
    late_loads()
    a(f"{done}:")
    for j in range(7):
        vm.issue(j)
    for j in range(Cfg.red_pre, 7):
        for b in range(2):
            add(b, slot_reg(18 + 2 * j + b))
    a("s_cmp_eq_u32 s3, 0")
    a("s_cselect_b32 s7, 1.0, 0")
    a("s_cselect_b32 s6, -1, 0")
    a("s_waitcnt vmcnt(7) lgkmcnt(0)")
    for i in range(4):
        a(f"v_and_b32 v{OW[1] + i}, s6, v{OW[1] + i}")
    a("v_mul_f32 v11, s7, v10")
    for b in range(2):
        add(b, XR + 4 * b)
    unpack(ACC + 16, XR + 8)
    for b in range(3):
        add(b, OW[b])
    for b in range(3):
        for i in range(4):
            c = ACC + 8 * b + 2 * i
            sel = "op_sel:[0,1] op_sel_hi:[1,1]" if b == 1 else "op_sel_hi:[1,0]"
            a(f"v_pk_add_f32 v[{c}:{c + 1}], v[{c}:{c + 1}], v[10:11] {sel}")
    for j in range(7):
        a(f"s_waitcnt vmcnt({vm.count(j)})")
        feed(Cfg.red_feed)
        add(2, LD + 4 * j)
    feed(len(queue) - Cfg.red_post)
    for b in range(3):
        for i in range(4):
            c = ACC + 8 * b + 2 * i
            a(f"v_cvt_pk_bf16_f32 v{XB + 4 * b + i}, v{c}, v{c + 1}")
    mark(a, 17)
    a("s_cmp_lg_u32 s42, 0")
    a(f"s_cbranch_scc1 {last}")
    a(f"s_add_u32 s19, s18, {X2 + LSTR}")
    a(f"s_add_u32 s20, s18, {XN + LSTR}")
    a("s_lshl_b32 s22, s21, 7")
    a(f"s_add_u32 s22, s22, {MEAN + LSTR}")
    red_ln_store(a, XB, "s19", "s20", "s22", "sc1")
    mark(a, 18)
    publish(a, PH_RED)
    mark(a, 19)
    feed(99)
    a(chunk)

    def tail():
        for b in range(3):
            a(f"buffer_store_dwordx4 v[{XB + 4 * b}:{XB + 4 * b + 3}], v{VM + b}, s[12:15], s18 offen sc0 sc1")
    return tail


ZB = 96 * KB


def o_row(a, dst, vc, vj, t0, t1):
    a(f"v_mul_u32_u24 {t0}, 7282, {vc}")
    a(f"v_lshrrev_b32 {t0}, 16, {t0}")
    a(f"v_mul_u32_u24 {t1}, 9, {t0}")
    a(f"v_sub_u32 {t1}, {vc}, {t1}")
    a(f"v_mul_u32_u24 {t0}, 72, {t0}")
    a(f"v_cmp_eq_u32 vcc, 8, {t1}")
    a(f"v_lshrrev_b32 {dst}, 1, {t1}")
    a(f"v_mad_u32_u24 {dst}, {dst}, 18, {t0}")
    a(f"v_and_b32 {t1}, 1, {t1}")
    a(f"v_lshl_add_u32 {dst}, {t1}, 3, {dst}")
    a(f"v_add_u32 {dst}, {dst}, {vj}")
    a(f"v_lshrrev_b32 {t1}, 1, {vj}")
    a(f"v_mad_u32_u24 {t0}, {t1}, 18, {t0}")
    a(f"v_and_b32 {t1}, 1, {vj}")
    a(f"v_add3_u32 {t0}, {t0}, {t1}, 16")
    a(f"v_cndmask_b32 {dst}, {dst}, {t0}, vcc")


def tr_rows(a, dst, tmp, shift, pitch):
    a(f"v_lshrrev_b32 {dst}, 4, v0")
    a(f"v_lshlrev_b32 {dst}, {shift}, {dst}")
    a(f"v_bfe_u32 {tmp}, v0, 2, 2")
    a(f"v_add_u32 {dst}, {dst}, {tmp}")
    a(f"v_mul_u32_u24 {dst}, {pitch}, {dst}")
    a(f"v_and_b32 {tmp}, 3, v0")
    a(f"v_lshl_add_u32 {dst}, {tmp}, 3, {dst}")


def qfrag(a, t, pending):
    a(f"s_waitcnt lgkmcnt({pending})")
    for i in range(4):
        a(f"v_lshl_or_b32 v{32 + 4 * t + i}, v{137 + 8 * t + 2 * i}, 16, v{136 + 8 * t + 2 * i}")
        if t == 3:
            a(f"v_cndmask_b32 v{32 + 4 * t + i}, 0, v{32 + 4 * t + i}, s[22:23]")
    a(f"buffer_store_dwordx4 v[{32 + 4 * t}:{35 + 4 * t}], v253, s[8:11], s33 offen offset:{t * KB} sc1")


def phase_prep(a, abort):
    srd(a, 12, "s18", "s19", 2048 * 1152)
    srd(a, 64, "s20", "s21", 576 * 3456)
    srd(a, 68, "s22", "s23", 576 * 1152)
    red_offsets(a)
    a("s_lshl_b32 s21, s41, 3")
    a("s_add_u32 s21, s21, s40")
    a(f"s_mul_i32 s18, s21, {GB}")
    for b in range(3):
        a(f"buffer_load_dwordx4 v[{16 + 4 * b}:{19 + 4 * b}], v{VM + b}, s[12:15], s18 offen nt")
    mark(a, 21)
    srd(a, 12, "s30", "s31", 2048 * 1152)
    a("s_lshl_b32 s79, s3, 14")
    a(f"s_add_u32 s79, s79, {ZB}")
    PS = 8 * KB
    lo, lw, l3 = a.label("prep_o"), a.label("prep_m"), a.label("prep_go")
    nq2, l4, l5 = a.label("prep_o"), a.label("prep_m"), a.label("prep_done")
    a("s_and_b32 s32, s41, 15")
    a("s_lshl_b32 s32, s32, 1")
    a("s_lshr_b32 s7, s41, 4")
    a("s_add_u32 s32, s32, s7")
    a("s_lshl_b32 s36, s32, 3")
    a("s_add_u32 s36, s36, s40")
    a("s_sub_u32 s36, s36, 144")
    a("s_cmp_ge_u32 s32, 18")
    a(f"s_cbranch_scc1 {lo}")
    a(f"s_mul_i32 s35, s32, {32 * 3456}")
    a("s_mul_i32 s7, s40, 144")
    a("s_and_b32 s46, s7, 127")
    a("s_sub_u32 s7, s7, s46")
    a("s_add_u32 s35, s35, s7")
    a(f"s_mul_i32 s7, s3, {4 * 3456}")
    a("s_add_u32 s35, s35, s7")
    a("v_lshrrev_b32 v8, 4, v0")
    a("v_mul_u32_u24 v8, 3456, v8")
    a("v_and_b32 v9, 15, v0")
    a("v_lshl_add_u32 v8, v9, 4, v8")
    a("s_lshl_b32 s34, s3, 10")
    for m in range(6):
        a(f"s_add_u32 m0, s34, {PS + m * 4 * KB}")
        a(f"s_add_u32 s7, s35, {(m & 1) * 16 * 3456 + (m >> 1) * 1152}")
        a("buffer_load_dwordx4 v8, s[64:67], s7 offen nt lds")
    a(f"s_branch {l3}")
    a(f"{lo}:")
    a("s_cmp_ge_u32 s36, 54")
    a(f"s_cbranch_scc1 {lw}")
    sdivmod(a, "s33", "s34", "s36", 3, 53)
    a("s_lshl_b32 s7, s33, 2")
    a("s_add_u32 s7, s7, s3")
    a("v_mov_b32 v8, s7")
    a("v_lshrrev_b32 v9, 3, v0")
    o_row(a, "v10", "v8", "v9", "v11", "v12")
    a("v_mul_u32_u24 v10, 1152, v10")
    a("v_and_b32 v9, 7, v0")
    a("v_lshl_add_u32 v10, v9, 4, v10")
    a("s_mul_i32 s35, s34, 384")
    a("s_lshl_b32 s6, s3, 10")
    for m in range(3):
        a(f"s_add_u32 m0, s6, {PS + m * 4 * KB}")
        a(f"s_add_u32 s7, s35, {m * 128}")
        a("buffer_load_dwordx4 v10, s[68:71], s7 offen nt lds")
    a(f"s_branch {l3}")
    a(f"{lw}:")
    a("s_sub_u32 s37, s36, 54")
    a("s_lshl_b32 s7, s3, 6")
    a("s_add_u32 s37, s37, s7")
    a("s_cmp_ge_u32 s37, 36")
    a(f"s_cbranch_scc1 {l3}")
    a("s_lshl_b32 s7, s37, 1")
    a("v_bfe_u32 v8, v0, 3, 1")
    a("v_add_u32 v8, s7, v8")
    a("v_and_b32 v9, 7, v0")
    o_row(a, "v10", "v8", "v9", "v11", "v12")
    a("v_mul_u32_u24 v10, 1152, v10")
    a("v_lshrrev_b32 v9, 4, v0")
    a("v_lshl_add_u32 v10, v9, 4, v10")
    for ks in range(18):
        a(f"buffer_load_dwordx4 v[{64 + 4 * ks}:{67 + 4 * ks}], v10, s[68:71], 0 offen offset:{64 * ks}")
    a(f"{l3}:")
    mark(a, 23)
    a("s_lshl_b32 s7, s32, 2")
    a("s_add_u32 s7, s7, s3")
    light, dec = a.label("blocks"), a.label("blocks")
    a("s_cmp_ge_u32 s7, 72")
    a(f"s_cbranch_scc1 {light}")
    a("s_cmp_ge_u32 s7, 54")
    a("s_cselect_b32 s93, 1, 0")
    a("s_cselect_b32 s6, 54, 0")
    a("s_sub_u32 s7, s7, s6")
    a("s_mul_i32 s17, s7, 3")
    a("s_mov_b32 s45, 1")
    a(f"s_branch {dec}")
    a(f"{light}:")
    a("s_sub_u32 s7, s7, 72")
    a("s_cmp_ge_u32 s7, 22")
    a("s_cselect_b32 s93, 2, 1")
    a("s_cselect_b32 s6, 22, 0")
    a("s_cselect_b32 s17, 0, 54")
    a("s_sub_u32 s7, s7, s6")
    a("s_mul_i32 s7, s7, 5")
    a("s_add_u32 s17, s17, s7")
    a("s_mov_b32 s45, 3")
    a(f"{dec}:")
    a("s_cmp_eq_u32 s93, 1")
    a("s_cselect_b32 s72, s26, s24")
    a("s_cselect_b32 s73, s27, s25")
    a("s_cmp_eq_u32 s93, 2")
    a("s_cselect_b32 s72, s28, s72")
    a("s_cselect_b32 s73, s29, s73")
    csel(a, "s92", 8 * 1152, 8 * 9216)
    csel(a, "s47", 18 * 32 * 1152, 1152)
    a("s_and_b32 s73, s73, 0xffff")
    a(f"s_mov_b32 s74, {576 * 9216}")
    a("s_mov_b32 s75, 0x20000")
    a("s_mul_i32 s47, s47, s40")
    for b in range(5):
        a(f"s_add_u32 s7, s17, {b if b < 3 else b - 3}")
        if b >= 3:
            a("s_add_u32 s7, s7, s45")
        a("s_min_u32 s7, s7, 161")
        sdivmod(a, f"s{ZK[b]}", f"s{ZK[b] + 1}", "s7", 9, 161)
        a(f"s_mul_i32 s7, s{ZK[b]}, s92")
        a("s_lshl_b32 s7, s7, 2")
        a("s_add_u32 s7, s7, s47")
        a(f"s_lshl_b32 s6, s{ZK[b] + 1}, 7")
        a(f"s_add_u32 s{ZS[b]}, s7, s6")
    a("s_lshr_b32 s7, s92, 3")
    a("v_lshrrev_b32 v224, 3, v0")
    a("v_mul_lo_u32 v224, v224, s7")
    a("v_and_b32 v8, 7, v0")
    a("v_lshl_add_u32 v224, v8, 4, v224")
    a("s_waitcnt lgkmcnt(0)")
    a("s_mul_i32 s76, s76, 0x9e3779b1")
    a("s_add_u32 s76, s76, 0x7f4a7c15")
    a("s_mov_b32 s77, s76")
    mark(a, 24)
    few, many = a.label("raw"), a.label("raw")
    for i in range(4):
        a(ffn_raw_dma(0, i))
    a("s_cmp_lt_u32 s32, 18")
    a(f"s_cbranch_scc1 {few}")
    for i in range(8):
        a(ffn_raw_dma(1 + i // 4, i % 4))
    ffn_transpose_dest(a)
    a("s_waitcnt vmcnt(12)")
    a(f"s_branch {many}")
    a(f"{few}:")
    ffn_transpose_dest(a)
    a("s_waitcnt vmcnt(4)")
    a(f"{many}:")
    mark(a, 25)
    a("s_barrier")
    mark(a, 28)
    a("s_cmp_ge_u32 s32, 18")
    a(f"s_cbranch_scc1 {nq2}")
    a("s_mul_i32 s7, s3, 36")
    a("s_add_u32 s7, s7, s46")
    a("v_lshrrev_b32 v8, 4, v0")
    a("v_lshlrev_b32 v8, 11, v8")
    a("v_add_u32 v8, s7, v8")
    a("v_and_b32 v9, 15, v0")
    a("v_cmp_gt_u32 s[22:23], 6, v9")
    a("v_lshrrev_b32 v10, 1, v9")
    a("v_min_u32 v10, 2, v10")
    a("v_lshl_add_u32 v10, v10, 13, v8")
    a("v_and_b32 v11, 1, v0")
    a("v_lshl_add_u32 v10, v11, 1, v10")
    a("v_lshl_add_u32 v8, v9, 1, v8")
    for t in range(4):
        for j in range(8):
            a(f"ds_read_u16 v{136 + 8 * t + j}, v8 offset:{PS + t * 8192 + j * 256}" if t < 3 else
              f"ds_read_u16 v{136 + 8 * t + j}, v10 offset:{PS + 32 + j * 256}")
        if t == 0:
            a("s_lshl_b32 s33, s40, 2")
            a("s_add_u32 s33, s33, s3")
            a("s_mul_i32 s33, s33, 18")
            a("s_add_u32 s33, s33, s32")
            a("s_lshl_b32 s33, s33, 12")
            if WQ:
                a(f"s_add_u32 s33, s33, {WQ}")
        if t:
            qfrag(a, t - 1, 8)
    qfrag(a, 3, 0)
    a(f"s_branch {l5}")
    a(f"{nq2}:")
    a("s_cmp_ge_u32 s36, 54")
    a(f"s_cbranch_scc1 {l4}")
    tr_rows(a, "v8", "v9", 3, 128)
    a("s_lshl_b32 s7, s3, 5")
    a("v_add_u32 v8, s7, v8")
    for m in range(3):
        a(f"ds_read_b64_tr_b16 v[{32 + 4 * m}:{33 + 4 * m}], v8 offset:{PS + m * 4 * KB}")
        a(f"ds_read_b64_tr_b16 v[{34 + 4 * m}:{35 + 4 * m}], v8 offset:{PS + m * 4 * KB + 512}")
    a("s_mul_i32 s34, s34, 12")
    a("s_add_u32 s34, s34, s3")
    a("s_mul_i32 s34, s34, 18")
    a("s_add_u32 s34, s34, s33")
    a("s_lshl_b32 s34, s34, 10")
    for m in range(3):
        a(f"s_add_u32 s7, s34, {WO + m * 4 * 18 * KB}")
        a(f"s_waitcnt lgkmcnt({4 - 2 * m})")
        a(f"buffer_store_dwordx4 v[{32 + 4 * m}:{35 + 4 * m}], v253, s[8:11], s7 offen sc1")
    a(f"s_branch {l5}")
    a(f"{l4}:")
    a("s_cmp_ge_u32 s37, 36")
    a(f"s_cbranch_scc1 {l5}")
    for i in range(4):
        a(f"v_mov_b32 v{28 + i}, 0x3f803f80")
    a("v_and_b32 v9, 15, v0")
    a("v_cmp_eq_u32 vcc, 0, v9")
    a("v_cmp_eq_u32 s[22:23], 1, v9")
    for ks in range(18):
        a(f"v_mfma_f32_16x16x32_bf16 v[32:35], v[{64 + 4 * ks}:{67 + 4 * ks}], v[28:31], {'0' if ks == 0 else 'v[32:35]'}")
    a("v_lshrrev_b32 v10, 5, v0")
    a("v_lshlrev_b32 v10, 8, v10")
    a("v_lshl_add_u32 v10, v9, 4, v10")
    a("v_bfe_u32 v9, v0, 4, 1")
    a("v_lshl_add_u32 v10, v9, 3, v10")
    a("s_lshl_b32 s7, s37, 9")
    a(f"s_add_u32 s7, s7, {WO + 36 * 18 * KB}")
    a("s_nop 0")
    for r in range(4):
        a(f"v_mul_f32 v{32 + r}, {f32(1.0 / 576)}, v{32 + r}")
    a("v_cvt_pk_bf16_f32 v36, v32, v33")
    a("v_cvt_pk_bf16_f32 v37, v34, v35")
    for h in range(2):
        a(f"v_lshlrev_b32 v38, 16, v{36 + h}")
        a(f"v_and_b32 v39, s16, v{36 + h}")
        a(f"v_sub_f32 v38, v{32 + 2 * h}, v38")
        a(f"v_sub_f32 v39, v{33 + 2 * h}, v39")
        a(f"v_cvt_pk_bf16_f32 v{28 + h}, v38, v39")
        a(f"v_cndmask_b32 v{28 + h}, 0, v{28 + h}, s[22:23]")
        a(f"v_cndmask_b32 v{28 + h}, v{28 + h}, v{36 + h}, vcc")
    a("buffer_store_dwordx2 v[28:29], v10, s[8:11], s7 offen sc1")
    a(f"{l5}:")
    a(f"s_add_u32 s19, s18, {X2}")
    a(f"s_add_u32 s20, s18, {XN}")
    a("s_lshl_b32 s22, s21, 7")
    a(f"s_add_u32 s22, s22, {MEAN}")
    red_ln_store(a, 16, "s19", "s20", "s22", "sc1")
    mark(a, 29)

    def more(skip):
        column_flag(a, SL_WQ, "s32")
        a("s_cmp_lt_u32 s32, 18")
        a(f"s_cbranch_scc1 {skip}")
        a("s_lshl_b32 s6, s36, 2")
        a(f"s_add_u32 s6, s6, {FLAGS + SL_WO * FPH}")
        a("s_mov_b64 exec, 1")
        a("buffer_store_dword v1, off, s[8:11], s6 sc1")

    publish(a, PH_RED - 4, more)
    mark(a, 30)
    few, many = a.label("raw"), a.label("raw")
    late = [ffn_raw_dma(b, i) for b in (3, 4) for i in range(4)]
    a("s_cmp_lt_u32 s32, 18")
    a(f"s_cbranch_scc1 {few}")
    for n, label in ((3, None), (1, few)):
        if label:
            a(f"s_branch {many}")
            a(f"{label}:")
        zst = ffn_transpose(a, range(n), list(range(64, 128, 4)))
        a("s_waitcnt lgkmcnt(0)")
        for t in late + zst:
            a(t)
    a(f"{many}:")
    out = a.label("wq_ready")
    a(f"s_cmp_lg_u32 s3, {Cfg.pw}")
    a(f"s_cbranch_scc1 {out}")
    column_wait(a, SL_WQ, abort, 18)
    a(f"{out}:")
    a("s_barrier")
    mark(a, 27)


ZS = [80, 81, 82, 83, 84]
ZK = [52, 54, 56, 58, 60]
ZD = [94, 95, 85, 78, 70]
ZL = [0, 1, 2, 2, 3]
ZQ = list(range(76, 100, 4)) + [176, 180]


def ffn_raw_dma(b, m):
    step = f"s_mov_b32 s71, s{ZS[b]}" if m == 0 else "s_add_u32 s71, s71, s92"
    return f"s_add_u32 m0, s79, {(4 * ZL[b] + m) * KB}\n{step}\nbuffer_load_dwordx4 v224, s[72:75], s71 offen nt lds"


def ffn_transpose_dest(a):
    a(f"s_mul_i32 s68, s40, {4 * WSTR}")
    a(f"s_add_u32 s68, s68, {WF}")
    for b in range(5):
        q, r = f"s{ZK[b]}", f"s{ZK[b] + 1}"
        sdivmod(a, "s6", "s7", q, 3, 17)
        a("s_mul_i32 s6, s6, 6")
        a("s_add_u32 s7, s7, s6")
        a(f"s_mul_i32 s6, {r}, 36")
        a("s_add_u32 s7, s7, s6")
        a("s_mul_i32 s6, s93, 3")
        a("s_add_u32 s7, s7, s6")
        a(f"s_mul_i32 s6, {r}, 18")
        a(f"s_add_u32 s6, s6, {q}")
        a("s_add_u32 s6, s6, 324")
        a("s_cmp_eq_u32 s93, 2")
        a("s_cselect_b32 s7, s6, s7")
        a("s_lshl_b32 s7, s7, 10")
        a(f"s_add_u32 s{ZD[b]}, s7, s68")


def ffn_transpose(a, blocks, regs):
    a("s_cmp_eq_u32 s93, 2")
    a("s_cselect_b32 s6, 2, 3")
    csel(a, "s7", 2048, 512)
    tr_rows(a, "v14", "v15", "s6", 128)
    a("v_add_u32 v14, s79, v14")
    a("v_add_u32 v15, s7, v14")
    stores = []
    for i, b in enumerate(blocks):
        for t in range(4):
            r = regs[4 * i + t]
            a(f"ds_read_b64_tr_b16 v[{r}:{r + 1}], v14 offset:{ZL[b] * 4096 + t * 32}")
            a(f"ds_read_b64_tr_b16 v[{r + 2}:{r + 3}], v15 offset:{ZL[b] * 4096 + t * 32}")
            stores.append(f"s_add_u32 s7, s{ZD[b]}, {t * WSTR}\n"
                          f"buffer_store_dwordx4 v[{r}:{r + 3}], v253, s[8:11], s7 offen sc1")
    return stores


BIG = -1e30


QR = 10
WO_FREE = [(160 + 4 * i, -1) for i in range(24)] + \
    [(16 * (k % QR) + 4 * t, k) for k in range(18 - QR, 18) for t in range(4)]


def wo_reg(ks, sl):
    return WO_FREE[ks * 3 + sl][0]


def qkv_prefetch(a, k0, k1, skip=None):
    if k0 == 0:
        a("s_lshl_b32 s28, s40, 2")
        a("s_add_u32 s28, s28, s3")
        a(f"s_mul_i32 s28, s28, {72 * KB}")
        if WQ:
            a(f"s_add_u32 s28, s28, {WQ}")
    v = "v253"
    a("v_and_b32 v229, 8, v0")
    a("v_lshl_add_u32 v229, v229, 27, v253")
    if skip:
        a(f"s_mul_i32 s7, {skip}, {OOB}")
        a("v_add_u32 v3, s7, v253")
        a("v_or_b32 v229, s7, v229")
        v = "v3"
    for ks in range(k0, k1):
        for l in qkv_wload(ks, v):
            a(l)
        a("s_add_u32 s28, s28, 4096")


def qkv_wload(ks, v="v253", vl="v229"):
    for t in range(4):
        r = 16 * (ks % QR) + 4 * t
        if t == 3:
            v = vl
        yield f"buffer_load_dwordx4 a[{r}:{r + 3}], {v}, s[8:11], s28 offen offset:{t * KB} sc1"


def wo_weight_loads(a):
    setup = []
    s = setup.append
    s("s_lshl_b32 s45, s41, 1")
    s("s_lshr_b32 s7, s40, 2")
    s("s_add_u32 s45, s45, s7")
    s(f"s_mul_i32 s30, s45, {4 * GB}")
    s("s_add_u32 s30, s30, s43")
    s("s_and_b32 s31, s40, 3")
    s("s_mul_i32 s31, s31, 9")
    s("s_add_u32 s31, s31, s3")
    s(f"s_mul_i32 s32, s31, {18 * KB}")
    s(f"s_add_u32 s32, s32, {WO}")
    s(f"s_add_u32 s33, s32, {4 * 18 * KB}")
    s(f"s_add_u32 s34, s32, {8 * 18 * KB}")
    s(f"s_mov_b32 s39, {FLAGS + SL_WO * FPH}")
    s("v_min_u32 v228, 44, v0")
    s("v_lshlrev_b32 v228, 3, v228")
    s("s_cmp_eq_u32 s3, 1")
    s(f"s_cmov_b32 s34, {WO + 36 * 18 * KB}")
    s("s_cmp_lt_u32 s3, 2")
    s(f"s_cselect_b32 s35, 0, {OOB}")
    s("v_add_u32 v5, s35, v253")
    s("s_cmp_eq_u32 s3, 1")
    s("s_cselect_b32 s7, 8, 0")
    s("v_and_b32 v10, s7, v0")
    s("v_lshl_add_u32 v5, v10, 27, v5")
    s("s_cmp_eq_u32 s3, 0")
    s(f"s_cselect_b32 s35, 0, {OOB}")
    s("v_add_u32 v7, s35, v9")
    s("s_lshl_b32 s7, s31, 8")
    s("s_add_u32 s36, s30, s7")
    s(f"s_add_u32 s37, s36, {X2}")
    s(f"s_add_u32 s46, s36, {XC}")
    s("s_lshl_b32 s36, s45, 7")
    s("s_add_u32 s36, s36, s43")
    s(f"s_add_u32 s36, s36, {MEAN1}")
    s("s_lshl_b32 s47, s45, 9")
    s("s_add_u32 s47, s47, s43")
    s(f"s_add_u32 s47, s47, {MEAN}")
    s("v_bfe_u32 v10, v0, 3, 2")
    s("v_and_b32 v8, 7, v0")
    s("v_lshlrev_b32 v8, 2, v8")
    s("v_lshl_add_u32 v8, v10, 7, v8")
    loads = []
    for ks in range(18):
        for sl in range(3):
            r = wo_reg(ks, sl)
            t = f"buffer_load_dwordx4 a[{r}:{r + 3}], v{5 if sl == 2 else 253}, s[8:11], s{32 + sl} offen offset:{(ks & 3) * KB} sc1"
            if ks & 3 == 3:
                t += f"\ns_add_u32 s{32 + sl}, s{32 + sl}, 4096"
            loads.append((t, WO_FREE[ks * 3 + sl][1]))
    for sl in range(3):
        loads.append((f"buffer_load_dwordx4 v[{240 + 4 * sl}:{243 + 4 * sl}], v{7 if sl == 2 else 9}, s[8:11], s37 offen offset:{sl * KB} sc1", -1))
    loads.append(("buffer_load_dword v252, v8, s[8:11], s47 offen sc1", -1))
    return setup, loads


def phase_qkv(a, abort):
    BF, ACC, QO, KO, VO, VL, SEL, CI, BP, BC, BP1 = 16, 56, 132, 152, 172, 182, 192, 196, 200, 204, 208
    bfrag_voff(a, "v2", "v3")
    dtile_voff(a, "v9", "v3", None, GB)
    a(f"s_mul_i32 s22, s41, {8 * GB}")
    a("s_add_u32 s22, s22, s43")
    a(f"s_add_u32 s23, s22, {XN}")
    a(f"s_mul_i32 s7, s3, {2 * GB}")
    a("s_add_u32 s24, s23, s7")
    a("s_cmp_eq_u32 s41, 0")
    a(f"s_cselect_b32 s7, 0, {2 * GB}")
    a("s_sub_u32 s23, s23, s7")
    units = [(0, tt) for tt in range(1, 5)] + [(t, tt) for t in range(1, 4) for tt in range(5)]
    acc = {u: ACC + 4 * i for i, u in enumerate(units)}
    a("s_lshl_b32 s25, s3, 10")
    a("s_add_u32 s25, s25, 1024")
    a("s_mul_i32 s26, s3, 5120")
    a("s_lshl_b32 s7, s3, 9")
    a("s_add_u32 s27, s23, s7")
    a("s_and_b32 s7, s3, 1")
    a("s_add_u32 s7, s7, 4")
    a("s_mul_i32 s29, s7, 5120")
    a("s_lshl_b32 s7, s7, 9")
    a("s_add_u32 s23, s23, s7")
    wait_flags(a, (PH_RED - 4) * FPH, abort, halo=True)
    mark(a, 0)
    def xdma(st):
        for kk in range(6):
            ks = 6 * st + kk
            t = f"s_add_u32 m0, s25, {ks * 5120 - (ks % 8) * 512}\n"
            t += "s_add_u32 s24, s24, 4096\n" if ks and ks % 8 == 0 else "s_nop 0\n"
            yield t + f"buffer_load_dwordx4 v2, s[8:11], s24 offen offset:{(ks % 8) * 512} sc1 lds"
        for sm, so in (("s26", "s27"), ("s29", "s23")):
            yield (f"s_add_u32 m0, {sm}, {st * 30720}\ns_add_u32 s7, {so}, {st * 3072}\n"
                   "buffer_load_dwordx4 v2, s[8:11], s7 offen sc1 lds")

    vm = Vm()
    for t in xdma(0):
        a(t)
        vm.issue(("x", 0))
    main, a = a, Asm()
    for r in [QO, QO + 1, SEL, SEL + 1, SEL + 3] + [QO + 4 * t + 3 for t in range(5)] + [KO + 4 * t + 3 for t in range(5)]:
        a(f"v_mov_b32 v{r}, 0")
    a("v_cmp_eq_u32 vcc, 16, v0")
    a("v_mov_b32 v10, 0x3f80")
    a("v_cmp_eq_u32 s[20:21], 17, v0")
    a(f"v_cndmask_b32 v{SEL + 2}, 0, v10, vcc")
    a("v_and_b32 v11, 3, v0")
    a(f"v_cndmask_b32 v{SEL + 2}, v{SEL + 2}, 1.0, s[20:21]")
    a("v_cmp_eq_u32 vcc, 2, v11")
    a("v_and_b32 v10, 15, v0")
    a("v_lshrrev_b32 v11, 4, v0")
    for r in range(4):
        a(f"v_cndmask_b32 v{CI + r}, 0, 1.0, vcc")
    a("v_lshlrev_b32 v11, 2, v11")
    a("v_sub_u32 v10, v11, v10")
    a(f"v_mov_b32 v12, {f32(BIG)}")
    a("s_cmp_eq_u32 s41, 0")
    a("s_cselect_b64 s[38:39], 0, -1")
    for r in range(4):
        a(f"v_add_u32 v11, {r}, v10")
        a("v_and_b32 v13, 1, v11")
        a("v_cmp_eq_u32 s[20:21], 0, v13")
        a("v_cmp_lt_i32 vcc, 1, v11")
        a("v_cmp_gt_i32 s[18:19], 1, v11")
        a("s_and_b64 vcc, vcc, s[20:21]")
        a("s_and_b64 s[18:19], s[18:19], s[20:21]")
        a("s_and_b64 s[20:21], vcc, s[38:39]")
        a(f"v_cndmask_b32 v{BP + r}, v12, 0, vcc")
        a(f"v_cndmask_b32 v{BC + r}, v12, 0, s[18:19]")
        a(f"v_cndmask_b32 v{BP1 + r}, v12, 0, s[20:21]")
    setup, early = wo_weight_loads(a)
    for t in setup:
        a(t)
    side, chunk = [], ""
    for ln in a.lines:
        chunk += ln + "\n"
        if ln.strip().startswith("v_") and not ln.strip().startswith("v_cmp"):
            side.append(chunk)
            chunk = ""
    side.append(chunk)
    a = main
    a(f"v_add_u32 v6, {45 * KB}, v253")
    a("s_waitcnt vmcnt(0)")
    a("s_barrier")
    mark(a, 1)

    def xread(ks, tt):
        r = BF + 20 * (ks & 1) + 4 * tt
        f = ks * 5 + tt
        return f"ds_read_b128 v[{r}:{r + 3}], v{253 if f < 45 else 6} offset:{(f % 45) * KB}"

    for tt in range(5):
        a(xread(0, tt))
    stage = {1: list(xdma(1)), 2: list(xdma(2))}
    wq = []
    for k in range(QR - 1, 18):
        ls = list(qkv_wload(k))
        ls[3] += "\ns_add_u32 s28, s28, 4096"
        wq += [(l, ("w", k)) for l in ls]
    for ks in range(18):
        cur = BF + 20 * (ks & 1)
        fill = {}
        if ks < 17:
            for tt in range(5):
                fill[tt] = [(xread(ks + 1, tt), None)]
        vq = []
        st = 1 if ks < 4 else 2
        for _ in range(2):
            if stage[st] and ks != 4:
                vq.append((stage[st].pop(0), ("x", st)))
        for _ in range(Cfg.w_per_ks):
            if wq and wq[0][1][1] - QR < ks:
                vq.append(wq.pop(0))
        while ks >= 18 - QR + 1 and len(vq) < Cfg.wo_per_ks and early[0][1] < ks:
            vq.append((early.pop(0)[0], "o"))
        for i, op in enumerate(vq):
            fill[5 + 2 * i] = [op]
        for u in (6, 8, 10, 12, 14, 15, 16, 17, 18):
            if u not in fill:
                fill[u] = [(side.pop(0), None) for _ in range(min(2, len(side)))]
        if ks == 6:
            assert not side
            fill[5 + 2 * len(vq)] = [("buffer_load_dwordx2 v[226:227], v228, s[8:11], s39 offen sc1", "b")]
        need = ([("w", ks)] if ks >= QR - 1 else []) + ([("x", (ks + 1) // 6)] if ks in (5, 11) else [])
        if ks == 18 - QR + 1:
            need.append("b")
        a(f"s_waitcnt vmcnt({vm.count(*need)}) lgkmcnt(0)" if need else "s_waitcnt lgkmcnt(0)")
        if ks == 18 - QR + 1:
            lp, ok = a.label("wo_poll"), a.label("wo_ready")
            a("s_mov_b32 s6, 0")
            a(f"{lp}:")
            a("v_cmp_eq_u32 vcc, s76, v226")
            a("v_cmp_eq_u32 s[20:21], s76, v227")
            a("s_and_b64 vcc, vcc, s[20:21]")
            a("s_cmp_eq_u64 vcc, exec")
            a(f"s_cbranch_scc1 {ok}")
            a("buffer_load_dwordx2 v[226:227], v228, s[8:11], s39 offen sc1")
            a("s_add_u32 s6, s6, 1")
            a(f"s_cmp_lt_u32 s6, {1 << 20}")
            a("s_waitcnt vmcnt(0)")
            a(f"s_cbranch_scc1 {lp}")
            a(f"s_branch {abort}")
            a(f"{ok}:")
        if ks in (5, 11):
            a("s_barrier")
        for u, (t, tt) in enumerate(units):
            c = acc[(t, tt)]
            wr = 16 * (ks % QR) + 4 * t
            w, x = f"a[{wr}:{wr + 3}]", f"v[{cur + 4 * tt}:{cur + 4 * tt + 3}]"
            if t == 2:
                w, x = x, w
            a(f"v_mfma_f32_16x16x32_bf16 v[{c}:{c + 3}], {w}, {x}, {'0' if ks == 0 else f'v[{c}:{c + 3}]'}")
            for text, tag in fill.get(u, []):
                a(text)
                if tag:
                    vm.issue(tag)
    assert not stage[1] and not stage[2]
    assert not wq
    early = [t for t, _ in early]
    nw = len(early) - 4
    tail_loads = early[nw - Cfg.wo_gap:nw]
    early = early[:nw - Cfg.wo_gap] + early[nw:]
    mark(a, 2)
    body = []
    e = body.append
    cvt = lambda d, s: e(f"v_cvt_pk_bf16_f32 v{d}, v{s}, v{s + 1}")
    mf = lambda d, x, y, c: e(f"v_mfma_f32_16x16x32_bf16 v[{d}:{d + 3}], v[{x}:{x + 3}], v[{y}:{y + 3}], {c}")
    quad = lambda r: f"v[{r}:{r + 3}]"
    for tt in range(1, 5):
        cvt(QO + 4 * tt, acc[(0, tt)]); cvt(QO + 4 * tt + 1, acc[(0, tt)] + 2)
    for tt in range(5):
        cvt(KO + 4 * tt, acc[(1, tt)]); cvt(KO + 4 * tt + 1, acc[(1, tt)] + 2)
    for tt in range(5):
        cvt(QO + 4 * tt + 2, acc[(3, tt)]); cvt(KO + 4 * tt + 2, acc[(3, tt)] + 2)
    for tt in range(5):
        cvt(VO + 2 * tt, acc[(2, tt)]); cvt(VO + 2 * tt + 1, acc[(2, tt)] + 2)
    S, T, P, M = 16, 56, 76, 92
    for tt in range(1, 5):
        s = S + 8 * (tt - 1)
        mf(s, KO + 4 * (tt - 1), QO + 4 * tt, quad(BP1 if tt == 1 else BP))
        mf(s + 4, KO + 4 * tt, QO + 4 * tt, quad(BC))
    for tt in range(5):
        mf(T + 4 * tt, QO + 4 * tt, SEL, quad(CI))
    for i in range(4):
        s = S + 8 * i
        e(f"v_max3_f32 v{M + i}, v{s}, v{s + 1}, v{s + 2}")
        e(f"v_max3_f32 v{M + 4 + i}, v{s + 3}, v{s + 4}, v{s + 5}")
    for i in range(4):
        s = S + 8 * i
        e(f"v_max3_f32 v{M + i}, v{M + i}, v{s + 6}, v{s + 7}")
    for i in range(4):
        e(f"v_max_f32 v{M + i}, v{M + i}, v{M + 4 + i}")
    c = 18 ** -0.5 * math.log2(math.e)
    e(f"s_mov_b32 s18, {f32(c)}")
    tcv = [(VL + 2 * tt + h, T + 4 * tt + 2 * h) for tt in range(5) for h in range(2)]
    pad = lambda n: [cvt(*tcv.pop(0)) for _ in range(n)]
    pad(1)
    e(f"v_permlane32_swap_b32 v{M}, v{M + 1}")
    e(f"v_permlane32_swap_b32 v{M + 2}, v{M + 3}")
    e(f"v_max_f32 v{M}, v{M}, v{M + 1}")
    e(f"v_max_f32 v{M + 2}, v{M + 2}, v{M + 3}")
    pad(2)
    e(f"v_permlane16_swap_b32 v{M}, v{M + 2}")
    e(f"v_max_f32 v{M}, v{M}, v{M + 2}")
    e(f"v_mul_f32 v{M}, {f32(-c)}, v{M}")
    e(f"v_mov_b32 v{M + 2}, v{M}")
    pad(2)
    e(f"v_permlane16_swap_b32 v{M}, v{M + 2}")
    e(f"v_mov_b32 v{M + 1}, v{M}")
    e(f"v_mov_b32 v{M + 3}, v{M + 2}")
    pad(2)
    e(f"v_permlane32_swap_b32 v{M}, v{M + 1}")
    e(f"v_permlane32_swap_b32 v{M + 2}, v{M + 3}")
    pad(3)
    OA, OL, R, OUT, LO = 100, 116, 96, 212, 220
    for i in range(4):
        s = S + 8 * i
        for r in range(8):
            e(f"v_fma_f32 v{s + r}, v{s + r}, s18, v{M + i}")
        for r in range(8):
            e(f"v_exp_f32 v{s + r}, v{s + r}")
        if i:
            mf(OA + 4 * (i - 1), VO + 2 * (i - 1), P + 4 * (i - 1), "0")
            mf(OL + 4 * (i - 1), VL + 2 * (i - 1), P + 4 * (i - 1), "0")
        else:
            e("s_nop 0")
        for r in range(4):
            cvt(P + 4 * i + r, s + 2 * r)
    e(f"v_rcp_f32 v{R}, v{OL + 2}")
    e(f"v_rcp_f32 v{R + 1}, v{OL + 6}")
    mf(OA + 12, VO + 6, P + 12, "0")
    mf(OL + 12, VL + 6, P + 12, "0")

    def scale(i):
        sel = "op_sel:[1,0] op_sel_hi:[1,1]" if i & 1 else "op_sel:[0,0] op_sel_hi:[0,1]"
        rp = R + (i & 2)
        for o in (OA + 4 * i, OA + 4 * i + 2, OL + 4 * i):
            e(f"v_pk_mul_f32 v[{o}:{o + 1}], v[{rp}:{rp + 1}], v[{o}:{o + 1}] {sel}")
        cvt(OUT + 2 * i, OA + 4 * i); cvt(OUT + 2 * i + 1, OA + 4 * i + 2); cvt(LO + i, OL + 4 * i)

    scale(0)
    e(f"v_rcp_f32 v{R + 2}, v{OL + 10}")
    scale(1)
    e(f"v_rcp_f32 v{R + 3}, v{OL + 14}")
    e(f"v_permlane16_swap_b32 v{OUT}, v{OUT + 2}")
    e(f"v_permlane16_swap_b32 v{OUT + 1}, v{OUT + 3}")
    scale(2)
    scale(3)
    LX = 92 * KB
    e("s_lshl_b32 s7, s3, 2")
    e(f"s_add_u32 s7, s7, {LX}")
    e(f"v_permlane16_swap_b32 v{LO}, v{LO + 1}")
    e(f"v_permlane16_swap_b32 v{LO + 2}, v{LO + 3}")
    e("v_add_u32 v11, s7, v253")
    e("v_lshrrev_b32 v10, 3, v0")
    e(f"v_permlane32_swap_b32 v{LO}, v{LO + 2}")
    e(f"v_mul_u32_u24 v10, {GB}, v10")
    e(f"ds_write_b32 v11, v{LO}")
    e(f"v_permlane16_swap_b32 v{OUT + 4}, v{OUT + 6}")
    e(f"v_permlane16_swap_b32 v{OUT + 5}, v{OUT + 7}")
    step = max(1, len(body) // len(early))
    for i, t in enumerate(body):
        a(t)
        if early and i % step == step - 1:
            a(early.pop(0))
    for t in early:
        a(t)
    a("s_mul_i32 s7, s40, 1152")
    a("s_add_u32 s22, s22, s7")
    a(f"s_add_u32 s22, s22, {OO}")
    a("s_lshl_b32 s7, s3, 8")
    a("s_add_u32 s23, s22, s7")
    a(f"s_add_u32 s24, s23, {4 * GB}")
    a(f"buffer_store_dwordx4 v[{OUT}:{OUT + 3}], v9, s[8:11], s23 offen sc1")
    a(f"buffer_store_dwordx4 v[{OUT + 4}:{OUT + 7}], v9, s[8:11], s24 offen sc1")
    a("v_and_b32 v11, 7, v0")
    a("v_lshl_add_u32 v10, v11, 4, v10")
    a("s_cmp_eq_u32 s3, 3")
    a(f"s_cselect_b32 s7, 0, {OOB}")
    a("v_add_u32 v10, s7, v10")
    a(f"v_add_u32 v11, {LX}, v253")
    a("s_waitcnt lgkmcnt(0)")
    a("s_barrier")
    a(f"ds_read_b128 v[{LO}:{LO + 3}], v11")
    a("s_waitcnt lgkmcnt(0)")
    a(f"buffer_store_dwordx4 v[{LO}:{LO + 3}], v10, s[8:11], s22 offen offset:1024 sc1")
    mark(a, 3)
    publish(a, PH_QKV)
    mark(a, 4)
    for t in tail_loads:
        a(t)


def phase_wo(a, abort):
    RES, BF, ACC, T = 240, 160, 100, 124
    z0 = a.label("swz")
    a("s_cmp_lg_u32 s42, 0")
    a(f"s_cbranch_scc1 {z0}")
    zst = ffn_transpose(a, (3, 4), ZQ)
    a("s_waitcnt lgkmcnt(0)")
    for t in zst:
        a(t)
    if Cfg.code_warm > 2:
        code_warm(a, "v[14:15]")
    a(f"{z0}:")
    a("s_and_b32 s7, s3, 1")
    a(f"s_mul_i32 s7, s7, {2 * GB}")
    a("s_add_u32 s24, s30, s7")
    a("s_lshr_b32 s7, s3, 1")
    a("s_lshl_b32 s7, s7, 9")
    a("s_add_u32 s24, s24, s7")
    a(f"s_add_u32 s24, s24, {OO}")
    a("s_mov_b32 s16, 0xffff0000")
    for sl in range(3):
        for i in range(4):
            a(f"v_lshlrev_b32 v{T + 8 * sl + 2 * i}, 16, v{RES + 4 * sl + i}")
            a(f"v_and_b32 v{T + 8 * sl + 2 * i + 1}, s16, v{RES + 4 * sl + i}")
    MX = 40 * KB
    a("s_cmp_eq_u32 s3, 1")
    a("s_cselect_b32 s7, 16, 0")
    a("v_lshlrev_b32 v12, 2, v0")
    a("v_cmp_gt_u32 vcc, s7, v0")
    a(f"v_add_u32 v10, {MX}, v12")
    a(f"v_add_u32 v11, {MX + 512}, v12")
    a("v_cndmask_b32 v10, v11, v10, vcc")
    a("v_and_b32 v11, 0x7c, v12")
    a("v_cmp_gt_u32 vcc, 32, v0")
    a(f"v_mov_b32 v13, {OOB}")
    a("s_and_b32 s7, s40, 3")
    a("s_lshl_b32 s45, s45, 2")
    a("v_cndmask_b32 v8, v13, v12, vcc")
    a("s_add_u32 s6, s7, s3")
    a("s_cmp_eq_u32 s6, 0")
    a(f"s_cselect_b32 s6, 0, {OOB}")
    a("v_add_u32 v6, s6, v8")
    a("s_add_u32 s45, s45, s7")
    a("s_lshl_b32 s45, s45, 2")
    a("s_add_u32 s45, s45, s3")
    a("s_lshl_b32 s45, s45, 7")
    a("s_add_u32 s45, s45, s43")
    a(f"s_add_u32 s45, s45, {STAT}")
    a("s_cmp_eq_u32 s3, 0")
    a("s_cselect_b32 s35, 1.0, 0")
    ring = ffn_ring_setup(a)
    wait_flags(a, PH_QKV * FPH, abort)
    mark(a, 5)
    a("s_lshl_b32 m0, s3, 10")
    for m in range(9):
        if m:
            a("s_add_u32 m0, m0, 4096")
            a("s_add_u32 s24, s24, 1024")
        else:
            a("s_nop 0")
        a("buffer_load_dwordx4 v2, s[8:11], s24 offen sc1 lds")
    z1 = a.label("swz")
    a("s_waitcnt vmcnt(4)")
    a("s_barrier")
    a(f"s_xor_b32 s7, s3, {Cfg.pw}")
    a("s_or_b32 s7, s7, s42")
    a(f"s_cbranch_scc1 {z1}")
    column_flag(a, SL_WF)
    a("s_mov_b64 exec, -1")
    a(f"{z1}:")
    mark(a, 6)
    for tt in range(2):
        a(f"ds_read_b128 v[{BF + 4 * tt}:{BF + 4 * tt + 3}], v253 offset:{tt * KB}")
    for ks in range(18):
        cur, nxt = BF + 8 * (ks & 1), BF + 8 * ((ks + 1) & 1)
        if ks == 9:
            one, both = a.label("wo_x"), a.label("wo_x")
            a(f"s_xor_b32 s7, s3, {Cfg.pw}")
            a("s_or_b32 s7, s7, s42")
            a(f"s_cbranch_scc1 {one}")
            a("s_waitcnt vmcnt(10) lgkmcnt(0)")
            a(f"s_branch {both}")
            a(f"{one}:")
            a("s_waitcnt vmcnt(9) lgkmcnt(0)")
            a(f"{both}:")
            a("s_barrier")
        else:
            a("s_waitcnt lgkmcnt(0)")
        i = 0
        for sl in range(3):
            for tt in range(2):
                c = ACC + 4 * (2 * sl + tt)
                w = wo_reg(ks, sl)
                src = "0" if ks == 0 else f"v[{c}:{c + 3}]"
                a(f"v_mfma_f32_16x16x32_bf16 v[{c}:{c + 3}], a[{w}:{w + 3}], v[{cur + 4 * tt}:{cur + 4 * tt + 3}], {src}")
                if i < 2 and ks < 17:
                    a(f"ds_read_b128 v[{nxt + 4 * i}:{nxt + 4 * i + 3}], v253 offset:{((ks + 1) * 2 + i) * KB}")
                if i == 3 and ring:
                    a(ring.pop(0))
                i += 1
    mark(a, 7)
    XR = 148
    a("s_nop 3")
    for r in range(4):
        a(f"v_permlane16_swap_b32 v{ACC + r}, v{ACC + 4 + r}")
    a(f"v_add_f32 v12, v{ACC + 16}, v{ACC + 17}")
    a(f"v_add_f32 v13, v{ACC + 20}, v{ACC + 21}")
    a("ds_write_b32 v10, v12")
    a("ds_write_b32 v10, v13 offset:64")
    for sl in (1, 2):
        for r in range(4):
            a(f"v_permlane16_swap_b32 v{ACC + 8 * sl + r}, v{ACC + 8 * sl + 4 + r}")
    a("s_waitcnt lgkmcnt(0)")
    a("s_barrier")
    a(f"ds_read_b32 v12, v11 offset:{MX}")
    for sl in range(3):
        for i in range(4):
            t, c = T + 8 * sl + 2 * i, ACC + 8 * sl + 2 * i
            a(f"v_pk_add_f32 v[{t}:{t + 1}], v[{t}:{t + 1}], v[{c}:{c + 1}]")
    a("v_mov_b32 v14, 0")
    a("v_mov_b32 v15, 0")
    a("s_waitcnt lgkmcnt(0)")
    a("v_add_f32 v12, v12, v252")
    for sl in range(3):
        for i in range(4):
            t, c = T + 8 * sl + 2 * i, ACC + 8 * sl + 2 * i
            a(f"v_pk_add_f32 v[{c}:{c + 1}], v[{t}:{t + 1}], v[12:13] op_sel_hi:[1,0] neg_lo:[0,1] neg_hi:[0,1]")
        for i in range(4):
            c = ACC + 8 * sl + 2 * i
            a(f"v_cvt_pk_bf16_f32 v{XR + 4 * sl + i}, v{c}, v{c + 1}")
        a(f"buffer_store_dwordx4 v[{XR + 4 * sl}:{XR + 4 * sl + 3}], v{7 if sl == 2 else 9}, s[8:11], s46 offen offset:{sl * KB} sc1")
    for i in range(12):
        a(f"v_dot2c_f32_bf16 v{15 if i >= 8 else 14}, v{XR + i}, v{XR + i}")
    a("buffer_store_dword v12, v6, s[8:11], s36 offen sc1")
    a("s_nop 1")
    a("v_fma_f32 v14, v15, s35, v14")
    a("v_mov_b32 v15, v14")
    a("s_nop 1")
    a("v_permlane32_swap_b32 v14, v15")
    a("v_add_f32 v14, v14, v15")
    a("buffer_store_dword v14, v8, s[8:11], s45 offen sc1")
    publish(a, PH_WO)
    mark(a, 8)


FFN_LDS = 144 * KB
HB = 72 * KB


def pack_gaps(n_gaps, pinned, ops, start=0, cap=2):
    gaps = [list(pinned.get(g, [])) for g in range(n_gaps)]
    g = start
    for text, cost, earliest in ops:
        g = max(g, earliest)
        while sum(c for _, c in gaps[g]) + cost > cap:
            g += 1
        gaps[g].append((text, cost))
    return gaps


def check_stage_reads(mf, gaps, base, n):
    stage = {("v", base + i) for i in range(n)}
    wr = {}
    for i, t in enumerate(mf):
        for r in hazards.I(t, 0).w & stage:
            wr[r] = i
    for i, g in enumerate(gaps):
        for t, _ in g:
            for r in hazards.I(t.split("\n")[-1], 0).r & stage:
                assert i < wr[r], (i, t, wr[r])


RING, VB = 16, 184
RING_EXT = [104, 108, 112, 116, 180, 196, 200, 204, 208, 212, 136, 140, 144, 160, 164, 168, 148, 4]


def slot_reg(slot):
    return RING + 4 * slot if slot < 18 else RING_EXT[slot - 18]


def wload(slot, n):
    r = slot_reg(slot)
    return f"buffer_load_dwordx4 v[{r}:{r + 3}], v{VB + n // 4}, s[48:51], s23 offen offset:{(n % 4) * KB} sc1"


def ffn_ring_setup(a):
    a("s_lshl_b32 s7, s40, 2")
    a("s_add_u32 s7, s7, s3")
    a(f"s_mul_i32 s23, s7, {WSTR}")
    a(f"s_add_u32 s23, s23, {WF}")
    a(f"s_add_u32 s50, s23, {486 * KB}")
    a("s_mul_i32 s50, s50, s42")
    a(f"v_mov_b32 v{VB}, v253")
    for m in range(1, 9):
        a(f"v_add_u32 v{VB + m}, {4096 * m}, v253")
    return [wload(n, n) for n in range(15)]


def phase_ffn(a, abort):
    ACC, STG, TMP = 88, 120, 152
    OA = 216
    xreg = lambda tt, ks: reg(256 + 4 * (tt * 18 + ks), 4) if tt * 18 + ks < 64 else reg(220 + 4 * (tt * 18 + ks - 64), 4)
    a("s_lshl_b32 s7, s41, 2")
    a("s_add_u32 s7, s7, s3")
    a(f"s_mul_i32 s22, s7, {2 * GB}")
    a("s_add_u32 s22, s22, s43")
    a(f"s_add_u32 s22, s22, {XC}")
    a(f"s_mul_i32 s24, s3, {18 * KB}")
    a("s_lshl_b32 s25, s41, 12")
    a("s_add_u32 s25, s25, s43")
    a(f"s_add_u32 s25, s25, {STAT}")
    a("v_lshrrev_b32 v3, 5, v0")
    a("v_and_b32 v10, 31, v0")
    a("v_lshlrev_b32 v10, 2, v10")
    a("v_lshl_add_u32 v3, v3, 11, v10")
    a(f"v_add_u32 v11, {36 * KB}, v{VB}")
    early = red_setup(a)
    dtile_voff(a, "v178", "v1", None, 8 * GB)
    a(f"v_add_u32 v179, {32 * GB}, v178")
    a("v_lshrrev_b32 v1, 5, v0")
    a("v_and_b32 v15, 7, v0")
    a("v_lshlrev_b32 v15, 4, v15")
    a("v_lshl_add_u32 v15, v1, 7, v15")
    a("s_lshl_b32 s7, s3, 8")
    a(f"s_add_u32 s7, s7, {OWN - KB}")
    a("v_add_u32 v15, s7, v15")
    a("v_bfe_u32 v1, v0, 3, 2")
    a(f"v_mov_b32 v182, {OOB}")
    a(f"v_add_u32 v183, {OWN + 10 * KB}, v253")
    for pr in range(2):
        a(f"s_sub_u32 s7, s40, {4 * pr}")
        a("v_cmp_eq_u32 vcc, s7, v1")
        a("s_nop 1")
        a(f"v_cndmask_b32 v{178 + pr}, v{178 + pr}, v182, vcc")
        a(f"v_cndmask_b32 v{OA + pr}, v183, v15, vcc")
        a(f"v_cndmask_b32 v{OA + 2 + pr}, 0, 1, vcc")
        a(f"v_lshlrev_b32 v{OA + 2 + pr}, 10, v{OA + 2 + pr}")
    a(f"s_mul_i32 s26, s41, {64 * GB}")
    a(f"s_mul_i32 s7, s40, {GB}")
    a("s_add_u32 s26, s26, s7")
    a("s_lshl_b32 s7, s3, 8")
    a("s_add_u32 s27, s26, s7")
    a(f"s_add_u32 s27, s27, {PART - KB}")
    a("s_mov_b32 s72, s8")
    a("s_mov_b32 s73, s9")
    a("s_mov_b32 s74, 0")
    a(f"s_mul_i32 s7, s42, {3 * FPH}")
    a("s_sub_u32 s29, s44, s7")
    a(f"s_add_u32 s29, s29, {(SL_EARLY - 1) * FPH}")
    a("s_lshl_b32 s7, s40, 7")
    a("s_add_u32 s7, s7, s29")
    a("s_add_u32 s38, s4, s7")
    a("s_addc_u32 s39, s5, 0")
    a("s_lshl_b32 s7, s40, 2")
    a("s_add_u32 s29, s29, s7")
    a(f"s_add_u32 s50, s23, {486 * KB}")
    late, seen = a.label("ring"), a.label("ring")
    a("s_cmp_lg_u32 s42, 0")
    a(f"s_cbranch_scc1 {late}")
    a(f"s_cmp_lg_u32 s3, {Cfg.pw}")
    a(f"s_cbranch_scc1 {seen}")
    column_wait(a, SL_WF, abort)
    a(f"{seen}:")
    a("s_barrier")
    for n in range(15):
        a(wload(n, n))
    a(f"{late}:")
    wait_flags(a, PH_WO * FPH, abort)
    mark(a, 9)
    C0, C1, VV, SS = [4, 5, 6, 7], [8, 9, 13, 14], [193, 194, 195, 252], 136
    k0 = -2.0 * math.sqrt(2.0 / math.pi) * math.log2(math.e)

    def xdma(ks):
        return (f"s_add_u32 m0, s24, {ks * KB - (ks % 8) * 512}\n"
                + ("s_add_u32 s22, s22, 4096\n" if ks and ks % 8 == 0 else "s_nop 0\n")
                + f"buffer_load_dwordx4 v2, s[8:11], s22 offen offset:{(ks % 8) * 512} sc1 lds")

    def xread(tt, ks):
        f = tt * 18 + ks
        return f"ds_read_b128 {xreg(tt, ks)}, v{VB if f < 36 else 11} offset:{(f % 36) * KB}"

    hread = lambda tt, ks: f"ds_read_b128 {xreg(tt, ks)}, v{10 if tt < 2 else 11} offset:{((tt * 18 + ks) % 36) * KB}"
    vm0 = Vm()
    for n in range(15):
        vm0.issue(("w", n))
    for ks in range(12):
        a(xdma(ks))
        vm0.issue(("x", ks))
    a(f"s_add_u32 s23, s23, {15 * KB}")
    a("s_lshr_b32 s7, s3, 1")
    a("s_lshl_b32 s7, s7, 10")
    a("s_and_b32 s6, s3, 1")
    a("s_lshl_b32 s6, s6, 3")
    a("s_add_u32 s28, s7, s6")
    a(f"s_add_u32 s28, s28, {HB}")
    a(f"s_waitcnt vmcnt({vm0.count(('x', 5))})")
    a("s_barrier")
    mark(a, 10)
    for ks in range(3):
        for tt in range(4):
            a(xread(tt, ks))

    def const_ops(e):
        ops = []
        for n in (8, 4, 2, 1):
            ops += [(f"v_add_f32 v{SS + i}, v{SS + i}, v{SS + n + i}", 1, e) for i in range(n)]
        ops += [(f"v_mov_b32 v{SS + 1}, {f32(1e-5)}", 1, e), (f"v_fmac_f32 v{SS + 1}, {f32(1.0 / 576)}, v{SS}", 1, e),
                (f"v_mov_b32 v{VV[0]}, v{SS + 1}", 1, e),
                (f"s_nop 0\nv_permlane16_swap_b32 v{VV[0]}, v{SS + 1}", 2, e),
                (f"v_mov_b32 v{VV[2]}, v{VV[0]}", 1, e), (f"v_mov_b32 v{VV[1]}, v{SS + 1}", 1, e),
                (f"v_mov_b32 v{VV[3]}, v{SS + 1}", 1, e),
                (f"s_nop 0\nv_permlane32_swap_b32 v{VV[0]}, v{VV[2]}", 2, e),
                (f"v_permlane32_swap_b32 v{VV[1]}, v{VV[3]}", 2, e)]
        ops += [(f"v_rsq_f32 v{C0[tt]}, v{VV[tt]}", 2, e) for tt in range(4)]
        ops += [(f"v_mul_f32 v{C1[tt]}, v{C0[tt]}, v{C0[tt]}", 1, e) for tt in range(4)]
        ops += [(f"v_mul_f32 v{C0[tt]}, {f32(k0)}, v{C0[tt]}", 1, e) for tt in range(4)]
        ops += [(f"v_mul_f32 v{C1[tt]}, {f32(0.044715)}, v{C1[tt]}", 1, e) for tt in range(4)]
        ops += [(f"v_mul_f32 v{C1[tt]}, v{C1[tt]}, v{C0[tt]}", 1, e) for tt in range(4)]
        return ops

    def gelu_ops(first_gap):
        ops = []
        for tt in range(4):
            t, p, o = TMP + 10 * (tt & 1), TMP + 10 * (tt & 1) + 4, TMP + 10 * (tt & 1) + 8
            g, u = STG + 4 * tt, STG + 16 + 4 * tt
            e = first_gap(tt)
            for r in range(4):
                ops.append((f"v_mul_f32 v{t + r}, v{g + r}, v{g + r}", 1, e))
            for r in range(4):
                ops.append((f"v_fma_f32 v{t + r}, v{t + r}, v{C1[tt]}, v{C0[tt]}", 1, e))
            for r in range(4):
                ops.append((f"v_mul_f32 v{t + r}, v{g + r}, v{t + r}", 1, e))
            for r in range(4):
                ops.append((f"v_exp_f32 v{t + r}, v{t + r}", 2, e))
            for r in range(4):
                ops.append((f"v_mul_f32 v{p + r}, v{g + r}, v{u + r}", 1, e))
            for r in range(4):
                ops.append((f"v_fma_f32 v{t + r}, v{t + r}, v{VV[tt]}, v{VV[tt]}", 1, e))
            for r in range(4):
                ops.append((f"v_rcp_f32 v{t + r}, v{t + r}", 2, e))
            for r in range(4):
                ops.append((f"v_mul_f32 v{p + r}, v{p + r}, v{t + r}", 1, e))
            ops.append((f"v_cvt_pk_bf16_f32 v{o}, v{p}, v{p + 1}", 1, e))
            ops.append((f"v_cvt_pk_bf16_f32 v{o + 1}, v{p + 2}, v{p + 3}", 1, e))
            ops.append((f"ds_write_b64 v12, v[{o}:{o + 1}] offset:{tt * 18 * KB}", 2, e))
        return ops

    def gu_step(kind):
        mf, pinned = [], {}
        for G in range(12):
            gu, grp = G & 1, G >> 1
            for tt in range(4):
                for kk in range(3):
                    ks = 3 * grp + kk
                    c = ACC + 16 * gu + 4 * tt
                    d = STG + 16 * gu + 4 * tt if ks == 17 else c
                    src = "0" if ks == 0 else f"v[{c}:{c + 3}]"
                    w = RING + 4 * ((3 * G + kk) % 18)
                    mf.append(f"v_mfma_f32_16x16x32_bf16 v[{d}:{d + 3}], v[{w}:{w + 3}], {xreg(tt, ks)}, {src}")
            for kk in range(3):
                n = 3 * G + kk
                pinned[12 * G + 4 * kk + 1] = [(wload((n + 15) % 18, n), 2)]
        if kind == "first":
            for k in range(6):
                pinned[4 * k + 3] = [(xdma(12 + k), 2)]
            for k in range(16):
                pinned[24 + 12 * (k // 5) + (3, 6, 7, 10, 11)[k % 5]] = \
                    [(f"buffer_load_dword v{SS + k}, v3, s[8:11], s25 offen offset:{128 * k} sc1", 2)]
            ops = [(xread(tt, ks), 1, 24 * (ks // 3 - 1) + (4 * (ks % 3) + tt) * 3 // 2) for ks in range(3, 18) for tt in range(4)]
            gaps = pack_gaps(144, pinned, ops)
            gaps = pack_gaps(144, dict(enumerate(gaps)), const_ops(96))
        else:
            gaps = pack_gaps(144, pinned, gelu_ops(lambda tt: 2))
        if kind == "last":
            g = 0
            for ks in range(14):
                for tt in range(4):
                    g = max(g + 1, 24 * (ks // 3) + 12 + 3 * tt + ks % 3)
                    while g < 143 and any("buffer_" in t or "ds_" in t for t, _ in gaps[g]):
                        g += 1
                    gaps[min(g, 143)].append((hread(tt, ks), 1))
        check_stage_reads(mf, gaps, STG, 32)
        lg = Vm()
        lg.issue(2)
        for i in range(144):
            G = i // 12
            if i % 12 == 0 and kind == "first":
                need = [("w", 3 * G + 2)] + {2: [("x", 11)], 6: [("x", 17)], 8: ["s"]}.get(G, [])
                a(f"s_waitcnt vmcnt({vm0.count(*need)}) lgkmcnt({min(15, lg.count(3 * (G // 2) + 2))})")
                if G in (2, 6):
                    a("s_barrier")
            elif i % 12 == 0:
                a("s_waitcnt vmcnt(12)")
            a(mf[i])
            for text, _ in gaps[i]:
                a(text)
                if kind == "first":
                    if "s[48:51]" in text:
                        vm0.issue(("w", 3 * G + (i % 12) // 4 + 15))
                    elif " lds" in text:
                        vm0.issue(("x", 12 + i // 4))
                    elif "buffer_load_dword " in text:
                        vm0.issue("s")
                    elif "ds_read" in text:
                        lg.issue(int(text.split("offset:")[1]) // KB % 18)
            if i == 139:
                a("s_lshl_b32 s7, s25, 11" if kind != "first" else "s_mov_b32 s25, 0")
            if i == 140:
                a("s_add_u32 s7, s7, s28" if kind != "first" else "s_mov_b32 s7, s28")
            if i == 142:
                a(f"s_add_u32 s23, s23, {36 * KB}")
        a(f"v_add_u32 v12, s7, v{VB}")
        a("s_add_u32 s25, s25, 1")

    gu_step("first")
    mark(a, 12)
    lp = a.label("ffn_gu")
    a(f"{lp}:")
    gu_step("loop")
    a("s_cmp_lt_u32 s25, 8")
    a(f"s_cbranch_scc1 {lp}")
    a(f"v_add_u32 v10, {HB}, v{VB}")
    a(f"v_add_u32 v11, {HB + 36 * KB}, v{VB}")
    if Cfg.code_warm > 1:
        code_warm(a, "v[2:3]")
    a("s_waitcnt lgkmcnt(0)")
    a("s_barrier")
    gu_step("last")
    mark(a, 13)
    a("s_waitcnt lgkmcnt(0)")
    a("s_barrier")
    reads = [hread(tt, ks) for ks in (14, 15) for tt in range(4)]
    ops = []
    for tt in range(4):
        t, p, o = TMP + 10 * (tt & 1), TMP + 10 * (tt & 1) + 4, TMP + 10 * (tt & 1) + 8
        g, u = STG + 4 * tt, STG + 16 + 4 * tt
        pr = lambda r: f"v[{r}:{r + 1}]"
        bc = lambda r: (pr(r & ~1), r & 1)

        def pkfma(d, x, y, z):
            (ry, sy), (rz, sz) = bc(y), bc(z)
            return f"v_pk_fma_f32 {pr(d)}, {pr(x)}, {ry}, {rz} op_sel:[0,{sy},{sz}] op_sel_hi:[1,{sy},{sz}]"
        ops += [f"v_pk_mul_f32 {pr(t + r)}, {pr(g + r)}, {pr(g + r)}" for r in (0, 2)]
        ops += [pkfma(t + r, t + r, C1[tt], C0[tt]) for r in (0, 2)]
        ops += [f"v_pk_mul_f32 {pr(t + r)}, {pr(g + r)}, {pr(t + r)}" for r in (0, 2)]
        ops += [f"v_exp_f32 v{t + r}, v{t + r}" for r in range(4)]
        ops += [f"v_pk_mul_f32 {pr(p + r)}, {pr(g + r)}, {pr(u + r)}" for r in (0, 2)]
        ops += [pkfma(t + r, t + r, VV[tt], VV[tt]) for r in (0, 2)]
        ops += [f"v_rcp_f32 v{t + r}, v{t + r}" for r in range(4)]
        ops += ["s_nop 0"]
        ops += [f"v_pk_mul_f32 {pr(p + r)}, {pr(p + r)}, {pr(t + r)}" for r in (0, 2)]
        ops += [f"v_cvt_pk_bf16_f32 v{o}, v{p}, v{p + 1}", f"v_cvt_pk_bf16_f32 v{o + 1}, v{p + 2}, v{p + 3}"]
        ops += [f"ds_write_b64 v12, v[{o}:{o + 1}] offset:{tt * 18 * KB}"]
    ahead = [wload(15 + n, n) for n in range(18)]
    for i, t in enumerate(ops):
        a(t)
        if reads and i % 4 != 3:
            a(reads.pop(0))
        if i % 6 == 5 and len(ahead) > 5:
            a(ahead.pop(0))
    for t in reads + ahead:
        a(t)
    a(f"s_add_u32 s23, s23, {18 * KB}")
    a("s_waitcnt lgkmcnt(0)")
    a("s_barrier")
    for ks in (16, 17):
        for tt in range(4):
            a(hread(tt, ks))
    a("s_mov_b32 s25, 0")
    a("s_waitcnt lgkmcnt(0)")
    mark(a, 14)

    def down_epi(e0, e1):
        ops = []
        for pr, e in enumerate((e0, e1)):
            o = TMP + 4 * pr
            for h in range(2):
                s = STG + 4 * (2 * pr + h)
                ops.append((f"v_cvt_pk_bf16_f32 v{o + 2 * h}, v{s}, v{s + 1}", 1, e))
                ops.append((f"v_cvt_pk_bf16_f32 v{o + 2 * h + 1}, v{s + 2}, v{s + 3}", 1, e))
            ops.append((f"s_nop 0\nv_permlane16_swap_b32 v{o}, v{o + 2}", 2, e))
            ops.append((f"v_permlane16_swap_b32 v{o + 1}, v{o + 3}", 2, e))
            ops.append((f"buffer_store_dwordx4 v[{o}:{o + 3}], v{178 + pr}, s[72:75], s27 offen sc1", 2, e))
            ops.append((f"ds_write_b128 v{OA + pr}, v[{o}:{o + 3}]", 2, e))
            ops.append((f"v_add_u32 v{OA + pr}, v{OA + pr}, v{OA + 2 + pr}", 1, e))
        return ops

    def down_trip(half, vm, last=0, emit=True):
        out = a if emit else Asm()
        mark_dyn(out, 21, "s25")
        base = 0 if half else 18
        mf, pinned = [], {}
        for G in range(6):
            for tt in range(4):
                for kk in range(3):
                    ks = 3 * G + kk
                    c = ACC + 4 * tt
                    d = STG + 4 * tt if ks == 17 else c
                    src = "0" if ks == 0 else f"v[{c}:{c + 3}]"
                    w = slot_reg(base + ks)
                    mf.append(f"v_mfma_f32_16x16x32_bf16 v[{d}:{d + 3}], v[{w}:{w + 3}], {xreg(tt, ks)}, {src}")
            for kk in range(3):
                n = 3 * G + kk
                if not last or (last == 1 and G == 0):
                    pinned[12 * G + 4 * kk + 1] = [(wload((base + n + 33) % 36, n), 2)]
                elif early and (last == 2 or G >= 2):
                    pinned[12 * G + 4 * kk + 1] = [(early.pop(0), 2)]
        gaps = pack_gaps(72, pinned, down_epi(Cfg.epi_gap, Cfg.epi_gap2 if not last else Cfg.epi_gap))
        check_stage_reads(mf, gaps, STG, 16)
        store_groups = [i // 12 for i in range(72) for t, _ in gaps[i] if "store" in t]
        for i in range(72):
            G = i // 12
            if i % 12 == 0 and last:
                out(f"s_waitcnt vmcnt({vm.count(('w', base + 3 * G + 2))})")
            elif i % 12 == 0:
                extra = sum(1 for sg in store_groups if sg < G)
                if not half:
                    extra += len(store_groups)
                out(f"s_waitcnt vmcnt({30 + extra})")
            if i == 36 and half and not last and emit:
                skip = a.label("early")
                a("s_cmp_lg_u32 s25, 6")
                a(f"s_cbranch_scc1 {skip}")
                a(f"s_waitcnt vmcnt({vm.count(('s', 0))})")
                a("s_barrier")
                a(f"s_cmp_lg_u32 s3, {Cfg.pw}")
                a(f"s_cbranch_scc1 {skip}")
                a("v_lshlrev_b32 v15, 7, v0")
                a("v_mov_b32 v1, s76")
                a("s_mov_b64 exec, 0xff")
                a("buffer_store_dword v1, v15, s[8:11], s29 offen sc1")
                a("s_mov_b64 exec, -1")
                a(f"{skip}:")
            if i == 12 * Cfg.early2_at and last == 2:
                skip = a.label("early")
                a(f"s_waitcnt vmcnt({vm.count(('s', 0))})")
                a("s_barrier")
                a(f"s_cmp_lg_u32 s3, {Cfg.pw}")
                a(f"s_cbranch_scc1 {skip}")
                a("s_mov_b64 exec, 0xff")
                a("buffer_store_dword v1, v15, s[8:11], s29 offen offset:32 sc1")
                a("s_mov_b64 exec, -1")
                a(f"{skip}:")
            if i == 24 and last == 1:
                check_early(a, 0, abort)
            out(mf[i])
            for text, _ in gaps[i]:
                out(text)
                if "buffer_store" in text:
                    vm.issue(("s", half))
                elif "s[48:51]" in text:
                    vm.issue(("w", (base + 3 * G + (i % 12) // 4 + 33) % 36))
                elif "buffer_load" in text:
                    vm.issue("e")
            if i == 14 and last == 1:
                out("s_load_dwordx8 s[56:63], s[38:39], 0 glc")
            if i == 66:
                out(f"s_mov_b32 s74, {WS_SIZE}")
            if i == 67:
                out(f"s_add_u32 s27, s27, {KB}")
            if i == 68:
                out("s_add_u32 s25, s25, 1")
            if i == 70:
                out(f"s_add_u32 s23, s23, {18 * KB}")

    lp, mid = a.label("ffn_dn"), a.label("ffn_dn_mid")
    vm = Vm()
    down_trip(1, vm, emit=False)
    a(f"s_branch {mid}")
    a(f"{lp}:")
    down_trip(0, vm)
    a(f"{mid}:")
    down_trip(1, vm)
    a("s_cmp_lt_u32 s25, 7")
    a(f"s_cbranch_scc1 {lp}")
    down_trip(0, vm, last=1)
    down_trip(1, vm, last=2)
    assert not early
    mark(a, 15)
    a("s_nop 7")
    fin = [t for t, _, _ in down_epi(0, 0)]
    for t in fin[:4] + fin[9:13] + fin[4:7] + fin[13:16] + fin[7:8] + fin[16:17]:
        a(t)
    a("s_waitcnt lgkmcnt(0)")
    publish(a, PH_FFN)
    mark(a, 20)


def k_main(a):
    name = NAME + "_kernel"
    kernel_begin(a, name)
    end, last, loop = "L_main_end", "L_main_last", "L_main_layer"
    Cfg.sv = 254
    entry(a, name, 256, end, ["s_load_dwordx4 s[16:19], s[0:1], 0", "s_load_dwordx2 s[22:23], s[0:1], 16",
                        "s_load_dwordx8 s[24:31], s[0:1], 32"])
    a(f"s_mov_b32 s7, {EPOCH}")
    a("s_load_dword s76, s[4:5], s7")
    a("s_mov_b64 s[20:21], s[18:19]")
    a("s_mov_b64 s[18:19], s[16:17]")
    srd(a, 48, "s4", "s5", WS_SIZE)
    tile_map(a, "s40", "s41", Cfg.jx)
    a("s_mov_b32 s42, 0")
    a("s_mov_b32 s43, 0")
    a("s_lshl_b32 s44, s41, 10")
    a(f"s_add_u32 s44, s44, {FLAGS + FPH}")
    a("v_lshlrev_b32 v253, 4, v0")
    if Cfg.stamps:
        a("v_mov_b32 v254, 0")
        a("v_mov_b32 v255, 0")
    mark(a, 31)
    a("; ---- prep")
    phase_prep(a, end)
    qkv_prefetch(a, 0, QR - 1)
    a(f"{loop}:")
    a("; ---- qkv")
    phase_qkv(a, end)
    a("; ---- wo")
    phase_wo(a, end)
    a("; ---- ffn")
    phase_ffn(a, end)
    a("; ---- red")
    tail = phase_red(a, end, last)
    a("s_mov_b32 s42, 1")
    a(f"s_mov_b32 s43, {LSTR}")
    a(f"s_add_u32 s44, s44, {4 * FPH}")
    a(f"s_branch {loop}")
    a(f"{last}:")
    tail()
    done = a.label("done")
    a("s_or_b32 s7, s40, s41")
    a("s_or_b32 s7, s7, s3")
    a(f"s_cbranch_scc1 {done}")
    a("v_mov_b32 v1, s76")
    a(f"s_mov_b32 s7, {EPOCH}")
    a("s_mov_b64 exec, 1")
    a("buffer_store_dword v1, off, s[8:11], s7 sc1")
    a("s_mov_b64 exec, -1")
    a(f"{done}:")
    if Cfg.stamps:
        a("s_waitcnt vmcnt(0)")
        mark(a, 19)
        dump_marks(a, 1)
    a(f"{end}:")
    a("s_endpgm")
    a("L_main_code_end:")
    return name, 256, 256


def build(stamps=False):
    Cfg.stamps = stamps
    a = Asm()
    a('.amdgcn_target "amdgcn-amd-amdhsa--gfx950"')
    name, nv, na = k_main(a)
    kernel_desc(a, name, nv, na, 102)
    text = HEADER + f"; @launch grid=(256,1,1) block=(256,1,1) lds={160 * KB}\n" + a.text()
    assert not re.search(r"s_(add|sub)_u32 [^,]+, [^,]+, -\d", text), "negative literal in unsigned address arithmetic"
    bad = hazards.check(text)
    if bad:
        print("\n".join(bad[:40]), file=sys.stderr)
        raise SystemExit(f"{len(bad)} hazards")
    return text


if __name__ == "__main__":
    out = sys.argv[1] if len(sys.argv) > 1 else os.path.join(os.path.dirname(os.path.abspath(__file__)), "..", NAME + ".s")
    stamps = "--stamps" in sys.argv
    for x in sys.argv[2:]:
        if x.startswith("--set="):
            for kv in x[6:].split(","):
                k, v = kv.split(":")
                setattr(Cfg, k, int(v))
    open(out, "w").write(build(stamps))
```

```python
import sys
import os; sys.path.insert(0, os.path.join(os.path.dirname(os.path.abspath(__file__)), "..", "gen"))
from asmlib import *

NAME = "interleave_layers__sliding_local_dilated__glu_gated_geglu__prompt_kernel"
STAMP_OFF = 255 << 20


def prologue(a, nwg=256):
    a(f"s_cmp_ge_u32 s2, {nwg}")
    a("s_cbranch_scc1 L_end")
    a("s_load_dwordx2 s[4:5], s[0:1], 72")
    a("s_waitcnt lgkmcnt(0)")
    srd(a, 8, "s4", "s5", 256 << 20)
    a("v_lshrrev_b32 v1, 6, v0")
    a("s_nop 0")
    a("v_readfirstlane_b32 s6, v1")
    a("v_and_b32 v2, 63, v0")


def stamp_start(a):
    a("s_barrier")
    a("s_memtime s[40:41]")
    a("s_memrealtime s[42:43]")
    a("s_waitcnt lgkmcnt(0)")


def stamp_end(a, extra=()):
    a("s_barrier")
    a("s_memtime s[44:45]")
    a("s_memrealtime s[46:47]")
    a("s_waitcnt lgkmcnt(0)")
    a("s_cmp_lg_u32 s6, 0")
    a("s_cbranch_scc1 L_end")
    a("s_lshl_b32 s7, s2, 6")
    a(f"s_add_u32 s7, s7, {STAMP_OFF}")
    vals = ["s40", "s41", "s44", "s45", "s42", "s43", "s46", "s47"]
    ex = list(extra) + ["0"] * (4 - len(extra))
    for e in ex:
        vals += [e, "0"]
    for i, v in enumerate(vals):
        a(f"v_mov_b32 v{16 + i}, {v}")
    a("v_mov_b32 v3, 0")
    a("v_cmp_eq_u32 vcc, 0, v2")
    a("s_and_saveexec_b64 s[48:49], vcc")
    for i in range(4):
        a(f"buffer_store_dwordx4 v[{16 + 4 * i}:{19 + 4 * i}], v3, s[8:11], s7 offen offset:{16 * i}")
    a("s_waitcnt vmcnt(0)")


def gen(seg, mode, nwaves, depth, mfma=0, mf="32", dsr=0, passes=4, share=8, valu=0, total=1728 * 1152):
    a = Asm()
    lds = 160 * 1024 if mode == "dma" or dsr else 96 * 1024
    a(f"; @launch grid=(256,1,1) block=({nwaves * 64},1,1) lds={lds}")
    a('.amdgcn_target "amdgcn-amd-amdhsa--gfx950"')
    kernel_begin(a, NAME)
    prologue(a)
    pitch = 9216
    if seg >= 1024:
        lpr, rpi = 64, 1
        pitch = 1024
    else:
        lpr = seg // 16
        rpi = 64 // lpr
    sh = lpr.bit_length() - 1
    a(f"v_lshrrev_b32 v3, {sh}, v2")
    a(f"s_mul_i32 s7, s6, {rpi}")
    a("v_add_u32 v3, s7, v3")
    a(f"s_mov_b32 s7, {pitch}")
    a("v_mul_lo_u32 v3, v3, s7")
    a(f"v_and_b32 v4, {lpr - 1}, v2")
    a("v_lshlrev_b32 v4, 4, v4")
    a("v_add_u32 v3, v3, v4")
    a(f"s_and_b32 s12, s2, {share - 1}")
    ninstr = total // 1024 // nwaves
    if seg >= 1024:
        a(f"s_mul_i32 s12, s12, {total}")
        nseg, nrb = 1, ninstr
        segstep = 0
    else:
        a(f"s_mul_i32 s12, s12, 1152")
        nseg = 1152 // seg
        nrb = ninstr // nseg
        segstep = seg
    rbstep = nwaves * rpi * pitch
    ring = depth
    ldsw = (lds // nwaves) // 1024 * 1024
    a(f"s_mul_i32 s13, s6, {ldsw}")
    a("v_lshlrev_b32 v5, 3, v2")
    a("v_add_u32 v5, s13, v5")
    nacc = 4
    for i in range(64):
        a(f"v_accvgpr_write_b32 a{i}, 0")
    for i in range(8):
        a(f"v_mov_b32 v{8 + i}, 0x3c003c01")
    for i in range(8):
        a(f"v_mov_b32 v{100 + i}, 1.0")
    U = ring
    while nrb % U:
        U -= 1
    assert U * 1024 <= ldsw
    stamp_start(a)
    a(f"s_mov_b32 s14, 0")
    a("L_pass:")
    a("s_memtime s[50:51]")
    a("s_mov_b32 s15, 0")
    a("s_mov_b32 s16, s12")
    a("L_seg:")
    a("s_mov_b32 s17, s16")
    a("s_mov_b32 s18, 0")
    a("L_rb:")
    mi = 0
    for u in range(U):
        if mode == "dma":
            a(f"s_add_u32 m0, s13, {u * 1024}")
            a(f"s_waitcnt vmcnt({U - 1})")
            a(f"buffer_load_dwordx4 v3, s[8:11], s17 offen lds")
        elif mode == "vgpr":
            a(f"s_waitcnt vmcnt({U - 1})")
            a(f"buffer_load_dwordx4 v[{128 + 4 * u}:{131 + 4 * u}], v3, s[8:11], s17 offen")
        a(f"s_add_u32 s17, s17, {rbstep}")
        for m in range(mfma):
            fr = 32 + 4 * (mi % 8)
            if dsr:
                a(f"s_waitcnt lgkmcnt({min(15, dsr * 3)})")
            A = f"v[{fr}:{fr + 3}]" if dsr else "v[8:11]"
            if mode == "vgpr" and not dsr:
                uu = (u + 1) % U
                A = f"v[{128 + 4 * uu}:{131 + 4 * uu}]"
            if mf == "32":
                ac = 16 * (mi % nacc)
                a(f"v_mfma_f32_32x32x16_bf16 a[{ac}:{ac + 15}], {A}, v[12:15], a[{ac}:{ac + 15}]")
            else:
                ac = 4 * (mi % 16)
                a(f"v_mfma_f32_16x16x32_bf16 a[{ac}:{ac + 3}], {A}, v[12:15], a[{ac}:{ac + 3}]")
            fw = 32 + 4 * ((mi + 4) % 8)
            if dsr == 2:
                a(f"ds_read_b64_tr_b16 v[{fw}:{fw + 1}], v5 offset:{(mi % U) * 1024}")
                a(f"ds_read_b64_tr_b16 v[{fw + 2}:{fw + 3}], v5 offset:{(mi % U) * 1024 + 512}")
            elif dsr == 1:
                a(f"ds_read_b128 v[{fw}:{fw + 3}], v6 offset:{(mi % U) * 1024}")
            for j in range(valu):
                a(f"v_fma_f32 v{100 + (j + mi) % 8}, v{100 + (j + mi) % 8}, v100, v101")
            mi += 1
    a(f"s_add_u32 s18, s18, {U}")
    a(f"s_cmp_lt_u32 s18, {nrb}")
    a("s_cbranch_scc1 L_rb")
    a(f"s_add_u32 s16, s16, {segstep}")
    a("s_add_u32 s15, s15, 1")
    a(f"s_cmp_lt_u32 s15, {nseg}")
    a("s_cbranch_scc1 L_seg")
    a("s_memtime s[52:53]")
    a("s_waitcnt lgkmcnt(0)")
    a("s_sub_u32 s54, s52, s50")
    a("s_cmp_eq_u32 s14, 0")
    a("s_cselect_b32 s55, s54, s55")
    a("s_add_u32 s14, s14, 1")
    a(f"s_cmp_lt_u32 s14, {passes}")
    a("s_cbranch_scc1 L_pass")
    a("s_waitcnt vmcnt(0)")
    stamp_end(a, ["s55", "s54"])
    a("L_end:")
    a("s_endpgm")
    kernel_desc(a, NAME, 256 if nwaves <= 4 else 192, 64, 96)
    txt = a.text()
    txt = txt.replace("    s_barrier\n    s_memtime s[40:41]", "    v_lshlrev_b32 v6, 4, v2\n    v_add_u32 v6, s13, v6\n    s_mov_b32 s55, 0\n    s_barrier\n    s_memtime s[40:41]")
    return txt


if __name__ == "__main__":
    out = sys.argv[1]
    cfgs = {
        "dma_s1024_w4_d16": dict(seg=1024, mode="dma", nwaves=4, depth=16),
        "dma_s128_w4_d16": dict(seg=128, mode="dma", nwaves=4, depth=18),
        "dma_s64_w4_d16": dict(seg=64, mode="dma", nwaves=4, depth=18),
        "dma_s128_w8_d16": dict(seg=128, mode="dma", nwaves=8, depth=18),
        "dma_s128_w4_d6": dict(seg=128, mode="dma", nwaves=4, depth=6),
        "vgpr_s1024_w4_d16": dict(seg=1024, mode="vgpr", nwaves=4, depth=18),
        "vgpr_s128_w4_d16": dict(seg=128, mode="vgpr", nwaves=4, depth=18),
        "vgpr_s64_w4_d16": dict(seg=64, mode="vgpr", nwaves=4, depth=18),
        "vgpr_s1024_w8_d16": dict(seg=1024, mode="vgpr", nwaves=8, depth=9),
        "none_m4": dict(seg=1024, mode="none", nwaves=4, depth=18, mfma=4),
        "none_m4_16": dict(seg=1024, mode="none", nwaves=4, depth=18, mfma=8, mf="16"),
        "A_dma_m4_tr2": dict(seg=128, mode="dma", nwaves=4, depth=18, mfma=4, dsr=2),
        "A_dma_m4_tr2_v2": dict(seg=128, mode="dma", nwaves=4, depth=18, mfma=4, dsr=2, valu=2),
        "A_dma_m4_b128_v2": dict(seg=1024, mode="dma", nwaves=4, depth=18, mfma=4, dsr=1, valu=2),
        "A2_dma_m4_tr2_v2": dict(seg=128, mode="dma", nwaves=8, depth=18, mfma=4, dsr=2, valu=2),
        "B_dma_m2_tr2_v2": dict(seg=128, mode="dma", nwaves=4, depth=18, mfma=2, dsr=2, valu=2),
        "B2_dma_m2_tr2_v2": dict(seg=128, mode="dma", nwaves=8, depth=18, mfma=2, dsr=2, valu=2),
        "D_vgpr_m2_v2": dict(seg=1024, mode="vgpr", nwaves=4, depth=18, mfma=2, valu=2),
        "D_vgpr_m4_16_v1": dict(seg=1024, mode="vgpr", nwaves=4, depth=18, mfma=4, mf="16", valu=1),
        "D_vgpr_m4_v2": dict(seg=1024, mode="vgpr", nwaves=4, depth=18, mfma=4, valu=2),
    }
    import os
    os.makedirs(out, exist_ok=True)
    for n, c in cfgs.items():
        open(f"{out}/{n}.s", "w").write(gen(**c))
    print(" ".join(f"{out}/{n}.s" for n in cfgs))
```

```python
import sys, os
sys.path.insert(0, os.path.join(os.path.dirname(os.path.abspath(__file__)), "..", "gen"))
from asmlib import *
from gen_stream import prologue, stamp_start, stamp_end, NAME


def gelu():
    ops = []
    for tt in range(4):
        t, p = 152 + 10 * (tt & 1), 156 + 10 * (tt & 1)
        g, u = 120 + 4 * tt, 136 + 4 * tt
        ops += [(f"v_mul_f32 v{t + r}, v{g + r}, v{g + r}", 1) for r in range(4)]
        ops += [(f"v_fma_f32 v{t + r}, v{t + r}, v13, v14", 1) for r in range(4)]
        ops += [(f"v_mul_f32 v{t + r}, v{g + r}, v{t + r}", 1) for r in range(4)]
        ops += [(f"v_exp_f32 v{t + r}, v{t + r}", 2) for r in range(4)]
        ops += [(f"v_mul_f32 v{p + r}, v{g + r}, v{u + r}", 1) for r in range(4)]
        ops += [(f"v_fma_f32 v{t + r}, v{t + r}, v15, v15", 1) for r in range(4)]
        ops += [(f"v_rcp_f32 v{t + r}, v{t + r}", 2) for r in range(4)]
        ops += [(f"v_mul_f32 v{p + r}, v{p + r}, v{t + r}", 1) for r in range(4)]
        ops += [(f"v_cvt_pk_bf16_f32 v{p + 4}, v{p}, v{p + 1}", 1), (f"v_cvt_pk_bf16_f32 v{p + 5}, v{p + 2}, v{p + 3}", 1)]
        ops += [(f"ds_write_b64 v12, v[{p + 4}:{p + 5}] offset:{tt * 1024}", 2)]
    return ops


def gen(mode, share=16, steps=36, nst=0, bar=48, tuned=False, chain=3, snake=0, swap=False):
    a = Asm()
    a("; @launch grid=(256,1,1) block=(256,1,1) lds=163840")
    a('.amdgcn_target "amdgcn-amd-amdhsa--gfx950"')
    kernel_begin(a, NAME)
    prologue(a)
    a("v_lshlrev_b32 v3, 4, v2")
    for m in range(9):
        a(f"v_add_u32 v{184 + m}, {4096 * m}, v3")
    nstream = 256 // share // 8
    a("s_and_b32 s12, s2, 7")
    a(f"s_mul_i32 s12, s12, {nstream}")
    a(f"s_lshr_b32 s7, s2, 3")
    a(f"s_and_b32 s7, s7, {nstream - 1}")
    a("s_add_u32 s12, s12, s7")
    per = 4 if mode == "D" else 2
    a(f"s_mul_i32 s12, s12, {per}")
    a("s_lshr_b32 s7, s6, 1" if mode == "A" else "s_mov_b32 s7, s6")
    a("s_add_u32 s12, s12, s7")
    a(f"s_mul_i32 s12, s12, {9 * 36 * 1024}")
    for i in range(64):
        a(f"s_mov_b32 s7, {(40 << 20) + i * 4096}")
        a(f"buffer_load_dwordx4 a[{4 * i}:{4 * i + 3}], v3, s[8:11], s7 offen")
        if i % 16 == 15:
            a("s_waitcnt vmcnt(0)")
    for i in range(8):
        a(f"s_mov_b32 s7, {(41 << 20) + i * 4096}")
        a(f"buffer_load_dwordx4 v[{220 + 4 * i}:{223 + 4 * i}], v3, s[8:11], s7 offen")
    for i in range(16, 184):
        a(f"v_mov_b32 v{i}, 0")
    a("v_mov_b32 v13, 0xbd800000")
    a("v_mov_b32 v14, 0xc0135761")
    a("v_mov_b32 v15, 1.0")
    a("v_add_u32 v12, 0x24000, v3")
    a("s_lshr_b32 s13, s6, 1")
    a("s_mul_i32 s13, s13, 36864")
    a("s_and_b32 s7, s6, 1")
    a("s_lshl_b32 s15, s7, 10")
    a("s_add_u32 s16, s13, s15")
    a("v_add_u32 v4, s13, v3")
    a("s_lshl_b32 s21, s2, 16")
    a(f"s_add_u32 s21, s21, {128 << 20}")
    a("s_waitcnt vmcnt(0)")
    stamp_start(a)
    a("s_mov_b32 s14, 0")
    a("s_mov_b32 s17, s12")
    a("s_mov_b32 s18, 0")
    if mode == "A":
        a("s_add_u32 s17, s17, s15")
    xreg = lambda tt, ks: reg(256 + 4 * (tt * 18 + ks), 4) if tt * 18 + ks < 64 else reg(220 + 4 * (tt * 18 + ks - 64), 4)
    a("L_step:")
    mf, pinned, salu = [], {}, {}
    for G in range(12):
        gu, grp = G & 1, G >> 1
        for tt in range(4):
            for kk in range(3):
                ks = 3 * grp + kk
                c = 88 + 16 * gu + 4 * tt
                d = 120 + 16 * gu + 4 * tt if ks == 17 else c
                w = 16 + 4 * ((3 * G + kk) % (18 if mode == "D" else 6))
                mf.append(f"v_mfma_f32_16x16x32_bf16 v[{d}:{d + 3}], v[{w}:{w + 3}], {xreg(tt, ks)}, {'0' if ks == 0 else f'v[{c}:{c + 3}]'}")
        for kk in range(3):
            n = 3 * G + kk
            if mode == "D":
                r = 16 + 4 * ((n + 15) % 18)
                pinned[12 * G + 4 * kk + 1] = [(f"buffer_load_dwordx4 v[{r}:{r + 3}], v{184 + n // 4}, s[8:11], s17 offen offset:{(n % 4) * 1024} sc1", 2)]
            else:
                r = 16 + 4 * ((n + 3) % 6)
                pinned[12 * G + 2 * kk] = [(f"ds_read_b128 v[{r}:{r + 3}], v4 offset:{((n + 3) % 36) * 1024}", 1)]
                if n % 2 == 0 and tuned:
                    slot = (n + 28) % 36
                    g0 = 12 * G + (7 if kk < 2 else 10)
                    salu[g0 - 1] = f"s_add_u32 m0, s16, {slot * 1024 - (n % 4) * 1024}"
                    pinned[g0] = [(f"buffer_load_dwordx4 v{184 + n // 4}, s[8:11], s17 offen offset:{(n % 4) * 1024} sc1 lds", 2)]
                elif n % 2 == 0:
                    slot = (n + 28) % 36
                    pinned[12 * G + 4 * kk + 3] = [(f"s_add_u32 m0, s16, {slot * 1024 - (n % 4) * 1024}\ns_nop 0\n"
                                                    f"buffer_load_dwordx4 v{184 + n // 4}, s[8:11], s17 offen offset:{(n % 4) * 1024} sc1 lds", 2)]
    for k in range(nst):
        pinned[20 + 30 * k] = [(f"buffer_store_dwordx4 v[152:155], v3, s[8:11], s21 offen offset:{(k % 4) * 1024} sc1", 2)]
    if chain != 3 or snake or swap:
        mf, pinned = [], {}
        gs = 4 * chain
        for G in range(36 // chain):
            gu, grp = G & 1, G >> 1
            for tt in range(4):
                if snake == 2 and gu:
                    tt = 3 - tt
                rev = snake and tt & 1
                for pos, kk in enumerate(reversed(range(chain)) if rev else range(chain)):
                    ks = chain * grp + kk
                    c = 88 + 16 * gu + 4 * tt
                    d = 120 + 16 * gu + 4 * tt if grp == 18 // chain - 1 and pos == chain - 1 else c
                    w = 16 + 4 * ((chain * G + kk) % 18)
                    A, B = f"v[{w}:{w + 3}]", xreg(tt, ks)
                    if swap:
                        A, B = B, A
                    mf.append(f"v_mfma_f32_16x16x32_bf16 v[{d}:{d + 3}], {A}, {B}, {'0' if grp == 0 and pos == 0 else f'v[{c}:{c + 3}]'}")
            for kk in range(chain):
                n = chain * G + kk
                r = 16 + 4 * ((n + 18 - chain) % 18)
                pinned[gs * G + 4 * kk + 1] = [(f"buffer_load_dwordx4 v[{r}:{r + 3}], v{184 + n // 4}, s[8:11], s17 offen offset:{(n % 4) * 1024} sc1", 2)]
    gaps = [list(pinned.get(g, [])) for g in range(144)]
    g = 2
    for text, cost in gelu():
        while sum(c for _, c in gaps[g]) + cost > 2 and g < 143:
            g += 1
        gaps[g].append((text, cost))
    order = [] if mode == "D" else [(i, t) for i in range(144) for t, _ in gaps[i] if t.startswith("ds_")]

    def lgk(i):
        seq = [(j - 144, t) for j, t in order] + order
        seq = [x for x in seq if x[0] < i]
        last = max(k for k, x in enumerate(seq) if x[1].startswith("ds_read"))
        return len(seq) - 1 - last

    for i in range(144):
        if chain != 3 or snake or swap:
            if i % (4 * chain) == 0:
                a(f"s_waitcnt vmcnt({18 - 2 * chain})")
        elif i % 12 == 0 and tuned:
            if i % bar == 0:
                a(f"s_waitcnt vmcnt({14 - bar // 8 + min(nst, 1)}) lgkmcnt({lgk(i)})")
                a("s_barrier")
            else:
                a(f"s_waitcnt lgkmcnt({lgk(i)})")
        elif i % 12 == 0:
            if mode == "D":
                a(f"s_waitcnt vmcnt({12 + min(nst, 1)})")
            elif i % 48 == 0:
                a(f"s_waitcnt vmcnt({6 + min(nst, 1)}) lgkmcnt(0)")
                a("s_barrier")
            else:
                a("s_waitcnt lgkmcnt(0)")
        a(mf[i])
        for t, _ in gaps[i]:
            a(t)
        if i in salu:
            a(salu[i])
        if i == 142:
            a("s_add_u32 s17, s17, 36864")
    a("s_add_u32 s18, s18, 1")
    a("s_cmp_eq_u32 s18, 8")
    a("s_cselect_b32 s7, 294912, 0")
    a("s_sub_u32 s17, s17, s7")
    a("s_and_b32 s18, s18, 7")
    a("s_add_u32 s14, s14, 1")
    a(f"s_cmp_lt_u32 s14, {steps}")
    a("s_cbranch_scc1 L_step")
    a("s_waitcnt vmcnt(0) lgkmcnt(0)")
    a(f"s_mov_b32 s56, {144 * steps}")
    stamp_end(a, ["s56"])
    a("L_end:")
    a("s_endpgm")
    kernel_desc(a, NAME, 256, 256, 96)
    return a.text()


if __name__ == "__main__":
    out = sys.argv[1]
    os.makedirs(out, exist_ok=True)
    cfgs = {"D": dict(mode="D"), "Dc1": dict(mode="D", chain=1), "Dc2": dict(mode="D", chain=2), "Dc6": dict(mode="D", chain=6), "Dc2s": dict(mode="D", chain=2, snake=1), "Dc3s": dict(mode="D", chain=3, snake=1),
            "Dc2s2": dict(mode="D", chain=2, snake=2), "Dc2w": dict(mode="D", chain=2, swap=True), "Dc2sw": dict(mode="D", chain=2, snake=1, swap=True),
            "Dc6s": dict(mode="D", chain=6, snake=1), "A": dict(mode="A", share=8), "D_st1": dict(mode="D", nst=1), "A_st2": dict(mode="A", share=8, nst=2),
            "At48": dict(mode="A", share=8, tuned=True), "At24": dict(mode="A", share=8, tuned=True, bar=24),
            "At72": dict(mode="A", share=8, tuned=True, bar=72), "At48_st3": dict(mode="A", share=8, tuned=True, nst=3)}
    for n, c in cfgs.items():
        open(f"{out}/{n}.s", "w").write(gen(**c))
    print(" ".join(f"{out}/{n}.s" for n in cfgs))
```

```python
import math
import os
import re
import struct
import sys

sys.path.insert(0, os.path.dirname(os.path.abspath(__file__)))
from asmlib import Asm, kernel_begin, kernel_desc, reg, srd
import hazards

NAME = "interleave_layers__sliding_local_dilated__glu_gated_geglu__prompt"
KB = 1024
GB = 9216
WS_SIZE = 256 << 20
WQ = 0
WO = 0x240000
WF = 0x300000
WSTR = 486 * KB
CH = 2
GS, LA = 4 * CH, 18 - CH
FLAGS = 0x1240000
FPH = 256 * 128
SL_WQ, SL_WF, SL_WO, SL_EARLY = 9, 10, 11, 12
EPOCH = 0x12C0000
PART = 0x1300000
XN = 0x2500000
OO = 0x2740000
X2 = 0x2980000
XC = 0x2BC0000
MEAN = 0x2E00000
STAT = 0x2E10000
MEAN1 = 0x2E30000
LSTR = 0x940000
OOB = 0x40000000
STAMP_OFF = 255 << 20

HEADER = """; Kernarg layout for this problem (80 bytes, ptrs only, base s[0:1]):
;
;   wo   : x1 = x + o @ wo for 32 tokens x 144 columns, stored as x1 - mean(x1) plus mean and sums of squares
; Hand-offs between workgroups: write-through (sc1) stores, drained by every wave, then one flag word per consumer;
"""


def f32(x):
    return "0x%08x" % struct.unpack("<I", struct.pack("<f", x))[0]


def sdiv(a, dst, src, d, hi):
    m = -(-(1 << 20) // d)
    assert all((x * m) >> 20 == x // d for x in range(hi + 1)) and hi * m < (1 << 32)
    a(f"s_mul_i32 {dst}, {src}, {m}")
    a(f"s_lshr_b32 {dst}, {dst}, 20")


def sdivmod(a, q, r, src, d, hi):
    sdiv(a, q, src, d, hi)
    a(f"s_mul_i32 {r}, {q}, {d}")
    a(f"s_sub_u32 {r}, {src}, {r}")


def csel(a, dst, x, y):
    a(f"s_mov_b32 {dst}, {y}")
    a(f"s_cmov_b32 {dst}, {x}")


class Vm:
    def __init__(self):
        self.ops = []

    def issue(self, tag):
        self.ops.append(tag)

    def count(self, *tags):
        last = max(i for i, t in enumerate(self.ops) if t in tags)
        return len(self.ops) - 1 - last


MARK_NAMES = {21: "pre.x0", 22: "pre.q", 23: "pre.o", 24: "pre.set", 25: "pre.raw"}
MARK_ORDER = [31, 21, 23, 24, 25, 28, 29, 30, 27, 0, 1, 2, 3, 4, 5, 6, 7, 8, 9, 10, 11, 12, 13, 14, 15, 20, 16, 17, 18, 19]


class Cfg:
    stamps = False
    tripmarks = 0
    jx = 2
    pw = 0
    pollw = 3
    code_warm = 3
    w_per_ks = 3
    wo_per_ks = 4
    wo_gap = 8
    red_pre = 7
    red_gap = 16
    red_feed = 1
    red_post = 12
    epi_gap = 6
    epi_gap2 = 40


def tile_map(a, sj, smt, jx):
    lg = jx.bit_length() - 1
    a(f"s_and_b32 {sj}, s2, {8 // jx - 1}")
    a(f"s_lshl_b32 {sj}, {sj}, {lg}")
    a(f"s_bfe_u32 s7, s2, {3 | (lg << 16)}")
    a(f"s_add_u32 {sj}, {sj}, s7")
    a(f"s_bfe_u32 {smt}, s2, {(3 - lg) | (lg << 16)}")
    a(f"s_lshl_b32 {smt}, {smt}, {5 - lg}")
    a(f"s_lshr_b32 s7, s2, {3 + lg}")
    a(f"s_add_u32 {smt}, {smt}, s7")


def entry(a, name, nwg, end, extra_loads=()):
    a(f"s_cmp_ge_u32 s2, {nwg}")
    a(f"s_cbranch_scc1 {end}")
    a("s_load_dwordx2 s[4:5], s[0:1], 72")
    for l in extra_loads:
        a(l)
    a("s_getpc_b64 s[96:97]")
    a("L_main_pc:")
    a(f"s_sub_u32 s96, s96, L_main_pc-{name}")
    a("s_subb_u32 s97, s97, 0")
    a("s_and_b32 s97, s97, 0xffff")
    a(f"s_mov_b32 s98, L_main_code_end-{name}")
    a("s_mov_b32 s99, 0x20000")
    a("s_lshr_b32 s7, s2, 3")
    a("s_lshl_b32 s7, s7, 11")
    a("v_lshl_add_u32 v253, v0, 3, s7")
    if Cfg.code_warm:
        a("buffer_load_dwordx2 v[2:3], v253, s[96:99], 0 offen")
    a("v_lshrrev_b32 v1, 6, v0")
    a("v_and_b32 v0, 63, v0")
    a("v_readfirstlane_b32 s3, v1")
    a("s_waitcnt lgkmcnt(0)")
    srd(a, 8, "s4", "s5", WS_SIZE)


def mark(a, idx):
    if Cfg.stamps:
        a("s_memrealtime s[100:101]")
        a("s_memtime vcc")
        a("s_lshl_b32 m0, s42, 5")
        a(f"s_add_u32 m0, m0, {idx}")
        a("s_waitcnt lgkmcnt(0)")
        a(f"v_writelane_b32 v{Cfg.sv}, s100, m0")
        a(f"v_writelane_b32 v{Cfg.sv + 1}, vcc_lo, m0")


def mark_dyn(a, base, sreg):
    if Cfg.stamps and Cfg.tripmarks:
        a("s_memrealtime s[100:101]")
        a("s_memtime vcc")
        a("s_lshl_b32 m0, s42, 5")
        a(f"s_add_u32 m0, m0, {sreg}")
        a(f"s_add_u32 m0, m0, {base}")
        a("s_waitcnt lgkmcnt(0)")
        a(f"v_writelane_b32 v{Cfg.sv}, s100, m0")
        a(f"v_writelane_b32 v{Cfg.sv + 1}, vcc_lo, m0")


def dump_marks(a, slot):
    if Cfg.stamps:
        a("s_lshl_b32 s7, s2, 2")
        a("s_add_u32 s7, s7, s3")
        a("s_lshl_b32 s7, s7, 9")
        a(f"s_add_u32 s7, s7, {STAMP_OFF + slot * 0x80000}")
        a("v_lshlrev_b32 v1, 2, v0")
        a(f"buffer_store_dword v{Cfg.sv}, v1, s[8:11], s7 offen")
        a(f"buffer_store_dword v{Cfg.sv + 1}, v1, s[8:11], s7 offen offset:256")


def code_warm(a, dst):
    if Cfg.code_warm:
        a("s_lshr_b32 s7, s2, 3")
        a("s_lshl_b32 s7, s7, 2")
        a("s_add_u32 s7, s7, s3")
        a("s_lshl_b32 s7, s7, 9")
        a("v_lshrrev_b32 v1, 1, v253")
        a("v_add_u32 v1, s7, v1")
        a(f"buffer_load_dwordx2 {dst}, v1, s[96:99], 0 offen")


PH_QKV, PH_WO, PH_FFN, PH_RED = range(4)


def publish(a, phase, extra=None):
    skip = a.label("pub")
    a("v_lshlrev_b32 v15, 7, v0")
    a("s_lshl_b32 s6, s40, 2")
    a("s_add_u32 s6, s6, s44")
    if phase > 0:
        a(f"s_add_u32 s6, s6, {phase * FPH}")
    elif phase < 0:
        a(f"s_sub_u32 s6, s6, {-phase * FPH}")
    a("v_mov_b32 v1, s76")
    a("s_mov_b64 vcc, 0xff")
    if phase % 4 == PH_RED:
        a("v_lshrrev_b32 v14, 3, v0")
        a("v_lshl_add_u32 v15, v14, 3, v15")
        a("s_cmp_ge_u32 s40, 6")
        a("s_cselect_b32 s7, s41, 31")
        a("s_cmp_lt_u32 s7, 31")
        a("s_cmov_b64 vcc, 0xffff")
    a("s_waitcnt vmcnt(0)")
    a("s_barrier")
    a(f"s_cmp_lg_u32 s3, {Cfg.pw}")
    a(f"s_cbranch_scc1 {skip}")
    a("s_mov_b64 exec, vcc")
    a("buffer_store_dword v1, v15, s[8:11], s6 offen sc1")
    if extra:
        extra(skip)
    a(f"{skip}:")
    a("s_mov_b64 exec, -1")


def column_flag(a, slot, word="s41"):
    a("s_lshl_b32 s6, s40, 7")
    a(f"s_lshl_b32 s7, {word}, 2")
    a("s_add_u32 s6, s6, s7")
    a(f"s_add_u32 s6, s6, {FLAGS + slot * FPH}")
    a("s_mov_b64 exec, 0xffffffff")
    a("v_lshlrev_b32 v15, 10, v0")
    a("v_mov_b32 v1, s76")
    a("buffer_store_dword v1, v15, s[8:11], s6 offen sc1")


def column_wait(a, slot, abort, n=32):
    lp, again, ok = a.label("cpoll"), a.label("cpoll"), a.label("cpolled")
    a("s_lshl_b32 s7, s41, 3")
    a("s_add_u32 s7, s7, s40")
    a("s_lshl_b32 s7, s7, 7")
    a(f"s_add_u32 s7, s7, {FLAGS + slot * FPH}")
    a("s_add_u32 s68, s4, s7")
    a("s_addc_u32 s69, s5, 0")
    a("s_mov_b32 s6, 0")
    a("s_mov_b32 s7, 0")
    a(f"{lp}:")
    a("s_load_dwordx16 s[52:67], s[68:69], s7 glc")
    a("s_add_u32 s6, s6, 1")
    a("s_waitcnt lgkmcnt(0)")
    for r in range(52, 68, 2):
        a(f"s_xor_b64 s[{r}:{r + 1}], s[{r}:{r + 1}], s[76:77]")
    for d in (8, 4, 2):
        for r in range(52, 52 + d, 2):
            a(f"s_or_b64 s[{r}:{r + 1}], s[{r}:{r + 1}], s[{r + d}:{r + d + 1}]")
    assert 16 < n <= 32
    a(f"s_cbranch_scc1 {again}")
    a(f"s_add_u32 s7, s7, {4 * (n - 16)}")
    a(f"s_cmp_eq_u32 s7, {8 * (n - 16)}")
    a(f"s_cbranch_scc1 {ok}")
    a(f"{again}:")
    a(f"s_cmp_lt_u32 s6, {1 << 20}")
    a(f"s_cbranch_scc1 {lp}")
    a(f"s_branch {abort}")
    a(f"{ok}:")


def wait_flags(a, off, abort, halo=False, extra=None):
    lp, ok, out = a.label("poll"), a.label("polled"), a.label("pollout")
    a(f"s_cmp_lg_u32 s3, {Cfg.pollw}")
    a(f"s_cbranch_scc1 {out}")
    a("s_lshl_b32 s7, s40, 7")
    a("s_add_u32 s7, s7, s44")
    if off > 0:
        a(f"s_add_u32 s7, s7, {off}")
    elif off < 0:
        a(f"s_sub_u32 s7, s7, {-off}")
    a("s_add_u32 s52, s4, s7")
    a("s_addc_u32 s53, s5, 0")
    if halo:
        a("s_cmp_eq_u32 s41, 0")
        a("s_cselect_b32 s7, 0, 32")
    a("s_mov_b32 s6, 0")
    a(f"{lp}:")
    a("s_load_dwordx8 s[56:63], s[52:53], 0 glc")
    if halo:
        a("s_load_dwordx2 s[54:55], s[52:53], s7 glc")
    a("s_add_u32 s6, s6, 1")
    a("s_waitcnt lgkmcnt(0)")
    for r in ([54] if halo else []) + [56, 58, 60, 62]:
        a(f"s_xor_b64 s[{r}:{r + 1}], s[{r}:{r + 1}], s[76:77]")
    a("s_or_b64 s[56:57], s[56:57], s[58:59]")
    a("s_or_b64 s[60:61], s[60:61], s[62:63]")
    if halo:
        a("s_or_b64 s[56:57], s[56:57], s[54:55]")
    a("s_or_b64 s[56:57], s[56:57], s[60:61]")
    a(f"s_cbranch_scc0 {ok}")
    a(f"s_cmp_lt_u32 s6, {1 << 20}")
    a(f"s_cbranch_scc1 {lp}")
    a(f"s_branch {abort}")
    a(f"{ok}:")
    if extra:
        extra(out)
    a(f"{out}:")
    a("s_barrier")


def check_early(a, off, abort):
    lp, ok = a.label("epoll"), a.label("epolled")
    a("s_mov_b32 s6, 0")
    a(f"{lp}:")
    a("s_waitcnt lgkmcnt(0)")
    for r in (56, 58, 60, 62):
        a(f"s_xor_b64 s[{r}:{r + 1}], s[{r}:{r + 1}], s[76:77]")
    a("s_or_b64 s[56:57], s[56:57], s[58:59]")
    a("s_or_b64 s[60:61], s[60:61], s[62:63]")
    a("s_or_b64 s[56:57], s[56:57], s[60:61]")
    a(f"s_cbranch_scc0 {ok}")
    a(f"s_load_dwordx8 s[56:63], s[38:39], {off} glc")
    a("s_add_u32 s6, s6, 1")
    a(f"s_cmp_lt_u32 s6, {1 << 20}")
    a(f"s_cbranch_scc1 {lp}")
    a(f"s_branch {abort}")
    a(f"{ok}:")


def bfrag_voff(a, dst, tmp):
    a(f"v_bfe_u32 {tmp}, v0, 3, 1")
    a(f"v_mul_u32_u24 {dst}, {GB}, {tmp}")
    a(f"v_lshrrev_b32 {tmp}, 4, v0")
    a(f"v_lshl_add_u32 {dst}, {tmp}, 7, {dst}")
    a(f"v_and_b32 {tmp}, 7, v0")
    a(f"v_lshl_add_u32 {dst}, {tmp}, 4, {dst}")


def dtile_voff(a, dst, tmp, tmp2, gstride):
    a(f"v_bfe_u32 {tmp}, v0, 3, 2")
    a(f"s_mov_b32 s7, {gstride}")
    a(f"v_mul_lo_u32 {dst}, {tmp}, s7")
    a(f"v_lshrrev_b32 {tmp}, 5, v0")
    a(f"v_lshl_add_u32 {dst}, {tmp}, 7, {dst}")
    a(f"v_and_b32 {tmp}, 7, v0")
    a(f"v_lshl_add_u32 {dst}, {tmp}, 4, {dst}")


def rowsum_16_32(a, vals, tmp):
    for swap in ("v_permlane32_swap_b32", "v_permlane16_swap_b32"):
        for i, v in enumerate(vals):
            a(f"v_mov_b32 {tmp[i]}, {v}")
        a("s_nop 1")
        for i, v in enumerate(vals):
            a(f"{swap} {tmp[i]}, {v}")
        for i, v in enumerate(vals):
            a(f"v_add_f32 {v}, {v}, {tmp[i]}")


def ln_coeffs(a, vs, vss, rstd, nb):
    a(f"v_mul_f32 {vs}, {f32(1.0 / 576)}, {vs}")
    a(f"v_mul_f32 {vss}, {f32(1.0 / 576)}, {vss}")
    a(f"v_fma_f32 {vss}, -{vs}, {vs}, {vss}")
    a(f"v_max_f32 {vss}, 0, {vss}")
    a(f"v_add_f32 {vss}, {f32(1e-5)}, {vss}")
    a(f"v_rsq_f32 v{rstd}, {vss}")
    a("s_nop 0")
    a(f"v_mul_f32 v{nb}, {vs}, v{rstd}")
    a(f"v_mov_b32 v{rstd + 1}, v{rstd}")
    a(f"v_sub_f32 v{nb}, 0, v{nb}")
    a(f"v_mov_b32 v{nb + 1}, v{nb}")


def normalize(a, src, dst, n, rstd, nb, tmp):
    for i0 in range(0, n, 4):
        k = min(4, n - i0)
        for i in range(k):
            a(f"v_lshlrev_b32 v{tmp + 2 * i}, 16, v{src + i0 + i}")
            a(f"v_and_b32 v{tmp + 2 * i + 1}, s16, v{src + i0 + i}")
        for i in range(k):
            t = tmp + 2 * i
            a(f"v_pk_fma_f32 v[{t}:{t + 1}], v[{t}:{t + 1}], v[{rstd}:{rstd + 1}], v[{nb}:{nb + 1}]")
        for i in range(k):
            t = tmp + 2 * i
            a(f"v_cvt_pk_bf16_f32 v{dst + i0 + i}, v{t}, v{t + 1}")


VR, VM = 172, 175


def red_offsets(a):
    a("s_mov_b32 s16, 0xffff0000")
    a("s_lshl_b32 s7, s3, 10")
    a(f"v_add_u32 v{VR}, s7, v253")
    a(f"v_add_u32 v{VR + 2}, 5120, v{VR}")
    a("v_and_b32 v178, 7, v0")
    a("v_mul_u32_u24 v178, 1152, v178")
    a("v_lshrrev_b32 v179, 3, v0")
    a("v_lshl_add_u32 v178, v179, 4, v178")
    a("s_lshl_b32 s7, s3, 7")
    a(f"v_add_u32 v{VM}, s7, v178")
    a(f"v_add_u32 v{VM + 2}, 640, v{VM}")
    a("s_cmp_eq_u32 s3, 0")
    csel(a, "s17", 4096, OOB)
    a(f"v_add_u32 v{VR + 1}, s17, v{VR}")
    csel(a, "s17", 512, OOB)
    a(f"v_add_u32 v{VM + 1}, s17, v{VM}")


def red_ln_store(a, XB, sX2, sXN, sMEAN, flag):
    for b in range(3):
        a(f"buffer_store_dwordx4 v[{XB + 4 * b}:{XB + 4 * b + 3}], v{VR + b}, s[8:11], {sX2} offen {flag}")
    a("s_mov_b32 s17, 0x3f803f80")
    for i in range(4):
        a(f"v_mov_b32 v{8 + i}, 0")
    for i in range(12):
        a(f"v_dot2c_f32_bf16 v{8 + 2 * (i & 1)}, s17, v{XB + i}")
        a(f"v_dot2c_f32_bf16 v{9 + 2 * (i & 1)}, v{XB + i}, v{XB + i}")
    a("v_and_b32 v12, 7, v0")
    a("v_lshlrev_b32 v12, 3, v12")
    a("s_lshl_b32 s7, s3, 6")
    a("v_add_u32 v13, s7, v12")
    a("v_pk_add_f32 v[8:9], v[8:9], v[10:11]")
    a("s_nop 1")
    a("v_add_f32_dpp v8, v8, v8 row_ror:8 row_mask:0xf bank_mask:0xf")
    a("v_add_f32_dpp v9, v9, v9 row_ror:8 row_mask:0xf bank_mask:0xf")
    rowsum_16_32(a, ["v8", "v9"], ["v10", "v11"])
    a("ds_write_b64 v13, v[8:9]")
    a("s_waitcnt lgkmcnt(0)")
    a("s_barrier")
    T = 40
    for w in range(4):
        a(f"ds_read_b64 v[{T + 2 * w}:{T + 2 * w + 1}], v12 offset:{64 * w}")
    a("s_waitcnt lgkmcnt(0)")
    a(f"v_pk_add_f32 v[{T}:{T + 1}], v[{T}:{T + 1}], v[{T + 2}:{T + 3}]")
    a(f"v_pk_add_f32 v[{T + 4}:{T + 5}], v[{T + 4}:{T + 5}], v[{T + 6}:{T + 7}]")
    a(f"v_pk_add_f32 v[8:9], v[{T}:{T + 1}], v[{T + 4}:{T + 5}]")
    ln_coeffs(a, "v8", "v9", 10, 12)
    a("s_cmp_eq_u32 s3, 0")
    a("s_cselect_b32 s7, 32, 0")
    a("v_lshlrev_b32 v14, 2, v0")
    a("v_cmp_gt_u32 vcc, s7, v0")
    a(f"v_mov_b32 v9, {OOB}")
    a("s_nop 0")
    a("v_cndmask_b32 v14, v9, v14, vcc")
    a(f"buffer_store_dword v8, v14, s[8:11], {sMEAN} offen {flag}")
    normalize(a, XB, 48, 12, 10, 12, T)
    for b in range(3):
        a(f"buffer_store_dwordx4 v[{48 + 4 * b}:{51 + 4 * b}], v{VR + b}, s[8:11], {sXN} offen {flag}")


def red_setup(a):
    red_offsets(a)
    a("s_lshl_b32 s21, s41, 3")
    a("s_add_u32 s21, s21, s40")
    a(f"s_mul_i32 s18, s21, {GB}")
    a(f"s_mul_i32 s20, s21, {8 * GB}")
    a(f"s_add_u32 s20, s20, {PART}")
    loads = []
    for k in range(7):
        for b in range(2):
            r = slot_reg(18 + 2 * k + b)
            t = f"buffer_load_dwordx4 v[{r}:{r + 3}], v{VR + b}, s[8:11], s19 offen sc1"
            loads.append(red_source("s19", k) + t if b == 0 else t)
    return loads


OWN = 4 * KB


def red_source(dst, k):
    return (f"s_add_u32 s7, s40, {k + 1}\ns_and_b32 s7, s7, 7\ns_mul_i32 s7, s7, {GB}\ns_add_u32 {dst}, s7, s20\n")


def phase_red(a, abort, last):
    ACC, TMP, LD, XR, XB = 16, 40, 60, 92, 120
    a("s_add_u32 s19, s18, s43")
    a(f"s_add_u32 s22, s19, {XC}")
    a("s_lshl_b32 s23, s21, 5")
    a("s_add_u32 s23, s23, s43")
    a(f"s_add_u32 s23, s23, {MEAN1}")
    other = a.label("late")
    assert Cfg.pollw >= 2
    a("s_cmp_ge_u32 s3, 2")
    a(f"s_cbranch_scc1 {other}")
    a("s_load_dwordx8 s[56:63], s[38:39], 32 glc")
    a(f"{other}:")
    a("v_and_b32 v12, 7, v0")
    a("v_lshlrev_b32 v12, 2, v12")
    a("buffer_load_dword v10, v12, s[8:11], s23 offen sc1")
    for b in range(3):
        a(f"buffer_load_dwordx4 v[{XR + 4 * b}:{XR + 4 * b + 3}], v{VR + b}, s[8:11], s22 offen sc1")

    def unpack(dst, r):
        for i in range(4):
            a(f"v_lshlrev_b32 v{dst + 2 * i}, 16, v{r + i}")
            a(f"v_and_b32 v{dst + 2 * i + 1}, s16, v{r + i}")

    def add(b, r):
        unpack(TMP, r)
        for i in range(4):
            c = ACC + 8 * b + 2 * i
            a(f"v_pk_add_f32 v[{c}:{c + 1}], v[{c}:{c + 1}], v[{TMP + 2 * i}:{TMP + 2 * i + 1}]")

    pf = Asm()
    qkv_prefetch(pf, 0, QR - 1, "s42")
    queue, chunk = [], ""
    for ln in pf.lines:
        chunk += ln + "\n"
        if "buffer_load" in ln:
            queue.append(chunk)
            chunk = ""
    vm = Vm()

    def feed(n):
        for _ in range(n):
            if queue:
                a(queue.pop(0))
                vm.issue("w")

    OW = [148, 152, 156]
    a(f"v_min_u32 v13, {9 * KB}, v{VR + 1}")
    a(f"ds_read_b128 v[{OW[0]}:{OW[0] + 3}], v{VR} offset:{OWN}")
    a(f"ds_read_b128 v[{OW[1]}:{OW[1] + 3}], v13 offset:{OWN}")
    a(f"ds_read_b128 v[{OW[2]}:{OW[2] + 3}], v{VR + 2} offset:{OWN}")
    setup, first = queue[0].rsplit("buffer_load", 1)
    a(setup)
    queue[0] = "buffer_load" + first

    def gap_feed(n):
        skip = a.label("nopf")
        a("s_cmp_lg_u32 s42, 0")
        a(f"s_cbranch_scc1 {skip}")
        feed(n)
        a(f"{skip}:")

    def late_loads():
        for j in range(7):
            a(red_source("s19", j) + f"buffer_load_dwordx4 v[{LD + 4 * j}:{LD + 4 * j + 3}], v{VR + 2}, s[8:11], s19 offen sc1")

    for b in range(2):
        unpack(ACC + 8 * b, slot_reg(18 + b))
    later, done = a.label("late"), a.label("late")
    a("s_cmp_ge_u32 s3, 2")
    a(f"s_cbranch_scc1 {later}")
    check_early(a, 32, abort)
    late_loads()
    a(f"{later}:")
    gap_feed(Cfg.red_gap // 2)
    for j in range(1, Cfg.red_pre):
        for b in range(2):
            add(b, slot_reg(18 + 2 * j + b))
        if j == 1:
            gap_feed(Cfg.red_gap - Cfg.red_gap // 2)
    wait_flags(a, PH_FFN * FPH, abort)
    mark(a, 16)
    a("s_cmp_lt_u32 s3, 2")
    a(f"s_cbranch_scc1 {done}")
    late_loads()
    a(f"{done}:")
    for j in range(7):
        vm.issue(j)
    for j in range(Cfg.red_pre, 7):
        for b in range(2):
            add(b, slot_reg(18 + 2 * j + b))
    a("s_cmp_eq_u32 s3, 0")
    a("s_cselect_b32 s7, 1.0, 0")
    a("s_cselect_b32 s6, -1, 0")
    a("s_waitcnt vmcnt(7) lgkmcnt(0)")
    for i in range(4):
        a(f"v_and_b32 v{OW[1] + i}, s6, v{OW[1] + i}")
    a("v_mul_f32 v11, s7, v10")
    for b in range(2):
        add(b, XR + 4 * b)
    unpack(ACC + 16, XR + 8)
    for b in range(3):
        add(b, OW[b])
    for b in range(3):
        for i in range(4):
            c = ACC + 8 * b + 2 * i
            sel = "op_sel:[0,1] op_sel_hi:[1,1]" if b == 1 else "op_sel_hi:[1,0]"
            a(f"v_pk_add_f32 v[{c}:{c + 1}], v[{c}:{c + 1}], v[10:11] {sel}")
    for j in range(7):
        a(f"s_waitcnt vmcnt({vm.count(j)})")
        feed(Cfg.red_feed)
        add(2, LD + 4 * j)
    feed(len(queue) - Cfg.red_post)
    for b in range(3):
        for i in range(4):
            c = ACC + 8 * b + 2 * i
            a(f"v_cvt_pk_bf16_f32 v{XB + 4 * b + i}, v{c}, v{c + 1}")
    mark(a, 17)
    a("s_cmp_lg_u32 s42, 0")
    a(f"s_cbranch_scc1 {last}")
    a(f"s_add_u32 s19, s18, {X2 + LSTR}")
    a(f"s_add_u32 s20, s18, {XN + LSTR}")
    a("s_lshl_b32 s22, s21, 7")
    a(f"s_add_u32 s22, s22, {MEAN + LSTR}")
    red_ln_store(a, XB, "s19", "s20", "s22", "sc1")
    mark(a, 18)
    publish(a, PH_RED)
    mark(a, 19)
    feed(99)
    a(chunk)

    def tail():
        for b in range(3):
            a(f"buffer_store_dwordx4 v[{XB + 4 * b}:{XB + 4 * b + 3}], v{VM + b}, s[12:15], s18 offen sc0 sc1")
    return tail


ZB = 96 * KB


def o_row(a, dst, vc, vj, t0, t1):
    a(f"v_mul_u32_u24 {t0}, 7282, {vc}")
    a(f"v_lshrrev_b32 {t0}, 16, {t0}")
    a(f"v_mul_u32_u24 {t1}, 9, {t0}")
    a(f"v_sub_u32 {t1}, {vc}, {t1}")
    a(f"v_mul_u32_u24 {t0}, 72, {t0}")
    a(f"v_cmp_eq_u32 vcc, 8, {t1}")
    a(f"v_lshrrev_b32 {dst}, 1, {t1}")
    a(f"v_mad_u32_u24 {dst}, {dst}, 18, {t0}")
    a(f"v_and_b32 {t1}, 1, {t1}")
    a(f"v_lshl_add_u32 {dst}, {t1}, 3, {dst}")
    a(f"v_add_u32 {dst}, {dst}, {vj}")
    a(f"v_lshrrev_b32 {t1}, 1, {vj}")
    a(f"v_mad_u32_u24 {t0}, {t1}, 18, {t0}")
    a(f"v_and_b32 {t1}, 1, {vj}")
    a(f"v_add3_u32 {t0}, {t0}, {t1}, 16")
    a(f"v_cndmask_b32 {dst}, {dst}, {t0}, vcc")


def tr_rows(a, dst, tmp, shift, pitch):
    a(f"v_lshrrev_b32 {dst}, 4, v0")
    a(f"v_lshlrev_b32 {dst}, {shift}, {dst}")
    a(f"v_bfe_u32 {tmp}, v0, 2, 2")
    a(f"v_add_u32 {dst}, {dst}, {tmp}")
    a(f"v_mul_u32_u24 {dst}, {pitch}, {dst}")
    a(f"v_and_b32 {tmp}, 3, v0")
    a(f"v_lshl_add_u32 {dst}, {tmp}, 3, {dst}")


def qfrag(a, t, pending):
    a(f"s_waitcnt lgkmcnt({pending})")
    for i in range(4):
        a(f"v_lshl_or_b32 v{32 + 4 * t + i}, v{137 + 8 * t + 2 * i}, 16, v{136 + 8 * t + 2 * i}")
        if t == 3:
            a(f"v_cndmask_b32 v{32 + 4 * t + i}, 0, v{32 + 4 * t + i}, s[22:23]")
    a(f"buffer_store_dwordx4 v[{32 + 4 * t}:{35 + 4 * t}], v253, s[8:11], s33 offen offset:{t * KB} sc1")


def phase_prep(a, abort):
    srd(a, 12, "s18", "s19", 2048 * 1152)
    srd(a, 64, "s20", "s21", 576 * 3456)
    srd(a, 68, "s22", "s23", 576 * 1152)
    red_offsets(a)
    a("s_lshl_b32 s21, s41, 3")
    a("s_add_u32 s21, s21, s40")
    a(f"s_mul_i32 s18, s21, {GB}")
    for b in range(3):
        a(f"buffer_load_dwordx4 v[{16 + 4 * b}:{19 + 4 * b}], v{VM + b}, s[12:15], s18 offen nt")
    mark(a, 21)
    srd(a, 12, "s30", "s31", 2048 * 1152)
    a("s_lshl_b32 s79, s3, 14")
    a(f"s_add_u32 s79, s79, {ZB}")
    PS = 8 * KB
    lo, lw, l3 = a.label("prep_o"), a.label("prep_m"), a.label("prep_go")
    nq2, l4, l5 = a.label("prep_o"), a.label("prep_m"), a.label("prep_done")
    a("s_and_b32 s32, s41, 15")
    a("s_lshl_b32 s32, s32, 1")
    a("s_lshr_b32 s7, s41, 4")
    a("s_add_u32 s32, s32, s7")
    a("s_lshl_b32 s36, s32, 3")
    a("s_add_u32 s36, s36, s40")
    a("s_sub_u32 s36, s36, 144")
    a("s_cmp_ge_u32 s32, 18")
    a(f"s_cbranch_scc1 {lo}")
    a(f"s_mul_i32 s35, s32, {32 * 3456}")
    a("s_mul_i32 s7, s40, 144")
    a("s_and_b32 s46, s7, 127")
    a("s_sub_u32 s7, s7, s46")
    a("s_add_u32 s35, s35, s7")
    a(f"s_mul_i32 s7, s3, {4 * 3456}")
    a("s_add_u32 s35, s35, s7")
    a("v_lshrrev_b32 v8, 4, v0")
    a("v_mul_u32_u24 v8, 3456, v8")
    a("v_and_b32 v9, 15, v0")
    a("v_lshl_add_u32 v8, v9, 4, v8")
    a("s_lshl_b32 s34, s3, 10")
    for m in range(6):
        a(f"s_add_u32 m0, s34, {PS + m * 4 * KB}")
        a(f"s_add_u32 s7, s35, {(m & 1) * 16 * 3456 + (m >> 1) * 1152}")
        a("buffer_load_dwordx4 v8, s[64:67], s7 offen nt lds")
    a(f"s_branch {l3}")
    a(f"{lo}:")
    a("s_cmp_ge_u32 s36, 54")
    a(f"s_cbranch_scc1 {lw}")
    sdivmod(a, "s33", "s34", "s36", 3, 53)
    a("s_lshl_b32 s7, s33, 2")
    a("s_add_u32 s7, s7, s3")
    a("v_mov_b32 v8, s7")
    a("v_lshrrev_b32 v9, 3, v0")
    o_row(a, "v10", "v8", "v9", "v11", "v12")
    a("v_mul_u32_u24 v10, 1152, v10")
    a("v_and_b32 v9, 7, v0")
    a("v_lshl_add_u32 v10, v9, 4, v10")
    a("s_mul_i32 s35, s34, 384")
    a("s_lshl_b32 s6, s3, 10")
    for m in range(3):
        a(f"s_add_u32 m0, s6, {PS + m * 4 * KB}")
        a(f"s_add_u32 s7, s35, {m * 128}")
        a("buffer_load_dwordx4 v10, s[68:71], s7 offen nt lds")
    a(f"s_branch {l3}")
    a(f"{lw}:")
    a("s_sub_u32 s37, s36, 54")
    a("s_lshl_b32 s7, s3, 6")
    a("s_add_u32 s37, s37, s7")
    a("s_cmp_ge_u32 s37, 36")
    a(f"s_cbranch_scc1 {l3}")
    a("s_lshl_b32 s7, s37, 1")
    a("v_bfe_u32 v8, v0, 3, 1")
    a("v_add_u32 v8, s7, v8")
    a("v_and_b32 v9, 7, v0")
    o_row(a, "v10", "v8", "v9", "v11", "v12")
    a("v_mul_u32_u24 v10, 1152, v10")
    a("v_lshrrev_b32 v9, 4, v0")
    a("v_lshl_add_u32 v10, v9, 4, v10")
    for ks in range(18):
        a(f"buffer_load_dwordx4 v[{64 + 4 * ks}:{67 + 4 * ks}], v10, s[68:71], 0 offen offset:{64 * ks}")
    a(f"{l3}:")
    mark(a, 23)
    a("s_lshl_b32 s7, s32, 2")
    a("s_add_u32 s7, s7, s3")
    light, dec = a.label("blocks"), a.label("blocks")
    a("s_cmp_ge_u32 s7, 72")
    a(f"s_cbranch_scc1 {light}")
    a("s_cmp_ge_u32 s7, 54")
    a("s_cselect_b32 s93, 1, 0")
    a("s_cselect_b32 s6, 54, 0")
    a("s_sub_u32 s7, s7, s6")
    a("s_mul_i32 s17, s7, 3")
    a("s_mov_b32 s45, 1")
    a(f"s_branch {dec}")
    a(f"{light}:")
    a("s_sub_u32 s7, s7, 72")
    a("s_cmp_ge_u32 s7, 22")
    a("s_cselect_b32 s93, 2, 1")
    a("s_cselect_b32 s6, 22, 0")
    a("s_cselect_b32 s17, 0, 54")
    a("s_sub_u32 s7, s7, s6")
    a("s_mul_i32 s7, s7, 5")
    a("s_add_u32 s17, s17, s7")
    a("s_mov_b32 s45, 3")
    a(f"{dec}:")
    a("s_cmp_eq_u32 s93, 1")
    a("s_cselect_b32 s72, s26, s24")
    a("s_cselect_b32 s73, s27, s25")
    a("s_cmp_eq_u32 s93, 2")
    a("s_cselect_b32 s72, s28, s72")
    a("s_cselect_b32 s73, s29, s73")
    csel(a, "s92", 8 * 1152, 8 * 9216)
    csel(a, "s47", 18 * 32 * 1152, 1152)
    a("s_and_b32 s73, s73, 0xffff")
    a(f"s_mov_b32 s74, {576 * 9216}")
    a("s_mov_b32 s75, 0x20000")
    a("s_mul_i32 s47, s47, s40")
    for b in range(5):
        a(f"s_add_u32 s7, s17, {b if b < 3 else b - 3}")
        if b >= 3:
            a("s_add_u32 s7, s7, s45")
        a("s_min_u32 s7, s7, 161")
        sdivmod(a, f"s{ZK[b]}", f"s{ZK[b] + 1}", "s7", 9, 161)
        a(f"s_mul_i32 s7, s{ZK[b]}, s92")
        a("s_lshl_b32 s7, s7, 2")
        a("s_add_u32 s7, s7, s47")
        a(f"s_lshl_b32 s6, s{ZK[b] + 1}, 7")
        a(f"s_add_u32 s{ZS[b]}, s7, s6")
    a("s_lshr_b32 s7, s92, 3")
    a("v_lshrrev_b32 v224, 3, v0")
    a("v_mul_lo_u32 v224, v224, s7")
    a("v_and_b32 v8, 7, v0")
    a("v_lshl_add_u32 v224, v8, 4, v224")
    a("s_waitcnt lgkmcnt(0)")
    a("s_mul_i32 s76, s76, 0x9e3779b1")
    a("s_add_u32 s76, s76, 0x7f4a7c15")
    a("s_mov_b32 s77, s76")
    mark(a, 24)
    few, many = a.label("raw"), a.label("raw")
    for i in range(4):
        a(ffn_raw_dma(0, i))
    a("s_cmp_lt_u32 s32, 18")
    a(f"s_cbranch_scc1 {few}")
    for i in range(8):
        a(ffn_raw_dma(1 + i // 4, i % 4))
    ffn_transpose_dest(a)
    a("s_waitcnt vmcnt(12)")
    a(f"s_branch {many}")
    a(f"{few}:")
    ffn_transpose_dest(a)
    a("s_waitcnt vmcnt(4)")
    a(f"{many}:")
    mark(a, 25)
    a("s_barrier")
    mark(a, 28)
    a("s_cmp_ge_u32 s32, 18")
    a(f"s_cbranch_scc1 {nq2}")
    a("s_mul_i32 s7, s3, 36")
    a("s_add_u32 s7, s7, s46")
    a("v_lshrrev_b32 v8, 4, v0")
    a("v_lshlrev_b32 v8, 11, v8")
    a("v_add_u32 v8, s7, v8")
    a("v_and_b32 v9, 15, v0")
    a("v_cmp_gt_u32 s[22:23], 6, v9")
    a("v_lshrrev_b32 v10, 1, v9")
    a("v_min_u32 v10, 2, v10")
    a("v_lshl_add_u32 v10, v10, 13, v8")
    a("v_and_b32 v11, 1, v0")
    a("v_lshl_add_u32 v10, v11, 1, v10")
    a("v_lshl_add_u32 v8, v9, 1, v8")
    for t in range(4):
        for j in range(8):
            a(f"ds_read_u16 v{136 + 8 * t + j}, v8 offset:{PS + t * 8192 + j * 256}" if t < 3 else
              f"ds_read_u16 v{136 + 8 * t + j}, v10 offset:{PS + 32 + j * 256}")
        if t == 0:
            a("s_lshl_b32 s33, s40, 2")
            a("s_add_u32 s33, s33, s3")
            a("s_mul_i32 s33, s33, 18")
            a("s_add_u32 s33, s33, s32")
            a("s_lshl_b32 s33, s33, 12")
            if WQ:
                a(f"s_add_u32 s33, s33, {WQ}")
        if t:
            qfrag(a, t - 1, 8)
    qfrag(a, 3, 0)
    a(f"s_branch {l5}")
    a(f"{nq2}:")
    a("s_cmp_ge_u32 s36, 54")
    a(f"s_cbranch_scc1 {l4}")
    tr_rows(a, "v8", "v9", 3, 128)
    a("s_lshl_b32 s7, s3, 5")
    a("v_add_u32 v8, s7, v8")
    for m in range(3):
        a(f"ds_read_b64_tr_b16 v[{32 + 4 * m}:{33 + 4 * m}], v8 offset:{PS + m * 4 * KB}")
        a(f"ds_read_b64_tr_b16 v[{34 + 4 * m}:{35 + 4 * m}], v8 offset:{PS + m * 4 * KB + 512}")
    a("s_mul_i32 s34, s34, 12")
    a("s_add_u32 s34, s34, s3")
    a("s_mul_i32 s34, s34, 18")
    a("s_add_u32 s34, s34, s33")
    a("s_lshl_b32 s34, s34, 10")
    for m in range(3):
        a(f"s_add_u32 s7, s34, {WO + m * 4 * 18 * KB}")
        a(f"s_waitcnt lgkmcnt({4 - 2 * m})")
        a(f"buffer_store_dwordx4 v[{32 + 4 * m}:{35 + 4 * m}], v253, s[8:11], s7 offen sc1")
    a(f"s_branch {l5}")
    a(f"{l4}:")
    a("s_cmp_ge_u32 s37, 36")
    a(f"s_cbranch_scc1 {l5}")
    for i in range(4):
        a(f"v_mov_b32 v{28 + i}, 0x3f803f80")
    a("v_and_b32 v9, 15, v0")
    a("v_cmp_eq_u32 vcc, 0, v9")
    a("v_cmp_eq_u32 s[22:23], 1, v9")
    for ks in range(18):
        a(f"v_mfma_f32_16x16x32_bf16 v[32:35], v[{64 + 4 * ks}:{67 + 4 * ks}], v[28:31], {'0' if ks == 0 else 'v[32:35]'}")
    a("v_lshrrev_b32 v10, 5, v0")
    a("v_lshlrev_b32 v10, 8, v10")
    a("v_lshl_add_u32 v10, v9, 4, v10")
    a("v_bfe_u32 v9, v0, 4, 1")
    a("v_lshl_add_u32 v10, v9, 3, v10")
    a("s_lshl_b32 s7, s37, 9")
    a(f"s_add_u32 s7, s7, {WO + 36 * 18 * KB}")
    a("s_nop 0")
    for r in range(4):
        a(f"v_mul_f32 v{32 + r}, {f32(1.0 / 576)}, v{32 + r}")
    a("v_cvt_pk_bf16_f32 v36, v32, v33")
    a("v_cvt_pk_bf16_f32 v37, v34, v35")
    for h in range(2):
        a(f"v_lshlrev_b32 v38, 16, v{36 + h}")
        a(f"v_and_b32 v39, s16, v{36 + h}")
        a(f"v_sub_f32 v38, v{32 + 2 * h}, v38")
        a(f"v_sub_f32 v39, v{33 + 2 * h}, v39")
        a(f"v_cvt_pk_bf16_f32 v{28 + h}, v38, v39")
        a(f"v_cndmask_b32 v{28 + h}, 0, v{28 + h}, s[22:23]")
        a(f"v_cndmask_b32 v{28 + h}, v{28 + h}, v{36 + h}, vcc")
    a("buffer_store_dwordx2 v[28:29], v10, s[8:11], s7 offen sc1")
    a(f"{l5}:")
    a(f"s_add_u32 s19, s18, {X2}")
    a(f"s_add_u32 s20, s18, {XN}")
    a("s_lshl_b32 s22, s21, 7")
    a(f"s_add_u32 s22, s22, {MEAN}")
    red_ln_store(a, 16, "s19", "s20", "s22", "sc1")
    mark(a, 29)

    def more(skip):
        column_flag(a, SL_WQ, "s32")
        a("s_cmp_lt_u32 s32, 18")
        a(f"s_cbranch_scc1 {skip}")
        a("s_lshl_b32 s6, s36, 2")
        a(f"s_add_u32 s6, s6, {FLAGS + SL_WO * FPH}")
        a("s_mov_b64 exec, 1")
        a("buffer_store_dword v1, off, s[8:11], s6 sc1")

    publish(a, PH_RED - 4, more)
    mark(a, 30)
    few, many = a.label("raw"), a.label("raw")
    late = [ffn_raw_dma(b, i) for b in (3, 4) for i in range(4)]
    a("s_cmp_lt_u32 s32, 18")
    a(f"s_cbranch_scc1 {few}")
    for n, label in ((3, None), (1, few)):
        if label:
            a(f"s_branch {many}")
            a(f"{label}:")
        zst = ffn_transpose(a, range(n), list(range(64, 128, 4)))
        a("s_waitcnt lgkmcnt(0)")
        for t in late + zst:
            a(t)
    a(f"{many}:")
    out = a.label("wq_ready")
    a(f"s_cmp_lg_u32 s3, {Cfg.pw}")
    a(f"s_cbranch_scc1 {out}")
    column_wait(a, SL_WQ, abort, 18)
    a(f"{out}:")
    a("s_barrier")
    mark(a, 27)


ZS = [80, 81, 82, 83, 84]
ZK = [52, 54, 56, 58, 60]
ZD = [94, 95, 85, 78, 70]
ZL = [0, 1, 2, 2, 3]
ZQ = list(range(76, 100, 4)) + [176, 180]


def ffn_raw_dma(b, m):
    step = f"s_mov_b32 s71, s{ZS[b]}" if m == 0 else "s_add_u32 s71, s71, s92"
    return f"s_add_u32 m0, s79, {(4 * ZL[b] + m) * KB}\n{step}\nbuffer_load_dwordx4 v224, s[72:75], s71 offen nt lds"


def ffn_transpose_dest(a):
    a(f"s_mul_i32 s68, s40, {4 * WSTR}")
    a(f"s_add_u32 s68, s68, {WF}")
    for b in range(5):
        q, r = f"s{ZK[b]}", f"s{ZK[b] + 1}"
        sdivmod(a, "s6", "s7", q, CH, 17)
        a(f"s_mul_i32 s6, s6, {2 * CH}")
        a("s_add_u32 s7, s7, s6")
        a(f"s_mul_i32 s6, {r}, 36")
        a("s_add_u32 s7, s7, s6")
        a(f"s_mul_i32 s6, s93, {CH}")
        a("s_add_u32 s7, s7, s6")
        a(f"s_mul_i32 s6, {r}, 18")
        a(f"s_add_u32 s6, s6, {q}")
        a("s_add_u32 s6, s6, 324")
        a("s_cmp_eq_u32 s93, 2")
        a("s_cselect_b32 s7, s6, s7")
        a("s_lshl_b32 s7, s7, 10")
        a(f"s_add_u32 s{ZD[b]}, s7, s68")


def ffn_transpose(a, blocks, regs):
    a("s_cmp_eq_u32 s93, 2")
    a("s_cselect_b32 s6, 2, 3")
    csel(a, "s7", 2048, 512)
    tr_rows(a, "v14", "v15", "s6", 128)
    a("v_add_u32 v14, s79, v14")
    a("v_add_u32 v15, s7, v14")
    stores = []
    for i, b in enumerate(blocks):
        for t in range(4):
            r = regs[4 * i + t]
            a(f"ds_read_b64_tr_b16 v[{r}:{r + 1}], v14 offset:{ZL[b] * 4096 + t * 32}")
            a(f"ds_read_b64_tr_b16 v[{r + 2}:{r + 3}], v15 offset:{ZL[b] * 4096 + t * 32}")
            stores.append(f"s_add_u32 s7, s{ZD[b]}, {t * WSTR}\n"
                          f"buffer_store_dwordx4 v[{r}:{r + 3}], v253, s[8:11], s7 offen sc1")
    return stores


BIG = -1e30


QR = 10
WO_FREE = [(160 + 4 * i, -1) for i in range(24)] + \
    [(16 * (k % QR) + 4 * t, k) for k in range(18 - QR, 18) for t in range(4)]


def wo_reg(ks, sl):
    return WO_FREE[ks * 3 + sl][0]


def qkv_prefetch(a, k0, k1, skip=None):
    if k0 == 0:
        a("s_lshl_b32 s28, s40, 2")
        a("s_add_u32 s28, s28, s3")
        a(f"s_mul_i32 s28, s28, {72 * KB}")
        if WQ:
            a(f"s_add_u32 s28, s28, {WQ}")
    v = "v253"
    a("v_and_b32 v229, 8, v0")
    a("v_lshl_add_u32 v229, v229, 27, v253")
    if skip:
        a(f"s_mul_i32 s7, {skip}, {OOB}")
        a("v_add_u32 v3, s7, v253")
        a("v_or_b32 v229, s7, v229")
        v = "v3"
    for ks in range(k0, k1):
        for l in qkv_wload(ks, v):
            a(l)
        a("s_add_u32 s28, s28, 4096")


def qkv_wload(ks, v="v253", vl="v229"):
    for t in range(4):
        r = 16 * (ks % QR) + 4 * t
        if t == 3:
            v = vl
        yield f"buffer_load_dwordx4 a[{r}:{r + 3}], {v}, s[8:11], s28 offen offset:{t * KB} sc1"


def wo_weight_loads(a):
    setup = []
    s = setup.append
    s("s_lshl_b32 s45, s41, 1")
    s("s_lshr_b32 s7, s40, 2")
    s("s_add_u32 s45, s45, s7")
    s(f"s_mul_i32 s30, s45, {4 * GB}")
    s("s_add_u32 s30, s30, s43")
    s("s_and_b32 s31, s40, 3")
    s("s_mul_i32 s31, s31, 9")
    s("s_add_u32 s31, s31, s3")
    s(f"s_mul_i32 s32, s31, {18 * KB}")
    s(f"s_add_u32 s32, s32, {WO}")
    s(f"s_add_u32 s33, s32, {4 * 18 * KB}")
    s(f"s_add_u32 s34, s32, {8 * 18 * KB}")
    s(f"s_mov_b32 s39, {FLAGS + SL_WO * FPH}")
    s("v_min_u32 v228, 44, v0")
    s("v_lshlrev_b32 v228, 3, v228")
    s("s_cmp_eq_u32 s3, 1")
    s(f"s_cmov_b32 s34, {WO + 36 * 18 * KB}")
    s("s_cmp_lt_u32 s3, 2")
    s(f"s_cselect_b32 s35, 0, {OOB}")
    s("v_add_u32 v5, s35, v253")
    s("s_cmp_eq_u32 s3, 1")
    s("s_cselect_b32 s7, 8, 0")
    s("v_and_b32 v10, s7, v0")
    s("v_lshl_add_u32 v5, v10, 27, v5")
    s("s_cmp_eq_u32 s3, 0")
    s(f"s_cselect_b32 s35, 0, {OOB}")
    s("v_add_u32 v7, s35, v9")
    s("s_lshl_b32 s7, s31, 8")
    s("s_add_u32 s36, s30, s7")
    s(f"s_add_u32 s37, s36, {X2}")
    s(f"s_add_u32 s46, s36, {XC}")
    s("s_lshl_b32 s36, s45, 7")
    s("s_add_u32 s36, s36, s43")
    s(f"s_add_u32 s36, s36, {MEAN1}")
    s("s_lshl_b32 s47, s45, 9")
    s("s_add_u32 s47, s47, s43")
    s(f"s_add_u32 s47, s47, {MEAN}")
    s("v_bfe_u32 v10, v0, 3, 2")
    s("v_and_b32 v8, 7, v0")
    s("v_lshlrev_b32 v8, 2, v8")
    s("v_lshl_add_u32 v8, v10, 7, v8")
    loads = []
    for ks in range(18):
        for sl in range(3):
            r = wo_reg(ks, sl)
            t = f"buffer_load_dwordx4 a[{r}:{r + 3}], v{5 if sl == 2 else 253}, s[8:11], s{32 + sl} offen offset:{(ks & 3) * KB} sc1"
            if ks & 3 == 3:
                t += f"\ns_add_u32 s{32 + sl}, s{32 + sl}, 4096"
            loads.append((t, WO_FREE[ks * 3 + sl][1]))
    for sl in range(3):
        loads.append((f"buffer_load_dwordx4 v[{240 + 4 * sl}:{243 + 4 * sl}], v{7 if sl == 2 else 9}, s[8:11], s37 offen offset:{sl * KB} sc1", -1))
    loads.append(("buffer_load_dword v252, v8, s[8:11], s47 offen sc1", -1))
    return setup, loads


def phase_qkv(a, abort):
    BF, ACC, QO, KO, VO, VL, SEL, CI, BP, BC, BP1 = 16, 56, 132, 152, 172, 182, 192, 196, 200, 204, 208
    bfrag_voff(a, "v2", "v3")
    dtile_voff(a, "v9", "v3", None, GB)
    a(f"s_mul_i32 s22, s41, {8 * GB}")
    a("s_add_u32 s22, s22, s43")
    a(f"s_add_u32 s23, s22, {XN}")
    a(f"s_mul_i32 s7, s3, {2 * GB}")
    a("s_add_u32 s24, s23, s7")
    a("s_cmp_eq_u32 s41, 0")
    a(f"s_cselect_b32 s7, 0, {2 * GB}")
    a("s_sub_u32 s23, s23, s7")
    units = [(0, tt) for tt in range(1, 5)] + [(t, tt) for t in range(1, 4) for tt in range(5)]
    acc = {u: ACC + 4 * i for i, u in enumerate(units)}
    a("s_lshl_b32 s25, s3, 10")
    a("s_add_u32 s25, s25, 1024")
    a("s_mul_i32 s26, s3, 5120")
    a("s_lshl_b32 s7, s3, 9")
    a("s_add_u32 s27, s23, s7")
    a("s_and_b32 s7, s3, 1")
    a("s_add_u32 s7, s7, 4")
    a("s_mul_i32 s29, s7, 5120")
    a("s_lshl_b32 s7, s7, 9")
    a("s_add_u32 s23, s23, s7")
    wait_flags(a, (PH_RED - 4) * FPH, abort, halo=True)
    mark(a, 0)
    def xdma(st):
        for kk in range(6):
            ks = 6 * st + kk
            t = f"s_add_u32 m0, s25, {ks * 5120 - (ks % 8) * 512}\n"
            t += "s_add_u32 s24, s24, 4096\n" if ks and ks % 8 == 0 else "s_nop 0\n"
            yield t + f"buffer_load_dwordx4 v2, s[8:11], s24 offen offset:{(ks % 8) * 512} sc1 lds"
        for sm, so in (("s26", "s27"), ("s29", "s23")):
            yield (f"s_add_u32 m0, {sm}, {st * 30720}\ns_add_u32 s7, {so}, {st * 3072}\n"
                   "buffer_load_dwordx4 v2, s[8:11], s7 offen sc1 lds")

    vm = Vm()
    for t in xdma(0):
        a(t)
        vm.issue(("x", 0))
    main, a = a, Asm()
    for r in [QO, QO + 1, SEL, SEL + 1, SEL + 3] + [QO + 4 * t + 3 for t in range(5)] + [KO + 4 * t + 3 for t in range(5)]:
        a(f"v_mov_b32 v{r}, 0")
    a("v_cmp_eq_u32 vcc, 16, v0")
    a("v_mov_b32 v10, 0x3f80")
    a("v_cmp_eq_u32 s[20:21], 17, v0")
    a(f"v_cndmask_b32 v{SEL + 2}, 0, v10, vcc")
    a("v_and_b32 v11, 3, v0")
    a(f"v_cndmask_b32 v{SEL + 2}, v{SEL + 2}, 1.0, s[20:21]")
    a("v_cmp_eq_u32 vcc, 2, v11")
    a("v_and_b32 v10, 15, v0")
    a("v_lshrrev_b32 v11, 4, v0")
    for r in range(4):
        a(f"v_cndmask_b32 v{CI + r}, 0, 1.0, vcc")
    a("v_lshlrev_b32 v11, 2, v11")
    a("v_sub_u32 v10, v11, v10")
    a(f"v_mov_b32 v12, {f32(BIG)}")
    a("s_cmp_eq_u32 s41, 0")
    a("s_cselect_b64 s[38:39], 0, -1")
    for r in range(4):
        a(f"v_add_u32 v11, {r}, v10")
        a("v_and_b32 v13, 1, v11")
        a("v_cmp_eq_u32 s[20:21], 0, v13")
        a("v_cmp_lt_i32 vcc, 1, v11")
        a("v_cmp_gt_i32 s[18:19], 1, v11")
        a("s_and_b64 vcc, vcc, s[20:21]")
        a("s_and_b64 s[18:19], s[18:19], s[20:21]")
        a("s_and_b64 s[20:21], vcc, s[38:39]")
        a(f"v_cndmask_b32 v{BP + r}, v12, 0, vcc")
        a(f"v_cndmask_b32 v{BC + r}, v12, 0, s[18:19]")
        a(f"v_cndmask_b32 v{BP1 + r}, v12, 0, s[20:21]")
    setup, early = wo_weight_loads(a)
    for t in setup:
        a(t)
    side, chunk = [], ""
    for ln in a.lines:
        chunk += ln + "\n"
        if ln.strip().startswith("v_") and not ln.strip().startswith("v_cmp"):
            side.append(chunk)
            chunk = ""
    side.append(chunk)
    a = main
    a(f"v_add_u32 v6, {45 * KB}, v253")
    a("s_waitcnt vmcnt(0)")
    a("s_barrier")
    mark(a, 1)

    def xread(ks, tt):
        r = BF + 20 * (ks & 1) + 4 * tt
        f = ks * 5 + tt
        return f"ds_read_b128 v[{r}:{r + 3}], v{253 if f < 45 else 6} offset:{(f % 45) * KB}"

    for tt in range(5):
        a(xread(0, tt))
    stage = {1: list(xdma(1)), 2: list(xdma(2))}
    wq = []
    for k in range(QR - 1, 18):
        ls = list(qkv_wload(k))
        ls[3] += "\ns_add_u32 s28, s28, 4096"
        wq += [(l, ("w", k)) for l in ls]
    for ks in range(18):
        cur = BF + 20 * (ks & 1)
        fill = {}
        if ks < 17:
            for tt in range(5):
                fill[tt] = [(xread(ks + 1, tt), None)]
        vq = []
        st = 1 if ks < 4 else 2
        for _ in range(2):
            if stage[st] and ks != 4:
                vq.append((stage[st].pop(0), ("x", st)))
        for _ in range(Cfg.w_per_ks):
            if wq and wq[0][1][1] - QR < ks:
                vq.append(wq.pop(0))
        while ks >= 18 - QR + 1 and len(vq) < Cfg.wo_per_ks and early[0][1] < ks:
            vq.append((early.pop(0)[0], "o"))
        for i, op in enumerate(vq):
            fill[5 + 2 * i] = [op]
        for u in (6, 8, 10, 12, 14, 15, 16, 17, 18):
            if u not in fill:
                fill[u] = [(side.pop(0), None) for _ in range(min(2, len(side)))]
        if ks == 6:
            assert not side
            fill[5 + 2 * len(vq)] = [("buffer_load_dwordx2 v[226:227], v228, s[8:11], s39 offen sc1", "b")]
        need = ([("w", ks)] if ks >= QR - 1 else []) + ([("x", (ks + 1) // 6)] if ks in (5, 11) else [])
        if ks == 18 - QR + 1:
            need.append("b")
        a(f"s_waitcnt vmcnt({vm.count(*need)}) lgkmcnt(0)" if need else "s_waitcnt lgkmcnt(0)")
        if ks == 18 - QR + 1:
            lp, ok = a.label("wo_poll"), a.label("wo_ready")
            a("s_mov_b32 s6, 0")
            a(f"{lp}:")
            a("v_cmp_eq_u32 vcc, s76, v226")
            a("v_cmp_eq_u32 s[20:21], s76, v227")
            a("s_and_b64 vcc, vcc, s[20:21]")
            a("s_cmp_eq_u64 vcc, exec")
            a(f"s_cbranch_scc1 {ok}")
            a("buffer_load_dwordx2 v[226:227], v228, s[8:11], s39 offen sc1")
            a("s_add_u32 s6, s6, 1")
            a(f"s_cmp_lt_u32 s6, {1 << 20}")
            a("s_waitcnt vmcnt(0)")
            a(f"s_cbranch_scc1 {lp}")
            a(f"s_branch {abort}")
            a(f"{ok}:")
        if ks in (5, 11):
            a("s_barrier")
        for u, (t, tt) in enumerate(units):
            c = acc[(t, tt)]
            wr = 16 * (ks % QR) + 4 * t
            w, x = f"a[{wr}:{wr + 3}]", f"v[{cur + 4 * tt}:{cur + 4 * tt + 3}]"
            if t == 2:
                w, x = x, w
            a(f"v_mfma_f32_16x16x32_bf16 v[{c}:{c + 3}], {w}, {x}, {'0' if ks == 0 else f'v[{c}:{c + 3}]'}")
            for text, tag in fill.get(u, []):
                a(text)
                if tag:
                    vm.issue(tag)
    assert not stage[1] and not stage[2]
    assert not wq
    early = [t for t, _ in early]
    nw = len(early) - 4
    tail_loads = early[nw - Cfg.wo_gap:nw]
    early = early[:nw - Cfg.wo_gap] + early[nw:]
    mark(a, 2)
    body = []
    e = body.append
    cvt = lambda d, s: e(f"v_cvt_pk_bf16_f32 v{d}, v{s}, v{s + 1}")
    mf = lambda d, x, y, c: e(f"v_mfma_f32_16x16x32_bf16 v[{d}:{d + 3}], v[{x}:{x + 3}], v[{y}:{y + 3}], {c}")
    quad = lambda r: f"v[{r}:{r + 3}]"
    for tt in range(1, 5):
        cvt(QO + 4 * tt, acc[(0, tt)]); cvt(QO + 4 * tt + 1, acc[(0, tt)] + 2)
    for tt in range(5):
        cvt(KO + 4 * tt, acc[(1, tt)]); cvt(KO + 4 * tt + 1, acc[(1, tt)] + 2)
    for tt in range(5):
        cvt(QO + 4 * tt + 2, acc[(3, tt)]); cvt(KO + 4 * tt + 2, acc[(3, tt)] + 2)
    for tt in range(5):
        cvt(VO + 2 * tt, acc[(2, tt)]); cvt(VO + 2 * tt + 1, acc[(2, tt)] + 2)
    S, T, P, M = 16, 56, 76, 92
    for tt in range(1, 5):
        s = S + 8 * (tt - 1)
        mf(s, KO + 4 * (tt - 1), QO + 4 * tt, quad(BP1 if tt == 1 else BP))
        mf(s + 4, KO + 4 * tt, QO + 4 * tt, quad(BC))
    for tt in range(5):
        mf(T + 4 * tt, QO + 4 * tt, SEL, quad(CI))
    for i in range(4):
        s = S + 8 * i
        e(f"v_max3_f32 v{M + i}, v{s}, v{s + 1}, v{s + 2}")
        e(f"v_max3_f32 v{M + 4 + i}, v{s + 3}, v{s + 4}, v{s + 5}")
    for i in range(4):
        s = S + 8 * i
        e(f"v_max3_f32 v{M + i}, v{M + i}, v{s + 6}, v{s + 7}")
    for i in range(4):
        e(f"v_max_f32 v{M + i}, v{M + i}, v{M + 4 + i}")
    c = 18 ** -0.5 * math.log2(math.e)
    e(f"s_mov_b32 s18, {f32(c)}")
    tcv = [(VL + 2 * tt + h, T + 4 * tt + 2 * h) for tt in range(5) for h in range(2)]
    pad = lambda n: [cvt(*tcv.pop(0)) for _ in range(n)]
    pad(1)
    e(f"v_permlane32_swap_b32 v{M}, v{M + 1}")
    e(f"v_permlane32_swap_b32 v{M + 2}, v{M + 3}")
    e(f"v_max_f32 v{M}, v{M}, v{M + 1}")
    e(f"v_max_f32 v{M + 2}, v{M + 2}, v{M + 3}")
    pad(2)
    e(f"v_permlane16_swap_b32 v{M}, v{M + 2}")
    e(f"v_max_f32 v{M}, v{M}, v{M + 2}")
    e(f"v_mul_f32 v{M}, {f32(-c)}, v{M}")
    e(f"v_mov_b32 v{M + 2}, v{M}")
    pad(2)
    e(f"v_permlane16_swap_b32 v{M}, v{M + 2}")
    e(f"v_mov_b32 v{M + 1}, v{M}")
    e(f"v_mov_b32 v{M + 3}, v{M + 2}")
    pad(2)
    e(f"v_permlane32_swap_b32 v{M}, v{M + 1}")
    e(f"v_permlane32_swap_b32 v{M + 2}, v{M + 3}")
    pad(3)
    OA, OL, R, OUT, LO = 100, 116, 96, 212, 220
    for i in range(4):
        s = S + 8 * i
        for r in range(8):
            e(f"v_fma_f32 v{s + r}, v{s + r}, s18, v{M + i}")
        for r in range(8):
            e(f"v_exp_f32 v{s + r}, v{s + r}")
        if i:
            mf(OA + 4 * (i - 1), VO + 2 * (i - 1), P + 4 * (i - 1), "0")
            mf(OL + 4 * (i - 1), VL + 2 * (i - 1), P + 4 * (i - 1), "0")
        else:
            e("s_nop 0")
        for r in range(4):
            cvt(P + 4 * i + r, s + 2 * r)
    e(f"v_rcp_f32 v{R}, v{OL + 2}")
    e(f"v_rcp_f32 v{R + 1}, v{OL + 6}")
    mf(OA + 12, VO + 6, P + 12, "0")
    mf(OL + 12, VL + 6, P + 12, "0")

    def scale(i):
        sel = "op_sel:[1,0] op_sel_hi:[1,1]" if i & 1 else "op_sel:[0,0] op_sel_hi:[0,1]"
        rp = R + (i & 2)
        for o in (OA + 4 * i, OA + 4 * i + 2, OL + 4 * i):
            e(f"v_pk_mul_f32 v[{o}:{o + 1}], v[{rp}:{rp + 1}], v[{o}:{o + 1}] {sel}")
        cvt(OUT + 2 * i, OA + 4 * i); cvt(OUT + 2 * i + 1, OA + 4 * i + 2); cvt(LO + i, OL + 4 * i)

    scale(0)
    e(f"v_rcp_f32 v{R + 2}, v{OL + 10}")
    scale(1)
    e(f"v_rcp_f32 v{R + 3}, v{OL + 14}")
    e(f"v_permlane16_swap_b32 v{OUT}, v{OUT + 2}")
    e(f"v_permlane16_swap_b32 v{OUT + 1}, v{OUT + 3}")
    scale(2)
    scale(3)
    LX = 92 * KB
    e("s_lshl_b32 s7, s3, 2")
    e(f"s_add_u32 s7, s7, {LX}")
    e(f"v_permlane16_swap_b32 v{LO}, v{LO + 1}")
    e(f"v_permlane16_swap_b32 v{LO + 2}, v{LO + 3}")
    e("v_add_u32 v11, s7, v253")
    e("v_lshrrev_b32 v10, 3, v0")
    e(f"v_permlane32_swap_b32 v{LO}, v{LO + 2}")
    e(f"v_mul_u32_u24 v10, {GB}, v10")
    e(f"ds_write_b32 v11, v{LO}")
    e(f"v_permlane16_swap_b32 v{OUT + 4}, v{OUT + 6}")
    e(f"v_permlane16_swap_b32 v{OUT + 5}, v{OUT + 7}")
    step = max(1, len(body) // len(early))
    for i, t in enumerate(body):
        a(t)
        if early and i % step == step - 1:
            a(early.pop(0))
    for t in early:
        a(t)
    a("s_mul_i32 s7, s40, 1152")
    a("s_add_u32 s22, s22, s7")
    a(f"s_add_u32 s22, s22, {OO}")
    a("s_lshl_b32 s7, s3, 8")
    a("s_add_u32 s23, s22, s7")
    a(f"s_add_u32 s24, s23, {4 * GB}")
    a(f"buffer_store_dwordx4 v[{OUT}:{OUT + 3}], v9, s[8:11], s23 offen sc1")
    a(f"buffer_store_dwordx4 v[{OUT + 4}:{OUT + 7}], v9, s[8:11], s24 offen sc1")
    a("v_and_b32 v11, 7, v0")
    a("v_lshl_add_u32 v10, v11, 4, v10")
    a("s_cmp_eq_u32 s3, 3")
    a(f"s_cselect_b32 s7, 0, {OOB}")
    a("v_add_u32 v10, s7, v10")
    a(f"v_add_u32 v11, {LX}, v253")
    a("s_waitcnt lgkmcnt(0)")
    a("s_barrier")
    a(f"ds_read_b128 v[{LO}:{LO + 3}], v11")
    a("s_waitcnt lgkmcnt(0)")
    a(f"buffer_store_dwordx4 v[{LO}:{LO + 3}], v10, s[8:11], s22 offen offset:1024 sc1")
    mark(a, 3)
    publish(a, PH_QKV)
    mark(a, 4)
    for t in tail_loads:
        a(t)


def phase_wo(a, abort):
    RES, BF, ACC, T = 240, 160, 100, 124
    z0 = a.label("swz")
    a("s_cmp_lg_u32 s42, 0")
    a(f"s_cbranch_scc1 {z0}")
    zst = ffn_transpose(a, (3, 4), ZQ)
    a("s_waitcnt lgkmcnt(0)")
    for t in zst:
        a(t)
    if Cfg.code_warm > 2:
        code_warm(a, "v[14:15]")
    a(f"{z0}:")
    a("s_and_b32 s7, s3, 1")
    a(f"s_mul_i32 s7, s7, {2 * GB}")
    a("s_add_u32 s24, s30, s7")
    a("s_lshr_b32 s7, s3, 1")
    a("s_lshl_b32 s7, s7, 9")
    a("s_add_u32 s24, s24, s7")
    a(f"s_add_u32 s24, s24, {OO}")
    a("s_mov_b32 s16, 0xffff0000")
    for sl in range(3):
        for i in range(4):
            a(f"v_lshlrev_b32 v{T + 8 * sl + 2 * i}, 16, v{RES + 4 * sl + i}")
            a(f"v_and_b32 v{T + 8 * sl + 2 * i + 1}, s16, v{RES + 4 * sl + i}")
    MX = 40 * KB
    a("s_cmp_eq_u32 s3, 1")
    a("s_cselect_b32 s7, 16, 0")
    a("v_lshlrev_b32 v12, 2, v0")
    a("v_cmp_gt_u32 vcc, s7, v0")
    a(f"v_add_u32 v10, {MX}, v12")
    a(f"v_add_u32 v11, {MX + 512}, v12")
    a("v_cndmask_b32 v10, v11, v10, vcc")
    a("v_and_b32 v11, 0x7c, v12")
    a("v_cmp_gt_u32 vcc, 32, v0")
    a(f"v_mov_b32 v13, {OOB}")
    a("s_and_b32 s7, s40, 3")
    a("s_lshl_b32 s45, s45, 2")
    a("v_cndmask_b32 v8, v13, v12, vcc")
    a("s_add_u32 s6, s7, s3")
    a("s_cmp_eq_u32 s6, 0")
    a(f"s_cselect_b32 s6, 0, {OOB}")
    a("v_add_u32 v6, s6, v8")
    a("s_add_u32 s45, s45, s7")
    a("s_lshl_b32 s45, s45, 2")
    a("s_add_u32 s45, s45, s3")
    a("s_lshl_b32 s45, s45, 7")
    a("s_add_u32 s45, s45, s43")
    a(f"s_add_u32 s45, s45, {STAT}")
    a("s_cmp_eq_u32 s3, 0")
    a("s_cselect_b32 s35, 1.0, 0")
    ring = ffn_ring_setup(a)
    wait_flags(a, PH_QKV * FPH, abort)
    mark(a, 5)
    a("s_lshl_b32 m0, s3, 10")
    for m in range(9):
        if m:
            a("s_add_u32 m0, m0, 4096")
            a("s_add_u32 s24, s24, 1024")
        else:
            a("s_nop 0")
        a("buffer_load_dwordx4 v2, s[8:11], s24 offen sc1 lds")
    z1 = a.label("swz")
    a("s_waitcnt vmcnt(4)")
    a("s_barrier")
    a(f"s_xor_b32 s7, s3, {Cfg.pw}")
    a("s_or_b32 s7, s7, s42")
    a(f"s_cbranch_scc1 {z1}")
    column_flag(a, SL_WF)
    a("s_mov_b64 exec, -1")
    a(f"{z1}:")
    mark(a, 6)
    for tt in range(2):
        a(f"ds_read_b128 v[{BF + 4 * tt}:{BF + 4 * tt + 3}], v253 offset:{tt * KB}")
    for ks in range(18):
        cur, nxt = BF + 8 * (ks & 1), BF + 8 * ((ks + 1) & 1)
        if ks == 9:
            one, both = a.label("wo_x"), a.label("wo_x")
            a(f"s_xor_b32 s7, s3, {Cfg.pw}")
            a("s_or_b32 s7, s7, s42")
            a(f"s_cbranch_scc1 {one}")
            a("s_waitcnt vmcnt(10) lgkmcnt(0)")
            a(f"s_branch {both}")
            a(f"{one}:")
            a("s_waitcnt vmcnt(9) lgkmcnt(0)")
            a(f"{both}:")
            a("s_barrier")
        else:
            a("s_waitcnt lgkmcnt(0)")
        i = 0
        for sl in range(3):
            for tt in range(2):
                c = ACC + 4 * (2 * sl + tt)
                w = wo_reg(ks, sl)
                src = "0" if ks == 0 else f"v[{c}:{c + 3}]"
                a(f"v_mfma_f32_16x16x32_bf16 v[{c}:{c + 3}], a[{w}:{w + 3}], v[{cur + 4 * tt}:{cur + 4 * tt + 3}], {src}")
                if i < 2 and ks < 17:
                    a(f"ds_read_b128 v[{nxt + 4 * i}:{nxt + 4 * i + 3}], v253 offset:{((ks + 1) * 2 + i) * KB}")
                if i == 3 and ring:
                    a(ring.pop(0))
                i += 1
    mark(a, 7)
    XR = 148
    a("s_nop 3")
    for r in range(4):
        a(f"v_permlane16_swap_b32 v{ACC + r}, v{ACC + 4 + r}")
    a(f"v_add_f32 v12, v{ACC + 16}, v{ACC + 17}")
    a(f"v_add_f32 v13, v{ACC + 20}, v{ACC + 21}")
    a("ds_write_b32 v10, v12")
    a("ds_write_b32 v10, v13 offset:64")
    for sl in (1, 2):
        for r in range(4):
            a(f"v_permlane16_swap_b32 v{ACC + 8 * sl + r}, v{ACC + 8 * sl + 4 + r}")
    a("s_waitcnt lgkmcnt(0)")
    a("s_barrier")
    a(f"ds_read_b32 v12, v11 offset:{MX}")
    for sl in range(3):
        for i in range(4):
            t, c = T + 8 * sl + 2 * i, ACC + 8 * sl + 2 * i
            a(f"v_pk_add_f32 v[{t}:{t + 1}], v[{t}:{t + 1}], v[{c}:{c + 1}]")
    a("v_mov_b32 v14, 0")
    a("v_mov_b32 v15, 0")
    a("s_waitcnt lgkmcnt(0)")
    a("v_add_f32 v12, v12, v252")
    for sl in range(3):
        for i in range(4):
            t, c = T + 8 * sl + 2 * i, ACC + 8 * sl + 2 * i
            a(f"v_pk_add_f32 v[{c}:{c + 1}], v[{t}:{t + 1}], v[12:13] op_sel_hi:[1,0] neg_lo:[0,1] neg_hi:[0,1]")
        for i in range(4):
            c = ACC + 8 * sl + 2 * i
            a(f"v_cvt_pk_bf16_f32 v{XR + 4 * sl + i}, v{c}, v{c + 1}")
        a(f"buffer_store_dwordx4 v[{XR + 4 * sl}:{XR + 4 * sl + 3}], v{7 if sl == 2 else 9}, s[8:11], s46 offen offset:{sl * KB} sc1")
    for i in range(12):
        a(f"v_dot2c_f32_bf16 v{15 if i >= 8 else 14}, v{XR + i}, v{XR + i}")
    a("buffer_store_dword v12, v6, s[8:11], s36 offen sc1")
    a("s_nop 1")
    a("v_fma_f32 v14, v15, s35, v14")
    a("v_mov_b32 v15, v14")
    a("s_nop 1")
    a("v_permlane32_swap_b32 v14, v15")
    a("v_add_f32 v14, v14, v15")
    a("buffer_store_dword v14, v8, s[8:11], s45 offen sc1")
    publish(a, PH_WO)
    mark(a, 8)


FFN_LDS = 144 * KB
HB = 72 * KB


def pack_gaps(n_gaps, pinned, ops, start=0, cap=2):
    gaps = [list(pinned.get(g, [])) for g in range(n_gaps)]
    g = start
    for text, cost, earliest in ops:
        g = max(g, earliest)
        while sum(c for _, c in gaps[g]) + cost > cap:
            g += 1
        gaps[g].append((text, cost))
    return gaps


def check_stage_reads(mf, gaps, base, n):
    stage = {("v", base + i) for i in range(n)}
    wr = {}
    for i, t in enumerate(mf):
        for r in hazards.I(t, 0).w & stage:
            wr[r] = i
    for i, g in enumerate(gaps):
        for t, _ in g:
            for r in hazards.I(t.split("\n")[-1], 0).r & stage:
                assert i < wr[r], (i, t, wr[r])


RING, VB = 16, 184
RING_EXT = [104, 108, 112, 116, 180, 196, 200, 204, 208, 212, 136, 140, 144, 160, 164, 168, 148, 4]


def slot_reg(slot):
    return RING + 4 * slot if slot < 18 else RING_EXT[slot - 18]


def wload(slot, n):
    r = slot_reg(slot)
    return f"buffer_load_dwordx4 v[{r}:{r + 3}], v{VB + n // 4}, s[48:51], s23 offen offset:{(n % 4) * KB} sc1"


def ffn_ring_setup(a):
    a("s_lshl_b32 s7, s40, 2")
    a("s_add_u32 s7, s7, s3")
    a(f"s_mul_i32 s23, s7, {WSTR}")
    a(f"s_add_u32 s23, s23, {WF}")
    a(f"s_add_u32 s50, s23, {486 * KB}")
    a("s_mul_i32 s50, s50, s42")
    a(f"v_mov_b32 v{VB}, v253")
    for m in range(1, 9):
        a(f"v_add_u32 v{VB + m}, {4096 * m}, v253")
    return [wload(n, n) for n in range(LA)]


def phase_ffn(a, abort):
    ACC, STG, TMP = 88, 120, 152
    OA = 216
    xreg = lambda tt, ks: reg(256 + 4 * (tt * 18 + ks), 4) if tt * 18 + ks < 64 else reg(220 + 4 * (tt * 18 + ks - 64), 4)
    a("s_lshl_b32 s7, s41, 2")
    a("s_add_u32 s7, s7, s3")
    a(f"s_mul_i32 s22, s7, {2 * GB}")
    a("s_add_u32 s22, s22, s43")
    a(f"s_add_u32 s22, s22, {XC}")
    a(f"s_mul_i32 s24, s3, {18 * KB}")
    a("s_lshl_b32 s25, s41, 12")
    a("s_add_u32 s25, s25, s43")
    a(f"s_add_u32 s25, s25, {STAT}")
    a("v_lshrrev_b32 v3, 5, v0")
    a("v_and_b32 v10, 31, v0")
    a("v_lshlrev_b32 v10, 2, v10")
    a("v_lshl_add_u32 v3, v3, 11, v10")
    a(f"v_add_u32 v11, {36 * KB}, v{VB}")
    early = red_setup(a)
    dtile_voff(a, "v178", "v1", None, 8 * GB)
    a(f"v_add_u32 v179, {32 * GB}, v178")
    a("v_lshrrev_b32 v1, 5, v0")
    a("v_and_b32 v15, 7, v0")
    a("v_lshlrev_b32 v15, 4, v15")
    a("v_lshl_add_u32 v15, v1, 7, v15")
    a("s_lshl_b32 s7, s3, 8")
    a(f"s_add_u32 s7, s7, {OWN - KB}")
    a("v_add_u32 v15, s7, v15")
    a("v_bfe_u32 v1, v0, 3, 2")
    a(f"v_mov_b32 v182, {OOB}")
    a(f"v_add_u32 v183, {OWN + 10 * KB}, v253")
    for pr in range(2):
        a(f"s_sub_u32 s7, s40, {4 * pr}")
        a("v_cmp_eq_u32 vcc, s7, v1")
        a("s_nop 1")
        a(f"v_cndmask_b32 v{178 + pr}, v{178 + pr}, v182, vcc")
        a(f"v_cndmask_b32 v{OA + pr}, v183, v15, vcc")
        a(f"v_cndmask_b32 v{OA + 2 + pr}, 0, 1, vcc")
        a(f"v_lshlrev_b32 v{OA + 2 + pr}, 10, v{OA + 2 + pr}")
    a(f"s_mul_i32 s26, s41, {64 * GB}")
    a(f"s_mul_i32 s7, s40, {GB}")
    a("s_add_u32 s26, s26, s7")
    a("s_lshl_b32 s7, s3, 8")
    a("s_add_u32 s27, s26, s7")
    a(f"s_add_u32 s27, s27, {PART - KB}")
    a("s_mov_b32 s72, s8")
    a("s_mov_b32 s73, s9")
    a("s_mov_b32 s74, 0")
    a(f"s_mul_i32 s7, s42, {3 * FPH}")
    a("s_sub_u32 s29, s44, s7")
    a(f"s_add_u32 s29, s29, {(SL_EARLY - 1) * FPH}")
    a("s_lshl_b32 s7, s40, 7")
    a("s_add_u32 s7, s7, s29")
    a("s_add_u32 s38, s4, s7")
    a("s_addc_u32 s39, s5, 0")
    a("s_lshl_b32 s7, s40, 2")
    a("s_add_u32 s29, s29, s7")
    a(f"s_add_u32 s50, s23, {486 * KB}")
    late, seen = a.label("ring"), a.label("ring")
    a("s_cmp_lg_u32 s42, 0")
    a(f"s_cbranch_scc1 {late}")
    a(f"s_cmp_lg_u32 s3, {Cfg.pw}")
    a(f"s_cbranch_scc1 {seen}")
    column_wait(a, SL_WF, abort)
    a(f"{seen}:")
    a("s_barrier")
    for n in range(LA):
        a(wload(n, n))
    a(f"{late}:")
    wait_flags(a, PH_WO * FPH, abort)
    mark(a, 9)
    C0, C1, VV, SS = [4, 5, 6, 7], [8, 9, 13, 14], [193, 194, 195, 252], 136
    k0 = -2.0 * math.sqrt(2.0 / math.pi) * math.log2(math.e)

    def xdma(ks):
        return (f"s_add_u32 m0, s24, {ks * KB - (ks % 8) * 512}\n"
                + ("s_add_u32 s22, s22, 4096\n" if ks and ks % 8 == 0 else "s_nop 0\n")
                + f"buffer_load_dwordx4 v2, s[8:11], s22 offen offset:{(ks % 8) * 512} sc1 lds")

    def xread(tt, ks):
        f = tt * 18 + ks
        return f"ds_read_b128 {xreg(tt, ks)}, v{VB if f < 36 else 11} offset:{(f % 36) * KB}"

    hread = lambda tt, ks: f"ds_read_b128 {xreg(tt, ks)}, v{10 if tt < 2 else 11} offset:{((tt * 18 + ks) % 36) * KB}"
    vm0 = Vm()
    for n in range(LA):
        vm0.issue(("w", n))
    for ks in range(12):
        a(xdma(ks))
        vm0.issue(("x", ks))
    a(f"s_add_u32 s23, s23, {LA * KB}")
    a("s_lshr_b32 s7, s3, 1")
    a("s_lshl_b32 s7, s7, 10")
    a("s_and_b32 s6, s3, 1")
    a("s_lshl_b32 s6, s6, 3")
    a("s_add_u32 s28, s7, s6")
    a(f"s_add_u32 s28, s28, {HB}")
    a(f"s_waitcnt vmcnt({vm0.count(('x', 5))})")
    a("s_barrier")
    mark(a, 10)
    for ks in range(CH):
        for tt in range(4):
            a(xread(tt, ks))

    def const_ops(e):
        ops = []
        for n in (8, 4, 2, 1):
            ops += [(f"v_add_f32 v{SS + i}, v{SS + i}, v{SS + n + i}", 1, e) for i in range(n)]
        ops += [(f"v_mov_b32 v{SS + 1}, {f32(1e-5)}", 1, e), (f"v_fmac_f32 v{SS + 1}, {f32(1.0 / 576)}, v{SS}", 1, e),
                (f"v_mov_b32 v{VV[0]}, v{SS + 1}", 1, e),
                (f"s_nop 0\nv_permlane16_swap_b32 v{VV[0]}, v{SS + 1}", 2, e),
                (f"v_mov_b32 v{VV[2]}, v{VV[0]}", 1, e), (f"v_mov_b32 v{VV[1]}, v{SS + 1}", 1, e),
                (f"v_mov_b32 v{VV[3]}, v{SS + 1}", 1, e),
                (f"s_nop 0\nv_permlane32_swap_b32 v{VV[0]}, v{VV[2]}", 2, e),
                (f"v_permlane32_swap_b32 v{VV[1]}, v{VV[3]}", 2, e)]
        ops += [(f"v_rsq_f32 v{C0[tt]}, v{VV[tt]}", 2, e) for tt in range(4)]
        ops += [(f"v_mul_f32 v{C1[tt]}, v{C0[tt]}, v{C0[tt]}", 1, e) for tt in range(4)]
        ops += [(f"v_mul_f32 v{C0[tt]}, {f32(k0)}, v{C0[tt]}", 1, e) for tt in range(4)]
        ops += [(f"v_mul_f32 v{C1[tt]}, {f32(0.044715)}, v{C1[tt]}", 1, e) for tt in range(4)]
        ops += [(f"v_mul_f32 v{C1[tt]}, v{C1[tt]}, v{C0[tt]}", 1, e) for tt in range(4)]
        return ops

    def gelu_ops(first_gap):
        ops = []
        for tt in range(4):
            t, p, o = TMP + 10 * (tt & 1), TMP + 10 * (tt & 1) + 4, TMP + 10 * (tt & 1) + 8
            g, u = STG + 4 * tt, STG + 16 + 4 * tt
            e = first_gap(tt)
            for r in range(4):
                ops.append((f"v_mul_f32 v{t + r}, v{g + r}, v{g + r}", 1, e))
            for r in range(4):
                ops.append((f"v_fma_f32 v{t + r}, v{t + r}, v{C1[tt]}, v{C0[tt]}", 1, e))
            for r in range(4):
                ops.append((f"v_mul_f32 v{t + r}, v{g + r}, v{t + r}", 1, e))
            for r in range(4):
                ops.append((f"v_exp_f32 v{t + r}, v{t + r}", 2, e))
            for r in range(4):
                ops.append((f"v_mul_f32 v{p + r}, v{g + r}, v{u + r}", 1, e))
            for r in range(4):
                ops.append((f"v_fma_f32 v{t + r}, v{t + r}, v{VV[tt]}, v{VV[tt]}", 1, e))
            for r in range(4):
                ops.append((f"v_rcp_f32 v{t + r}, v{t + r}", 2, e))
            for r in range(4):
                ops.append((f"v_mul_f32 v{p + r}, v{p + r}, v{t + r}", 1, e))
            ops.append((f"v_cvt_pk_bf16_f32 v{o}, v{p}, v{p + 1}", 1, e))
            ops.append((f"v_cvt_pk_bf16_f32 v{o + 1}, v{p + 2}, v{p + 3}", 1, e))
            ops.append((f"ds_write_b64 v12, v[{o}:{o + 1}] offset:{tt * 18 * KB}", 2, e))
        return ops

    def gu_step(kind):
        mf, pinned = [], {}
        for G in range(36 // CH):
            gu, grp = G & 1, G >> 1
            for tt in range(4):
                for kk in range(CH):
                    ks = CH * grp + kk
                    c = ACC + 16 * gu + 4 * tt
                    d = STG + 16 * gu + 4 * tt if ks == 17 else c
                    src = "0" if ks == 0 else f"v[{c}:{c + 3}]"
                    w = RING + 4 * ((CH * G + kk) % 18)
                    mf.append(f"v_mfma_f32_16x16x32_bf16 v[{d}:{d + 3}], v[{w}:{w + 3}], {xreg(tt, ks)}, {src}")
            for kk in range(CH):
                n = CH * G + kk
                pinned[4 * n + 1] = [(wload((n + LA) % 18, n), 2)]
        if kind == "first":
            for k in range(6):
                pinned[4 * k + 3] = [(xdma(12 + k), 2)]
            for k in range(16):
                pinned[24 + 12 * (k // 5) + (3, 6, 7, 10, 11)[k % 5]] = \
                    [(f"buffer_load_dword v{SS + k}, v3, s[8:11], s25 offen offset:{128 * k} sc1", 2)]
            ops = [(xread(tt, ks), 1, 2 * GS * (ks // CH - 1) + (4 * (ks % CH) + tt) * 3 // 2)
                   for ks in range(CH, 18) for tt in range(4)]
            gaps = pack_gaps(144, pinned, ops)
            gaps = pack_gaps(144, dict(enumerate(gaps)), const_ops(96))
        else:
            gaps = pack_gaps(144, pinned, gelu_ops(lambda tt: 2))
        if kind == "last":
            g = 0
            for ks in range(14):
                for tt in range(4):
                    g = max(g + 1, 2 * GS * (ks // CH) + GS + CH * tt + ks % CH)
                    while g < 143 and any("buffer_" in t or "ds_" in t for t, _ in gaps[g]):
                        g += 1
                    gaps[min(g, 143)].append((hread(tt, ks), 1))
        check_stage_reads(mf, gaps, STG, 32)
        lg = Vm()
        lg.issue(CH - 1)
        bars = {2 * GS * (6 // CH - 1): ("x", 11), 2 * GS * (12 // CH - 1): ("x", 17)}
        for i in range(144):
            G = i // GS
            if i % GS == 0 and kind == "first":
                need = [("w", CH * G + CH - 1)] + ([bars[i]] if i in bars else []) + (["s"] if i == 96 else [])
                a(f"s_waitcnt vmcnt({vm0.count(*need)}) lgkmcnt({min(15, lg.count(CH * (G // 2) + CH - 1))})")
                if i in bars:
                    a("s_barrier")
            elif i % GS == 0:
                a(f"s_waitcnt vmcnt({18 - 2 * CH})")
            a(mf[i])
            for text, _ in gaps[i]:
                a(text)
                if kind == "first":
                    if "s[48:51]" in text:
                        vm0.issue(("w", i // 4 + LA))
                    elif " lds" in text:
                        vm0.issue(("x", 12 + i // 4))
                    elif "buffer_load_dword " in text:
                        vm0.issue("s")
                    elif "ds_read" in text:
                        lg.issue(int(text.split("offset:")[1]) // KB % 18)
            if i == 139:
                a("s_lshl_b32 s7, s25, 11" if kind != "first" else "s_mov_b32 s25, 0")
            if i == 140:
                a("s_add_u32 s7, s7, s28" if kind != "first" else "s_mov_b32 s7, s28")
            if i == 142:
                a(f"s_add_u32 s23, s23, {36 * KB}")
        a(f"v_add_u32 v12, s7, v{VB}")
        a("s_add_u32 s25, s25, 1")

    gu_step("first")
    mark(a, 12)
    lp = a.label("ffn_gu")
    a(f"{lp}:")
    gu_step("loop")
    a("s_cmp_lt_u32 s25, 8")
    a(f"s_cbranch_scc1 {lp}")
    a(f"v_add_u32 v10, {HB}, v{VB}")
    a(f"v_add_u32 v11, {HB + 36 * KB}, v{VB}")
    if Cfg.code_warm > 1:
        code_warm(a, "v[2:3]")
    a("s_waitcnt lgkmcnt(0)")
    a("s_barrier")
    gu_step("last")
    mark(a, 13)
    a("s_waitcnt lgkmcnt(0)")
    a("s_barrier")
    reads = [hread(tt, ks) for ks in (14, 15) for tt in range(4)]
    ops = []
    for tt in range(4):
        t, p, o = TMP + 10 * (tt & 1), TMP + 10 * (tt & 1) + 4, TMP + 10 * (tt & 1) + 8
        g, u = STG + 4 * tt, STG + 16 + 4 * tt
        pr = lambda r: f"v[{r}:{r + 1}]"
        bc = lambda r: (pr(r & ~1), r & 1)

        def pkfma(d, x, y, z):
            (ry, sy), (rz, sz) = bc(y), bc(z)
            return f"v_pk_fma_f32 {pr(d)}, {pr(x)}, {ry}, {rz} op_sel:[0,{sy},{sz}] op_sel_hi:[1,{sy},{sz}]"
        ops += [f"v_pk_mul_f32 {pr(t + r)}, {pr(g + r)}, {pr(g + r)}" for r in (0, 2)]
        ops += [pkfma(t + r, t + r, C1[tt], C0[tt]) for r in (0, 2)]
        ops += [f"v_pk_mul_f32 {pr(t + r)}, {pr(g + r)}, {pr(t + r)}" for r in (0, 2)]
        ops += [f"v_exp_f32 v{t + r}, v{t + r}" for r in range(4)]
        ops += [f"v_pk_mul_f32 {pr(p + r)}, {pr(g + r)}, {pr(u + r)}" for r in (0, 2)]
        ops += [pkfma(t + r, t + r, VV[tt], VV[tt]) for r in (0, 2)]
        ops += [f"v_rcp_f32 v{t + r}, v{t + r}" for r in range(4)]
        ops += ["s_nop 0"]
        ops += [f"v_pk_mul_f32 {pr(p + r)}, {pr(p + r)}, {pr(t + r)}" for r in (0, 2)]
        ops += [f"v_cvt_pk_bf16_f32 v{o}, v{p}, v{p + 1}", f"v_cvt_pk_bf16_f32 v{o + 1}, v{p + 2}, v{p + 3}"]
        ops += [f"ds_write_b64 v12, v[{o}:{o + 1}] offset:{tt * 18 * KB}"]
    ahead = [wload(LA + n, n) for n in range(18)]
    for i, t in enumerate(ops):
        a(t)
        if reads and i % 4 != 3:
            a(reads.pop(0))
        if i % 6 == 5 and len(ahead) > LA - 10:
            a(ahead.pop(0))
    for t in reads + ahead:
        a(t)
    a(f"s_add_u32 s23, s23, {18 * KB}")
    a("s_waitcnt lgkmcnt(0)")
    a("s_barrier")
    for ks in (16, 17):
        for tt in range(4):
            a(hread(tt, ks))
    a("s_mov_b32 s25, 0")
    a("s_waitcnt lgkmcnt(0)")
    mark(a, 14)

    def down_epi(e0, e1):
        ops = []
        for pr, e in enumerate((e0, e1)):
            o = TMP + 4 * pr
            for h in range(2):
                s = STG + 4 * (2 * pr + h)
                ops.append((f"v_cvt_pk_bf16_f32 v{o + 2 * h}, v{s}, v{s + 1}", 1, e))
                ops.append((f"v_cvt_pk_bf16_f32 v{o + 2 * h + 1}, v{s + 2}, v{s + 3}", 1, e))
            ops.append((f"s_nop 0\nv_permlane16_swap_b32 v{o}, v{o + 2}", 2, e))
            ops.append((f"v_permlane16_swap_b32 v{o + 1}, v{o + 3}", 2, e))
            ops.append((f"buffer_store_dwordx4 v[{o}:{o + 3}], v{178 + pr}, s[72:75], s27 offen sc1", 2, e))
            ops.append((f"ds_write_b128 v{OA + pr}, v[{o}:{o + 3}]", 2, e))
            ops.append((f"v_add_u32 v{OA + pr}, v{OA + pr}, v{OA + 2 + pr}", 1, e))
        return ops

    def down_trip(half, vm, last=0, emit=True):
        out = a if emit else Asm()
        mark_dyn(out, 21, "s25")
        base = 0 if half else 18
        mf, pinned = [], {}
        for G in range(18 // CH):
            for tt in range(4):
                for kk in range(CH):
                    ks = CH * G + kk
                    c = ACC + 4 * tt
                    d = STG + 4 * tt if ks == 17 else c
                    src = "0" if ks == 0 else f"v[{c}:{c + 3}]"
                    w = slot_reg(base + ks)
                    mf.append(f"v_mfma_f32_16x16x32_bf16 v[{d}:{d + 3}], v[{w}:{w + 3}], {xreg(tt, ks)}, {src}")
            for kk in range(CH):
                n = CH * G + kk
                if not last or (last == 1 and G == 0):
                    pinned[4 * n + 1] = [(wload((base + n + LA + 18) % 36, n), 2)]
                elif early and (last == 2 or n >= 6):
                    pinned[4 * n + 1] = [(early.pop(0), 2)]
        gaps = pack_gaps(72, pinned, down_epi(Cfg.epi_gap, Cfg.epi_gap2 if not last else Cfg.epi_gap))
        check_stage_reads(mf, gaps, STG, 16)
        store_groups = [i // GS for i in range(72) for t, _ in gaps[i] if "store" in t]
        for i in range(72):
            G = i // GS
            if i % GS == 0 and last:
                out(f"s_waitcnt vmcnt({vm.count(('w', base + CH * G + CH - 1))})")
            elif i % GS == 0:
                extra = sum(1 for sg in store_groups if sg < G)
                if not half:
                    extra += len(store_groups)
                out(f"s_waitcnt vmcnt({36 - 2 * CH + extra})")
            if i == -(-36 // GS) * GS and half and not last and emit:
                skip = a.label("early")
                a("s_cmp_lg_u32 s25, 6")
                a(f"s_cbranch_scc1 {skip}")
                a(f"s_waitcnt vmcnt({vm.count(('s', 0))})")
                a("s_barrier")
                a(f"s_cmp_lg_u32 s3, {Cfg.pw}")
                a(f"s_cbranch_scc1 {skip}")
                a("v_lshlrev_b32 v15, 7, v0")
                a("v_mov_b32 v1, s76")
                a("s_mov_b64 exec, 0xff")
                a("buffer_store_dword v1, v15, s[8:11], s29 offen sc1")
                a("s_mov_b64 exec, -1")
                a(f"{skip}:")
            if i == 24 and last == 2:
                skip = a.label("early")
                a(f"s_waitcnt vmcnt({vm.count(('s', 0))})")
                a("s_barrier")
                a(f"s_cmp_lg_u32 s3, {Cfg.pw}")
                a(f"s_cbranch_scc1 {skip}")
                a("s_mov_b64 exec, 0xff")
                a("buffer_store_dword v1, v15, s[8:11], s29 offen offset:32 sc1")
                a("s_mov_b64 exec, -1")
                a(f"{skip}:")
            if i == 24 and last == 1:
                check_early(a, 0, abort)
            out(mf[i])
            for text, _ in gaps[i]:
                out(text)
                if "buffer_store" in text:
                    vm.issue(("s", half))
                elif "s[48:51]" in text:
                    vm.issue(("w", (base + i // 4 + LA + 18) % 36))
                elif "buffer_load" in text:
                    vm.issue("e")
            if i == 14 and last == 1:
                out("s_load_dwordx8 s[56:63], s[38:39], 0 glc")
            if i == 66:
                out(f"s_mov_b32 s74, {WS_SIZE}")
            if i == 67:
                out(f"s_add_u32 s27, s27, {KB}")
            if i == 68:
                out("s_add_u32 s25, s25, 1")
            if i == 70:
                out(f"s_add_u32 s23, s23, {18 * KB}")

    lp, mid = a.label("ffn_dn"), a.label("ffn_dn_mid")
    vm = Vm()
    down_trip(1, vm, emit=False)
    a(f"s_branch {mid}")
    a(f"{lp}:")
    down_trip(0, vm)
    a(f"{mid}:")
    down_trip(1, vm)
    a("s_cmp_lt_u32 s25, 7")
    a(f"s_cbranch_scc1 {lp}")
    down_trip(0, vm, last=1)
    down_trip(1, vm, last=2)
    assert not early
    mark(a, 15)
    a("s_nop 7")
    fin = [t for t, _, _ in down_epi(0, 0)]
    for t in fin[:4] + fin[9:13] + fin[4:7] + fin[13:16] + fin[7:8] + fin[16:17]:
        a(t)
    a("s_waitcnt lgkmcnt(0)")
    publish(a, PH_FFN)
    mark(a, 20)


def k_main(a):
    name = NAME + "_kernel"
    kernel_begin(a, name)
    end, last, loop = "L_main_end", "L_main_last", "L_main_layer"
    Cfg.sv = 254
    entry(a, name, 256, end, ["s_load_dwordx4 s[16:19], s[0:1], 0", "s_load_dwordx2 s[22:23], s[0:1], 16",
                        "s_load_dwordx8 s[24:31], s[0:1], 32"])
    a(f"s_mov_b32 s7, {EPOCH}")
    a("s_load_dword s76, s[4:5], s7")
    a("s_mov_b64 s[20:21], s[18:19]")
    a("s_mov_b64 s[18:19], s[16:17]")
    srd(a, 48, "s4", "s5", WS_SIZE)
    tile_map(a, "s40", "s41", Cfg.jx)
    a("s_mov_b32 s42, 0")
    a("s_mov_b32 s43, 0")
    a("s_lshl_b32 s44, s41, 10")
    a(f"s_add_u32 s44, s44, {FLAGS + FPH}")
    a("v_lshlrev_b32 v253, 4, v0")
    if Cfg.stamps:
        a("v_mov_b32 v254, 0")
        a("v_mov_b32 v255, 0")
    mark(a, 31)
    a("; ---- prep")
    phase_prep(a, end)
    qkv_prefetch(a, 0, QR - 1)
    a(f"{loop}:")
    a("; ---- qkv")
    phase_qkv(a, end)
    a("; ---- wo")
    phase_wo(a, end)
    a("; ---- ffn")
    phase_ffn(a, end)
    a("; ---- red")
    tail = phase_red(a, end, last)
    a("s_mov_b32 s42, 1")
    a(f"s_mov_b32 s43, {LSTR}")
    a(f"s_add_u32 s44, s44, {4 * FPH}")
    a(f"s_branch {loop}")
    a(f"{last}:")
    tail()
    done = a.label("done")
    a("s_or_b32 s7, s40, s41")
    a("s_or_b32 s7, s7, s3")
    a(f"s_cbranch_scc1 {done}")
    a("v_mov_b32 v1, s76")
    a(f"s_mov_b32 s7, {EPOCH}")
    a("s_mov_b64 exec, 1")
    a("buffer_store_dword v1, off, s[8:11], s7 sc1")
    a("s_mov_b64 exec, -1")
    a(f"{done}:")
    if Cfg.stamps:
        a("s_waitcnt vmcnt(0)")
        mark(a, 19)
        dump_marks(a, 1)
    a(f"{end}:")
    a("s_endpgm")
    a("L_main_code_end:")
    return name, 256, 256


def build(stamps=False):
    Cfg.stamps = stamps
    a = Asm()
    a('.amdgcn_target "amdgcn-amd-amdhsa--gfx950"')
    name, nv, na = k_main(a)
    kernel_desc(a, name, nv, na, 102)
    text = HEADER + f"; @launch grid=(256,1,1) block=(256,1,1) lds={160 * KB}\n" + a.text()
    assert not re.search(r"s_(add|sub)_u32 [^,]+, [^,]+, -\d", text), "negative literal in unsigned address arithmetic"
    bad = hazards.check(text)
    if bad:
        print("\n".join(bad[:40]), file=sys.stderr)
        raise SystemExit(f"{len(bad)} hazards")
    return text


if __name__ == "__main__":
    out = sys.argv[1] if len(sys.argv) > 1 else os.path.join(os.path.dirname(os.path.abspath(__file__)), "..", NAME + ".s")
    stamps = "--stamps" in sys.argv
    for x in sys.argv[2:]:
        if x.startswith("--set="):
            for kv in x[6:].split(","):
                k, v = kv.split(":")
                setattr(Cfg, k, int(v))
    open(out, "w").write(build(stamps))
```
